```python
import torch

def _softmax(x, axis=-1):
    return torch.softmax(x, dim=axis)
def _gelu(x):
    return torch.nn.functional.gelu(x, approximate="tanh")
def _silu(x):
    return torch.nn.functional.silu(x)
def _sigmoid(x):
    return torch.sigmoid(x)
def _layernorm(x, axis=-1, eps=1e-5):
    m = x.mean(dim=axis, keepdim=True)
    v = x.var(dim=axis, keepdim=True, unbiased=False)
    return (x - m) / torch.sqrt(v + eps)
def _scatter_add(tgt, idx, src, axis=0):
    return tgt.clone().index_add_(axis, idx, src)
def _segment_sum(src, seg, n):
    out = torch.zeros((n,) + src.shape[1:], dtype=src.dtype)
    return out.index_add_(0, seg, src)
def _pad(x, pw):
    flat = tuple(v for pair in reversed(pw) for v in pair)
    return torch.nn.functional.pad(x, flat)

kernel_name = 'parallel_sum__spectral_fnet__swiglu_ffn__prompt'

def setup_inputs():

    _w = (lambda a: (lambda t: t.to(torch.bfloat16) if t.is_floating_point() else t)(torch.as_tensor(a)))
    def _A_setup():
        B, S, D = 1, 2048, 640
        ns = torch.arange(S)[:, None] * torch.arange(S)[None, :]
        nd = torch.arange(D)[:, None] * torch.arange(D)[None, :]
        Ws_re = torch.cos(-2.0 * torch.pi * ns / S).to(float)
        Ws_im = torch.sin(-2.0 * torch.pi * ns / S).to(float)
        Wd_re = torch.cos(-2.0 * torch.pi * nd / D).to(float)
        Wd_im = torch.sin(-2.0 * torch.pi * nd / D).to(float)
        return {
            "x": _w((lambda *s: torch.randn(*s, dtype=torch.bfloat16) * 0.05)(B, S, D)),
            "dft_seq_re": _w(Ws_re),
            "dft_seq_im": _w(Ws_im),
            "dft_hid_re": _w(Wd_re),
            "dft_hid_im": _w(Wd_im),
        }
    _A_in = _A_setup()

    def _B_setup():
        B, S, D, F = 1, 2048, 640, 1536
        return {
            "x": _w((lambda *s: torch.randn(*s, dtype=torch.bfloat16) * 0.05)(B, S, D)),
            "w_gate": _w((lambda *s: torch.randn(*s, dtype=torch.bfloat16) * 0.2)(D, F)),
            "w_up": _w((lambda *s: torch.randn(*s, dtype=torch.bfloat16) * 0.2)(D, F)),
            "w_down": _w((lambda *s: torch.randn(*s, dtype=torch.bfloat16) * 0.2)(F, D)),
        }
    _B_in = _B_setup()

    return {
        "A_x": _A_in["x"],
        "A_dft_seq_re": _A_in["dft_seq_re"],
        "A_dft_seq_im": _A_in["dft_seq_im"],
        "A_dft_hid_re": _A_in["dft_hid_re"],
        "A_dft_hid_im": _A_in["dft_hid_im"],
        "B_x": _B_in["x"],
        "B_w_gate": _B_in["w_gate"],
        "B_w_up": _B_in["w_up"],
        "B_w_down": _B_in["w_down"],
    }

def reference(A_x, A_dft_seq_re, A_dft_seq_im, A_dft_hid_re, A_dft_hid_im, B_x, B_w_gate, B_w_up, B_w_down):
    def _A_ref(x, dft_seq_re, dft_seq_im, dft_hid_re, dft_hid_im):
        a = torch.einsum("bsd,ed->bse", x, dft_hid_re)
        b = torch.einsum("bsd,ed->bse", x, dft_hid_im)
        y = torch.einsum("ts,bse->bte", dft_seq_re, a) - torch.einsum("ts,bse->bte", dft_seq_im, b)
        return y

    def _B_ref(x, w_gate, w_up, w_down):
        g = _silu(x @ w_gate)
        u = x @ w_up
        return (g * u) @ w_down

    x = A_x
    xn = _layernorm(x, axis=-1)
    return x + _A_ref(xn, A_dft_seq_re, A_dft_seq_im, A_dft_hid_re, A_dft_hid_im) + _B_ref(xn, B_w_gate, B_w_up, B_w_down)
```

```python
import re

def v(i, n=1): return 'v%d' % i if n == 1 else 'v[%d:%d]' % (i, i+n-1)
def s(i, n=1): return 's%d' % i if n == 1 else 's[%d:%d]' % (i, i+n-1)

class Asm:
    def __init__(self):
        self.lines = []
    def __call__(self, txt):
        for l in txt.split('\n'):
            l = l.strip()
            if l: self.lines.append(l)
    def label(self, name): self.lines.append(name + ':')
    def nop(self, n):
        while n > 0:
            k = min(n, 16); self.lines.append('s_nop %d' % (k-1)); n -= k
    def align(self, p): self.lines.append('.p2align %d' % p)
    def text(self):
        out = []
        for l in self.lines:
            out.append(l if (l.endswith(':') or l.startswith('.') or l.startswith(';')) else '    ' + l)
        return '\n'.join(out) + '\n'

_reg = re.compile(r'(?<![\w.])(-?)(?:abs\()?([vsa])(?:(\d+)|\[(\d+):(\d+)\])')
def regs_of(tok):
    tok = tok.strip()
    out = []
    for m in _reg.finditer(tok):
        k = m.group(2)
        if m.group(3) is not None: out.append((k, int(m.group(3))))
        else: out += [(k, i) for i in range(int(m.group(4)), int(m.group(5))+1)]
    if re.search(r'\bvcc\b', tok): out += [('s', 106), ('s', 107)]
    if re.search(r'\bm0\b', tok): out.append(('s', 124))
    if re.search(r'\bexec\b', tok): out += [('s', 126), ('s', 127)]
    return out

TRANS = ('v_exp_f32','v_log_f32','v_rcp_f32','v_rsq_f32','v_sqrt_f32','v_sin_f32','v_cos_f32')
def parse(line):
    line = line.split(';')[0].strip()
    if not line or line.endswith(':') or line.startswith('.'): return None
    parts = line.split(None, 1)
    op = parts[0]
    ops = []
    if len(parts) > 1:
        depth = 0; cur = ''
        for ch in parts[1]:
            if ch == '[': depth += 1
            if ch == ']': depth -= 1
            if ch == ',' and depth == 0: ops.append(cur); cur = ''
            else: cur += ch
        ops.append(cur)
    d = dict(op=op, ops=ops, line=line)
    base = op.replace('_e32','').replace('_e64','').replace('_dpp','').replace('_sdwa','')
    d['base'] = base
    is_mfma = base.startswith('v_mfma')
    is_valu = base.startswith('v_') and not is_mfma
    is_ds = base.startswith('ds_')
    is_vmem = base.startswith('buffer_') or base.startswith('global_')
    is_salu = base.startswith('s_')
    d.update(mfma=is_mfma, valu=is_valu, ds=is_ds, vmem=is_vmem, salu=is_salu, trans=base in TRANS)
    w, r = [], []
    R = [regs_of(o) for o in ops]
    if is_mfma:
        w = R[0]; r = R[1] + R[2] + R[3]; d['srcC'] = R[3]; d['srcAB'] = R[1] + R[2]
        d['passes'] = 8 if '32x32' in base else 4
    elif is_valu:
        if base.startswith('v_cmp'):
            w = R[0]; r = sum(R[1:], [])
        elif (base.startswith('v_permlane') and 'swap' in base) or base == 'v_swap_b32':
            w = R[0] + R[1]; r = R[0] + R[1]
        elif base in ('v_add_co_u32','v_sub_co_u32','v_addc_co_u32','v_subb_co_u32'):
            w = R[0] + R[1]; r = sum(R[2:], [])
        else:
            w = R[0]; r = sum(R[1:], [])
            if base in ('v_fmac_f32','v_dot2c_f32_bf16','v_writelane_b32'): r = r + R[0]
        d['dpp'] = any(k in line for k in ('quad_perm','row_shr','row_shl','row_ror','row_mirror','row_half_mirror','row_bcast','wave_'))
    elif is_ds:
        if base.startswith('ds_read') or base.startswith('ds_add_rtn') or base.startswith('ds_bpermute') or base.startswith('ds_swizzle'):
            w = R[0]; r = sum(R[1:], [])
        else: r = sum(R, [])
    elif is_vmem:
        lds = re.search(r'\blds\b', line) is not None or '_lds_' in base
        d['lds'] = lds
        if 'store' in base or ('atomic' in base and 'sc0' not in line) or lds or base in ('buffer_inv','buffer_wbl2'):
            r = sum(R, [])
            if lds: r = r + [('s',124)]
            if 'store' in base and ('x3' in base or 'x4' in base):
                d['wdata'] = R[0] if base.startswith('buffer_') else R[1]
        else:
            w = R[0]; r = sum(R[1:], [])
    elif is_salu:
        if base.startswith('s_cmp') or base.startswith('s_cbranch') or base in ('s_waitcnt','s_nop','s_barrier','s_branch','s_endpgm','s_sleep','s_setprio'):
            r = sum(R, [])
        else:
            w = R[0] if R else []; r = sum(R[1:], [])
            if 'saveexec' in base: w = w + [('s',126),('s',127)]
    d['w'] = set(w); d['r'] = set(r)
    return d

def check(lines):
    ins = [p for p in (parse(l) for l in lines) if p]
    errs = []
    hist = []
    for cur in ins:
        dist = 0
        for prev in reversed(hist[-40:]):
            need = 0; why = ''
            pw = prev['w']
            def upd(n, y):
                nonlocal need, why
                if n > need: need, why = n, y
            vw = {x for x in pw if x[0] in 'va'}; sw = {x for x in pw if x[0] == 's'}
            if prev['valu']:
                if cur['mfma'] and vw & cur['r']: upd(2, 'VALU->MFMA')
                if cur['valu'] and cur['base'].startswith('v_permlane') and vw & cur['r']: upd(2, 'VALU->permlane')
                if cur['valu'] and cur.get('dpp') and vw & cur['r']: upd(2, 'VALU->DPP')
                if cur['base'] in ('v_readfirstlane_b32','v_readlane_b32') and vw & cur['r']: upd(1, 'VALU->readlane')
                if prev['trans'] and cur['valu'] and not cur['trans'] and vw & cur['r']: upd(1, 'trans->VALU')
                if cur['vmem'] and sw & cur['r']: upd(5, 'VALU sgpr->VMEM')
                if cur['valu'] and sw & cur['r']: upd(2, 'VALU sgpr->VALU')
                if cur['salu'] and sw & cur['r'] and not cur['base'].startswith('s_cbranch'): upd(1, 'VALU sgpr->SALU(pad)')
                if 'sdwa' in prev['op'] and 'dst_sel' in prev['line'] and cur['valu'] and vw & cur['r']: upd(1,'sdwa')
            if prev['salu'] and ('s',124) in pw and cur['vmem'] and cur.get('lds'): upd(1, 'M0->LDS DMA')
            if prev['mfma']:
                p = prev['passes']
                big = {4: 8, 8: 12}[p]
                if cur['mfma']:
                    if vw & set(cur['srcAB']): upd(big, 'MFMA D->MFMA AB')
                    c = set(cur['srcC'])
                    if vw & c and not (vw == c and cur['passes'] == p): upd({4:6, 8:10}[p], 'MFMA D->MFMA C partial')
                    if vw & cur['w'] and not (vw == cur['w'] and vw == c): upd(big, 'MFMA D->MFMA D WAW(cons)')
                elif cur['valu'] or cur['ds'] or cur['vmem']:
                    if vw & (cur['r'] | cur['w']): upd(big, 'MFMA D->VALU/mem')
                if cur['valu'] and set(prev['srcC']) & cur['w']: upd({4:3, 8:7}[p], 'MFMA C WAR')
            if prev.get('wdata') and cur['valu'] and set(prev['wdata']) & cur['w']: upd(2, 'store data WAR')
            if dist < need:
                errs.append('hazard %s: need %d have %d\n    %s\n    %s' % (why, need, dist, prev['line'], cur['line']))
            if prev['base'] == 's_nop': dist += int(prev['ops'][0]) + 1
            else: dist += 1
            if dist > 24: break
        hist.append(cur)
    return errs
```

```python
import sys
from dsl import *

KN = 'parallel_sum__spectral_fnet__swiglu_ffn__prompt_kernel'
FLAGS   = 0x0
FLAGS_D = 768*128
STATS   = 0x20000
COLSUM  = 0x28000
STAMPS  = 0x40000
WDF     = 0x100000
G16     = 0x300000
HF      = 0x600000
WS_SIZE = 0xC00000
GROW = 161*16
GBLK = 32*GROW
SPIN_MAX = 0x10000

S_X, S_WS, S_DBG, S_OUT, S_A, S_B = 4, 8, 12, 16, 20, 24
P_X, P_HRE, P_HIM, P_WG, P_WU, P_WD, P_OUT, P_DBG, P_WS = 28, 32, 34, 36, 38, 40, 42, 44, 46
WAVE, XCD, IDX = 48, 49, 50
T1, CS = 51, 52

class Gen:
    def __init__(self, stage='full', stamps=False):
        self.a = Asm(); self.stage = stage; self.stamps = stamps; self.nst = 0

    def srd(self, dst, ptr, size):
        a = self.a
        a('s_mov_b32 %s, %s' % (s(dst), s(ptr)))
        a('s_mov_b32 %s, %s' % (s(dst+1), s(ptr+1)))
        a('s_mov_b32 %s, 0x%x' % (s(dst+2), size))
        a('s_mov_b32 %s, 0x20000' % s(dst+3))

    def stamp(self, k):
        if self.stamps:
            self.a('s_memrealtime s[98:99]\ns_waitcnt lgkmcnt(0)\ns_mov_b32 s%d, s98' % (80+k))

    def dump_stamps(self):
        if not self.stamps: return
        a = self.a
        a('s_lshl_b32 s96, s2, 3\ns_add_u32 s96, s96, s%d\ns_lshl_b32 s96, s96, 6\ns_add_u32 s96, s96, 0x%x' % (WAVE, STAMPS))
        for k in range(16): a('v_mov_b32 v%d, s%d' % (100+k, 80+k))
        a('v_mov_b32 v99, s96')
        a('s_mov_b64 exec, 1')
        for k in range(4): a('buffer_store_dwordx4 v[%d:%d], v99, %s, 0 offen offset:%d' % (100+4*k, 103+4*k, s(S_WS,4), 16*k))
        a('s_waitcnt vmcnt(0)')

    def poll_counter(self, lbl, vt=2):
        a = self.a
        a('v_mov_b32 v%d, 0\ns_mov_b32 s53, 0' % vt)
        a.label(lbl)
        a('buffer_load_dword v%d, v%d, %s, 0 offen sc0 sc1' % (vt+1, vt, s(S_DBG,4)))
        a('s_add_u32 s53, s53, 1\ns_cmp_gt_u32 s53, 0x%x\ns_cbranch_scc1 %s_x' % (SPIN_MAX, lbl))
        a('s_waitcnt vmcnt(0)')
        a('v_cmp_ne_u32 vcc, 32, v%d' % (vt+1))
        a('s_cbranch_vccz %s_x\ns_sleep 2\ns_branch %s' % (lbl, lbl))
        a.label(lbl + '_x')

    def prologue(self):
        a = self.a
        a('s_load_dwordx2 s[28:29], s[0:1], 0')
        a('s_load_dwordx4 s[36:39], s[0:1], 48')
        a('s_load_dwordx8 s[40:47], s[0:1], 64')
        a('s_load_dwordx4 s[32:35], s[0:1], 24')
        a('s_cmp_ge_u32 s2, 256\ns_cbranch_scc1 L_end')
        a('v_lshrrev_b32 v1, 6, v0\nv_and_b32 v0, 63, v0')
        a('v_readfirstlane_b32 s%d, v1' % WAVE)
        a('s_and_b32 s%d, s2, 7\ns_lshr_b32 s%d, s2, 3' % (XCD, IDX))
        if self.stamps:
            for k in range(16): a('s_mov_b32 s%d, 0' % (80+k))
        a('s_lshr_b32 s%d, s%d, 3\ns_lshl_b32 s53, s%d, 2\ns_add_u32 s%d, s%d, s53\ns_and_b32 s%d, s%d, 7' % (T1, IDX, XCD, T1, T1, CS, IDX))
        a('s_cmp_lt_u32 s%d, 4\ns_cbranch_scc1 L_nopf' % WAVE)
        a('s_getpc_b64 s[54:55]')
        a.label('L_pc')
        a('s_sub_u32 s53, s%d, 4\ns_lshl_b32 s53, s53, 13' % WAVE)
        a('v_lshl_add_u32 v2, v0, 7, s53')
        a('v_min_u32 v2, L_end-L_pc, v2')
        a('global_load_dword v255, v2, s[54:55]')
        a.label('L_nopf')
        a('s_waitcnt lgkmcnt(0)')
        self.stamp(0)
        self.srd(S_X, P_X, 2048*640*2)
        self.srd(S_WS, P_WS, WS_SIZE)
        self.srd(S_DBG, P_DBG, 256)
        self.srd(S_OUT, P_OUT, 2048*640*2)
        a('s_cmp_ge_u32 s%d, 24\ns_cbranch_scc1 L_notffn' % IDX)
        a('s_mul_i32 s54, s%d, 43\ns_lshr_b32 s54, s54, 7' % IDX)
        a('s_mul_i32 s55, s54, 3\ns_sub_u32 s55, s%d, s55' % IDX)
        a('s_and_b32 s56, s%d, 1\ns_lshl_b32 s56, s56, 3\ns_add_u32 s54, s54, s56' % XCD)
        a('s_lshr_b32 s56, s%d, 1\ns_mul_i32 s56, s56, 3\ns_add_u32 s55, s55, s56' % XCD)
        a('s_cmp_lt_u32 s%d, 2\ns_cbranch_scc1 L_ffn_wl' % WAVE)
        a('s_cmp_lt_u32 s%d, 4\ns_cbranch_scc1 L_ffn_xl' % WAVE)
        a('s_branch L_ffn_cons')
        a.label('L_notffn')
        a('s_cmp_ge_u32 s%d, 28\ns_cbranch_scc1 L_spare' % IDX)
        a('s_sub_u32 s55, s%d, 24\ns_lshr_b32 s54, s55, 1\ns_and_b32 s55, s55, 1' % IDX)
        a('s_lshl_b32 s56, s%d, 1\ns_add_u32 s54, s54, s56' % XCD)
        a('s_cmp_lt_u32 s%d, 4\ns_cbranch_scc1 L_dft_ld' % WAVE)
        a('s_branch L_dft_cons')

    WSLOT, NWS = 16384, 6
    XB, XSLOT, NXS = 98304, 16384, 3
    MISC = 147456

    def wvoff(self, dst0, rowbytes, tmp):
        a = self.a
        t = tmp
        a('v_lshrrev_b32 v%d, 3, v0' % t)
        a('v_bfe_u32 v%d, v0, 4, 1' % (t+1))
        a('v_bfe_u32 v%d, v0, 1, 2' % (t+2))
        a('v_xor_b32 v%d, v%d, v%d' % (t+2, t+2, t+1))
        a('v_and_b32 v%d, 1, v0' % (t+1))
        a('v_lshlrev_b32 v%d, 4, v%d' % (t+1, t+1))
        a('v_lshl_add_u32 v%d, v%d, 5, v%d' % (t+2, t+2, t+1))
        a('v_mul_u32_u24 v%d, %d, v%d' % (t, rowbytes, t))
        a('v_add_u32 v%d, v%d, v%d' % (dst0, t, t+2))
        a('v_xor_b32 v%d, 64, v%d' % (t+2, t+2))
        a('v_add_u32 v%d, v%d, v%d' % (dst0+1, t, t+2))
        a('v_add_u32 v%d, %d, v%d' % (dst0+1, 8*rowbytes, dst0+1))
        a('v_add_u32 v%d, %d, v%d' % (dst0+2, 16*rowbytes, dst0))
        a('v_add_u32 v%d, %d, v%d' % (dst0+3, 16*rowbytes, dst0+1))

    def ffn_wloader(self):
        a = self.a
        a.label('L_ffn_wl')
        a('s_cmp_eq_u32 s%d, 0' % WAVE)
        a('s_cselect_b32 s%d, s%d, s%d\ns_cselect_b32 s%d, s%d, s%d' % (S_A, P_WG, P_WU, S_A+1, P_WG+1, P_WU+1))
        a('s_mov_b32 s%d, 0x%x\ns_mov_b32 s%d, 0x20000' % (S_A+2, 640*1536*2, S_A+3))
        self.wvoff(4, 3072, 8)
        a('s_lshl_b32 s56, s55, 8')
        a('s_lshl_b32 s57, s%d, 13' % WAVE)
        a('s_add_u32 s59, s57, %d' % (self.NWS*self.WSLOT))
        a('s_mov_b32 s58, 0')
        def issue():
            for b in range(2):
                for j in range(4):
                    a('s_add_u32 m0, s57, %d' % (b*4096 + j*1024 - b*128))
                    a('s_nop 0')
                    a('buffer_load_dwordx4 v%d, %s, s56 offen offset:%d lds' % (4+j, s(S_A,4), b*128))
            a('s_add_u32 s56, s56, %d' % (32*3072))
            a('s_add_u32 s57, s57, %d' % self.WSLOT)
            a('s_cmp_ge_u32 s57, s59\ns_cselect_b32 s60, %d, 0\ns_sub_u32 s57, s57, s60' % (self.NWS*self.WSLOT))
            a('s_add_u32 s58, s58, 1')
        a.label('L_wl_pro')
        issue()
        a('s_cmp_lt_u32 s58, 6\ns_cbranch_scc1 L_wl_pro')
        a('s_waitcnt vmcnt(40)')
        self.stamp(1)
        a('s_barrier')
        a('s_waitcnt vmcnt(32)')
        a.label('L_wl_loop')
        a('s_barrier')
        issue()
        a('s_waitcnt vmcnt(32)')
        a('s_cmp_lt_u32 s58, 20\ns_cbranch_scc1 L_wl_loop')
        a('s_barrier')
        for n in (24, 16, 8, 0):
            a('s_waitcnt vmcnt(%d)\ns_barrier' % n)
        a('s_barrier')
        self.stamp(2)
        a('s_branch L_p2_mfma')

    def ffn_xloader(self):
        a = self.a
        a.label('L_ffn_xl')
        a('s_sub_u32 s56, s%d, 2' % WAVE)
        a('v_lshrrev_b32 v2, 3, v0')
        a('v_lshrrev_b32 v3, 4, v0')
        a('s_lshl_b32 s57, s56, 2')
        a('v_add_u32 v3, s57, v3')
        a('v_and_b32 v12, 7, v0')
        a('v_xor_b32 v3, v3, v12')
        a('v_lshlrev_b32 v3, 4, v3')
        a('v_mul_u32_u24 v2, 40960, v2')
        a('v_add_u32 v2, v2, v3')
        a('s_lshl_b32 s57, s56, 8\ns_lshl_b32 s58, s54, 1\ns_add_u32 s57, s57, s58\ns_mul_i32 s57, s57, 1280')
        a('v_add_u32 v4, s57, v2')
        for tt in range(1, 8):
            a('v_add_u32 v%d, %d, v4' % (4+tt, ((tt>>2) + 512*(tt&3))*1280))
        a('s_lshl_b32 s57, s56, 10\ns_add_u32 s57, s57, %d' % self.XB)
        a('s_add_u32 s59, s57, %d' % (self.NXS*self.XSLOT))
        a('s_mov_b32 s58, 0')
        def issue():
            for tt in range(8):
                a('s_add_u32 m0, s57, %d' % (tt*2048))
                a('s_nop 0')
                a('buffer_load_dwordx4 v%d, %s, s58 offen lds' % (4+tt, s(S_X,4)))
            a('s_add_u32 s58, s58, 128')
            a('s_add_u32 s57, s57, %d' % self.XSLOT)
            a('s_cmp_ge_u32 s57, s59\ns_cselect_b32 s60, %d, 0\ns_sub_u32 s57, s57, s60' % (self.NXS*self.XSLOT))
        a.label('L_xl_pro')
        issue()
        a('s_cmp_lt_u32 s58, 384\ns_cbranch_scc1 L_xl_pro')
        a('s_cmp_eq_u32 s56, 0\ns_cbranch_scc0 L_xl_a1')
        a('v_and_b32 v12, 15, v0\nv_lshlrev_b32 v12, 5, v12')
        a('v_lshrrev_b32 v13, 4, v0\nv_lshl_add_u32 v12, v13, 9, v12')
        a('s_lshl_b32 s60, s54, 1\nv_add_u32 v12, s60, v12')
        a('v_lshlrev_b32 v12, 4, v12\nv_add_u32 v12, 0x%x, v12' % STATS)
        a('s_mov_b32 s61, 16')
        a('v_lshlrev_b32 v13, 4, v0\nv_add_u32 v13, %d, v13' % self.MISC)
        a('s_branch L_xl_a2')
        a.label('L_xl_a1')
        a('v_lshrrev_b32 v13, 5, v0\nv_mul_u32_u24 v13, 6144, v13')
        a('v_and_b32 v12, 31, v0\nv_lshl_add_u32 v12, v12, 4, v13')
        a('s_lshl_b32 s60, s55, 9\ns_add_u32 s60, s60, 0x%x\nv_add_u32 v12, s60, v12' % COLSUM)
        a('s_mov_b32 s61, 12288')
        a('v_lshlrev_b32 v13, 4, v0\nv_add_u32 v13, %d, v13' % (self.MISC+2048))
        a.label('L_xl_a2')
        a('v_mov_b32 v14, 0')
        a('s_waitcnt vmcnt(16)\ns_barrier\ns_barrier')
        a('s_waitcnt vmcnt(8)')
        a.label('L_xl_loop')
        a('s_barrier')
        a('s_cmp_eq_u32 s58, %d\ns_cbranch_scc0 L_xl_n1' % (6*128))
        a('buffer_load_dword v15, v14, %s, 0 offen sc0 sc1' % s(S_DBG,4))
        a.label('L_xl_n1')
        a('s_cmp_eq_u32 s58, %d\ns_cbranch_scc0 L_xl_n2' % (7*128))
        a('v_cmp_ne_u32 vcc, 32, v15\ns_cbranch_vccz L_xl_ok')
        self.poll_counter('L_xl_poll', 14)
        a.label('L_xl_ok')
        a('buffer_load_dwordx4 v[16:19], v12, %s, 0 offen sc1' % s(S_WS,4))
        a('buffer_load_dwordx4 v[20:23], v12, %s, s61 offen sc1' % s(S_WS,4))
        a.label('L_xl_n2')
        a('s_cmp_eq_u32 s58, %d\ns_cbranch_scc0 L_xl_n3' % (8*128))
        a('s_cmp_eq_u32 s56, 0\ns_cbranch_scc0 L_xl_cs')
        a('ds_write_b128 v13, v[16:19]\nds_write_b128 v13, v[20:23] offset:1024\ns_branch L_xl_n3')
        a.label('L_xl_cs')
        a('v_pk_add_f32 v[16:17], v[16:17], v[20:21]\nv_pk_add_f32 v[18:19], v[18:19], v[22:23]')
        a('ds_write_b128 v13, v[16:19]')
        a.label('L_xl_n3')
        issue()
        a('s_barrier')
        a('s_waitcnt vmcnt(8)')
        a('s_cmp_lt_u32 s58, 1280\ns_cbranch_scc1 L_xl_loop')
        a('s_barrier\ns_barrier')
        a('s_waitcnt vmcnt(0) lgkmcnt(0)')
        a('s_barrier\ns_barrier\ns_barrier')
        self.stamp(2)
        a('s_branch L_p2_mfma')

    def ffn_consumer(self):
        a = self.a
        ACC, FR = 8, 136
        AW0, AW1, AX0, AX1 = 2, 3, 4, 5
        def acc(tt, mat, c2): return ACC + ((tt*2 + mat)*2 + c2)*4
        def xf(st, tt): return FR + st*48 + tt*4
        def wf(st, mat, c2): return FR + st*48 + 32 + (mat*2 + c2)*4
        a.label('L_ffn_cons')
        a('s_setprio 1')
        a('s_sub_u32 s56, s%d, 4' % WAVE)
        a('v_lshrrev_b32 v6, 4, v0')
        a('v_bfe_u32 v7, v0, 2, 2')
        a('v_lshl_add_u32 v8, v6, 3, v7\nv_lshlrev_b32 v8, 7, v8')
        a('v_and_b32 v9, 3, v0\nv_lshl_add_u32 v8, v9, 3, v8')
        a('v_bfe_u32 v9, v0, 3, 1\nv_bfe_u32 v10, v0, 4, 1\nv_lshl_add_u32 v9, v10, 1, v9')
        a('s_and_b32 s57, s56, 1\ns_lshl_b32 s57, s57, 1')
        a('v_xor_b32 v9, s57, v9\nv_lshl_add_u32 v8, v9, 5, v8')
        a('s_lshr_b32 s57, s56, 1\ns_lshl_b32 s57, s57, 12')
        a('v_add_u32 v%d, s57, v8' % AW0)
        a('v_xor_b32 v%d, 32, v%d' % (AW1, AW0))
        a('v_and_b32 v8, 15, v0\nv_lshrrev_b32 v9, 1, v8\nv_xor_b32 v9, v9, v6')
        a('v_lshlrev_b32 v9, 4, v9\nv_lshl_add_u32 v9, v8, 7, v9')
        a('v_add_u32 v%d, %d, v9' % (AX0, self.XB))
        a('v_xor_b32 v%d, 64, v%d' % (AX1, AX0))
        for i in range(128): a('v_mov_b32 v%d, 0' % (ACC+i))
        a('s_mov_b32 s58, 0\ns_mov_b32 s59, 0\ns_mov_b32 s60, 0')
        a('s_mov_b32 s62, %d\ns_mov_b32 s63, %d' % (self.WSLOT, self.XSLOT))
        def reads(st, xa):
            r = []
            for mat in range(2):
                for c2 in range(2):
                    for q in range(2):
                        r.append('ds_read_b64_tr_b16 v[%d:%d], v%d offset:%d' % (wf(st,mat,c2)+2*q, wf(st,mat,c2)+2*q+1, AW0+c2, mat*8192 + q*512))
            for tt in range(8):
                r.append('ds_read_b128 %s, v%d offset:%d' % (v(xf(st,tt),4), xa, tt*2048))
            return r
        def advW():
            a('s_add_u32 s58, s58, 1\ns_cmp_eq_u32 s58, %d\ns_cselect_b32 s61, %d, s62\ns_cselect_b32 s58, 0, s58' % (self.NWS, -(self.NWS-1)*self.WSLOT))
            a('v_add_u32 v%d, s61, v%d\nv_add_u32 v%d, s61, v%d' % (AW0, AW0, AW1, AW1))
        def advX():
            a('s_add_u32 s59, s59, 1\ns_cmp_eq_u32 s59, %d\ns_cselect_b32 s61, %d, s63\ns_cselect_b32 s59, 0, s59' % (self.NXS, -(self.NXS-1)*self.XSLOT))
            a('v_add_u32 v%d, s61, v%d\nv_add_u32 v%d, s61, v%d' % (AX0, AX0, AX1, AX1))
        def step(st, nxt_xa, pre):
            a('s_waitcnt lgkmcnt(0)\ns_barrier')
            pre()
            rd = reads(1-st, nxt_xa)
            k = 0
            for tt in range(8):
                for mat in range(2):
                    for c2 in range(2):
                        A = acc(tt, mat, c2)
                        a('v_mfma_f32_16x16x32_bf16 %s, %s, %s, %s' % (v(A,4), v(wf(st,mat,c2),4), v(xf(st,tt),4), v(A,4)))
                        if k < len(rd): a(rd[k]); k += 1
        a('s_barrier')
        self.stamp(1)
        for r in reads(0, AX0): a(r)
        a.align(3)
        a.label('L_fc_loop')
        step(0, AX1, advW)
        step(1, AX0, lambda: (advW(), advX()))
        a('s_add_u32 s60, s60, 1\ns_cmp_lt_u32 s60, 10\ns_cbranch_scc1 L_fc_loop')
        self.stamp(2)
        a('s_waitcnt lgkmcnt(0)')
        ST, CSR, TM = FR, FR+32, FR+48
        a('v_and_b32 v2, 15, v0\nv_lshlrev_b32 v2, 4, v2\nv_add_u32 v2, %d, v2' % self.MISC)
        for tt in range(8): a('ds_read_b128 %s, v2 offset:%d' % (v(ST+4*tt,4), tt*256))
        a('v_lshrrev_b32 v3, 4, v0\nv_lshlrev_b32 v3, 4, v3\ns_lshl_b32 s57, s56, 7\nv_add_u32 v3, s57, v3\nv_add_u32 v3, %d, v3' % (self.MISC+2048))
        for mat in range(2):
            for c2 in range(2): a('ds_read_b128 %s, v3 offset:%d' % (v(CSR+(mat*2+c2)*4,4), mat*512 + c2*64))
        a('s_mul_i32 s57, s54, %d\ns_lshl_b32 s58, s55, 2\ns_add_u32 s58, s58, s56\ns_lshl_b32 s58, s58, 10\ns_add_u32 s57, s57, s58\ns_add_u32 s57, s57, 0x%x' % (8*49152, HF))
        a('v_lshlrev_b32 v4, 4, v0')
        a('s_waitcnt lgkmcnt(0)')
        for tt in range(8):
            m, c1, q = ST+4*tt, ST+4*tt+1, ST+4*tt+2
            O = TM + 32 + (tt&1)*4
            t = TM + (tt&1)*16
            pairs = [(c2, hh) for c2 in range(2) for hh in range(2)]
            for k, (c2, hh) in enumerate(pairs):
                ga = acc(tt,0,c2)+2*hh; ua = acc(tt,1,c2)+2*hh
                a('v_pk_fma_f32 %s, %s, %s, %s op_sel_hi:[0,1,1] neg_lo:[1,0,0] neg_hi:[1,0,0]' % (v(ga,2), v(m,2), v(CSR+c2*4+2*hh,2), v(ga,2)))
                a('v_pk_fma_f32 %s, %s, %s, %s op_sel_hi:[0,1,1] neg_lo:[1,0,0] neg_hi:[1,0,0]' % (v(ua,2), v(m,2), v(CSR+8+c2*4+2*hh,2), v(ua,2)))
            for k, (c2, hh) in enumerate(pairs):
                ga = acc(tt,0,c2)+2*hh
                a('v_pk_mul_f32 %s, %s, %s op_sel:[0,1] op_sel_hi:[1,1]' % (v(t+2*k,2), v(ga,2), v(m,2)))
            for k in range(8): a('v_exp_f32 v%d, v%d' % (t+k, t+k))
            for k, (c2, hh) in enumerate(pairs):
                ga = acc(tt,0,c2)+2*hh; ua = acc(tt,1,c2)+2*hh
                a('v_pk_mul_f32 %s, %s, %s' % (v(ga,2), v(ga,2), v(ua,2)))
                a('v_pk_fma_f32 %s, %s, %s, %s op_sel_hi:[1,0,0]' % (v(t+2*k,2), v(t+2*k,2), v(q,2), v(q,2)))
            for k in range(8): a('v_rcp_f32 v%d, v%d' % (t+k, t+k))
            a('s_nop 0')
            for k, (c2, hh) in enumerate(pairs):
                ga = acc(tt,0,c2)+2*hh
                a('v_pk_mul_f32 %s, %s, %s' % (v(ga,2), v(ga,2), v(t+2*k,2)))
            for k, (c2, hh) in enumerate(pairs):
                ga = acc(tt,0,c2)+2*hh
                a('v_cvt_pk_bf16_f32 v%d, v%d, v%d' % (O+k, ga, ga+1))
            a('buffer_store_dwordx4 %s, v4, %s, s57 offen sc1' % (v(O,4), s(S_WS,4)))
            a('s_add_u32 s57, s57, 49152')
        self.stamp(3)
        a('s_waitcnt vmcnt(0)')
        self.stamp(4)
        a('s_mul_i32 s57, s54, 12\ns_add_u32 s57, s57, s55\ns_lshl_b32 s57, s57, 2\ns_add_u32 s57, s57, s56\ns_lshl_b32 s57, s57, 7')
        a('v_mov_b32 v2, s57\nv_mov_b32 v3, 1')
        a('s_mov_b64 exec, 1')
        a('buffer_store_dword v3, v2, %s, 0 offen sc0 sc1' % s(S_WS,4))
        a('s_mov_b64 exec, -1')
        a('s_setprio 0')
        a('s_branch L_p2_help')

    MSLOT = 40960; MB = 32768; XFB = 0; XFS = 16384; DMISC = 155648

    def dft_loader(self):
        a = self.a
        RAW = 32
        a.label('L_dft_ld')
        a('s_cmp_lt_u32 s%d, 2' % WAVE)
        a('s_cselect_b32 s%d, s%d, s%d\ns_cselect_b32 s%d, s%d, s%d' % (S_A, P_HRE, P_HIM, S_A+1, P_HRE+1, P_HIM+1))
        a('s_mov_b32 s%d, 0x%x\ns_mov_b32 s%d, 0x20000' % (S_A+2, 640*640*2, S_A+3))
        a('v_lshrrev_b32 v2, 3, v0\nv_lshrrev_b32 v3, 4, v0\nv_and_b32 v4, 7, v0')
        a('v_xor_b32 v3, v3, v4\nv_lshlrev_b32 v3, 4, v3')
        a('v_mul_u32_u24 v5, 81920, v2\nv_lshl_add_u32 v5, v4, 4, v5')
        a('v_mul_u32_u24 v6, 2560, v2\nv_add_u32 v6, v6, v3\nv_xor_b32 v7, 64, v6')
        a('s_or_b32 s56, s55, s%d\ns_cmp_eq_u32 s56, 0\ns_cselect_b32 s56, %d, 0' % (WAVE, 320*1280))
        a('v_cmp_gt_u32 vcc, 8, v0\nv_mov_b32 v8, s56\ns_nop 0\nv_cndmask_b32 v8, 0, v8, vcc\nv_add_u32 v8, v8, v6')
        a('s_lshl_b32 s56, s%d, 12\ns_add_u32 s56, s56, %d' % (WAVE, self.XFB))
        a('v_lshl_add_u32 v9, v2, 7, v3\nv_add_u32 v9, s56, v9\nv_xor_b32 v10, 64, v9')
        a('s_lshl_b32 s56, s54, 2\ns_add_u32 s56, s56, s%d\ns_mul_i32 s56, s56, 1280' % WAVE)
        for u in range(1, 4): a('s_add_u32 s%d, s56, %d' % (56+u, u*512*1280))
        a('s_and_b32 s60, s%d, 1\ns_mul_i32 s60, s60, 160\ns_add_u32 s60, s60, s55\ns_mul_i32 s60, s60, 1280' % WAVE)
        a('s_mul_i32 s61, s%d, 10240' % WAVE)
        a('s_cmp_eq_u32 s55, 0\ns_cselect_b32 s63, 1.0, -1.0')
        a('v_mov_b32 v12, s63\nv_mov_b32 v13, s63')
        def xload(c):
            for u in range(4):
                a('buffer_load_dwordx4 %s, v5, %s, s%d offen offset:%d' % (v(RAW+32*c+8*u,4), s(S_X,4), 56+u, 128*c))
                a('buffer_load_dwordx4 %s, v5, %s, s%d offen offset:%d' % (v(RAW+32*c+8*u+4,4), s(S_X,4), 56+u, 128*c+640))
        def mload(c):
            for u in range(10):
                a('s_add_u32 m0, s61, %d' % (self.MB + (c%3)*self.MSLOT + u*1024 - 128*c))
                a('s_add_u32 s62, s60, %d' % (u*16*1280))
                a('buffer_load_dwordx4 v%d, %s, s62 offen offset:%d lds' % (8 if u == 0 else 6+(u&1), s(S_A,4), 128*c))
        def fold(c):
            for u in range(4):
                lo = RAW+32*c+8*u; hi = lo+4; t = 16
                for k in range(4):
                    a('v_lshlrev_b32 v%d, 16, v%d\nv_and_b32 v%d, 0xffff0000, v%d' % (t+2*k, lo+k, t+2*k+1, lo+k))
                    a('v_lshlrev_b32 v%d, 16, v%d\nv_and_b32 v%d, 0xffff0000, v%d' % (t+8+2*k, hi+k, t+8+2*k+1, hi+k))
                for k in range(4):
                    a('v_pk_fma_f32 %s, %s, v[12:13], %s' % (v(t+2*k,2), v(t+8+2*k,2), v(t+2*k,2)))
                for k in range(4):
                    a('v_cvt_pk_bf16_f32 v%d, v%d, v%d' % (lo+k, t+2*k, t+2*k+1))
                a('ds_write_b128 v%d, %s offset:%d' % (9+(u&1), v(lo,4), (c&1)*self.XFS + u*1024))
        xload(0); mload(0); xload(1); mload(1); xload(2); mload(2); xload(3)
        a('s_waitcnt vmcnt(54)'); fold(0)
        xload(4)
        a('s_waitcnt vmcnt(52) lgkmcnt(0)\ns_barrier')
        self.stamp(1)
        a('s_waitcnt vmcnt(44)'); fold(1)
        a('s_waitcnt vmcnt(34) lgkmcnt(0)\ns_barrier')
        mload(3)
        a('s_waitcnt vmcnt(36)'); fold(2)
        a('s_waitcnt vmcnt(26) lgkmcnt(0)\ns_barrier')
        mload(4)
        a('s_waitcnt vmcnt(28)'); fold(3)
        a('s_waitcnt vmcnt(10) lgkmcnt(0)\ns_barrier')
        fold(4)
        a('s_waitcnt vmcnt(0) lgkmcnt(0)\ns_barrier')
        self.poll_counter('L_dl_poll', 14)
        a('v_and_b32 v2, 31, v0\nv_lshlrev_b32 v3, 10, v2')
        a('s_lshl_b32 s56, s54, 2\ns_add_u32 s56, s56, s%d\ns_lshl_b32 s56, s56, 4\ns_add_u32 s56, s56, 0x%x' % (WAVE, STATS+12))
        a('buffer_load_dword v4, v3, %s, s56 offen sc1' % s(S_WS,4))
        a('s_lshl_b32 s56, s%d, 7\ns_add_u32 s56, s56, %d' % (WAVE, self.DMISC))
        a('v_lshl_add_u32 v2, v2, 2, s56')
        a('s_waitcnt vmcnt(0)\nds_write_b32 v2, v4\ns_waitcnt lgkmcnt(0)')
        a('s_barrier')
        self.stamp(2)
        a('s_branch L_dft_copy')

    def dft_consumer(self):
        a = self.a
        ACC = 8
        MP, XP = 168, 200
        AM0, AX0 = 2, 6
        a.label('L_dft_cons')
        a('s_setprio 1')
        a('s_sub_u32 s56, s%d, 4' % WAVE)
        a('v_and_b32 v208, 31, v0\nv_lshrrev_b32 v209, 5, v0\nv_bfe_u32 v210, v0, 1, 3\nv_xor_b32 v210, v210, v209')
        a('v_lshlrev_b32 v210, 4, v210\nv_lshl_add_u32 v210, v208, 7, v210')
        AM = [211, 212, 213, 214]; AX = [215, 216, 217, 218]
        a('v_mov_b32 v%d, v210' % AM[0])
        for u in range(1,4): a('v_xor_b32 v%d, %d, v210' % (AM[u], 32*u))
        a('s_lshl_b32 s57, s56, 12\ns_add_u32 s57, s57, %d' % self.XFB)
        for u in range(4): a('v_add_u32 v%d, s57, v%d\nv_add_u32 v%d, %d, v%d' % (AX[u], AM[u], AM[u], self.MB, AM[u]))
        for i in range(160): a('v_mov_b32 v%d, 0' % (ACC+i))
        a('s_mov_b32 s58, 0\ns_mov_b32 s60, 0\ns_mov_b32 s62, %d' % self.MSLOT)
        def accr(m): return ACC + 32*(m%5) + 16*(m//5)
        rd = []
        for u in range(4):
            rd.append('ds_read_b128 %s, v%d' % (v(XP+4*(u&1),4), AX[u]))
            for m in range(10):
                rd.append('ds_read_b128 %s, v%d offset:%d' % (v(MP+4*((10*u+m)%8),4), AM[u], m*4096))
        LA = 6
        a('s_barrier')
        self.stamp(1)
        for r in rd[:8]: a(r)
        a.align(3)
        a.label('L_dc_loop')
        issued = 8
        for mu in range(40):
            u, m = divmod(mu, 10)
            need = 11*u + 1 + m
            if mu == 37:
                a('s_waitcnt lgkmcnt(0)\ns_barrier')
                a('s_add_u32 s58, s58, 1\ns_cmp_eq_u32 s58, 3\ns_cselect_b32 s61, %d, s62\ns_cselect_b32 s58, 0, s58' % (-2*self.MSLOT))
                for k in range(4): a('v_add_u32 v%d, s61, v%d\nv_xor_b32 v%d, %d, v%d' % (AM[k], AM[k], AX[k], self.XFS, AX[k]))
                for r in rd[:6]: a(r)
            elif mu < 37:
                a('s_waitcnt lgkmcnt(%d)' % (issued - need - 1))
            a('v_mfma_f32_32x32x16_bf16 %s, %s, %s, %s' % (v(accr(m),16), v(XP+4*(u&1),4), v(MP+4*(mu%8),4), v(accr(m),16)))
            if mu < 37:
                tgt = min(44, (11*((mu+1)//10) + 1 + (mu+1)%10) + LA + 1)
                while issued < tgt: a(rd[issued]); issued += 1
            elif mu < 39:
                a(rd[6 + mu - 37])
        a('s_add_u32 s60, s60, 1\ns_cmp_lt_u32 s60, 5\ns_cbranch_scc1 L_dc_loop')
        self.stamp(2)
        assert (self.XFB & self.XFS) == 0 or True
        a('s_waitcnt lgkmcnt(0)')
        RR = 168
        CC, SS, NS = 184, 192, 200
        a('s_lshl_b32 s57, s56, 7\ns_add_u32 s57, s57, %d' % self.DMISC)
        a('v_lshl_add_u32 v2, v209, 4, s57')
        for k in range(4): a('ds_read_b128 %s, v2 offset:%d' % (v(RR+4*k,4), 32*k))
        a('v_lshlrev_b32 v3, 2, v209')
        a('s_mov_b32 s62, 0x3d000000')
        T = 219
        for k in range(4):
            for i in range(4):
                a('v_add_u32 v%d, %d, v3' % (T+i, 8*k+i))
                a('v_mul_u32_u24 v%d, v%d, v208' % (T+i, T+i))
                a('v_and_b32 v%d, 31, v%d' % (T+i, T+i))
                a('v_cvt_f32_u32 v%d, v%d' % (T+i, T+i))
                a('v_mul_f32 v%d, s62, v%d' % (T+i, T+i))
            for i in range(4):
                a('v_sin_f32 v%d, v%d' % (T+4+i, T+i))
                a('v_cos_f32 v%d, v%d' % (T+i, T+i))
            if k == 0: a('s_waitcnt lgkmcnt(0)')
            for i in range(4):
                a('v_mul_f32 v%d, v%d, v%d' % (T+4+i, T+4+i, RR+4*k+i))
                a('v_mul_f32 v%d, v%d, v%d' % (T+i, T+i, RR+4*k+i))
            for j in range(2):
                a('v_cvt_pk_bf16_f32 v%d, v%d, v%d' % (CC+2*k+j, T+2*j, T+2*j+1))
                a('v_cvt_pk_bf16_f32 v%d, v%d, v%d' % (SS+2*k+j, T+4+2*j, T+4+2*j+1))
                a('v_xor_b32 v%d, 0x80008000, v%d' % (NS+2*k+j, SS+2*k+j))
        a('v_mul_u32_u24 v4, %d, v208\nv_lshl_add_u32 v4, v209, 6, v4' % GROW)
        a('v_lshrrev_b32 v5, 3, v208\nv_add_u32 v5, s56, v5\nv_and_b32 v5, 3, v5\nv_lshl_add_u32 v4, v5, 2, v4')
        Z = 168
        D = 208
        for et in range(5):
            A0 = ACC + 32*et
            for k in range(8):
                a('v_cvt_pk_bf16_f32 v%d, v%d, v%d' % (Z+k, A0+2*k, A0+2*k+1))
                a('v_cvt_pk_bf16_f32 v%d, v%d, v%d' % (Z+8+k, A0+16+2*k, A0+16+2*k+1))
            a('s_nop 1')
            RE, IM = A0, A0+16
            a('v_mfma_f32_32x32x16_bf16 %s, %s, %s, 0' % (v(RE,16), v(Z,4), v(CC,4)))
            a('v_mfma_f32_32x32x16_bf16 %s, %s, %s, 0' % (v(IM,16), v(Z+8,4), v(CC,4)))
            a('v_mfma_f32_32x32x16_bf16 %s, %s, %s, %s' % (v(RE,16), v(Z+4,4), v(CC+4,4), v(RE,16)))
            a('v_mfma_f32_32x32x16_bf16 %s, %s, %s, %s' % (v(IM,16), v(Z+12,4), v(CC+4,4), v(IM,16)))
            a('v_mfma_f32_32x32x16_bf16 %s, %s, %s, %s' % (v(RE,16), v(Z+8,4), v(SS,4), v(RE,16)))
            a('v_mfma_f32_32x32x16_bf16 %s, %s, %s, %s' % (v(IM,16), v(Z,4), v(NS,4), v(IM,16)))
            a('v_mfma_f32_32x32x16_bf16 %s, %s, %s, %s' % (v(RE,16), v(Z+12,4), v(SS+4,4), v(RE,16)))
            a('v_mfma_f32_32x32x16_bf16 %s, %s, %s, %s' % (v(IM,16), v(Z+4,4), v(NS+4,4), v(IM,16)))
            if et > 0: self._dft_out(ACC + 32*(et-1), et-1)
        a.nop(12)
        self._dft_out(ACC + 32*4, 4)
        a('s_waitcnt lgkmcnt(0)')
        a('s_setprio 0')
        self.stamp(3)
        a.label('L_dft_copy')
        a('s_barrier')
        a('s_lshl_b32 s56, s54, 1\ns_add_u32 s56, s56, s55\ns_mul_i32 s56, s56, %d\ns_add_u32 s56, s56, 0x%x' % (GBLK, G16))
        a('s_lshl_b32 s57, s%d, 10\nv_lshl_add_u32 v2, v0, 4, s57' % WAVE)
        a('v_add_u32 v3, 0xc000, v2')
        for k in range(10):
            a('ds_read_b128 %s, v%d offset:%d' % (v(8+4*k,4), 2 if k < 6 else 3, (k*8192) if k < 6 else (k-6)*8192))
        a('ds_read_b128 v[48:51], v3 offset:%d' % (4*8192))
        a('v_add_u32 v5, %d, v2\nv_cmp_gt_u32 vcc, %d, v5\nv_mov_b32 v4, 0x7ffffff0\ns_nop 0\nv_cndmask_b32 v5, v4, v5, vcc' % (10*8192, GBLK))
        for k in range(10):
            a('s_waitcnt lgkmcnt(%d)' % (10-k))
            a('buffer_store_dwordx4 %s, v2, %s, s56 offen sc1' % (v(8+4*k,4), s(S_WS,4)))
            a('s_add_u32 s56, s56, 8192')
        a('s_sub_u32 s56, s56, %d' % (10*8192))
        a('s_waitcnt lgkmcnt(0)')
        a('buffer_store_dwordx4 v[48:51], v5, %s, s56 offen sc1' % s(S_WS,4))
        a('s_waitcnt vmcnt(0)\ns_barrier')
        self.stamp(4)
        a('s_cmp_lt_u32 s%d, 4\ns_cbranch_scc1 L_p2_mfma' % WAVE)
        a('s_cmp_eq_u32 s%d, 4\ns_cbranch_scc0 L_p2_help' % WAVE)
        a('s_lshl_b32 s56, s54, 1\ns_add_u32 s56, s56, s55\ns_lshl_b32 s56, s56, 7\ns_add_u32 s56, s56, %d' % FLAGS_D)
        a('v_mov_b32 v2, s56\nv_mov_b32 v3, 1')
        a('s_mov_b64 exec, 1')
        a('buffer_store_dword v3, v2, %s, 0 offen sc0 sc1' % s(S_WS,4))
        a('s_mov_b64 exec, -1')
        a('s_branch L_p2_help')

    def _dft_out(self, A0, et):
        a = self.a
        for r in range(16):
            a('v_cvt_pk_bf16_f32 v%d, v%d, v%d' % (A0+r, A0+r, A0+16+r))
        for r in range(16):
            a('ds_write_b32 v4, v%d offset:%d' % (A0+r, (32*et + 8*(r>>2) + (r&3))*16))

    def spare(self):
        a = self.a
        a.label('L_spare')
        a('s_sub_u32 s54, s%d, 28\ns_lshl_b32 s55, s%d, 2\ns_add_u32 s54, s54, s55' % (IDX, XCD))
        a('s_lshl_b32 s55, s54, 3\ns_add_u32 s55, s55, s%d\ns_lshl_b32 s55, s55, 3' % WAVE)
        a('v_lshrrev_b32 v2, 3, v0\nv_add_u32 v2, s55, v2')
        a('v_mul_u32_u24 v3, 1280, v2\nv_and_b32 v4, 7, v0\nv_lshl_add_u32 v3, v4, 4, v3')
        for n in range(10): a('buffer_load_dwordx4 %s, v3, %s, 0 offen offset:%d' % (v(16+4*n,4), s(S_X,4), 128*n))
        a('s_cmp_eq_u32 s%d, 0\ns_cbranch_scc0 L_sp_nc' % WAVE)
        a('s_mul_i32 s56, s54, 25\nv_add_u32 v5, s56, v0\nv_lshlrev_b32 v5, 7, v5\nv_mov_b32 v6, 0')
        a('s_mov_b64 exec, 0x1ffffff')
        a('buffer_store_dword v6, v5, %s, 0 offen sc0 sc1' % s(S_WS,4))
        a('s_mov_b64 exec, -1')
        a.label('L_sp_nc')
        a('s_mul_i32 s57, s%d, 20480' % WAVE)
        a('s_cmp_lt_u32 s%d, 3\ns_cbranch_scc0 L_sp_wd0' % WAVE)
        a('s_mul_i32 s58, s54, 3\ns_add_u32 s58, s58, s%d\ns_lshr_b32 s59, s58, 1\ns_and_b32 s58, s58, 1' % WAVE)
        a('s_cmp_lt_u32 s59, 24')
        a('s_cselect_b32 s%d, s%d, s%d\ns_cselect_b32 s%d, s%d, s%d' % (S_A, P_WG, P_WU, S_A+1, P_WG+1, P_WU+1))
        a('s_cselect_b32 s60, 0, 24\ns_sub_u32 s60, s59, s60\ns_lshl_b32 s60, s60, 7')
        a('s_mov_b32 s%d, 0x%x\ns_mov_b32 s%d, 0x20000' % (S_A+2, 640*1536*2, S_A+3))
        a('s_mul_i32 s61, s58, %d\ns_add_u32 s60, s60, s61' % (320*3072))
        self.wvoff(8, 3072, 12)
        def units(n, stepbytes):
            for u in range(n):
                for j in range(4):
                    a('s_add_u32 m0, s57, %d\ns_nop 0' % (u*4096 + j*1024))
                    a('buffer_load_dwordx4 v%d, %s, s60 offen lds' % (8+j, s(S_A,4)))
                a('s_add_u32 s60, s60, %d' % stepbytes)
        units(5, 32*3072)
        a('s_waitcnt vmcnt(20)\ns_branch L_sp_stats')
        a.label('L_sp_wd0')
        self.srd(S_A, P_WD, 1536*640*2)
        self.wvoff(8, 1280, 12)
        a('s_mul_i32 s58, s54, 15\ns_mul_i32 s59, s%d, 3\ns_add_u32 s58, s58, s59\ns_sub_u32 s58, s58, 9' % WAVE)
        for i in range(3):
            a('s_add_u32 s59, s58, %d\ns_mul_i32 s61, s59, 52429\ns_lshr_b32 s61, s61, 19' % i)
            a('s_mul_i32 s62, s61, 10\ns_sub_u32 s62, s59, s62')
            a('s_mov_b32 s%d, s61\ns_mov_b32 s%d, s62' % (64+2*i, 65+2*i))
            a('s_mul_i32 s60, s61, %d\ns_lshl_b32 s62, s62, 7\ns_add_u32 s60, s60, s62' % (32*1280))
            for j in range(4):
                a('s_add_u32 m0, s57, %d\ns_nop 0' % (i*4096 + j*1024))
                a('buffer_load_dwordx4 v%d, %s, s60 offen lds' % (8+j, s(S_A,4)))
        a('s_waitcnt vmcnt(12)')
        a.label('L_sp_stats')
        F = 64
        for k in range(40):
            a('v_lshlrev_b32 v%d, 16, v%d\nv_and_b32 v%d, 0xffff0000, v%d' % (F+2*k, 16+k, F+2*k+1, 16+k))
        for k in range(4): a('v_pk_add_f32 %s, %s, %s' % (v(16+2*k,2), v(F+2*k,2), v(F+8+2*k,2)))
        for k in range(8, 40): a('v_pk_add_f32 %s, %s, %s' % (v(16+2*(k&3),2), v(16+2*(k&3),2), v(F+2*k,2)))
        def red():
            a('v_pk_add_f32 v[16:17], v[16:17], v[18:19]\nv_pk_add_f32 v[20:21], v[20:21], v[22:23]')
            a('v_pk_add_f32 v[16:17], v[16:17], v[20:21]\nv_add_f32 v16, v16, v17')
            a('s_nop 1\nv_add_f32 v16, v16, v16 quad_perm:[1,0,3,2] row_mask:0xf bank_mask:0xf')
            a('s_nop 1\nv_add_f32 v16, v16, v16 quad_perm:[2,3,0,1] row_mask:0xf bank_mask:0xf')
            a('s_nop 1\nv_add_f32 v16, v16, v16 row_half_mirror row_mask:0xf bank_mask:0xf')
        red()
        a('v_mul_f32 v24, 0x3acccccd, v16')
        for k in range(40): a('v_pk_add_f32 %s, %s, v[24:25] op_sel_hi:[1,0] neg_lo:[0,1] neg_hi:[0,1]' % (v(F+2*k,2), v(F+2*k,2)))
        for k in range(4): a('v_pk_mul_f32 %s, %s, %s' % (v(16+2*k,2), v(F+2*k,2), v(F+2*k,2)))
        for k in range(4, 40): a('v_pk_fma_f32 %s, %s, %s, %s' % (v(16+2*(k&3),2), v(F+2*k,2), v(F+2*k,2), v(16+2*(k&3),2)))
        red()
        a('v_mov_b32 v26, 0x3727c5ac')
        a('v_fmac_f32 v26, 0x3acccccd, v16')
        a('v_rsq_f32 v27, v26\ns_nop 0\nv_mul_f32 v25, 0xbfb8aa3b, v27')
        a('v_lshlrev_b32 v2, 4, v2\nv_add_u32 v2, 0x%x, v2' % STATS)
        a('s_mov_b32 exec_lo, 0x01010101\ns_mov_b32 exec_hi, 0x01010101')
        a('buffer_store_dwordx4 v[24:27], v2, %s, 0 offen sc1' % s(S_WS,4))
        a('s_mov_b64 exec, -1')
        a('v_lshrrev_b32 v4, 2, v0\nv_lshlrev_b32 v4, 7, v4\nv_and_b32 v5, 3, v0\nv_lshl_add_u32 v4, v5, 3, v4')
        a('v_bfe_u32 v5, v0, 3, 1\nv_bfe_u32 v6, v0, 5, 1\nv_lshl_add_u32 v5, v6, 1, v5\nv_lshl_add_u32 v4, v5, 5, v4')
        a('v_add_u32 v4, s57, v4')
        for ct in range(1,4): a('v_xor_b32 v%d, %d, v4' % (4+ct, 32*ct))
        a('s_cmp_lt_u32 s%d, 3\ns_cbranch_scc0 L_sp_wd1' % WAVE)
        for k in range(4): a('v_mov_b32 v%d, 0x3f803f80' % (32+k))
        for k in range(16): a('v_mov_b32 v%d, 0' % (40+k))
        a('s_mov_b32 s62, 0')
        a.label('L_sp_cs')
        a('s_waitcnt vmcnt(0)')
        for u in range(5):
            for ct in range(4):
                for q in range(2):
                    a('ds_read_b64_tr_b16 %s, v%d offset:%d' % (v(F+(u*4+ct)*4+2*q,2), 4+ct, u*4096+q*2048))
            a('s_waitcnt lgkmcnt(0)')
            for ct in range(4):
                a('v_mfma_f32_16x16x32_bf16 %s, %s, v[32:35], %s' % (v(40+4*ct,4), v(F+(u*4+ct)*4,4), v(40+4*ct,4)))
        a('s_cmp_eq_u32 s62, 0\ns_cbranch_scc0 L_sp_cs2\ns_mov_b32 s62, 1')
        units(5, 32*3072)
        a('s_branch L_sp_cs')
        a.label('L_sp_cs2')
        a('s_mul_i32 s58, s58, 12288\ns_lshl_b32 s59, s59, 8\ns_add_u32 s58, s58, s59\ns_add_u32 s58, s58, 0x%x' % COLSUM)
        a('v_and_b32 v2, 48, v0')
        a.nop(6)
        a('s_mov_b32 exec_lo, 0x00010001\ns_mov_b32 exec_hi, 0x00010001')
        for ct in range(4): a('buffer_store_dwordx4 %s, v2, %s, s58 offen offset:%d sc1' % (v(40+4*ct,4), s(S_WS,4), 64*ct))
        a('s_mov_b64 exec, -1')
        a('s_branch L_sp_done')
        a.label('L_sp_wd1')
        a('s_waitcnt vmcnt(0)')
        a('v_lshlrev_b32 v2, 4, v0')
        for i in range(3):
            for ct in range(4):
                for q in range(2):
                    a('ds_read_b64_tr_b16 %s, v%d offset:%d' % (v(F+(i*4+ct)*4+2*q,2), 4+ct, i*4096+q*2048))
            a('s_waitcnt lgkmcnt(0)')
            for ct in range(4):
                a('s_lshl_b32 s58, s%d, 2\ns_add_u32 s58, s58, %d\ns_mul_i32 s59, s58, 52\ns_lshr_b32 s59, s59, 8' % (65+2*i, ct))
                a('s_mul_i32 s60, s59, 5\ns_sub_u32 s60, s58, s60\ns_lshl_b32 s60, s60, 10')
                a('s_mul_i32 s59, s59, 245760\ns_add_u32 s60, s60, s59\ns_mul_i32 s59, s%d, 5120\ns_add_u32 s60, s60, s59\ns_add_u32 s60, s60, 0x%x' % (64+2*i, WDF))
                a('buffer_store_dwordx4 %s, v2, %s, s60 offen sc1' % (v(F+(i*4+ct)*4,4), s(S_WS,4)))
        a.label('L_sp_done')
        a('s_waitcnt vmcnt(0)\ns_barrier')
        self.stamp(1)
        a('s_cmp_eq_u32 s%d, 0\ns_cbranch_scc0 L_sp_w' % WAVE)
        a('v_mov_b32 v2, 0\nv_mov_b32 v3, 1\ns_mov_b64 exec, 1')
        a('buffer_atomic_add v3, v2, %s, 0 offen sc1' % s(S_DBG,4))
        a('s_mov_b64 exec, -1')
        self.poll_counter('L_sp_poll', 2)
        a.label('L_sp_w')
        a('s_barrier')
        self.stamp(2)
        a('s_cmp_lt_u32 s%d, 4\ns_cbranch_scc1 L_p2_mfma' % WAVE)
        a('s_branch L_p2_help')

    def p2_help(self):
        a = self.a
        a.label('L_p2_help')
        if self.stage == 'p1':
            self.dump_stamps(); a('s_endpgm'); return
        a('s_sub_u32 s56, s%d, 4\ns_lshr_b32 s57, s56, 1\ns_and_b32 s56, s56, 1' % WAVE)
        a('s_mul_i32 s58, s%d, 245760\ns_mul_i32 s59, s57, %d\ns_add_u32 s58, s58, s59' % (CS, 24*5120))
        a('s_mul_i32 s59, s56, %d\ns_add_u32 s58, s58, s59\ns_add_u32 s58, s58, 0x%x' % (5*5120, WDF + 14*5120))
        a('v_lshlrev_b32 v2, 4, v0')
        for f in range(25):
            a('buffer_load_dwordx4 %s, v2, %s, s58 offen offset:%d sc1' % (v(16+4*f,4), s(S_WS,4), (f&3)*1024))
            if f & 3 == 3: a('s_add_u32 s58, s58, 4096')
        a('s_mul_i32 s58, s57, %d\ns_add_u32 s58, s58, s59\nv_add_u32 v3, s58, v2' % (14*5120))
        a('s_barrier')
        a('s_barrier')
        a('s_cmp_eq_u32 s56, 0\ns_cbranch_scc1 L_ph_w')
        a('s_barrier')
        a.label('L_ph_w')
        a('s_waitcnt vmcnt(0)')
        for f in range(25): a('ds_write_b128 v3, %s offset:%d' % (v(16+4*f,4), f*1024))
        a('s_waitcnt lgkmcnt(0)')
        a('s_cmp_eq_u32 s56, 0\ns_cbranch_scc0 L_ph_e')
        a('s_barrier')
        a.label('L_ph_e')
        a('s_barrier')
        self.dump_stamps()
        a('s_endpgm')

    def p2_mfma(self):
        a = self.a
        a.label('L_p2_mfma')
        if self.stage == 'p1':
            self.dump_stamps(); a('s_endpgm'); return
        ACC, WB, H = 16, 56, 96
        def acc(t, n): return ACC + (t*5+n)*4
        a('s_and_b32 s56, s%d, 1\ns_lshr_b32 s57, s%d, 1' % (WAVE, WAVE))
        a('s_mul_i32 s58, s%d, 245760\ns_mul_i32 s59, s57, %d\ns_add_u32 s58, s58, s59' % (CS, 24*5120))
        a('s_mul_i32 s59, s56, 35840\ns_add_u32 s58, s58, s59\ns_add_u32 s58, s58, 0x%x' % WDF)
        a('s_mul_i32 s60, s57, 71680\ns_add_u32 s60, s60, s59')
        a('v_lshlrev_b32 v2, 4, v0')
        for f in range(35):
            if f & 3 == 0:
                a('s_add_u32 m0, s60, %d' % (f*1024))
                if f: a('s_add_u32 s58, s58, 4096')
                else: a('s_nop 0')
            a('buffer_load_dwordx4 v2, %s, s58 offen offset:%d sc1 lds' % (s(S_WS,4), (f&3)*1024))
        a('s_lshl_b32 s58, s56, 1\ns_add_u32 s59, s58, s57\ns_sub_u32 s58, s58, s57\ns_add_u32 s58, s58, 1')
        a('v_and_b32 v3, 15, v0\nv_lshrrev_b32 v4, 4, v0')
        a('s_lshl_b32 s60, s59, 9\ns_add_u32 s60, s60, s%d\ns_mul_i32 s60, s60, 1280\ns_mul_i32 s61, s%d, 160\ns_add_u32 s60, s60, s61' % (T1, CS))
        a('v_mul_u32_u24 v5, 40960, v3\nv_lshl_add_u32 v5, v4, 3, v5')
        for n in range(5): a('buffer_load_dwordx2 %s, v5, %s, s60 offen offset:%d' % (v(WB+2*n,2), s(S_X,4), 32*n))
        a('s_lshl_b32 s61, s%d, 2\ns_add_u32 s62, s61, s59\ns_mul_i32 s62, s62, 49152\nv_add_u32 v6, s62, v2' % T1)
        a('s_add_u32 s62, s61, s58\ns_mul_i32 s62, s62, 49152\nv_add_u32 v7, s62, v2')
        a('s_cmp_lt_u32 s%d, 4' % CS)
        a('s_mov_b32 s63, 0xba000000\ns_cselect_b32 s63, 0x3a000000, s63')
        a('s_cselect_b32 s64, 1, -1\ns_cselect_b32 s65, 0, 640')
        a('s_sub_u32 s66, 32, s%d\ns_and_b32 s66, s66, 31\ns_cmp_lt_u32 s%d, 4\ns_cselect_b32 s66, s%d, s66' % (T1, CS, T1))
        a('s_mul_i32 s67, s%d, 80' % CS)
        a('v_mul_u32_u24 v8, %d, v4' % (2*GBLK))
        for n in range(5):
            a('v_add_u32 v9, s67, v3\nv_add_u32 v9, %d, v9' % (16*n))
            a('v_mul_lo_u32 v9, v9, s64\nv_add_u32 v9, s65, v9')
            a('v_and_b32 v10, 1, v9\nv_mul_u32_u24 v10, %d, v10\nv_add_u32 v10, v10, v8' % GBLK)
            a('v_lshrrev_b32 v11, 1, v9\nv_cmp_eq_u32 vcc, 160, v11\ns_nop 1\nv_cndmask_b32 v11, v11, 0, vcc')
            a('v_lshl_add_u32 v10, v11, 4, v10')
            if n == 0:
                a('v_cmp_eq_u32 vcc, 0, v9\nv_mov_b32 v11, 0x7ffffff0\ns_nop 0\nv_cndmask_b32 v10, v10, v11, vcc')
            a('v_mov_b32 v%d, v10' % (H+60+n))
        a('v_and_b32 v9, 31, v0\nv_lshlrev_b32 v9, 7, v9\nv_add_u32 v9, %d, v9\ns_mov_b32 s53, 0' % FLAGS_D)
        a.label('L_p2_pd')
        a('buffer_load_dword v10, v9, %s, 0 offen sc0 sc1' % s(S_WS,4))
        a('s_add_u32 s53, s53, 1\ns_cmp_gt_u32 s53, 0x%x\ns_cbranch_scc1 L_p2_pdx' % SPIN_MAX)
        a('s_waitcnt vmcnt(0)\nv_cmp_ne_u32 vcc, 1, v10\ns_cbranch_vccz L_p2_pdx\ns_sleep 4\ns_branch L_p2_pd')
        a.label('L_p2_pdx')
        self.stamp(5)
        a('s_mul_i32 s68, s66, %d\ns_mul_i32 s69, s57, %d\ns_add_u32 s68, s68, s69\ns_add_u32 s68, s68, 0x%x' % (GROW, 16*GBLK, G16))
        a('s_add_u32 s69, s68, %d' % (8*GBLK))
        for d in range(2):
            for n in range(5):
                a('buffer_load_dwordx4 %s, v%d, %s, s%d offen sc1' % (v(H+(d*5+n)*4,4), H+60+n, s(S_WS,4), 68+d))
        for n in range(5):
            for k in range(2):
                a('v_lshlrev_b32 v%d, 16, v%d\nv_and_b32 v%d, 0xffff0000, v%d' % (acc(0,n)+2*k, WB+2*n+k, acc(0,n)+2*k+1, WB+2*n+k))
        for k in range(20): a('v_mov_b32 v%d, 0' % (acc(1,0)+k))
        TW = H+40
        a('s_lshr_b32 s70, s66, 3')
        for t in range(2):
            a('s_lshl_b32 s71, s%d, 9\ns_add_u32 s71, s71, s%d' % (59 - t, T1))
            a('v_lshl_add_u32 v%d, v3, 5, s71' % (9+t))
        for i in range(4):
            a('s_sub_u32 s71, %d, s70\ns_and_b32 s71, s71, 3\ns_lshl_b32 s72, s57, 5\ns_add_u32 s71, s71, s72' % (i+4))
            a('v_lshl_add_u32 v11, v4, 2, s71')
            a('v_add_u32 v12, 16, v11')
            for t in range(2):
                for d in range(2):
                    r = WB + 20 + (t*2+d)*2
                    a('v_mul_u32_u24 v%d, v%d, v%d' % (r, 9+t, 11+d))
                    a('v_and_b32 v%d, 2047, v%d\nv_cvt_f32_u32 v%d, v%d\nv_mul_f32 v%d, s63, v%d' % (r, r, r, r, r, r))
                    a('v_sin_f32 v%d, v%d\nv_cos_f32 v%d, v%d' % (r+1, r, r, r))
            a('s_nop 0')
            for t in range(2):
                for d in range(2):
                    r = WB + 20 + (t*2+d)*2
                    a('v_cvt_pk_bf16_f32 v%d, v%d, v%d' % (TW+(t*2+d)*4+i, r, r+1))
        a('s_lshl_b32 s60, s59, 9\ns_add_u32 s60, s60, s%d\ns_mul_i32 s60, s60, 1280\ns_mul_i32 s61, s%d, 160\ns_add_u32 s60, s60, s61' % (T1, CS))
        a('s_xor_b32 s73, s%d, 2\ns_mul_i32 s73, s73, 5120\ns_add_u32 s73, s73, 143360' % WAVE)
        a('s_mul_i32 s74, s%d, 5120\ns_add_u32 s74, s74, 143360' % WAVE)
        for m in range(3):
            a('v_add_u32 v8, %d, v0\nv_mul_u32_u24 v9, 205, v8\nv_lshrrev_b32 v9, 11, v9' % (64*m))
            a('v_mul_u32_u24 v%d, 10, v9\nv_sub_u32 v8, v8, v%d\nv_lshlrev_b32 v8, 4, v8' % (10+m, 10+m))
            a('v_mul_u32_u24 v%d, 40960, v9\nv_add_u32 v%d, v%d, v8' % (10+m, 10+m, 10+m))
            a('v_mul_u32_u24 v9, 176, v9\nv_add3_u32 v%d, v9, v8, s74' % (13+m))
        a('v_cmp_gt_u32 vcc, 32, v0\nv_mov_b32 v8, 0x7ffffff0\ns_nop 0\nv_cndmask_b32 v12, v8, v12, vcc')
        a('v_mul_u32_u24 v8, 176, v3\nv_lshl_add_u32 v8, v4, 3, v8\nv_add_u32 v8, s74, v8')
        a('v_add_u32 v9, s73, v2\nv_add_u32 v5, s74, v2')
        a('s_mul_i32 s61, s57, 71680\nv_add_u32 v3, s61, v2')
        a('v_add_u32 v4, 0xc800, v3')
        a('s_waitcnt vmcnt(0)')
        for d in range(2):
            for n in range(5):
                for t in range(2):
                    a('v_mfma_f32_16x16x32_bf16 %s, %s, %s, %s' % (v(acc(t,n),4), v(H+(d*5+n)*4,4), v(TW+(t*2+d)*4,4), v(acc(t,n),4)))
        self.stamp(6)
        a('s_lshr_b32 s61, s%d, 1\ns_mul_i32 s61, s61, 12\ns_mul_i32 s62, s57, 6\ns_add_u32 s61, s61, s62\ns_lshl_b32 s61, s61, 9' % T1)
        a('v_min_u32 v1, 23, v0\nv_lshlrev_b32 v1, 7, v1\ns_mov_b32 s53, 0')
        a.label('L_p2_pf')
        a('buffer_load_dword v%d, v1, %s, s61 offen sc0 sc1' % (WB, s(S_WS,4)))
        a('s_add_u32 s53, s53, 1\ns_cmp_gt_u32 s53, 0x%x\ns_cbranch_scc1 L_p2_pfx' % SPIN_MAX)
        a('s_waitcnt vmcnt(0)\nv_cmp_ne_u32 vcc, 1, v%d\ns_cbranch_vccz L_p2_pfx\ns_sleep 1\ns_branch L_p2_pf' % WB)
        a.label('L_p2_pfx')
        self.stamp(7)
        a('s_mul_i32 s61, s57, %d\ns_add_u32 s61, s61, 0x%x' % (24*1024, HF))
        def hload(j):
            for t in range(2):
                a('buffer_load_dwordx4 %s, v%d, %s, s61 offen offset:%d sc1' % (v(H+(j%20)*8+4*t,4), 6+t, s(S_WS,4), (j&3)*1024))
            if j & 3 == 3: a('s_add_u32 s61, s61, 4096')
        for j in range(20): hload(j)
        a('s_barrier')
        def wread(j):
            sl = j if j < 14 else j - 14
            return ['ds_read_b128 %s, v%d offset:%d' % (v(WB+(j&1)*20+4*n,4), 3 if sl < 10 else 4, (sl if sl < 10 else sl-10)*5120 + n*1024) for n in range(5)]
        for r in wread(0): a(r)
        for j in range(24):
            if j == 4:
                for jj in range(20, 24): hload(jj)
            tot = 40 if j < 4 else 48
            a('s_waitcnt vmcnt(%d) lgkmcnt(0)' % (tot - 2*(j+1)))
            if j in (5, 10, 18): a('s_barrier')
            rd = wread(j+1) if j < 23 else []
            k = 0
            for n in range(5):
                for t in range(2):
                    a('v_mfma_f32_16x16x32_bf16 %s, %s, %s, %s' % (v(acc(t,n),4), v(WB+(j&1)*20+4*n,4), v(H+(j%20)*8+4*t,4), v(acc(t,n),4)))
                    if k < len(rd): a(rd[k]); k += 1
        self.stamp(8)
        a.nop(7)
        for n in range(5): a('ds_write_b128 v9, %s offset:%d' % (v(acc(1,n),4), n*1024))
        a('s_waitcnt lgkmcnt(0)\ns_barrier')
        for n in range(5): a('ds_read_b128 %s, v5 offset:%d' % (v(WB+4*n,4), n*1024))
        for n in range(5):
            a('s_waitcnt lgkmcnt(%d)' % (4-n))
            for k in range(2): a('v_pk_add_f32 %s, %s, %s' % (v(acc(0,n)+2*k,2), v(acc(0,n)+2*k,2), v(WB+4*n+2*k,2)))
            for k in range(2): a('v_cvt_pk_bf16_f32 v%d, v%d, v%d' % (acc(1,n)+k, acc(0,n)+2*k, acc(0,n)+2*k+1))
        for n in range(5): a('ds_write_b64 v8, %s offset:%d' % (v(acc(1,n),2), 32*n))
        a('s_waitcnt lgkmcnt(0)')
        for m in range(3): a('ds_read_b128 %s, v%d' % (v(WB+4*m,4), 13+m))
        for m in range(3):
            a('s_waitcnt lgkmcnt(%d)' % (2-m))
            a('buffer_store_dwordx4 %s, v%d, %s, s60 offen' % (v(WB+4*m,4), 10+m, s(S_OUT,4)))
        if self.stamps:
            a('s_waitcnt vmcnt(0)'); self.stamp(9)
        self.dump_stamps()

    def build(self, header):
        a = self.a
        self.prologue()
        self.ffn_wloader(); self.ffn_xloader(); self.ffn_consumer()
        self.dft_loader(); self.dft_consumer()
        self.spare()
        self.p2_help(); self.p2_mfma()
        a.label('L_end')
        a('s_endpgm')
        errs = check(a.lines)
        for e in errs: print(e, file=sys.stderr)
        txt = header + '; @launch grid=(256,1,1) block=(512,1,1) lds=163840\n'
        txt += '.amdgcn_target "amdgcn-amd-amdhsa--gfx950"\n.text\n.globl %s\n.p2align 8\n.type %s,@function\n%s:\n' % (KN, KN, KN)
        txt += a.text()
        txt += '''.section .rodata,"a"
.p2align 6
.amdhsa_kernel %s
  .amdhsa_next_free_vgpr 256
  .amdhsa_next_free_sgpr 102
  .amdhsa_accum_offset 256
  .amdhsa_group_segment_fixed_size 0
  .amdhsa_kernarg_size 96
  .amdhsa_user_sgpr_count 2
  .amdhsa_user_sgpr_kernarg_segment_ptr 1
  .amdhsa_system_sgpr_workgroup_id_x 1
.end_amdhsa_kernel
''' % KN
        return txt, errs

if __name__ == '__main__':
    import argparse
    ap = argparse.ArgumentParser()
    ap.add_argument('-o', default='k.s'); ap.add_argument('--stage', default='full'); ap.add_argument('--stamps', action='store_true')
    args = ap.parse_args()
    ref = open('parallel_sum__spectral_fnet__swiglu_ffn__prompt.s.ref').read()
    header = ''.join(l + '\n' for l in ref.split('\n') if l.startswith(';') and '@launch' not in l and 'Override launch' not in l and 'grid=ceil' not in l)
    txt, errs = Gen(args.stage, args.stamps).build(header)
    open(args.o, 'w').write(txt)
    print('written', args.o, 'hazard errors:', len(errs))
```

```python
import sys
from dsl import *

KN = 'parallel_sum__spectral_fnet__swiglu_ffn__prompt_kernel'
HFLAG   = 0x0
EPOCH   = 0x18000
SFLAG   = 0x18400
STATS   = 0x20000
COLSUM  = 0x28000
STAMPS  = 0x40000
DFLAG   = 0x80000
WDF     = 0x100000
G16     = 0x300000
HF      = 0x600000
WS_SIZE = 0xC00000
GROW = 161*16
GBLK = 32*GROW
SPIN_MAX = 0x10000
OOB = 0x7ffffff0

S_X, S_WS, S_OUT, S_A = 4, 8, 16, 20
NONCE = 12
P_X, P_HRE, P_HIM, P_WG, P_WU, P_WD, P_OUT, P_DBG, P_WS = 28, 32, 34, 36, 38, 40, 42, 44, 46
WAVE, XCD, IDX = 48, 49, 50
T1, CS = 51, 52

class VM:
    def __init__(self, a): self.a = a; self.q = []
    def op(self, txt, tag): self.a(txt); self.q.append(tag); assert len(self.q) <= 63, len(self.q)
    def wait(self, tag, extra=''):
        idx = max([i for i, t in enumerate(self.q) if t == tag], default=-1)
        if idx < 0:
            if extra: self.a('s_waitcnt ' + extra)
            return
        n = len(self.q) - idx - 1
        self.a('s_waitcnt vmcnt(%d) %s' % (n, extra))
        self.q = self.q[idx+1:]
    def drained(self): self.q = []

class Gen:
    def __init__(self, stage='full', stamps=False, opt=()):
        self.a = Asm(); self.stage = stage; self.stamps = stamps; self.opt = set(opt)

    def srd(self, dst, ptr, size):
        a = self.a
        a('s_mov_b32 %s, %s' % (s(dst), s(ptr)))
        a('s_mov_b32 %s, %s' % (s(dst+1), s(ptr+1)))
        a('s_mov_b32 %s, 0x%x' % (s(dst+2), size))
        a('s_mov_b32 %s, 0x20000' % s(dst+3))

    def stamp(self, k):
        if self.stamps:
            self.a('s_memrealtime s[98:99]\ns_waitcnt lgkmcnt(0)\ns_mov_b32 s%d, s98' % (80+k))

    def dump_stamps(self):
        if not self.stamps: return
        a = self.a
        a('s_memtime s[96:97]\ns_waitcnt lgkmcnt(0)\ns_sub_u32 s95, s96, s95')
        a('s_lshl_b32 s96, s2, 3\ns_add_u32 s96, s96, s%d\ns_lshl_b32 s96, s96, 6\ns_add_u32 s96, s96, 0x%x' % (WAVE, STAMPS))
        self.stamp(14)
        for k in range(16): a('v_mov_b32 v%d, s%d' % (100+k, 80+k))
        a('v_mov_b32 v99, s96')
        a('s_mov_b64 exec, 1')
        for k in range(4): a('buffer_store_dwordx4 v[%d:%d], v99, %s, 0 offen offset:%d' % (100+4*k, 103+4*k, s(S_WS,4), 16*k))
        a('s_waitcnt vmcnt(0)')

    def nonce(self):
        self.a('s_waitcnt lgkmcnt(0)\ns_add_u32 s12, s12, 1\ns_add_u32 s13, s13, 1')

    def spin(self, lbl, va, vd, soff, sleep, first_done=False):
        a = self.a
        a('s_mov_b32 s53, 0')
        if first_done: a('s_branch %s_c' % lbl)
        a.label(lbl)
        a('buffer_load_dwordx2 %s, v%d, %s, %s offen sc1' % (v(vd,2), va, s(S_WS,4), soff))
        a('s_add_u32 s53, s53, 1\ns_cmp_gt_u32 s53, 0x%x\ns_cbranch_scc1 %s_x' % (SPIN_MAX, lbl))
        a('s_waitcnt vmcnt(0)')
        a.label(lbl + '_c')
        a('v_cmp_ne_u64 vcc, s[12:13], %s' % v(vd,2))
        a('s_cbranch_vccz %s_x\ns_sleep %d\ns_branch %s' % (lbl, sleep, lbl))
        a.label(lbl + '_x')

    def setflag(self, va, vd, mask='1'):
        a = self.a
        a('v_mov_b32 v%d, s12\nv_mov_b32 v%d, s13' % (vd, vd+1))
        a('s_mov_b64 exec, %s' % mask)
        a('buffer_store_dwordx2 %s, v%d, %s, 0 offen sc1' % (v(vd,2), va, s(S_WS,4)))
        a('s_mov_b64 exec, -1')

    def prologue(self):
        a = self.a
        a('s_load_dwordx2 s[28:29], s[0:1], 0')
        a('s_load_dwordx4 s[36:39], s[0:1], 48')
        a('s_load_dwordx8 s[40:47], s[0:1], 64')
        a('s_load_dwordx4 s[32:35], s[0:1], 24')
        a('s_cmp_ge_u32 s2, 256\ns_cbranch_scc1 L_end')
        a('v_lshrrev_b32 v1, 6, v0\nv_and_b32 v0, 63, v0')
        a('v_readfirstlane_b32 s%d, v1' % WAVE)
        a('s_and_b32 s%d, s2, 7\ns_lshr_b32 s%d, s2, 3' % (XCD, IDX))
        if self.stamps:
            for k in range(16): a('s_mov_b32 s%d, 0' % (80+k))
            a('s_memtime s[96:97]\ns_waitcnt lgkmcnt(0)\ns_mov_b32 s95, s96')
        a('s_mul_i32 s54, s%d, 43\ns_lshr_b32 s54, s54, 7' % IDX)
        a('s_mul_i32 s55, s54, 3\ns_sub_u32 s55, s%d, s55' % IDX)
        a('s_and_b32 s56, s%d, 1\ns_lshl_b32 s56, s56, 3\ns_add_u32 s54, s54, s56' % XCD)
        a('s_lshr_b32 s56, s%d, 1\ns_mul_i32 s56, s56, 3\ns_add_u32 s55, s55, s56' % XCD)
        a('s_lshr_b32 s%d, s%d, 3\ns_lshl_b32 s53, s%d, 2\ns_add_u32 s%d, s%d, s53\ns_and_b32 s%d, s%d, 7' % (T1, IDX, XCD, T1, T1, CS, IDX))
        a('s_mov_b32 s%d, 0x%x\ns_mov_b32 s%d, 0x20000' % (S_X+2, 2048*640*2, S_X+3))
        a('s_mov_b32 s%d, 0x%x\ns_mov_b32 s%d, 0x20000' % (S_WS+2, WS_SIZE, S_WS+3))
        a('s_mov_b32 s%d, 0x%x\ns_mov_b32 s%d, 0x20000' % (S_OUT+2, 2048*640*2, S_OUT+3))
        a('s_mov_b32 s%d, 0x20000' % (S_A+3))
        a('s_waitcnt lgkmcnt(0)')
        self.stamp(0)
        a('s_load_dwordx2 s[12:13], s[46:47], 0x%x' % EPOCH)
        for d, p in ((S_X, P_X), (S_WS, P_WS), (S_OUT, P_OUT)):
            a('s_mov_b32 s%d, s%d\ns_mov_b32 s%d, s%d' % (d, p, d+1, p+1))
        a('s_cmp_ge_u32 s%d, 24\ns_cbranch_scc1 L_notffn' % IDX)
        a('s_cmp_lt_u32 s%d, 2\ns_cbranch_scc1 L_ffn_wl' % WAVE)
        a('s_cmp_lt_u32 s%d, 4\ns_cbranch_scc1 L_ffn_xl' % WAVE)
        a('s_branch L_ffn_cons')
        a.label('L_notffn')
        if 'ffnonly' in self.opt: a('s_endpgm')
        a('s_cmp_ge_u32 s%d, 28\ns_cbranch_scc1 L_spare' % IDX)
        a('s_sub_u32 s54, s%d, 24\ns_lshr_b32 s55, s%d, 2\ns_lshl_b32 s55, s55, 3\ns_add_u32 s54, s54, s55' % (IDX, XCD))
        a('s_and_b32 s55, s%d, 1\ns_lshl_b32 s55, s55, 2\ns_add_u32 s54, s54, s55\ns_bfe_u32 s55, s%d, 0x10001' % (XCD, XCD))
        a('s_cmp_lt_u32 s%d, 4\ns_cbranch_scc1 L_dft_ld' % WAVE)
        a('s_branch L_dft_cons')

    WSLOT, NWS = 16384, 6
    XB, XSLOT, NXS = 98304, 16384, 3
    MISC = 147456

    def wvoff(self, dst0, rowbytes, tmp):
        a = self.a
        t = tmp
        a('v_lshrrev_b32 v%d, 3, v0' % t)
        a('v_bfe_u32 v%d, v0, 4, 1' % (t+1))
        a('v_bfe_u32 v%d, v0, 1, 2' % (t+2))
        a('v_xor_b32 v%d, v%d, v%d' % (t+2, t+2, t+1))
        a('v_and_b32 v%d, 1, v0' % (t+1))
        a('v_lshlrev_b32 v%d, 4, v%d' % (t+1, t+1))
        a('v_lshl_add_u32 v%d, v%d, 5, v%d' % (t+2, t+2, t+1))
        a('v_mul_u32_u24 v%d, %d, v%d' % (t, rowbytes, t))
        a('v_add_u32 v%d, v%d, v%d' % (dst0, t, t+2))
        a('v_xor_b32 v%d, 64, v%d' % (t+2, t+2))
        a('v_add_u32 v%d, v%d, v%d' % (dst0+1, t, t+2))
        a('v_add_u32 v%d, %d, v%d' % (dst0+1, 8*rowbytes, dst0+1))
        a('v_add_u32 v%d, %d, v%d' % (dst0+2, 16*rowbytes, dst0))
        a('v_add_u32 v%d, %d, v%d' % (dst0+3, 16*rowbytes, dst0+1))

    def rot_start(self, dst):
        a = self.a
        if 'norot' in self.opt:
            a('s_mov_b32 s%d, 0' % dst); return
        a('s_and_b32 s%d, s54, 1\ns_lshl_b32 s%d, s%d, 2\ns_bitcmp1_b32 s54, 1\ns_cselect_b32 s53, 10, 0\ns_add_u32 s%d, s%d, s53' % (dst, dst, dst, dst, dst))

    def ffn_wloader(self):
        a = self.a; vm = VM(a)
        a.label('L_ffn_wl')
        a('s_cmp_eq_u32 s%d, 0' % WAVE)
        a('s_cselect_b32 s%d, s%d, s%d\ns_cselect_b32 s%d, s%d, s%d' % (S_A, P_WG, P_WU, S_A+1, P_WG+1, P_WU+1))
        a('s_mov_b32 s%d, 0x%x' % (S_A+2, 640*1536*2))
        self.wvoff(4, 3072, 8)
        self.rot_start(58)
        a('s_lshl_b32 s59, s55, 8\ns_mul_i32 s56, s58, %d\ns_add_u32 s56, s56, s59' % (32*3072))
        a('s_add_u32 s59, s59, %d' % (20*32*3072))
        a('s_lshl_b32 s57, s%d, 13' % WAVE)
        def issue(n):
            for b in range(2):
                for j in range(4):
                    a('s_add_u32 m0, s57, %d' % ((n % self.NWS)*self.WSLOT + b*4096 + j*1024 - b*128))
                    a('s_nop 0')
                    if 'now' not in self.opt: vm.op('buffer_load_dwordx4 v%d, %s, s56 offen offset:%d lds' % (4+j, s(S_A,4), b*128), n)
            a('s_add_u32 s56, s56, %d\ns_cmp_eq_u32 s56, s59\ns_cselect_b32 s60, %d, 0\ns_sub_u32 s56, s56, s60' % (32*3072, 20*32*3072))
        sched = {-1: [0,1,2], 0: [3], 1: [4,5], 2: [6], 3: [7,8]}
        for m in range(4, 15): sched[m] = [m+5]
        for n in sched[-1]: issue(n)
        self.nonce()
        for m in range(21):
            if m < 20: vm.wait(m)
            if m == 0: self.stamp(1)
            a('s_barrier')
            for n in sched.get(m, []): issue(n)
        self.stamp(2)
        a('s_branch L_p2_mfma')

    def ffn_xloader(self):
        a = self.a; vm = VM(a)
        a.label('L_ffn_xl')
        a('s_sub_u32 s56, s%d, 2' % WAVE)
        a('v_lshrrev_b32 v2, 3, v0\nv_lshrrev_b32 v3, 4, v0')
        a('s_lshl_b32 s57, s56, 2')
        a('v_add_u32 v3, s57, v3\nv_and_b32 v12, 7, v0\nv_xor_b32 v3, v3, v12\nv_lshlrev_b32 v3, 4, v3')
        a('v_mul_u32_u24 v2, 40960, v2\nv_add_u32 v2, v2, v3')
        a('s_lshl_b32 s57, s56, 8\ns_lshl_b32 s58, s54, 1\ns_add_u32 s57, s57, s58\ns_mul_i32 s57, s57, 1280')
        a('v_add_u32 v4, s57, v2')
        for tt in range(1, 8):
            a('v_add_u32 v%d, %d, v4' % (4+tt, ((tt>>2) + 512*(tt&3))*1280))
        a('s_lshl_b32 s57, s56, 10')
        self.rot_start(58)
        a('s_lshl_b32 s58, s58, 6')
        def issue(c):
            for tt in range(8):
                a('s_add_u32 m0, s57, %d' % (self.XB + (c % self.NXS)*self.XSLOT + tt*2048))
                a('s_nop 0')
                if 'nox' not in self.opt: vm.op('buffer_load_dwordx4 v%d, %s, s58 offen lds' % (4+tt, s(S_X,4)), c)
            a('s_add_u32 s58, s58, 128\ns_cmp_eq_u32 s58, 1280\ns_cselect_b32 s58, 0, s58')
        issue(0); issue(1)
        self.nonce()
        a('s_cmp_eq_u32 s56, 0\ns_cbranch_scc0 L_ffn_xl3')
        q0 = list(vm.q)
        for role in (2, 3):
            vm.q = list(q0)
            if role == 2:
                a('v_lshrrev_b32 v12, 4, v0\nv_bfe_u32 v13, v0, 2, 2')
                a('v_lshl_add_u32 v14, v12, 3, v13\nv_lshlrev_b32 v14, 7, v14')
                a('v_and_b32 v13, 3, v0\nv_lshl_add_u32 v14, v13, 3, v14')
                a('v_bfe_u32 v13, v0, 3, 1\nv_bfe_u32 v15, v0, 4, 1\nv_lshl_add_u32 v13, v15, 1, v13')
                a('v_lshl_add_u32 v14, v13, 5, v14')
                a('s_lshr_b32 s60, s54, 2\ns_lshl_b32 s60, s60, 12\nv_add_u32 v16, s60, v14')
                for ct in range(1, 4): a('v_xor_b32 v%d, %d, v16' % (16+ct, 32*ct))
                for k in range(4): a('v_mov_b32 v%d, 0x3f803f80' % (20+k))
                for k in range(16): a('v_mov_b32 v%d, 0' % (24+k))
                a('s_and_b32 s61, s54, 3\ns_mul_i32 s61, s61, 12288\ns_lshr_b32 s62, s54, 3\ns_mul_i32 s62, s62, 6144\ns_add_u32 s61, s61, s62')
                a('s_lshl_b32 s62, s55, 9\ns_add_u32 s61, s61, s62\ns_bfe_u32 s62, s54, 0x10002\ns_lshl_b32 s62, s62, 8\ns_add_u32 s61, s61, s62\ns_add_u32 s61, s61, 0x%x' % COLSUM)
                a('v_and_b32 v56, 48, v0')
                a('s_lshl_b32 s62, s55, 4\ns_add_u32 s62, s62, s54\ns_lshl_b32 s62, s62, 3\ns_add_u32 s62, s62, 0x%x\nv_mov_b32 v57, s62' % (SFLAG+512))
                a('v_and_b32 v12, 15, v0\nv_lshlrev_b32 v12, 5, v12')
                a('v_lshrrev_b32 v13, 4, v0\nv_lshl_add_u32 v12, v13, 9, v12')
                a('s_lshl_b32 s60, s54, 1\nv_add_u32 v12, s60, v12')
                a('v_lshlrev_b32 v12, 4, v12\nv_add_u32 v12, 0x%x, v12' % STATS)
                a('v_lshlrev_b32 v13, 4, v0\nv_add_u32 v13, %d, v13' % self.MISC)
                a('v_lshlrev_b32 v14, 3, v0\nv_add_u32 v14, 0x%x, v14' % SFLAG)
            else:
                a.label('L_ffn_xl3')
                a('v_lshrrev_b32 v13, 5, v0\nv_mul_u32_u24 v13, 6144, v13')
                a('v_and_b32 v12, 31, v0\nv_lshl_add_u32 v12, v12, 4, v13')
                a('s_lshl_b32 s60, s55, 9\ns_add_u32 s60, s60, 0x%x\nv_add_u32 v12, s60, v12' % COLSUM)
                a('v_lshlrev_b32 v13, 4, v0\nv_add_u32 v13, %d, v13' % (self.MISC+2048))
                a('v_and_b32 v14, 15, v0\nv_lshlrev_b32 v14, 3, v14\ns_lshl_b32 s60, s55, 7\ns_add_u32 s60, s60, 0x%x\nv_add_u32 v14, s60, v14' % (SFLAG+512))
                a('s_mov_b32 s61, 12288\ns_mov_b32 s62, 24576\ns_mov_b32 s63, 36864')
            for m in range(21):
                if m % 2 == 0 and m < 20: vm.wait(m//2)
                if m == 20: a('s_waitcnt lgkmcnt(0)')
                a('s_barrier')
                if role == 2 and m == 8:
                    vm.wait('cs')
                    self.setflag(57, 58); vm.q.append('fl')
                if role == 2 and m == 6:
                    a('s_mov_b32 exec_lo, 0x00010001\ns_mov_b32 exec_hi, 0x00010001')
                    for ct in range(4): vm.op('buffer_store_dwordx4 %s, v56, %s, s61 offen offset:%d sc1' % (v(24+4*ct,4), s(S_WS,4), 64*ct), 'cs')
                    a('s_mov_b64 exec, -1')
                if m == 14:
                    vm.op('buffer_load_dwordx2 v[60:61], v14, %s, 0 offen sc1' % s(S_WS,4), 'poll')
                if m % 2 == 0 and m//2 + 2 < 10: issue(m//2 + 2)
                if role == 2 and m < 6:
                    if m == 4: a('s_bitcmp1_b32 s54, 0\ns_cbranch_scc0 L_cs_skip4')
                    if m == 5: a('s_bitcmp1_b32 s54, 0\ns_cbranch_scc0 L_cs_skip5')
                    for ct in range(4):
                        for q in range(2):
                            a('ds_read_b64_tr_b16 %s, v%d offset:%d' % (v(40+4*ct+2*q,2), 16+ct, q*512))
                    for ct in range(4): a('v_add_u32 v%d, %d, v%d' % (16+ct, self.WSLOT, 16+ct))
                    a('s_waitcnt lgkmcnt(0)')
                    for ct in range(4): a('v_mfma_f32_16x16x32_bf16 %s, %s, v[20:23], %s' % (v(24+4*ct,4), v(40+4*ct,4), v(24+4*ct,4)))
                    if m >= 4: a.label('L_cs_skip%d' % m)
                    if m == 5: a.nop(8)
                if m == 16:
                    vm.wait('poll')
                    if 'nospin' not in self.opt: self.spin('L_xl_sp%d' % role, 14, 60, '0', 4, first_done=True)
                    if role == 2:
                        vm.op('buffer_load_dwordx4 v[64:67], v12, %s, 0 offen sc1' % s(S_WS,4), 'st')
                        vm.op('buffer_load_dwordx4 v[68:71], v12, %s, 0 offen offset:16 sc1' % s(S_WS,4), 'st')
                    else:
                        vm.op('buffer_load_dwordx4 v[64:67], v12, %s, 0 offen sc1' % s(S_WS,4), 'st')
                        for k in range(3): vm.op('buffer_load_dwordx4 %s, v12, %s, s%d offen sc1' % (v(68+4*k,4), s(S_WS,4), 61+k), 'st')
                if m == 18:
                    vm.wait('st')
                    if role == 2:
                        a('ds_write_b128 v13, v[64:67]\nds_write_b128 v13, v[68:71] offset:1024')
                    else:
                        for k in range(2):
                            a('v_pk_add_f32 %s, %s, %s' % (v(64+2*k,2), v(64+2*k,2), v(68+2*k,2)))
                            a('v_pk_add_f32 %s, %s, %s' % (v(72+2*k,2), v(72+2*k,2), v(76+2*k,2)))
                        for k in range(2): a('v_pk_add_f32 %s, %s, %s' % (v(64+2*k,2), v(64+2*k,2), v(72+2*k,2)))
                        a('ds_write_b128 v13, v[64:67]')
            self.stamp(2)
            a('s_branch L_p2_mfma')

    def ffn_consumer(self):
        a = self.a
        ACC, FR = 8, 136
        AW = [2, 3, 232, 233]
        AX = [4, 5]
        def acc(tt, mat, c2): return ACC + ((tt*2 + mat)*2 + c2)*4
        def xf(st, tt): return FR + st*48 + tt*4
        def wf(st, mat, c2): return FR + st*48 + 32 + (mat*2 + c2)*4
        a.label('L_ffn_cons')
        a('s_sub_u32 s56, s%d, 4' % WAVE)
        a('s_getpc_b64 s[60:61]')
        a.label('L_pc')
        a('s_sub_u32 s60, s60, L_pc-%s\ns_subb_u32 s61, s61, 0' % KN)
        a('s_lshl_b32 s53, s56, 13')
        a('v_lshl_add_u32 v2, v0, 7, s53')
        a('v_add_u32 v3, 0x8000, v2')
        a('v_min_u32 v2, L_end-%s, v2\nv_min_u32 v3, L_end-%s, v3' % (KN, KN))
        a('global_load_dword v255, v2, s[60:61]\nglobal_load_dword v255, v3, s[60:61]')
        if 'notouch' not in self.opt:
            self.rot_start(58)
            a('s_mul_i32 s57, s%d, 43\ns_lshr_b32 s57, s57, 7\ns_mul_i32 s59, s57, 3\ns_sub_u32 s59, s%d, s59' % (IDX, IDX))
            a('s_lshl_b32 s59, s59, 2\ns_add_u32 s59, s59, s56')
            a('v_and_b32 v2, 15, v0\nv_lshlrev_b32 v2, 5, v2\nv_lshrrev_b32 v3, 4, v0\nv_lshl_add_u32 v2, v3, 9, v2')
            a('s_and_b32 s62, s59, 1\ns_lshl_b32 s63, s54, 1\ns_add_u32 s62, s62, s63\nv_add_u32 v2, s62, v2\nv_mul_u32_u24 v2, 1280, v2')
            a('s_lshr_b32 s62, s58, 1\ns_lshr_b32 s63, s59, 1\ns_add_u32 s62, s62, s63\ns_add_u32 s62, s62, 2')
            a('s_cmp_ge_u32 s62, 10\ns_cselect_b32 s63, 10, 0\ns_sub_u32 s63, s62, s63\ns_lshl_b32 s63, s63, 7')
            a('buffer_load_dword v255, v2, %s, s63 offen' % s(S_X,4))
            a('s_lshl_b32 s57, s57, 2\ns_add_u32 s57, s57, s56\ns_cmp_lt_u32 s57, 16\ns_cbranch_scc0 L_fc_t2')
            a('s_bitcmp0_b32 s57, 0')
            a('s_cselect_b32 s%d, s%d, s%d\ns_cselect_b32 s%d, s%d, s%d' % (S_A, P_WG, P_WU, S_A+1, P_WG+1, P_WU+1))
            a('s_mov_b32 s%d, 0x%x' % (S_A+2, 640*1536*2))
            a('s_lshr_b32 s57, s57, 1\ns_and_b32 s63, s57, 3\ns_cmp_eq_u32 s63, 0\ns_cselect_b32 s64, 3, 6\ns_add_u32 s63, s63, s64')
            a('s_cmp_ge_u32 s57, 4\ns_cselect_b32 s64, 10, 0\ns_add_u32 s63, s63, s64\ns_mul_i32 s63, s63, %d\ns_lshl_b32 s64, s55, 8\ns_add_u32 s63, s63, s64' % (32*3072))
            a('v_lshrrev_b32 v3, 1, v0\nv_mul_u32_u24 v3, 3072, v3\nv_and_b32 v4, 1, v0\nv_lshl_add_u32 v3, v4, 7, v3')
            a('buffer_load_dword v255, v3, %s, s63 offen' % s(S_A,4))
            a.label('L_fc_t2')
            a('s_cmp_lt_u32 s59, 4\ns_cbranch_scc0 L_fc_t3')
            a('s_add_u32 s62, s62, 6\ns_cmp_ge_u32 s62, 10\ns_cselect_b32 s63, 10, 0\ns_sub_u32 s63, s62, s63\ns_lshl_b32 s63, s63, 7')
            a('buffer_load_dword v255, v2, %s, s63 offen' % s(S_X,4))
            a.label('L_fc_t3')
        a('s_setprio 1')
        a('v_lshrrev_b32 v6, 4, v0\nv_bfe_u32 v7, v0, 2, 2')
        a('v_lshl_add_u32 v8, v6, 3, v7\nv_lshlrev_b32 v8, 7, v8')
        a('v_and_b32 v9, 3, v0\nv_lshl_add_u32 v8, v9, 3, v8')
        a('v_bfe_u32 v9, v0, 3, 1\nv_bfe_u32 v10, v0, 4, 1\nv_lshl_add_u32 v9, v10, 1, v9')
        a('s_and_b32 s57, s56, 1\ns_lshl_b32 s57, s57, 1')
        a('v_xor_b32 v9, s57, v9\nv_lshl_add_u32 v8, v9, 5, v8')
        a('s_lshr_b32 s57, s56, 1\ns_lshl_b32 s57, s57, 12')
        a('v_add_u32 v%d, s57, v8' % AW[0])
        a('v_xor_b32 v%d, 32, v%d' % (AW[1], AW[0]))
        a('v_add_u32 v%d, %d, v%d\nv_add_u32 v%d, %d, v%d' % (AW[2], 3*self.WSLOT, AW[0], AW[3], 3*self.WSLOT, AW[1]))
        a('v_and_b32 v8, 15, v0\nv_lshrrev_b32 v9, 1, v8\nv_xor_b32 v9, v9, v6')
        a('v_lshlrev_b32 v9, 4, v9\nv_lshl_add_u32 v9, v8, 7, v9')
        a('v_add_u32 v%d, %d, v9' % (AX[0], self.XB))
        a('v_xor_b32 v%d, 64, v%d' % (AX[1], AX[0]))
        a('v_lshlrev_b32 v234, 4, v8\nv_add_u32 v234, %d, v234' % self.MISC)
        a('v_lshlrev_b32 v235, 4, v6\ns_lshl_b32 s57, s56, 7\nv_add_u32 v235, s57, v235\nv_add_u32 v235, %d, v235' % (self.MISC+2048))
        a('v_lshlrev_b32 v236, 4, v0')
        a('s_lshl_b32 s58, s54, 4\ns_add_u32 s58, s58, s55\ns_lshl_b32 s58, s58, 2\ns_add_u32 s58, s58, s56\ns_lshl_b32 s58, s58, 3\nv_mov_b32 v237, s58')
        a('s_mul_i32 s57, s54, %d\ns_lshl_b32 s58, s55, 2\ns_add_u32 s58, s58, s56\ns_lshl_b32 s58, s58, 10\ns_add_u32 s57, s57, s58\ns_add_u32 s57, s57, 0x%x' % (8*49152, HF))
        self.nonce()
        def reads(n):
            st = n & 1; sl = n % self.NWS
            r = []
            for mat in range(2):
                for c2 in range(2):
                    for q in range(2):
                        r.append('ds_read_b64_tr_b16 v[%d:%d], v%d offset:%d' % (wf(st,mat,c2)+2*q, wf(st,mat,c2)+2*q+1, AW[c2 + 2*(sl//3)], (sl%3)*self.WSLOT + mat*8192 + q*512))
            for tt in range(8):
                r.append('ds_read_b128 %s, v%d offset:%d' % (v(xf(st,tt),4), AX[n&1], ((n//2) % self.NXS)*self.XSLOT + tt*2048))
            return r
        ST, CSR, TM = FR, FR+32, 238
        ep_reads = ['ds_read_b128 %s, v234 offset:%d' % (v(ST+4*tt,4), tt*256) for tt in range(8)]
        ep_reads += ['ds_read_b128 %s, v235 offset:%d' % (v(CSR+(mat*2+c2)*4,4), mat*512 + c2*64) for mat in range(2) for c2 in range(2)]
        a('s_barrier')
        self.stamp(1)
        for r in reads(0): a(r)
        a.align(3)
        for n in range(20):
            st = n & 1
            a('s_waitcnt lgkmcnt(0)\ns_barrier')
            if n == 10: self.stamp(5)
            rd = reads(n+1) if n < 19 else ep_reads
            k = 0
            for tt in range(8):
                for mat in range(2):
                    for c2 in range(2):
                        A = acc(tt, mat, c2)
                        if 'nomfma' not in self.opt: a('v_mfma_f32_16x16x32_bf16 %s, %s, %s, %s' % (v(A,4), v(wf(st,mat,c2),4), v(xf(st,tt),4), v(A,4) if n else '0'))
                        if k < len(rd) and 'nords' not in self.opt: a(rd[k]); k += 1
        self.stamp(2)
        a('s_waitcnt lgkmcnt(0)')
        OUT = FR + 48
        for tt in range(8):
            m, q = ST+4*tt, ST+4*tt+2
            O = OUT + tt*4
            t = TM + (tt&1)*8
            pairs = [(c2, hh) for c2 in range(2) for hh in range(2)]
            for k, (c2, hh) in enumerate(pairs):
                ga = acc(tt,0,c2)+2*hh; ua = acc(tt,1,c2)+2*hh
                a('v_pk_fma_f32 %s, %s, %s, %s op_sel_hi:[0,1,1] neg_lo:[1,0,0] neg_hi:[1,0,0]' % (v(ga,2), v(m,2), v(CSR+c2*4+2*hh,2), v(ga,2)))
                a('v_pk_fma_f32 %s, %s, %s, %s op_sel_hi:[0,1,1] neg_lo:[1,0,0] neg_hi:[1,0,0]' % (v(ua,2), v(m,2), v(CSR+8+c2*4+2*hh,2), v(ua,2)))
            for k, (c2, hh) in enumerate(pairs):
                ga = acc(tt,0,c2)+2*hh
                a('v_pk_mul_f32 %s, %s, %s op_sel:[0,1] op_sel_hi:[1,1]' % (v(t+2*k,2), v(ga,2), v(m,2)))
            for k in range(8): a('v_exp_f32 v%d, v%d' % (t+k, t+k))
            for k, (c2, hh) in enumerate(pairs):
                ga = acc(tt,0,c2)+2*hh; ua = acc(tt,1,c2)+2*hh
                a('v_pk_mul_f32 %s, %s, %s' % (v(ga,2), v(ga,2), v(ua,2)))
                a('v_pk_fma_f32 %s, %s, %s, %s op_sel_hi:[1,0,0]' % (v(t+2*k,2), v(t+2*k,2), v(q,2), v(q,2)))
            for k in range(8): a('v_rcp_f32 v%d, v%d' % (t+k, t+k))
            a('s_nop 0')
            for k, (c2, hh) in enumerate(pairs):
                ga = acc(tt,0,c2)+2*hh
                a('v_pk_mul_f32 %s, %s, %s' % (v(ga,2), v(ga,2), v(t+2*k,2)))
            for k, (c2, hh) in enumerate(pairs):
                ga = acc(tt,0,c2)+2*hh
                a('v_cvt_pk_bf16_f32 v%d, v%d, v%d' % (O+k, ga, ga+1))
            a('buffer_store_dwordx4 %s, v236, %s, s57 offen sc1' % (v(O,4), s(S_WS,4)))
            a('s_add_u32 s57, s57, 49152')
        self.stamp(3)
        a('s_waitcnt vmcnt(0)')
        self.stamp(4)
        self.setflag(237, 2)
        a('s_setprio 0')
        a('s_branch L_p2_help')

    MSLOT = 40960; MB = 32768; XFB = 0; XFS = 16384; DMISC = 155648

    def dft_loader(self):
        a = self.a; vm = VM(a)
        RAW = 32
        a.label('L_dft_ld')
        a('s_cmp_lt_u32 s%d, 2' % WAVE)
        a('s_cselect_b32 s%d, s%d, s%d\ns_cselect_b32 s%d, s%d, s%d' % (S_A, P_HRE, P_HIM, S_A+1, P_HRE+1, P_HIM+1))
        a('s_mov_b32 s%d, 0x%x' % (S_A+2, 640*640*2))
        a('v_lshrrev_b32 v2, 3, v0\nv_lshrrev_b32 v3, 4, v0\nv_and_b32 v4, 7, v0')
        a('v_mul_u32_u24 v5, 81920, v2\nv_lshl_add_u32 v5, v4, 4, v5')
        a('s_lshl_b32 s56, s54, 2\ns_add_u32 s56, s56, s%d\ns_mul_i32 s56, s56, 1280' % WAVE)
        for u in range(1, 4): a('s_add_u32 s%d, s56, %d' % (56+u, u*512*1280))
        def xload(c):
            for u in range(4):
                vm.op('buffer_load_dwordx4 %s, v5, %s, s%d offen offset:%d' % (v(RAW+32*c+8*u,4), s(S_X,4), 56+u, 128*c), 'x%d' % c)
                vm.op('buffer_load_dwordx4 %s, v5, %s, s%d offen offset:%d' % (v(RAW+32*c+8*u+4,4), s(S_X,4), 56+u, 128*c+640), 'x%d' % c)
        xload(0)
        a('v_xor_b32 v3, v3, v4\nv_lshlrev_b32 v3, 4, v3')
        a('v_mul_u32_u24 v6, 2560, v2\nv_add_u32 v6, v6, v3\nv_xor_b32 v7, 64, v6')
        a('s_or_b32 s60, s55, s%d\ns_cmp_eq_u32 s60, 0\ns_cselect_b32 s60, %d, 0' % (WAVE, 320*1280))
        a('v_cmp_gt_u32 vcc, 8, v0\nv_mov_b32 v8, s60\ns_nop 0\nv_cndmask_b32 v8, 0, v8, vcc\nv_add_u32 v8, v8, v6')
        a('s_and_b32 s60, s%d, 1\ns_mul_i32 s60, s60, 160\ns_add_u32 s60, s60, s55\ns_mul_i32 s60, s60, 1280' % WAVE)
        a('s_mul_i32 s61, s%d, 10240' % WAVE)
        def mload(c):
            for u in range(10):
                a('s_add_u32 m0, s61, %d' % (self.MB + (c%3)*self.MSLOT + u*1024 - 128*c))
                a('s_add_u32 s62, s60, %d' % (u*16*1280))
                vm.op('buffer_load_dwordx4 v%d, %s, s62 offen offset:%d lds' % (8 if u == 0 else 6+(u&1), s(S_A,4), 128*c), 'm%d' % c)
        mload(0); xload(1)
        a('s_lshl_b32 s63, s%d, 12\ns_add_u32 s63, s63, %d' % (WAVE, self.XFB))
        a('v_lshl_add_u32 v9, v2, 7, v3\nv_add_u32 v9, s63, v9\nv_xor_b32 v10, 64, v9')
        a('s_cmp_eq_u32 s55, 0\ns_cselect_b32 s63, 1.0, -1.0')
        a('v_mov_b32 v12, s63\nv_mov_b32 v13, s63')
        a('v_lshlrev_b32 v11, 3, v0\nv_add_u32 v11, 0x%x, v11' % SFLAG)
        self.nonce()
        def fold(c):
            vm.wait('x%d' % c)
            for u in range(4):
                lo = RAW+32*c+8*u; hi = lo+4; t = 16
                for k in range(4):
                    a('v_lshlrev_b32 v%d, 16, v%d\nv_and_b32 v%d, 0xffff0000, v%d' % (t+2*k, lo+k, t+2*k+1, lo+k))
                    a('v_lshlrev_b32 v%d, 16, v%d\nv_and_b32 v%d, 0xffff0000, v%d' % (t+8+2*k, hi+k, t+8+2*k+1, hi+k))
                for k in range(4):
                    a('v_pk_fma_f32 %s, %s, v[12:13], %s' % (v(t+2*k,2), v(t+8+2*k,2), v(t+2*k,2)))
                for k in range(4):
                    a('v_cvt_pk_bf16_f32 v%d, v%d, v%d' % (lo+k, t+2*k, t+2*k+1))
                a('ds_write_b128 v%d, %s offset:%d' % (9+(u&1), v(lo,4), (c&1)*self.XFS + u*1024))
        fold(0); mload(1)
        vm.wait('m0', 'lgkmcnt(0)'); a('s_barrier')
        self.stamp(1)
        xload(2); mload(2); fold(1)
        vm.wait('m1', 'lgkmcnt(0)'); a('s_barrier')
        xload(3); mload(3); fold(2)
        vm.wait('m2', 'lgkmcnt(0)'); a('s_barrier')
        xload(4); mload(4); fold(3)
        vm.wait('m3', 'lgkmcnt(0)'); a('s_barrier')
        vm.op('buffer_load_dwordx2 v[14:15], v11, %s, 0 offen sc1' % s(S_WS,4), 'poll')
        fold(4)
        vm.wait('poll', 'lgkmcnt(0)'); a('s_barrier')
        self.spin('L_dl_sp', 11, 14, '0', 4, first_done=True)
        a('v_and_b32 v2, 31, v0\nv_lshlrev_b32 v3, 10, v2')
        a('s_lshl_b32 s56, s54, 2\ns_add_u32 s56, s56, s%d\ns_lshl_b32 s56, s56, 4\ns_add_u32 s56, s56, 0x%x' % (WAVE, STATS+12))
        a('buffer_load_dword v4, v3, %s, s56 offen sc1' % s(S_WS,4))
        a('s_lshl_b32 s56, s%d, 7\ns_add_u32 s56, s56, %d' % (WAVE, self.DMISC))
        a('v_lshl_add_u32 v2, v2, 2, s56')
        a('s_waitcnt vmcnt(0)\nds_write_b32 v2, v4\ns_waitcnt lgkmcnt(0)')
        a('s_barrier')
        self.stamp(2)
        a('s_branch L_dft_copy')

    def dft_consumer(self):
        a = self.a
        ACC = 8
        MP, XP = 168, 200
        a.label('L_dft_cons')
        a('s_sub_u32 s56, s%d, 4' % WAVE)
        if 'notouch' not in self.opt:
            a('s_sub_u32 s57, s%d, 24\ns_lshl_b32 s57, s57, 2\ns_add_u32 s57, s57, s56\ns_min_u32 s57, s57, 14' % IDX)
            a('s_mul_i32 s58, s57, 52\ns_lshr_b32 s58, s58, 8\ns_mul_i32 s59, s58, 5\ns_sub_u32 s59, s57, s59')
            a('s_lshl_b32 s59, s59, 6\nv_add_u32 v2, s59, v0')
            a('v_cmp_gt_u32 vcc, 160, v2\nv_subrev_u32 v3, 160, v2\nv_mov_b32 v4, 0x%x\nv_mul_u32_u24 v5, 2560, v2\nv_mul_u32_u24 v3, 2560, v3' % OOB)
            a('v_cndmask_b32 v5, v4, v5, vcc\nv_cndmask_b32 v3, v3, v4, vcc')
            a('s_lshl_b32 s58, s58, 7\ns_add_u32 s58, s58, 256\ns_mul_i32 s59, s55, 1280\ns_add_u32 s58, s58, s59')
            a('s_mov_b32 s%d, s%d\ns_mov_b32 s%d, s%d\ns_mov_b32 s%d, 0x%x' % (S_A, P_HRE, S_A+1, P_HRE+1, S_A+2, 640*640*2))
            a('buffer_load_dword v223, v5, %s, s58 offen' % s(S_A,4))
            a('s_mov_b32 s24, s%d\ns_mov_b32 s25, s%d\ns_mov_b32 s26, 0x%x\ns_mov_b32 s27, 0x20000' % (P_HIM, P_HIM+1, 640*640*2))
            a('buffer_load_dword v223, v3, s[24:27], s58 offen')
        a('s_setprio 1')
        a('v_and_b32 v208, 31, v0\nv_lshrrev_b32 v209, 5, v0\nv_bfe_u32 v210, v0, 1, 3\nv_xor_b32 v210, v210, v209')
        a('v_lshlrev_b32 v210, 4, v210\nv_lshl_add_u32 v210, v208, 7, v210')
        AM = [[211+4*k+u for u in range(4)] for k in range(3)]; AX = [2, 3, 4, 5]
        a('s_lshl_b32 s57, s56, 12\ns_add_u32 s57, s57, %d' % self.XFB)
        for u in range(4):
            a('v_xor_b32 v6, %d, v210' % (32*u))
            a('v_add_u32 v%d, s57, v6' % AX[u])
            for k in range(3): a('v_add_u32 v%d, %d, v6' % (AM[k][u], self.MB + k*self.MSLOT))
        a('v_lshlrev_b32 v7, 2, v209\ns_mov_b32 s62, 0x3d000000')
        for k in range(16):
            r = 224 + k
            a('v_add_u32 v%d, %d, v7\nv_mul_u32_u24 v%d, v%d, v208\nv_and_b32 v%d, 31, v%d\nv_cvt_f32_u32 v%d, v%d\nv_mul_f32 v%d, s62, v%d' % (r, 8*(k>>2)+(k&3), r, r, r, r, r, r, r, r))
        for k in range(16):
            a('v_sin_f32 v%d, v%d\nv_cos_f32 v%d, v%d' % (240+k, 224+k, 224+k, 224+k))
        self.nonce()
        def accr(m): return ACC + 32*(m%5) + 16*(m//5)
        rd = []; need = []
        for c in range(5):
            for u in range(4):
                rd.append((c, 'ds_read_b128 %s, v%d offset:%d' % (v(XP+4*(u&1),4), AX[u], (c&1)*self.XFS)))
                for m in range(10):
                    rd.append((c, 'ds_read_b128 %s, v%d offset:%d' % (v(MP+4*((10*u+m)%8),4), AM[c%3][u], m*4096)))
                    need.append(len(rd)-1)
        LA = 6
        a('s_barrier')
        self.stamp(1)
        for _, r in rd[:8]: a(r)
        issued = 8; done = 0
        a.align(3)
        for g in range(200):
            c, mu = divmod(g, 40); u, m = divmod(mu, 10)
            if mu == 37:
                a('s_waitcnt lgkmcnt(0)\ns_barrier'); done = issued
                if c < 4:
                    for _ in range(6): a(rd[issued][1]); issued += 1
            elif need[g] >= done:
                a('s_waitcnt lgkmcnt(%d)' % (issued - need[g] - 1)); done = need[g] + 1
            a('v_mfma_f32_32x32x16_bf16 %s, %s, %s, %s' % (v(accr(m),16), v(XP+4*(u&1),4), v(MP+4*(mu%8),4), v(accr(m),16) if g >= 10 else '0'))
            if mu < 37:
                tgt = min(44*(c+1), need[g+1] + LA + 1)
                while issued < tgt: a(rd[issued][1]); issued += 1
            elif mu < 39 and c < 4:
                a(rd[issued][1]); issued += 1
        self.stamp(2)
        RR = 168
        CC, SS, NS = 184, 192, 200
        a('s_lshl_b32 s57, s56, 7\ns_add_u32 s57, s57, %d' % self.DMISC)
        a('v_lshl_add_u32 v2, v209, 4, s57')
        for k in range(4): a('ds_read_b128 %s, v2 offset:%d' % (v(RR+4*k,4), 32*k))
        a('v_mul_u32_u24 v4, %d, v208\nv_lshl_add_u32 v4, v209, 6, v4' % GROW)
        a('v_lshrrev_b32 v5, 3, v208\nv_add_u32 v5, s56, v5\nv_and_b32 v5, 3, v5\nv_lshl_add_u32 v4, v5, 2, v4')
        a('s_waitcnt lgkmcnt(0)')
        for k in range(8):
            a('v_pk_mul_f32 %s, %s, %s' % (v(224+2*k,2), v(224+2*k,2), v(RR+2*k,2)))
            a('v_pk_mul_f32 %s, %s, %s' % (v(240+2*k,2), v(240+2*k,2), v(RR+2*k,2)))
        for k in range(8):
            a('v_cvt_pk_bf16_f32 v%d, v%d, v%d' % (CC+k, 224+2*k, 225+2*k))
            a('v_cvt_pk_bf16_f32 v%d, v%d, v%d' % (SS+k, 240+2*k, 241+2*k))
            a('v_xor_b32 v%d, 0x80008000, v%d' % (NS+k, SS+k))
        for et in range(5):
            A0 = ACC + 32*et
            Z = 168 if et & 1 == 0 else 224
            for k in range(8):
                a('v_cvt_pk_bf16_f32 v%d, v%d, v%d' % (Z+k, A0+2*k, A0+2*k+1))
                a('v_cvt_pk_bf16_f32 v%d, v%d, v%d' % (Z+8+k, A0+16+2*k, A0+16+2*k+1))
            a('s_nop 1')
            RE, IM = A0, A0+16
            ms = [(RE,Z,CC,0),(IM,Z+8,CC,0),(RE,Z+4,CC+4,1),(IM,Z+12,CC+4,1),(RE,Z+8,SS,1),(IM,Z,NS,1),(RE,Z+12,SS+4,1),(IM,Z+4,NS+4,1)]
            fill = self._dft_out(ACC + 32*(et-1), et-1) if et > 0 else []
            for i, (D, A_, B_, ac) in enumerate(ms):
                a('v_mfma_f32_32x32x16_bf16 %s, %s, %s, %s' % (v(D,16), v(A_,4), v(B_,4), v(D,16) if ac else '0'))
                for f in fill[4*i:4*i+4]: a(f)
        a.nop(12)
        for f in self._dft_out(ACC + 32*4, 4): a(f)
        a('s_waitcnt lgkmcnt(0)')
        a('s_setprio 0')
        self.stamp(3)
        a.label('L_dft_copy')
        a('s_barrier')
        a('s_lshl_b32 s56, s54, 1\ns_add_u32 s56, s56, s55\ns_mul_i32 s57, s56, %d\ns_add_u32 s57, s57, 0x%x' % (GBLK, G16))
        a('s_lshl_b32 s58, s%d, 10\nv_lshl_add_u32 v2, v0, 4, s58' % WAVE)
        a('v_add_u32 v3, 0xc000, v2')
        for k in range(10):
            a('ds_read_b128 %s, v%d offset:%d' % (v(8+4*k,4), 2 if k < 6 else 3, (k*8192) if k < 6 else (k-6)*8192))
        a('ds_read_b128 v[48:51], v3 offset:%d' % (4*8192))
        a('v_add_u32 v5, %d, v2\nv_cmp_gt_u32 vcc, %d, v5\nv_mov_b32 v4, 0x%x\ns_nop 0\nv_cndmask_b32 v5, v4, v5, vcc' % (10*8192, GBLK, OOB))
        for k in range(10):
            a('s_waitcnt lgkmcnt(%d)' % (10-k))
            a('buffer_store_dwordx4 %s, v2, %s, s57 offen sc1' % (v(8+4*k,4), s(S_WS,4)))
            a('s_add_u32 s57, s57, 8192')
        a('s_sub_u32 s57, s57, %d' % (10*8192))
        a('s_waitcnt lgkmcnt(0)')
        a('buffer_store_dwordx4 v[48:51], v5, %s, s57 offen sc1' % s(S_WS,4))
        a('s_lshl_b32 s56, s56, 3\ns_add_u32 s56, s56, 0x%x\nv_lshl_add_u32 v6, v0, 8, s56' % DFLAG)
        a('s_waitcnt vmcnt(0)\ns_barrier')
        self.stamp(4)
        a('s_cmp_lt_u32 s%d, 4\ns_cbranch_scc1 L_p2_mfma' % WAVE)
        a('s_cmp_eq_u32 s%d, 4\ns_cbranch_scc0 L_p2_help' % WAVE)
        a('v_cmp_gt_u32 vcc, 32, v0\nv_mov_b32 v7, 0x%x\ns_nop 0\nv_cndmask_b32 v6, v7, v6, vcc' % OOB)
        self.setflag(6, 2, '-1')
        a('s_branch L_p2_help')

    def _dft_out(self, A0, et):
        o = []
        for r in range(16):
            o.append('v_cvt_pk_bf16_f32 v%d, v%d, v%d' % (A0+r, A0+r, A0+16+r))
            o.append('ds_write_b32 v4, v%d offset:%d' % (A0+r, (32*et + 8*(r>>2) + (r&3))*16))
        return o

    def spare(self):
        a = self.a
        a.label('L_spare')
        a('s_sub_u32 s54, s%d, 28\ns_lshl_b32 s55, s%d, 2\ns_add_u32 s54, s54, s55' % (IDX, XCD))
        a('s_lshl_b32 s57, s%d, 13' % WAVE)
        a('s_mov_b32 s%d, s%d\ns_mov_b32 s%d, s%d\ns_mov_b32 s%d, 0x%x' % (S_A, P_WD, S_A+1, P_WD+1, S_A+2, 1536*640*2))
        self.wvoff(8, 1280, 12)
        a('s_mul_i32 s58, s54, 15\ns_lshl_b32 s59, s%d, 1' % WAVE)
        for i in range(2):
            a('s_add_u32 s60, s59, %d\ns_min_u32 s60, s60, 14\ns_add_u32 s60, s60, s58' % i)
            a('s_mul_i32 s61, s60, 52429\ns_lshr_b32 s61, s61, 19')
            a('s_mul_i32 s62, s61, 10\ns_sub_u32 s62, s60, s62')
            a('s_mov_b32 s%d, s61\ns_mov_b32 s%d, s62' % (64+2*i, 65+2*i))
            a('s_mul_i32 s60, s61, %d\ns_lshl_b32 s62, s62, 7\ns_add_u32 s60, s60, s62' % (32*1280))
            for j in range(4):
                a('s_add_u32 m0, s57, %d\ns_nop 0' % (i*4096 + j*1024))
                a('buffer_load_dwordx4 v%d, %s, s60 offen lds' % (8+j, s(S_A,4)))
        a('s_lshr_b32 s55, s%d, 1\ns_lshl_b32 s55, s55, 2\ns_add_u32 s55, s55, s%d\ns_sub_u32 s55, s55, 28\ns_lshl_b32 s55, s55, 3\ns_add_u32 s55, s55, s%d' % (XCD, IDX, WAVE))
        a('s_lshr_b32 s56, s55, 1\ns_lshl_b32 s56, s56, 1\ns_and_b32 s58, s%d, 1\ns_add_u32 s56, s56, s58\ns_lshl_b32 s56, s56, 1\ns_and_b32 s55, s55, 1\ns_add_u32 s55, s55, s56\ns_lshl_b32 s55, s55, 3' % XCD)
        a('v_lshrrev_b32 v2, 3, v0\nv_add_u32 v2, s55, v2')
        a('v_mul_u32_u24 v3, 1280, v2\nv_and_b32 v4, 7, v0\nv_lshl_add_u32 v3, v4, 4, v3')
        for n in range(10): a('buffer_load_dwordx4 %s, v3, %s, 0 offen offset:%d' % (v(16+4*n,4), s(S_X,4), 128*n))
        a('v_lshrrev_b32 v4, 2, v0\nv_lshlrev_b32 v4, 7, v4\nv_and_b32 v5, 3, v0\nv_lshl_add_u32 v4, v5, 3, v4')
        a('v_bfe_u32 v5, v0, 3, 1\nv_bfe_u32 v6, v0, 5, 1\nv_lshl_add_u32 v5, v6, 1, v5\nv_lshl_add_u32 v4, v5, 5, v4')
        a('v_add_u32 v4, s57, v4')
        for ct in range(1,4): a('v_xor_b32 v%d, %d, v4' % (4+ct, 32*ct))
        self.nonce()
        a('s_waitcnt vmcnt(10)')
        a('v_lshlrev_b32 v3, 4, v0')
        for i in range(2):
            for ct in range(4):
                for q in range(2):
                    a('ds_read_b64_tr_b16 %s, v%d offset:%d' % (v(144+(i*4+ct)*4+2*q,2), 4+ct, i*4096+q*2048))
            a('s_waitcnt lgkmcnt(0)')
            for ct in range(4):
                a('s_lshl_b32 s58, s%d, 2\ns_add_u32 s58, s58, %d\ns_mul_i32 s59, s58, 52\ns_lshr_b32 s59, s59, 8' % (65+2*i, ct))
                a('s_mul_i32 s60, s59, 5\ns_sub_u32 s60, s58, s60\ns_lshl_b32 s60, s60, 10')
                a('s_mul_i32 s59, s59, 245760\ns_add_u32 s60, s60, s59\ns_mul_i32 s59, s%d, 5120\ns_add_u32 s60, s60, s59\ns_add_u32 s60, s60, 0x%x' % (64+2*i, WDF))
                a('buffer_store_dwordx4 %s, v3, %s, s60 offen sc1' % (v(144+(i*4+ct)*4,4), s(S_WS,4)))
        a('s_waitcnt vmcnt(8)')
        F = 64
        for k in range(40):
            a('v_lshlrev_b32 v%d, 16, v%d\nv_and_b32 v%d, 0xffff0000, v%d' % (F+2*k, 16+k, F+2*k+1, 16+k))
        for k in range(4): a('v_pk_add_f32 %s, %s, %s' % (v(16+2*k,2), v(F+2*k,2), v(F+8+2*k,2)))
        for k in range(8, 40): a('v_pk_add_f32 %s, %s, %s' % (v(16+2*(k&3),2), v(16+2*(k&3),2), v(F+2*k,2)))
        def red():
            a('v_pk_add_f32 v[16:17], v[16:17], v[18:19]\nv_pk_add_f32 v[20:21], v[20:21], v[22:23]')
            a('v_pk_add_f32 v[16:17], v[16:17], v[20:21]\nv_add_f32 v16, v16, v17')
            a('s_nop 1\nv_add_f32 v16, v16, v16 quad_perm:[1,0,3,2] row_mask:0xf bank_mask:0xf')
            a('s_nop 1\nv_add_f32 v16, v16, v16 quad_perm:[2,3,0,1] row_mask:0xf bank_mask:0xf')
            a('s_nop 1\nv_add_f32 v16, v16, v16 row_half_mirror row_mask:0xf bank_mask:0xf')
        red()
        a('v_mul_f32 v24, 0x3acccccd, v16')
        for k in range(40): a('v_pk_add_f32 %s, %s, v[24:25] op_sel_hi:[1,0] neg_lo:[0,1] neg_hi:[0,1]' % (v(F+2*k,2), v(F+2*k,2)))
        for k in range(4): a('v_pk_mul_f32 %s, %s, %s' % (v(16+2*k,2), v(F+2*k,2), v(F+2*k,2)))
        for k in range(4, 40): a('v_pk_fma_f32 %s, %s, %s, %s' % (v(16+2*(k&3),2), v(F+2*k,2), v(F+2*k,2), v(16+2*(k&3),2)))
        red()
        a('v_mov_b32 v26, 0x3727c5ac')
        a('v_fmac_f32 v26, 0x3acccccd, v16')
        a('v_rsq_f32 v27, v26\ns_nop 0\nv_mul_f32 v25, 0xbfb8aa3b, v27')
        a('v_lshlrev_b32 v2, 4, v2\nv_add_u32 v2, 0x%x, v2' % STATS)
        a('s_mov_b32 exec_lo, 0x01010101\ns_mov_b32 exec_hi, 0x01010101')
        a('buffer_store_dwordx4 v[24:27], v2, %s, 0 offen sc1' % s(S_WS,4))
        a('s_mov_b64 exec, -1')
        self.stamp(1)
        a('s_lshl_b32 s58, s54, 3\ns_add_u32 s58, s58, 0x%x\nv_lshl_add_u32 v3, v0, 8, s58' % SFLAG)
        a('s_waitcnt vmcnt(0)\ns_barrier')
        self.stamp(2)
        a('s_cmp_eq_u32 s%d, 0\ns_cbranch_scc0 L_sp_w' % WAVE)
        self.setflag(3, 4, '3')
        a('v_lshlrev_b32 v3, 3, v0\nv_add_u32 v3, 0x%x, v3' % SFLAG)
        self.spin('L_sp_sp', 3, 4, '0', 16)
        a.label('L_sp_w')
        a('s_barrier')
        self.stamp(3)
        a('s_cmp_lt_u32 s%d, 4\ns_cbranch_scc1 L_p2_mfma' % WAVE)
        a('s_branch L_p2_help')

    def p2_help(self):
        a = self.a
        a.label('L_p2_help')
        if self.stage == 'p1':
            self.dump_stamps(); a('s_endpgm'); return
        a('s_sub_u32 s56, s%d, 4\ns_lshr_b32 s57, s56, 1\ns_and_b32 s56, s56, 1' % WAVE)
        a('s_mul_i32 s58, s%d, 245760\ns_mul_i32 s59, s57, %d\ns_add_u32 s58, s58, s59' % (CS, 24*5120))
        a('s_mul_i32 s59, s56, %d\ns_add_u32 s58, s58, s59\ns_add_u32 s58, s58, 0x%x' % (5*5120, WDF + 14*5120))
        a('v_lshlrev_b32 v2, 4, v0')
        for f in range(25):
            a('buffer_load_dwordx4 %s, v2, %s, s58 offen offset:%d sc1' % (v(16+4*f,4), s(S_WS,4), (f&3)*1024))
            if f & 3 == 3: a('s_add_u32 s58, s58, 4096')
        a('s_mul_i32 s58, s57, %d\ns_add_u32 s58, s58, s59\nv_add_u32 v3, s58, v2' % (14*5120))
        a('s_barrier')
        a('s_barrier')
        a('s_cmp_eq_u32 s56, 0\ns_cbranch_scc1 L_ph_w')
        a('s_barrier')
        a.label('L_ph_w')
        a('s_waitcnt vmcnt(0)')
        for f in range(25): a('ds_write_b128 v3, %s offset:%d' % (v(16+4*f,4), f*1024))
        a('s_waitcnt lgkmcnt(0)')
        a('s_cmp_eq_u32 s56, 0\ns_cbranch_scc0 L_ph_e')
        a('s_barrier')
        a.label('L_ph_e')
        a('s_barrier')
        a('s_cmp_eq_u32 s2, 0\ns_cbranch_scc0 L_ph_x\ns_cmp_eq_u32 s%d, 4\ns_cbranch_scc0 L_ph_x' % WAVE)
        a('v_lshlrev_b32 v2, 3, v0\nv_add_u32 v2, 0x%x, v2' % (SFLAG+512))
        a('s_mov_b32 s58, 512\ns_mov_b32 s59, 1024')
        self.spin('L_ep0', 2, 4, '0', 4); self.spin('L_ep1', 2, 4, 's58', 4); self.spin('L_ep2', 2, 4, 's59', 4)
        a('v_mov_b32 v2, 0x%x' % EPOCH)
        self.setflag(2, 4)
        a.label('L_ph_x')
        self.dump_stamps()
        a('s_endpgm')

    def p2_mfma(self):
        a = self.a
        a.label('L_p2_mfma')
        if self.stage == 'p1':
            self.dump_stamps(); a('s_endpgm'); return
        ACC, WB, H = 16, 56, 136
        NH, NWB = 14, 4
        GV = 248
        def acc(t, n): return ACC + (t*5+n)*4
        a('s_and_b32 s56, s%d, 1\ns_lshr_b32 s57, s%d, 1' % (WAVE, WAVE))
        a('s_mul_i32 s75, s%d, 245760\ns_mul_i32 s59, s57, %d\ns_add_u32 s75, s75, s59' % (CS, 24*5120))
        a('s_mul_i32 s59, s56, 35840\ns_add_u32 s75, s75, s59\ns_add_u32 s75, s75, 0x%x' % WDF)
        a('s_mul_i32 s76, s57, 71680\ns_add_u32 s76, s76, s59')
        a('v_lshlrev_b32 v2, 4, v0')
        main = self.a; p = Asm(); self.a = p; a = p
        a('s_lshl_b32 s58, s56, 1\ns_add_u32 s59, s58, s57\ns_sub_u32 s58, s58, s57\ns_add_u32 s58, s58, 1')
        a('v_and_b32 v3, 15, v0\nv_lshrrev_b32 v4, 4, v0')
        a('s_lshl_b32 s60, s59, 9\ns_add_u32 s60, s60, s%d\ns_mul_i32 s60, s60, 1280\ns_mul_i32 s61, s%d, 160\ns_add_u32 s60, s60, s61' % (T1, CS))
        a('v_mul_u32_u24 v5, 40960, v3\nv_lshl_add_u32 v5, v4, 3, v5')
        for n in range(5): a('buffer_load_dwordx2 %s, v5, %s, s60 offen offset:%d' % (v(WB+2*n,2), s(S_X,4), 32*n))
        a('s_lshl_b32 s61, s%d, 2\ns_add_u32 s62, s61, s59\ns_mul_i32 s62, s62, 49152\nv_add_u32 v6, s62, v2' % T1)
        a('s_add_u32 s62, s61, s58\ns_mul_i32 s62, s62, 49152\nv_add_u32 v7, s62, v2')
        a('s_lshr_b32 s64, s%d, 2' % CS)
        a('s_lshl_b32 s63, s64, 31\ns_or_b32 s63, s63, 0x3a000000')
        a('s_mul_i32 s65, s64, 640\ns_lshl_b32 s64, s64, 1\ns_sub_u32 s64, 1, s64')
        a('s_mul_i32 s66, s64, s%d\ns_and_b32 s66, s66, 31' % T1)
        a('s_mul_i32 s67, s%d, 80' % CS)
        a('v_mul_u32_u24 v8, %d, v4' % (2*GBLK))
        for n in range(5):
            a('v_add_u32 v9, s67, v3\nv_add_u32 v9, %d, v9' % (16*n))
            a('v_mul_lo_u32 v9, v9, s64\nv_add_u32 v9, s65, v9')
            a('v_and_b32 v10, 1, v9\nv_mul_u32_u24 v10, %d, v10\nv_add_u32 v10, v10, v8' % GBLK)
            a('v_lshrrev_b32 v11, 1, v9\nv_cmp_eq_u32 vcc, 160, v11\ns_nop 1\nv_cndmask_b32 v11, v11, 0, vcc')
            a('v_lshl_add_u32 v%d, v11, 4, v10' % (GV+n))
            if n == 0:
                a('v_cmp_eq_u32 vcc, 0, v9\nv_mov_b32 v11, 0x%x\ns_nop 0\nv_cndmask_b32 v%d, v%d, v11, vcc' % (OOB, GV, GV))
        TW = H+40
        a('s_lshr_b32 s70, s66, 3')
        for t in range(2):
            a('s_lshl_b32 s71, s%d, 9\ns_add_u32 s71, s71, s%d' % (59 - t, T1))
            a('v_lshl_add_u32 v%d, v3, 5, s71' % (9+t))
        for i in range(4):
            a('s_sub_u32 s71, %d, s70\ns_and_b32 s71, s71, 3\ns_lshl_b32 s72, s57, 5\ns_add_u32 s71, s71, s72' % (i+4))
            a('v_lshl_add_u32 v11, v4, 2, s71')
            a('v_add_u32 v12, 16, v11')
            for t in range(2):
                for d in range(2):
                    r = WB + 20 + (t*2+d)*2
                    a('v_mul_u32_u24 v%d, v%d, v%d' % (r, 9+t, 11+d))
                    a('v_and_b32 v%d, 2047, v%d\nv_cvt_f32_u32 v%d, v%d\nv_mul_f32 v%d, s63, v%d' % (r, r, r, r, r, r))
                    a('v_sin_f32 v%d, v%d\nv_cos_f32 v%d, v%d' % (r+1, r, r, r))
            a('s_nop 0')
            for t in range(2):
                for d in range(2):
                    r = WB + 20 + (t*2+d)*2
                    a('v_cvt_pk_bf16_f32 v%d, v%d, v%d' % (TW+(t*2+d)*4+i, r, r+1))
        for k in range(20): a('v_mov_b32 v%d, 0' % (acc(1,0)+k))
        a('s_xor_b32 s73, s%d, 2\ns_mul_i32 s73, s73, 5120\ns_add_u32 s73, s73, 143360' % WAVE)
        a('s_mul_i32 s74, s%d, 5120\ns_add_u32 s74, s74, 143360' % WAVE)
        for m in range(3):
            a('v_add_u32 v8, %d, v0\nv_mul_u32_u24 v9, 205, v8\nv_lshrrev_b32 v9, 11, v9' % (64*m))
            a('v_mul_u32_u24 v%d, 10, v9\nv_sub_u32 v8, v8, v%d\nv_lshlrev_b32 v8, 4, v8' % (10+m, 10+m))
            a('v_mul_u32_u24 v%d, 40960, v9\nv_add_u32 v%d, v%d, v8' % (10+m, 10+m, 10+m))
            a('v_mul_u32_u24 v9, 176, v9\nv_add3_u32 v%d, v9, v8, s74' % (13+m))
        a('v_cmp_gt_u32 vcc, 32, v0\nv_mov_b32 v8, 0x%x\ns_nop 0\nv_cndmask_b32 v12, v8, v12, vcc' % OOB)
        a('v_mul_u32_u24 v8, 176, v3\nv_lshl_add_u32 v8, v4, 3, v8\nv_add_u32 v8, s74, v8')
        a('v_add_u32 v9, s73, v2\nv_add_u32 v5, s74, v2')
        a('s_mul_i32 s61, s57, 71680\nv_add_u32 v3, s61, v2')
        a('v_add_u32 v4, 0xc800, v3')
        a('s_mul_i32 s68, s66, %d\ns_mul_i32 s69, s57, %d\ns_add_u32 s68, s68, s69\ns_add_u32 s68, s68, 0x%x' % (GROW, 16*GBLK, G16))
        a('s_add_u32 s69, s68, %d' % (8*GBLK))
        a('v_and_b32 v1, 31, v0\nv_lshlrev_b32 v1, 3, v1\ns_lshl_b32 s61, s%d, 8\ns_add_u32 s61, s61, 0x%x' % (T1, DFLAG))
        self.a = main; a = main
        prep = p.lines; per = (len(prep) + 34) // 35; k = 0
        for f in range(35):
            if f & 3 == 0:
                a('s_add_u32 m0, s76, %d' % (f*1024))
                if f: a('s_add_u32 s75, s75, 4096')
                else: a('s_nop 0')
            a('buffer_load_dwordx4 v2, %s, s75 offen offset:%d sc1 lds' % (s(S_WS,4), (f&3)*1024))
            for l in prep[k:k+per]: a(l)
            k += per
        self.stamp(5)
        self.spin('L_p2_pd', 1, 254, 's61', 8)
        self.stamp(6)
        for d in range(2):
            for n in range(5):
                a('buffer_load_dwordx4 %s, v%d, %s, s%d offen sc1' % (v(H+(d*5+n)*4,4), GV+n, s(S_WS,4), 68+d))
        for n in range(5):
            for k in range(2):
                a('v_lshlrev_b32 v%d, 16, v%d\nv_and_b32 v%d, 0xffff0000, v%d' % (acc(0,n)+2*k, WB+2*n+k, acc(0,n)+2*k+1, WB+2*n+k))
        a('s_lshr_b32 s61, s%d, 1\ns_lshl_b32 s61, s61, 9' % T1)
        a('v_min_u32 v1, 47, v0\nv_lshlrev_b32 v1, 3, v1')
        a('s_waitcnt vmcnt(0)')
        for d in range(2):
            for n in range(5):
                for t in range(2):
                    a('v_mfma_f32_16x16x32_bf16 %s, %s, %s, %s' % (v(acc(t,n),4), v(H+(d*5+n)*4,4), v(TW+(t*2+d)*4,4), v(acc(t,n),4)))
        self.stamp(7)
        a('s_cmp_eq_u32 s%d, 0\ns_cbranch_scc0 L_p2_nf' % WAVE)
        self.spin('L_p2_pf', 1, 254, 's61', 1)
        a.label('L_p2_nf')
        a('s_mul_i32 s61, s57, %d\ns_add_u32 s61, s61, 0x%x' % (24*1024, HF))
        a('s_barrier')
        self.stamp(8)
        vm = VM(a)
        def hload(j):
            for t in range(2):
                vm.op('buffer_load_dwordx4 %s, v%d, %s, s61 offen offset:%d sc1' % (v(H+(j%NH)*8+4*t,4), 6+t, s(S_WS,4), (j&3)*1024), j)
            if j & 3 == 3: a('s_add_u32 s61, s61, 4096')
        def wread(j):
            sl = j if j < 14 else j - 14
            return ['ds_read_b128 %s, v%d offset:%d' % (v(WB+(j%NWB)*20+4*n,4), 3 if sl < 10 else 4, (sl if sl < 10 else sl-10)*5120 + n*1024) for n in range(5)]
        PRE = self.h_pre
        for j in range(PRE): hload(j)
        for j in range(2):
            for r in wread(j): a(r)
        nxt = PRE
        for j in range(24):
            vm.wait(j, 'lgkmcnt(%d)' % (5 if j < 23 else 0))
            if j in (0, 4, 9, 17): self.stamp({0: 9, 4: 10, 9: 11, 17: 12}[j])
            if j in (4, 9, 17): a('s_barrier')
            rd = wread(j+2) if j < 22 else []
            k = 0
            for n in range(5):
                for t in range(2):
                    a('v_mfma_f32_16x16x32_bf16 %s, %s, %s, %s' % (v(acc(t,n),4), v(WB+(j%NWB)*20+4*n,4), v(H+(j%NH)*8+4*t,4), v(acc(t,n),4)))
                    if k < len(rd): a(rd[k]); k += 1
                    elif k in (5, 7) and nxt < 24 and nxt < j + NH and (k == 5 or nxt <= j + NH - 2):
                        hload(nxt); nxt += 1; k += 1
                    else: k += 1
        assert nxt == 24
        self.stamp(13)
        a.nop(7)
        for n in range(5): a('ds_write_b128 v9, %s offset:%d' % (v(acc(1,n),4), n*1024))
        a('s_waitcnt lgkmcnt(0)\ns_barrier')
        for n in range(5): a('ds_read_b128 %s, v5 offset:%d' % (v(WB+4*n,4), n*1024))
        for n in range(5):
            a('s_waitcnt lgkmcnt(%d)' % (4-n))
            for k in range(2): a('v_pk_add_f32 %s, %s, %s' % (v(acc(0,n)+2*k,2), v(acc(0,n)+2*k,2), v(WB+4*n+2*k,2)))
            for k in range(2): a('v_cvt_pk_bf16_f32 v%d, v%d, v%d' % (acc(1,n)+k, acc(0,n)+2*k, acc(0,n)+2*k+1))
        for n in range(5): a('ds_write_b64 v8, %s offset:%d' % (v(acc(1,n),2), 32*n))
        a('s_waitcnt lgkmcnt(0)')
        for m in range(3): a('ds_read_b128 %s, v%d' % (v(WB+4*m,4), 13+m))
        for m in range(3):
            a('s_waitcnt lgkmcnt(%d)' % (2-m))
            a('buffer_store_dwordx4 %s, v%d, %s, s60 offen' % (v(WB+4*m,4), 10+m, s(S_OUT,4)))
        if self.stamps: a('s_waitcnt vmcnt(0)')
        self.dump_stamps()

    h_pre = 10

    def build(self, header):
        a = self.a
        self.prologue()
        self.ffn_wloader(); self.ffn_xloader(); self.dft_loader(); self.spare()
        self.ffn_consumer(); self.dft_consumer()
        self.p2_help(); self.p2_mfma()
        a.label('L_end')
        a('s_endpgm')
        errs = check(a.lines)
        for e in errs: print(e, file=sys.stderr)
        txt = header + '; @launch grid=(256,1,1) block=(512,1,1) lds=163840\n'
        txt += '.amdgcn_target "amdgcn-amd-amdhsa--gfx950"\n.text\n.globl %s\n.p2align 8\n.type %s,@function\n%s:\n' % (KN, KN, KN)
        txt += a.text()
        txt += '''.section .rodata,"a"
.p2align 6
.amdhsa_kernel %s
  .amdhsa_next_free_vgpr 256
  .amdhsa_next_free_sgpr 102
  .amdhsa_accum_offset 256
  .amdhsa_group_segment_fixed_size 0
  .amdhsa_kernarg_size 96
  .amdhsa_user_sgpr_count 2
  .amdhsa_user_sgpr_kernarg_segment_ptr 1
  .amdhsa_system_sgpr_workgroup_id_x 1
.end_amdhsa_kernel
''' % KN
        return txt, errs

if __name__ == '__main__':
    import argparse
    ap = argparse.ArgumentParser()
    ap.add_argument('-o', default='k.s'); ap.add_argument('--stage', default='full'); ap.add_argument('--stamps', action='store_true'); ap.add_argument('--opt', default='')
    args = ap.parse_args()
    ref = open('parallel_sum__spectral_fnet__swiglu_ffn__prompt.s.ref').read()
    header = ''.join(l + '\n' for l in ref.split('\n') if l.startswith(';') and '@launch' not in l and 'Override launch' not in l and 'grid=ceil' not in l)
    txt, errs = Gen(args.stage, args.stamps, [o for o in args.opt.split(',') if o]).build(header)
    open(args.o, 'w').write(txt)
    print('written', args.o, 'hazard errors:', len(errs))
```

```python
import sys
from dsl import *

KN = 'parallel_sum__spectral_fnet__swiglu_ffn__prompt_kernel'
HFLAG   = 0x0
EPOCH   = 0x18000
SFLAG   = 0x18400
STATS   = 0x20000
COLSUM  = 0x28000
STAMPS  = 0x60000
DFLAG   = 0x80000
WDF     = 0x100000
G16     = 0x300000
HF      = 0x600000
WS_SIZE = 0xC00000
LROW = 97*16
GROW = 160*16
GBLK = 32*GROW
SPIN_MAX = 0x10000
OOB = 0x7ffffff0

S_X, S_WS, S_OUT, S_A = 4, 8, 16, 20
NONCE = 12
P_X, P_HRE, P_HIM, P_WG, P_WU, P_WD, P_OUT, P_DBG, P_WS = 28, 32, 34, 36, 38, 40, 42, 44, 46
WAVE, XCD, IDX = 48, 49, 50
T1, CS = 51, 52
HH, DID = 14, 15

class VM:
    def __init__(self, a): self.a = a; self.q = []
    def op(self, txt, tag): self.a(txt); self.q.append(tag)
    def wait(self, tag, extra=''):
        idx = max([i for i, t in enumerate(self.q) if t == tag], default=-1)
        if idx < 0:
            if extra: self.a('s_waitcnt ' + extra)
            return
        n = len(self.q) - idx - 1
        assert n <= 63
        self.a('s_waitcnt vmcnt(%d) %s' % (n, extra))
        self.q = self.q[idx+1:]
    def drained(self): self.q = []

class Gen:
    def __init__(self, stage='full', stamps=False, opt=()):
        self.a = Asm(); self.stage = stage; self.stamps = stamps; self.opt = set(o.split('=')[0] for o in opt); self.val = dict(o.split('=') for o in opt if '=' in o)

    def srd(self, dst, ptr, size):
        a = self.a
        a('s_mov_b32 %s, %s' % (s(dst), s(ptr)))
        a('s_mov_b32 %s, %s' % (s(dst+1), s(ptr+1)))
        a('s_mov_b32 %s, 0x%x' % (s(dst+2), size))
        a('s_mov_b32 %s, 0x20000' % s(dst+3))

    def stamp(self, k):
        if self.stamps:
            self.a('%s s[98:99]\ns_waitcnt lgkmcnt(0)\ns_mov_b32 s%d, s98' % ('s_memtime' if 'cyc' in self.opt else 's_memrealtime', 80+k))

    def dump_stamps(self):
        if not self.stamps: return
        a = self.a
        a('s_memtime s[96:97]\ns_waitcnt lgkmcnt(0)\ns_sub_u32 s95, s96, s95')
        a('s_lshl_b32 s96, s2, 3\ns_add_u32 s96, s96, s%d\ns_lshl_b32 s96, s96, 6\ns_add_u32 s96, s96, 0x%x' % (WAVE, STAMPS))
        self.stamp(14)
        for k in range(16): a('v_mov_b32 v%d, s%d' % (100+k, 80+k))
        a('v_mov_b32 v99, s96')
        a('s_mov_b64 exec, 1')
        for k in range(4): a('buffer_store_dwordx4 v[%d:%d], v99, %s, 0 offen offset:%d' % (100+4*k, 103+4*k, s(S_WS,4), 16*k))
        a('s_waitcnt vmcnt(0)')

    def nonce(self):
        self.a('s_waitcnt lgkmcnt(0)\ns_add_u32 s12, s12, 1\ns_add_u32 s13, s13, 1')

    def spin(self, lbl, va, vd, soff, sleep, first_done=False):
        a = self.a
        a('s_mov_b32 s53, 0')
        if first_done: a('s_branch %s_c' % lbl)
        a.label(lbl)
        a('buffer_load_dwordx2 %s, v%d, %s, %s offen sc1' % (v(vd,2), va, s(S_WS,4), soff))
        a('s_add_u32 s53, s53, 1\ns_cmp_gt_u32 s53, 0x%x\ns_cbranch_scc1 %s_x' % (SPIN_MAX, lbl))
        a('s_waitcnt vmcnt(0)')
        a.label(lbl + '_c')
        a('v_cmp_ne_u64 vcc, s[12:13], %s' % v(vd,2))
        a('s_cbranch_vccz %s_x\ns_sleep %d\ns_branch %s' % (lbl, sleep, lbl))
        a.label(lbl + '_x')

    def spin3(self, lbl, va, vd, first_done=False):
        a = self.a
        a('s_mov_b32 s53, 0')
        if first_done: a('s_branch %s_c' % lbl)
        a.label(lbl)
        for k in range(3): a('buffer_load_dwordx2 %s, v%d, %s, 0 offen offset:%d sc1' % (v(vd+2*k,2), va, s(S_WS,4), 512*k))
        a('s_add_u32 s53, s53, 1\ns_cmp_gt_u32 s53, 0x%x\ns_cbranch_scc1 %s_x' % (SPIN_MAX, lbl))
        a('s_waitcnt vmcnt(0)')
        a.label(lbl + '_c')
        a('v_cmp_ne_u64 vcc, s[12:13], %s\nv_cmp_ne_u64 s[68:69], s[12:13], %s\ns_nop 0\ns_or_b64 vcc, vcc, s[68:69]' % (v(vd,2), v(vd+2,2)))
        a('v_cmp_ne_u64 s[68:69], s[12:13], %s\ns_nop 0\ns_or_b64 vcc, vcc, s[68:69]' % v(vd+4,2))
        a('s_cbranch_vccz %s_x\ns_sleep 8\ns_branch %s' % (lbl, lbl))
        a.label(lbl + '_x')

    def setflag(self, va, vd, mask='1'):
        a = self.a
        a('v_mov_b32 v%d, s12\nv_mov_b32 v%d, s13' % (vd, vd+1))
        a('s_mov_b64 exec, %s' % mask)
        a('buffer_store_dwordx2 %s, v%d, %s, 0 offen sc1' % (v(vd,2), va, s(S_WS,4)))
        a('s_mov_b64 exec, -1')

    def prologue(self):
        a = self.a
        a('s_load_dwordx2 s[28:29], s[0:1], 0')
        a('s_load_dwordx4 s[36:39], s[0:1], 48')
        a('s_load_dwordx8 s[40:47], s[0:1], 64')
        a('s_load_dwordx4 s[32:35], s[0:1], 24')
        a('s_cmp_ge_u32 s2, 256\ns_cbranch_scc1 L_end')
        a('v_lshrrev_b32 v1, 6, v0\nv_and_b32 v0, 63, v0')
        a('v_readfirstlane_b32 s%d, v1' % WAVE)
        a('s_and_b32 s%d, s2, 7\ns_lshr_b32 s%d, s2, 3' % (XCD, IDX))
        if self.stamps:
            for k in range(16): a('s_mov_b32 s%d, 0' % (80+k))
            a('s_memtime s[96:97]\ns_waitcnt lgkmcnt(0)\ns_mov_b32 s95, s96')
        a('s_cmp_lt_u32 s%d, 4\ns_cbranch_scc1 L_nopf\ns_cmp_ge_u32 s%d, 24\ns_cbranch_scc1 L_nopf' % (WAVE, IDX))
        a('s_getpc_b64 s[54:55]')
        a.label('L_pc')
        a('s_sub_u32 s53, s%d, 4\ns_lshl_b32 s53, s53, 13' % WAVE)
        a('v_lshl_add_u32 v2, v0, 7, s53')
        a('v_add_u32 v3, 0x8000, v2')
        a('v_min_u32 v2, L_end-L_pc, v2\nv_min_u32 v3, L_end-L_pc, v3')
        a('global_load_dword v255, v2, s[54:55]\nglobal_load_dword v255, v3, s[54:55]')
        a.label('L_nopf')
        a('s_mul_i32 s54, s%d, 43\ns_lshr_b32 s54, s54, 7' % IDX)
        a('s_mul_i32 s55, s54, 3\ns_sub_u32 s55, s%d, s55' % IDX)
        a('s_and_b32 s56, s%d, 1\ns_lshl_b32 s56, s56, 3\ns_add_u32 s54, s54, s56' % XCD)
        a('s_lshr_b32 s56, s%d, 1\ns_mul_i32 s56, s56, 3\ns_add_u32 s55, s55, s56' % XCD)
        if 'map48' in self.opt:
            a('s_lshr_b32 s%d, s%d, 3\ns_lshl_b32 s53, s%d, 2\ns_add_u32 s%d, s%d, s53\ns_and_b32 s%d, s%d, 7' % (T1, IDX, XCD, T1, T1, CS, IDX))
        else:
            a('s_lshr_b32 s%d, s%d, 2\ns_lshr_b32 s53, s%d, 1\ns_lshl_b32 s53, s53, 3\ns_add_u32 s%d, s%d, s53' % (T1, IDX, XCD, T1, T1))
            a('s_and_b32 s%d, s%d, 3\ns_and_b32 s53, s%d, 1\ns_lshl_b32 s53, s53, 2\ns_add_u32 s%d, s%d, s53' % (CS, IDX, XCD, CS, CS))
        a('s_mov_b32 s%d, 0x%x\ns_mov_b32 s%d, 0x20000' % (S_X+2, 2048*640*2, S_X+3))
        a('s_mov_b32 s%d, 0x%x\ns_mov_b32 s%d, 0x20000' % (S_WS+2, WS_SIZE, S_WS+3))
        a('s_mov_b32 s%d, 0x%x\ns_mov_b32 s%d, 0x20000' % (S_OUT+2, 2048*640*2, S_OUT+3))
        a('s_mov_b32 s%d, 0x20000' % (S_A+3))
        a('s_waitcnt lgkmcnt(0)')
        self.stamp(0)
        a('s_load_dwordx2 s[12:13], s[46:47], 0x%x' % EPOCH)
        for d, p in ((S_X, P_X), (S_WS, P_WS), (S_OUT, P_OUT)):
            a('s_mov_b32 s%d, s%d\ns_mov_b32 s%d, s%d' % (d, p, d+1, p+1))
        a('s_cmp_ge_u32 s%d, 24\ns_cbranch_scc1 L_notffn' % IDX)
        a('s_cmp_lt_u32 s%d, 2\ns_cbranch_scc1 L_ffn_wl' % WAVE)
        a('s_cmp_lt_u32 s%d, 4\ns_cbranch_scc1 L_ffn_xl' % WAVE)
        a('s_branch L_ffn_cons')
        a.label('L_notffn')
        if 'ffnonly' in self.opt: a('s_endpgm')
        a('s_and_b32 s54, s%d, 3\ns_lshr_b32 s55, s%d, 2\ns_lshl_b32 s55, s55, 3\ns_add_u32 s54, s54, s55' % (IDX, XCD))
        a('s_and_b32 s55, s%d, 1\ns_lshl_b32 s55, s55, 2\ns_add_u32 s54, s54, s55\ns_bfe_u32 s55, s%d, 0x10001' % (XCD, XCD))
        a('s_bfe_u32 s%d, s%d, 0x10002\ns_lshl_b32 s%d, s54, 1\ns_add_u32 s%d, s%d, s55\ns_lshl_b32 s%d, s%d, 1\ns_add_u32 s%d, s%d, s%d' % (HH, IDX, DID, DID, DID, DID, DID, DID, DID, HH))
        a('s_cmp_lt_u32 s%d, 4\ns_cbranch_scc1 L_dft_ld' % WAVE)
        a('s_branch L_dft_cons')

    WSLOT, NWS = 16384, 6
    XB, XSLOT, NXS = 98304, 16384, 3
    MISC = 147456

    def wvoff(self, dst0, rowbytes, tmp):
        a = self.a
        t = tmp
        a('v_lshrrev_b32 v%d, 3, v0' % t)
        a('v_bfe_u32 v%d, v0, 4, 1' % (t+1))
        a('v_bfe_u32 v%d, v0, 1, 2' % (t+2))
        a('v_xor_b32 v%d, v%d, v%d' % (t+2, t+2, t+1))
        a('v_and_b32 v%d, 1, v0' % (t+1))
        a('v_lshlrev_b32 v%d, 4, v%d' % (t+1, t+1))
        a('v_lshl_add_u32 v%d, v%d, 5, v%d' % (t+2, t+2, t+1))
        a('v_mul_u32_u24 v%d, %d, v%d' % (t, rowbytes, t))
        a('v_add_u32 v%d, v%d, v%d' % (dst0, t, t+2))
        a('v_xor_b32 v%d, 64, v%d' % (t+2, t+2))
        a('v_add_u32 v%d, v%d, v%d' % (dst0+1, t, t+2))
        a('v_add_u32 v%d, %d, v%d' % (dst0+1, 8*rowbytes, dst0+1))
        a('v_add_u32 v%d, %d, v%d' % (dst0+2, 16*rowbytes, dst0))
        a('v_add_u32 v%d, %d, v%d' % (dst0+3, 16*rowbytes, dst0+1))

    def phase(self, dst):
        a = self.a
        a('s_mul_i32 s64, s%d, 43\ns_lshr_b32 s64, s64, 7\ns_mul_i32 s65, s64, 3\ns_sub_u32 s65, s%d, s65' % (IDX, IDX))
        a('s_and_b32 s%d, s64, 1\ns_mul_i32 s%d, s%d, 5' % (dst, dst, dst))

    def p2_coords(self):
        a = self.a
        if 'rho' not in self.opt: a('s_mov_b32 s76, 0')
        else:
            a('s_and_b32 s76, s%d, 7\ns_and_b32 s53, s%d, 3\ns_lshl_b32 s53, s53, 1\ns_add_u32 s76, s76, s53\ns_and_b32 s76, s76, 7\ns_mul_i32 s76, s76, 3' % (T1, CS))
        a('s_mul_i32 s77, s%d, 245760\ns_mul_i32 s53, s76, 5120\ns_add_u32 s77, s77, s53\ns_add_u32 s77, s77, 0x%x\ns_sub_u32 s75, s77, 122880\ns_sub_u32 s76, 24, s76' % (CS, WDF))

    def wd_dma(self, vm, frags, voff):
        a = self.a; last = None
        for f in frags:
            half, r = divmod(f, 70); j, n = divmod(r, 5)
            if j != last: a('s_cmp_le_u32 s76, %d\ns_cselect_b32 s74, s75, s77' % j); last = j
            a('s_add_u32 m0, %d, 0\ns_add_u32 s78, s74, %d' % (f*1024, half*122880 + j*5120 + n*1024))
            vm.op('buffer_load_dwordx4 v%d, %s, s78 offen sc1 lds' % (voff, s(S_WS,4)), 'wd')

    OV = 128
    def ov_setup(self):
        a = self.a
        a('s_lshr_b32 s53, s%d, 1\ns_mul_i32 s72, s53, 122880\ns_and_b32 s53, s%d, 1\ns_sub_i32 s71, s76, s53\ns_mul_i32 s53, s53, 5120\ns_add_u32 s72, s72, s53' % (WAVE, WAVE))
        a('s_add_u32 s73, s72, s75\ns_add_u32 s72, s72, s77')
    def ov_load(self, vm, i, voff):
        a = self.a
        a('s_cmp_le_i32 s71, %d\ns_cselect_b32 s74, s73, s72\ns_add_u32 s74, s74, %d\ns_add_u32 s78, s74, 4096' % (14+2*i, (14+2*i)*5120))
        for n in range(5):
            vm.op('buffer_load_dwordx4 %s, v%d, %s, %s offen offset:%d sc1' % (v(self.OV+20*i+4*n,4), voff, s(S_WS,4), 's74' if n < 4 else 's78', (n&3)*1024), 'ov')

    def ffn_wloader(self):
        a = self.a; vm = VM(a)
        a.label('L_ffn_wl')
        a('s_cmp_eq_u32 s%d, 0' % WAVE)
        a('s_cselect_b32 s%d, s%d, s%d\ns_cselect_b32 s%d, s%d, s%d' % (S_A, P_WG, P_WU, S_A+1, P_WG+1, P_WU+1))
        a('s_mov_b32 s%d, 0x%x' % (S_A+2, 640*1536*2))
        self.wvoff(4, 3072, 8)
        self.phase(58)
        a('s_lshl_b32 s59, s55, 8\ns_mul_i32 s56, s58, %d\ns_add_u32 s56, s56, s59\ns_add_u32 s59, s59, %d' % (64*3072, 640*3072))
        a('s_lshl_b32 s57, s%d, 13' % WAVE)
        def issue(n):
            for b in range(2):
                for j in range(4):
                    a('s_add_u32 m0, s57, %d' % ((n % self.NWS)*self.WSLOT + b*4096 + j*1024 - b*128))
                    a('s_nop 0')
                    if 'now' not in self.opt: vm.op('buffer_load_dwordx4 v%d, %s, s56 offen offset:%d lds' % (4+j, s(S_A,4), b*128), n)
            a('s_add_u32 s56, s56, %d' % (32*3072))
            if n & 1: a('s_cmp_eq_u32 s56, s59\ns_cselect_b32 s60, %d, 0\ns_sub_u32 s56, s56, s60' % (640*3072))
        L0 = int(self.val.get('wl', 2)); L1 = int(self.val.get('wl1', 4)); R0 = int(self.val.get('wr', 6))
        sched = {-1: list(range(L0))}; front = L0
        for m in range(20):
            lead = L0 if m < R0 else min(L1, L0 + (m - R0)//2 + 1)
            sched[m] = []
            while front < 20 and front <= m + lead and front <= m + 5: sched[m].append(front); front += 1
        for n in sched[-1]: issue(n)
        self.nonce()
        self.p2_coords(); self.ov_setup()
        a('v_lshlrev_b32 v2, 4, v0')
        for m in range(15):
            vm.wait(m)
            if m == 0: self.stamp(1)
            a('s_barrier')
            for n in sched.get(m, []): issue(n)
        a('s_cmp_eq_u32 s%d, 0\ns_cbranch_scc0 L_wl_t1' % WAVE)
        q0 = list(vm.q)
        for w in range(2):
            vm.q = list(q0)
            if w: a.label('L_wl_t1')
            for m in range(15, 21):
                if m < 20: vm.wait(m)
                a('s_barrier')
                for n in sched.get(m, []): issue(n)
                sl = (m-1) % 6
                self.wd_dma(vm, range(16*sl + 8*w, 16*sl + 8*w + 8), 2)
                for i in self.ov_sched(m): self.ov_load(vm, i, 2)
            self.stamp(2)
            a('s_branch L_p2_help')

    def ov_sched(self, m):
        return {'0': {20: [0,1,2,3,4]}, '1': {19: [0], 20: [1,2,3,4]}, '2': {17: [0], 19: [1], 20: [2,3,4]}}[self.val.get('ove', '1')].get(m, [])

    def tw_addr(self, dst):
        a = self.a
        a('v_lshrrev_b32 v%d, 4, v0\nv_lshlrev_b32 v%d, 5, v%d\nv_bfe_u32 v1, v0, 1, 3\nv_add_u32 v%d, v%d, v1' % (dst, dst, dst, dst, dst))
        a('s_lshr_b32 s53, s64, 1\ns_lshl_b32 s53, s53, 3\nv_add_u32 v%d, s53, v%d\nv_mul_u32_u24 v%d, 3072, v%d' % (dst, dst, dst, dst))
        a('v_and_b32 v1, 1, v0\nv_lshl_add_u32 v%d, v1, 7, v%d' % (dst, dst))
    def tx_addr(self, dst, half):
        a = self.a
        a('v_and_b32 v%d, 15, v0\nv_lshlrev_b32 v%d, 5, v%d\nv_lshrrev_b32 v1, 4, v0\nv_lshl_add_u32 v%d, v1, 9, v%d' % (dst, dst, dst, dst, dst))
        a('s_lshl_b32 s53, s54, 1\ns_add_u32 s53, s53, s%d\nv_add_u32 v%d, s53, v%d\nv_mul_u32_u24 v%d, 1280, v%d' % (half, dst, dst, dst, dst))
    def tx_off(self, dst, ph, r):
        a = self.a
        a('s_add_u32 s%d, s%d, s65\ns_add_u32 s%d, s%d, %d\ns_cmp_ge_u32 s%d, 10\ns_cselect_b32 s53, 10, 0\ns_sub_u32 s%d, s%d, s53\ns_lshl_b32 s%d, s%d, 7' % (dst, ph, dst, dst, 3*r, dst, dst, dst, dst, dst))
        if r == 3: a('s_cmp_eq_u32 s65, 0\ns_cselect_b32 s%d, s%d, 0x%x' % (dst, dst, OOB))

    def wtouch(self, unit_sgpr, nlanes, step0, dst):
        a = self.a
        a('s_bitcmp0_b32 s%d, 0' % XCD)
        a('s_cselect_b32 s24, s%d, s%d\ns_cselect_b32 s25, s%d, s%d\ns_mov_b32 s26, 0x%x\ns_mov_b32 s27, 0x20000' % (P_WG, P_WU, P_WG+1, P_WU+1, 640*1536*2))
        a('s_mul_i32 s53, s%d, %d' % (unit_sgpr, nlanes))
        a('v_min_u32 v1, %d, v0\nv_add_u32 v1, s53, v1\nv_mul_u32_u24 v%d, 10923, v1\nv_lshrrev_b32 v%d, 16, v%d' % (nlanes-1, dst-1, dst-1, dst-1))
        a('v_mul_u32_u24 v%d, 2304, v%d\nv_lshl_add_u32 v1, v1, 7, v%d' % (dst-1, dst-1, dst-1))
        a('s_lshr_b32 s53, s%d, 1\ns_mul_i32 s53, s53, 768\ns_add_u32 s53, s53, %d' % (XCD, step0*32*3072))
        return 'buffer_load_dword v%d, v1, s[24:27], s53 offen' % dst

    def xtouch(self, unit_sgpr, rows, c0, c1, dst):
        a = self.a
        n = rows*(c1-c0); assert n <= 64
        mag = (2048 + rows - 1)//rows
        assert all((l*mag) >> 11 == l//rows for l in range(64))
        a('v_min_u32 v1, %d, v0\nv_mul_u32_u24 v%d, %d, v1\nv_lshrrev_b32 v%d, 11, v%d' % (n-1, dst, mag, dst, dst))
        a('v_mul_u32_u24 v%d, %d, v%d\nv_sub_u32 v1, v1, v%d\nv_mul_u32_u24 v1, 1280, v1\nv_lshl_add_u32 v1, v%d, 7, v1' % (dst-1, rows, dst, dst-1, dst))
        a('s_mul_i32 s53, s%d, %d' % (unit_sgpr, rows*1280))
        return 'buffer_load_dword v%d, v1, %s, s53 offen offset:%d' % (dst, s(S_X,4), 128*c0)

    def touch_spec(self, spec, unit_sgpr, nunits, dst):
        kind, rng = spec[0], spec[1:].split('-'); lo, hi = int(rng[0]), int(rng[1])
        if kind == 'W':
            nl = (hi-lo)*8; assert nl <= 64, spec
            return self.wtouch(IDX, nl, lo, dst)
        return self.xtouch(unit_sgpr, -(-2048//nunits), lo, hi, dst)

    def ffn_xloader(self):
        a = self.a; vm = VM(a)
        a.label('L_ffn_xl')
        a('s_sub_u32 s56, s%d, 2' % WAVE)
        a('v_lshrrev_b32 v2, 3, v0\nv_lshrrev_b32 v3, 4, v0')
        a('s_lshl_b32 s57, s56, 2')
        a('v_add_u32 v3, s57, v3\nv_and_b32 v12, 7, v0\nv_xor_b32 v3, v3, v12\nv_lshlrev_b32 v3, 4, v3')
        a('v_mul_u32_u24 v2, 40960, v2\nv_add_u32 v2, v2, v3')
        a('s_lshl_b32 s57, s56, 8\ns_lshl_b32 s58, s54, 1\ns_add_u32 s57, s57, s58\ns_mul_i32 s57, s57, 1280')
        a('v_add_u32 v4, s57, v2')
        for tt in range(1, 8):
            a('v_add_u32 v%d, %d, v4' % (4+tt, ((tt>>2) + 512*(tt&3))*1280))
        a('s_lshl_b32 s57, s56, 10')
        self.phase(58)
        a('s_lshl_b32 s58, s58, 7')
        def issue(c):
            for tt in range(8):
                a('s_add_u32 m0, s57, %d' % (self.XB + (c % self.NXS)*self.XSLOT + tt*2048))
                a('s_nop 0')
                if 'nox' not in self.opt: vm.op('buffer_load_dwordx4 v%d, %s, s58 offen lds' % (4+tt, s(S_X,4)), c)
            a('s_add_u32 s58, s58, 128\ns_cmp_eq_u32 s58, 1280\ns_cselect_b32 s58, 0, s58')
        a('s_lshr_b32 s59, s58, 7')
        issue(0)
        XP = int(self.val.get('xp', 1))
        if XP == 2: issue(1)
        self.p2_coords(); self.ov_setup()
        a('v_lshlrev_b32 v2, 4, v0')
        self.tw_addr(80); self.tx_addr(81, 56)
        a('s_cmp_eq_u32 s56, 0')
        a('s_cselect_b32 s%d, s%d, s%d\ns_cselect_b32 s%d, s%d, s%d\ns_mov_b32 s%d, 0x%x' % (S_A, P_WG, P_WU, S_A+1, P_WG+1, P_WU+1, S_A+2, 640*1536*2))
        a('s_mul_i32 s66, s59, %d\ns_lshl_b32 s67, s55, 8\ns_add_u32 s66, s66, s67' % (64*3072))
        TB = {}
        for spec in self.val.get('tp', 'w4@0+x1@0+w8@1+x2@4+x3@8').split('+'):
            if spec == '0': continue
            k, m = spec.split('@'); TB.setdefault(int(m), []).append(k)
        def touch(k):
            if k[0] == 'w':
                n0 = int(k[1:])
                a('s_add_u32 s67, s66, %d' % (n0*32*3072))
                if n0 == 8: a('v_and_b32 v1, 31, v0\nv_lshlrev_b32 v1, 2, v1\nds_bpermute_b32 v80, v1, v80\ns_waitcnt lgkmcnt(0)')
                vm.op('buffer_load_dword v255, v80, %s, s67 offen' % s(S_A,4), 't')
            else:
                self.tx_off(67, 59, int(k[1:]))
                vm.op('buffer_load_dword v255, v81, %s, s67 offen' % s(S_X,4), 't')
        self.nonce()
        a('s_cmp_eq_u32 s56, 0\ns_cbranch_scc0 L_ffn_xl3')
        q0 = list(vm.q)
        PW = int(self.val.get('pw', 12)); PS = int(self.val.get('ps', 15)); FB = int(self.val.get('fb', 5))
        for role in (2, 3):
            vm.q = list(q0)
            if role == 2:
                a('v_lshrrev_b32 v12, 4, v0\nv_bfe_u32 v13, v0, 2, 2')
                a('v_lshl_add_u32 v14, v12, 3, v13\nv_lshlrev_b32 v14, 7, v14')
                a('v_and_b32 v13, 3, v0\nv_lshl_add_u32 v14, v13, 3, v14')
                a('v_bfe_u32 v13, v0, 3, 1\nv_bfe_u32 v15, v0, 4, 1\nv_lshl_add_u32 v13, v15, 1, v13')
                a('s_and_b32 s60, s54, 2\nv_xor_b32 v13, s60, v13\nv_lshl_add_u32 v14, v13, 5, v14')
                a('s_lshr_b32 s60, s54, 2\ns_lshl_b32 s60, s60, 12\nv_add_u32 v16, s60, v14\nv_xor_b32 v17, 32, v16')
                a('v_add_u32 v18, %d, v16\nv_add_u32 v19, %d, v17' % (3*self.WSLOT, 3*self.WSLOT))
                for k in range(4): a('v_mov_b32 v%d, 0x3f803f80' % (20+k))
                for k in range(8): a('v_mov_b32 v%d, 0' % (24+k))
                a('s_and_b32 s61, s54, 1\ns_mul_i32 s61, s61, 24576\ns_lshr_b32 s62, s54, 3\ns_mul_i32 s62, s62, 12288\ns_add_u32 s61, s61, s62')
                a('s_lshl_b32 s62, s55, 10\ns_add_u32 s61, s61, s62\ns_bfe_u32 s62, s54, 0x20001\ns_lshl_b32 s62, s62, 8\ns_add_u32 s61, s61, s62\ns_add_u32 s61, s61, 0x%x' % COLSUM)
                a('v_lshlrev_b32 v56, 5, v12\nv_and_b32 v13, 1, v0\nv_lshl_add_u32 v56, v13, 4, v56')
                a('s_lshl_b32 s62, s55, 4\ns_add_u32 s62, s62, s54\ns_lshl_b32 s62, s62, 3\ns_add_u32 s62, s62, 0x%x\nv_mov_b32 v57, s62' % (SFLAG))
                a('v_and_b32 v12, 15, v0\nv_lshlrev_b32 v12, 5, v12')
                a('v_lshrrev_b32 v13, 4, v0\nv_lshl_add_u32 v12, v13, 9, v12')
                a('s_lshl_b32 s60, s54, 1\nv_add_u32 v12, s60, v12')
                a('v_lshlrev_b32 v12, 4, v12\nv_add_u32 v12, 0x%x, v12' % STATS)
                a('v_lshlrev_b32 v13, 4, v0\nv_add_u32 v13, %d, v13' % self.MISC)
                a('v_lshlrev_b32 v14, 3, v0\nv_add_u32 v14, 0x%x, v14' % SFLAG)
                rl = ['buffer_load_dwordx4 v[64:67], v12, %s, 0 offen sc1' % s(S_WS,4), 'buffer_load_dwordx4 v[68:71], v12, %s, 0 offen offset:16 sc1' % s(S_WS,4)]
                tags = [66, 70]
            else:
                a.label('L_ffn_xl3')
                a('v_lshrrev_b32 v13, 5, v0\nv_mul_u32_u24 v13, 12288, v13')
                a('v_and_b32 v12, 31, v0\nv_lshl_add_u32 v12, v12, 5, v13')
                a('s_lshl_b32 s60, s55, 10\ns_add_u32 s60, s60, 0x%x\nv_add_u32 v12, s60, v12' % COLSUM)
                a('v_lshlrev_b32 v13, 4, v0\nv_add_u32 v13, %d, v13' % (self.MISC+2048))
                a('s_mov_b32 s61, 24576')
                rl = ['buffer_load_dwordx4 %s, v12, %s, %s offen offset:%d sc1' % (v(64+8*p+4*h,4), s(S_WS,4), 's61' if p else '0', 16*h) for p in range(2) for h in range(2)]
                tags = [66, 70, 74, 78]
            for m in range(21):
                if m % 2 == 0 and m < 20: vm.wait(m//2)
                if m == 20: a('s_waitcnt lgkmcnt(0)')
                a('s_barrier')
                if role == 2:
                    if m == PW + 2:
                        vm.wait('pw')
                        if 'nospin' not in self.opt: self.spin3('L_xl_sw', 14, 72, True)
                    if m == PW:
                        for k in range(3): vm.op('buffer_load_dwordx2 %s, v14, %s, 0 offen offset:%d sc1' % (v(72+2*k,2), s(S_WS,4), 512*k), 'pw')
                    if m == FB:
                        self.setflag(57, 58); vm.q.append('fl')
                    if m == 10:
                        a('v_and_b32 v1, 1, v0\nv_cmp_eq_u32 vcc, 1, v1\nv_mov_b32 v34, s12\nv_mov_b32 v35, s13\nv_mov_b32 v38, s12\nv_mov_b32 v39, s13')
                        for ct in range(2): a('v_cndmask_b32 v%d, v%d, v%d, vcc\nv_cndmask_b32 v%d, v%d, v%d, vcc' % (32+4*ct, 24+4*ct, 26+4*ct, 33+4*ct, 25+4*ct, 27+4*ct))
                        a('s_mov_b32 exec_lo, 0x00030003\ns_mov_b32 exec_hi, 0x00030003')
                        for ct in range(2): vm.op('buffer_store_dwordx4 %s, v56, %s, s61 offen offset:%d sc1' % (v(32+4*ct,4), s(S_WS,4), 128*ct), 'cs')
                        a('s_mov_b64 exec, -1')
                if m == PS:
                    for l in rl: vm.op(l, 'st')
                if m == PS + 2:
                    vm.wait('st')
                    a('s_mov_b32 s53, 0')
                    a.label('L_xl_rs%d' % role)
                    a('v_cmp_ne_u64 vcc, s[12:13], %s' % v(tags[0],2))
                    for t in tags[1:]: a('v_cmp_ne_u64 s[68:69], s[12:13], %s\ns_nop 0\ns_or_b64 vcc, vcc, s[68:69]' % v(t,2))
                    a('s_cbranch_vccz L_xl_rx%d\ns_add_u32 s53, s53, 1\ns_cmp_gt_u32 s53, 0x%x\ns_cbranch_scc1 L_xl_rx%d\ns_sleep 2' % (role, 0 if 'nospin' in self.opt else SPIN_MAX, role))
                    for l in rl: a(l)
                    a('s_waitcnt vmcnt(0)\ns_branch L_xl_rs%d' % role)
                    a.label('L_xl_rx%d' % role)
                    if role == 2:
                        for b in (64, 68):
                            a('v_rsq_f32 v%d, v%d\nv_mov_b32 v%d, v%d\nv_mul_f32 v%d, 0xbfb8aa3b, v%d' % (b+3, b+1, b+2, b+1, b+1, b+3))
                        a('ds_write_b128 v13, v[64:67]\nds_write_b128 v13, v[68:71] offset:1024')
                    else:
                        a('v_add_f32 v64, v64, v72\nv_add_f32 v65, v65, v73\nv_add_f32 v66, v68, v76\nv_add_f32 v67, v69, v77')
                        a('ds_write_b128 v13, v[64:67]')
                for c in range(XP, 10):
                    when = max(0, 2*c - 2 - int(self.val.get('xl%d' % role, 1 if role == 2 else 0)))
                    if c >= int(self.val.get('xr', 4)): when = max(0, 2*c - (4 if role == 2 else 3))
                    if when == m: issue(c)
                for k in TB.get(m, []): touch(k)
                if role == 2 and m < 10:
                    sl = m % self.NWS
                    for ct in range(2):
                        for q in range(2):
                            a('ds_read_b64_tr_b16 %s, v%d offset:%d' % (v(40+4*ct+2*q,2), 16+ct+2*(sl//3), (sl%3)*self.WSLOT + q*512))
                    a('s_waitcnt lgkmcnt(0)')
                    for ct in range(2): a('v_mfma_f32_16x16x32_bf16 %s, %s, v[20:23], %s' % (v(24+4*ct,4), v(40+4*ct,4), v(24+4*ct,4)))
                    if m == 9: a.nop(6)
                if m in (16, 18, 20):
                    f0 = {16: 112, 18: 128, 20: 96}[m]; n = {16: 8, 18: 6, 20: 8}[m]
                    self.wd_dma(vm, range(f0 + (role-2)*n, f0 + (role-1)*n), 2)
                for i in self.ov_sched(m): self.ov_load(vm, i, 2)
            self.stamp(2)
            a('s_branch L_p2_help')

    def ffn_consumer(self):
        a = self.a
        ACC, FR = 8, 136
        AW = [2, 3, 232, 233]
        AX = [4, 5]
        def acc(tt, mat, c2): return ACC + ((tt*2 + mat)*2 + c2)*4
        def xf(st, tt): return FR + st*48 + tt*4
        def wf(st, mat, c2): return FR + st*48 + 32 + (mat*2 + c2)*4
        a.label('L_ffn_cons')
        a('s_sub_u32 s56, s%d, 4' % WAVE)
        if 'noa' not in self.opt:
            self.phase(59)
            a('s_cmp_lt_u32 s56, 2\ns_cbranch_scc0 L_fc_tx')
            self.tw_addr(2)
            a('s_cmp_eq_u32 s56, 0')
            a('s_cselect_b32 s%d, s%d, s%d\ns_cselect_b32 s%d, s%d, s%d\ns_mov_b32 s%d, 0x%x' % (S_A, P_WG, P_WU, S_A+1, P_WG+1, P_WU+1, S_A+2, 640*1536*2))
            a('s_mul_i32 s66, s59, %d\ns_lshl_b32 s67, s55, 8\ns_add_u32 s66, s66, s67' % (64*3072))
            a('buffer_load_dword v255, v2, %s, s66 offen' % s(S_A,4))
            a('s_branch L_fc_t3')
            a.label('L_fc_tx')
            a('s_sub_u32 s60, s56, 2')
            self.tx_addr(2, 60); self.tx_off(67, 59, 0)
            a('buffer_load_dword v255, v2, %s, s67 offen' % s(S_X,4))
            a.label('L_fc_t3')
        a('s_mul_i32 s57, s%d, 24\ns_add_u32 s57, s57, s%d\ns_and_b32 s58, s57, 1\ns_add_u32 s58, s58, 2\ns_cmp_lt_u32 s56, s58\ns_cselect_b32 s79, 1, 0\ns_cbranch_scc0 L_fc_nu' % (XCD, IDX))
        a('s_mul_i32 s57, s57, 5\ns_lshr_b32 s57, s57, 1\ns_add_u32 s57, s57, s56')
        a('s_mul_i32 s70, s57, 52429\ns_lshr_b32 s70, s70, 19\ns_mul_i32 s53, s70, 10\ns_sub_u32 s71, s57, s53')
        a('s_mul_i32 s68, s70, %d\ns_lshl_b32 s53, s71, 7\ns_add_u32 s68, s68, s53' % (32*1280))
        a('s_mov_b32 s24, s%d\ns_mov_b32 s25, s%d\ns_mov_b32 s26, 0x%x\ns_mov_b32 s27, 0x20000' % (P_WD, P_WD+1, 1536*640*2))
        self.wvoff(8, 1280, 12)
        a('s_lshl_b32 s67, s56, 12\ns_add_u32 s67, s67, %d' % (self.MISC + 4096))
        for j in range(4):
            a('s_add_u32 m0, s67, %d\ns_nop 0' % (j*1024))
            a('buffer_load_dwordx4 v%d, s[24:27], s68 offen nt lds' % (8+j))
        a.label('L_fc_nu')
        a('s_setprio 1')
        a('v_lshrrev_b32 v6, 4, v0\nv_bfe_u32 v7, v0, 2, 2')
        a('v_lshl_add_u32 v8, v6, 3, v7\nv_lshlrev_b32 v8, 7, v8')
        a('v_and_b32 v9, 3, v0\nv_lshl_add_u32 v8, v9, 3, v8')
        a('v_bfe_u32 v9, v0, 3, 1\nv_bfe_u32 v10, v0, 4, 1\nv_lshl_add_u32 v9, v10, 1, v9')
        a('s_and_b32 s57, s56, 1\ns_lshl_b32 s57, s57, 1')
        a('v_xor_b32 v9, s57, v9\nv_lshl_add_u32 v8, v9, 5, v8')
        a('s_lshr_b32 s57, s56, 1\ns_lshl_b32 s57, s57, 12')
        a('v_add_u32 v%d, s57, v8' % AW[0])
        a('v_xor_b32 v%d, 32, v%d' % (AW[1], AW[0]))
        a('v_add_u32 v%d, %d, v%d\nv_add_u32 v%d, %d, v%d' % (AW[2], 3*self.WSLOT, AW[0], AW[3], 3*self.WSLOT, AW[1]))
        a('v_and_b32 v8, 15, v0\nv_lshrrev_b32 v9, 1, v8\nv_xor_b32 v9, v9, v6')
        a('v_lshlrev_b32 v9, 4, v9\nv_lshl_add_u32 v9, v8, 7, v9')
        a('v_add_u32 v%d, %d, v9' % (AX[0], self.XB))
        a('v_xor_b32 v%d, 64, v%d' % (AX[1], AX[0]))
        a('v_lshlrev_b32 v234, 4, v8\nv_add_u32 v234, %d, v234' % self.MISC)
        a('v_lshlrev_b32 v235, 4, v6\ns_lshl_b32 s57, s56, 7\nv_add_u32 v235, s57, v235\nv_add_u32 v235, %d, v235' % (self.MISC+2048))
        a('v_lshlrev_b32 v236, 4, v0')
        a('s_lshl_b32 s58, s54, 4\ns_add_u32 s58, s58, s55\ns_lshl_b32 s58, s58, 2\ns_add_u32 s58, s58, s56\ns_lshl_b32 s58, s58, 3\nv_mov_b32 v237, s58')
        a('s_mul_i32 s57, s54, %d\ns_lshl_b32 s58, s55, 2\ns_add_u32 s58, s58, s56\ns_lshl_b32 s58, s58, 10\ns_add_u32 s57, s57, s58\ns_add_u32 s57, s57, 0x%x' % (8*49152, HF))
        self.nonce()
        a('s_cmp_eq_u32 s79, 0\ns_cbranch_scc1 L_fc_nv')
        a('v_lshrrev_b32 v16, 2, v0\nv_lshlrev_b32 v16, 7, v16\nv_and_b32 v1, 3, v0\nv_lshl_add_u32 v16, v1, 3, v16')
        a('v_bfe_u32 v1, v0, 3, 1\nv_bfe_u32 v17, v0, 5, 1\nv_lshl_add_u32 v1, v17, 1, v1\nv_lshl_add_u32 v16, v1, 5, v16')
        a('v_add_u32 v1, s67, v16\nv_xor_b32 v6, 32, v1\nv_xor_b32 v7, 64, v1\nv_xor_b32 v254, 96, v1')
        for ct in range(4):
            a('s_lshl_b32 s63, s71, 2\ns_add_u32 s63, s63, %d\ns_mul_i32 s64, s63, 52\ns_lshr_b32 s64, s64, 8' % ct)
            a('s_mul_i32 s65, s64, 5\ns_sub_u32 s65, s63, s65\ns_lshl_b32 s65, s65, 10')
            a('s_mul_i32 s64, s64, 245760\ns_add_u32 s65, s65, s64\ns_mul_i32 s64, s70, 5120\ns_add_u32 s65, s65, s64\ns_add_u32 s%d, s65, 0x%x' % (72+ct, WDF))
        a.label('L_fc_nv')
        def reads(n):
            st = n & 1; sl = n % self.NWS
            r = []
            for mat in range(2):
                for c2 in range(2):
                    for q in range(2):
                        r.append('ds_read_b64_tr_b16 v[%d:%d], v%d offset:%d' % (wf(st,mat,c2)+2*q, wf(st,mat,c2)+2*q+1, AW[c2 + 2*(sl//3)], (sl%3)*self.WSLOT + mat*8192 + q*512))
            for tt in range(8):
                r.append('ds_read_b128 %s, v%d offset:%d' % (v(xf(st,tt),4), AX[n&1], ((n//2) % self.NXS)*self.XSLOT + tt*2048))
            return r
        ST, CSR, TM = FR, FR+32, 238
        ep_reads = ['ds_read_b128 %s, v234 offset:%d' % (v(ST+4*tt,4), tt*256) for tt in range(8)]
        ep_reads += ['ds_read_b128 %s, v235 offset:%d' % (v(CSR+(mat*2+c2)*4,4), mat*512 + c2*64) for mat in range(2) for c2 in range(2)]
        FB = int(self.val.get('fb', 5))
        a('s_barrier')
        self.stamp(1)
        for r in reads(0): a(r)
        a.align(3)
        for n in range(20):
            st = n & 1
            a('s_waitcnt %slgkmcnt(0)\ns_barrier' % ('vmcnt(0) ' if n == FB - 1 else ''))
            if n == 10: self.stamp(5)
            if n == 5: self.stamp(6)
            if n == 15: self.stamp(7)
            rd = reads(n+1) if n < 19 else ep_reads
            WS = int(self.val.get('wds', 0))
            if n == WS:
                a('s_cmp_eq_u32 s79, 0\ns_cbranch_scc1 L_fc_w1\ns_waitcnt vmcnt(0)')
                for ct, ar in enumerate((1, 6, 7, 254)):
                    for q in range(2): a('ds_read_b64_tr_b16 %s, v%d offset:%d' % (v(238+4*ct+2*q,2), ar, q*2048))
                a.label('L_fc_w1')
            if n == WS + 1:
                a('s_cmp_eq_u32 s79, 0\ns_cbranch_scc1 L_fc_w2')
                for ct in range(4): a('buffer_store_dwordx4 %s, v236, %s, s%d offen sc1' % (v(238+4*ct,4), s(S_WS,4), 72+ct))
                a.label('L_fc_w2')
            k = 0
            for tt in range(8):
                for mat in range(2):
                    for c2 in range(2):
                        A = acc(tt, mat, c2)
                        if 'nomfma' not in self.opt: a('v_mfma_f32_16x16x32_bf16 %s, %s, %s, %s' % (v(A,4), v(wf(st,mat,c2),4), v(xf(st,tt),4), v(A,4) if n else '0'))
                        if k < len(rd) and 'nords' not in self.opt: a(rd[k]); k += 1
        self.stamp(2)
        a('s_waitcnt lgkmcnt(0)')
        a.label('L_fc_epi')
        OUT = FR + 48
        for tt in range(8):
            m, q = ST+4*tt, ST+4*tt+2
            O = OUT + tt*4
            t = TM + (tt&1)*8
            pairs = [(c2, hh) for c2 in range(2) for hh in range(2)]
            for k, (c2, hh) in enumerate(pairs):
                ga = acc(tt,0,c2)+2*hh; ua = acc(tt,1,c2)+2*hh
                a('v_pk_fma_f32 %s, %s, %s, %s op_sel_hi:[0,1,1] neg_lo:[1,0,0] neg_hi:[1,0,0]' % (v(ga,2), v(m,2), v(CSR+c2*4+2*hh,2), v(ga,2)))
                a('v_pk_fma_f32 %s, %s, %s, %s op_sel_hi:[0,1,1] neg_lo:[1,0,0] neg_hi:[1,0,0]' % (v(ua,2), v(m,2), v(CSR+8+c2*4+2*hh,2), v(ua,2)))
            for k, (c2, hh) in enumerate(pairs):
                ga = acc(tt,0,c2)+2*hh
                a('v_pk_mul_f32 %s, %s, %s op_sel:[0,1] op_sel_hi:[1,1]' % (v(t+2*k,2), v(ga,2), v(m,2)))
            for k in range(8): a('v_exp_f32 v%d, v%d' % (t+k, t+k))
            for k, (c2, hh) in enumerate(pairs):
                ga = acc(tt,0,c2)+2*hh; ua = acc(tt,1,c2)+2*hh
                a('v_pk_mul_f32 %s, %s, %s' % (v(ga,2), v(ga,2), v(ua,2)))
                a('v_pk_fma_f32 %s, %s, %s, %s op_sel_hi:[1,0,0]' % (v(t+2*k,2), v(t+2*k,2), v(q,2), v(q,2)))
            for k in range(8): a('v_rcp_f32 v%d, v%d' % (t+k, t+k))
            a('s_nop 0')
            for k, (c2, hh) in enumerate(pairs):
                ga = acc(tt,0,c2)+2*hh
                a('v_pk_mul_f32 %s, %s, %s' % (v(ga,2), v(ga,2), v(t+2*k,2)))
            for k, (c2, hh) in enumerate(pairs):
                ga = acc(tt,0,c2)+2*hh
                a('v_cvt_pk_bf16_f32 v%d, v%d, v%d' % (O+k, ga, ga+1))
            a('buffer_store_dwordx4 %s, v236, %s, s57 offen sc1' % (v(O,4), s(S_WS,4)))
            a('s_add_u32 s57, s57, 49152')
        self.stamp(3)
        a('s_waitcnt vmcnt(0)')
        self.stamp(4)
        self.setflag(237, 2)
        a('s_branch L_p2_mfma')

    MSLOT = 24576; MB = 32768; XFB = 0; XFS = 16384; DMISC = 155648

    def code_touch(self, lo, hi, n, dst, uniq):
        a = self.a
        a('s_getpc_b64 s[72:73]')
        a.label('L_ct%s' % uniq)
        a('s_add_u32 s72, s72, %s-L_ct%s\ns_addc_u32 s73, s73, 0' % (lo, uniq))
        out = []
        for k in range(n):
            a('v_lshlrev_b32 v%d, 7, v0\nv_add_u32 v%d, %d, v%d\nv_min_u32 v%d, %s-%s-4, v%d' % (dst-1-k, dst-1-k, 8192*k, dst-1-k, dst-1-k, hi, lo, dst-1-k))
            out.append('global_load_dword v%d, v%d, s[72:73]' % (dst, dst-1-k))
        return out

    def dft_loader(self):
        a = self.a; vm = VM(a)
        RAW, SA = 32, 192
        a.label('L_dft_ld')
        a('s_setprio %s' % self.val.get('dlp', '2'))
        a('s_cmp_lt_u32 s%d, 2' % WAVE)
        a('s_cselect_b32 s%d, s%d, s%d\ns_cselect_b32 s%d, s%d, s%d' % (S_A, P_HRE, P_HIM, S_A+1, P_HRE+1, P_HIM+1))
        a('s_mov_b32 s%d, 0x%x' % (S_A+2, 640*640*2))
        a('v_lshrrev_b32 v2, 3, v0\nv_lshrrev_b32 v3, 4, v0\nv_and_b32 v4, 7, v0')
        a('v_mul_u32_u24 v5, 81920, v2\nv_lshl_add_u32 v5, v4, 4, v5')
        a('s_lshl_b32 s66, s54, 2\ns_add_u32 s66, s66, s%d\ns_and_b32 s63, s%d, 3' % (WAVE, DID))
        for u in range(4): a('s_add_u32 s53, s63, %d\ns_and_b32 s%d, s53, 3\ns_lshl_b32 s53, s%d, 9\ns_add_u32 s53, s53, s66\ns_mul_i32 s%d, s53, 1280' % (u, 68+u, 68+u, 56+u))
        if 'dph0' in self.opt: a('s_mov_b32 s74, 0')
        else: a('s_and_b32 s74, s54, 3\ns_lshl_b32 s75, s%d, 1\ns_add_u32 s74, s74, s75\ns_cmp_ge_u32 s74, 5\ns_cselect_b32 s75, 5, 0\ns_sub_u32 s74, s74, s75\ns_lshl_b32 s74, s74, 7' % HH)
        a('s_mov_b32 s75, s74\nv_add_u32 v208, s74, v5')
        def xl(c, us):
            o = []
            for u in us:
                tag = 'x%d' % c if u else 'y%d' % c
                o.append(([], 'buffer_load_dwordx4 %s, v%d, %s, s%d offen' % (v(RAW+32*c+8*u,4), 208+c, s(S_X,4), 56+u), tag))
                o.append(([], 'buffer_load_dwordx4 %s, v%d, %s, s%d offen offset:640' % (v(RAW+32*c+8*u+4,4), 208+c, s(S_X,4), 56+u), tag))
            return o
        def ml(c):
            adv = ['s_add_u32 s75, s75, 128', 's_cmp_eq_u32 s75, 640', 's_cselect_b32 s75, 0, s75', 's_add_u32 s76, s60, s75']
            return [((adv if u == 0 and c > 0 else []) + ['s_add_u32 m0, s61, %d' % (self.MB + c*self.MSLOT + u*1024), 's_add_u32 s62, s76, %d' % (u*16*1280)],
                     'buffer_load_dwordx4 v%d, %s, s62 offen lds' % (8 if u == 0 else 6+(u&1), s(S_A,4)), 'm%d' % c) for u in range(6)]
        t = 16
        def unpack(lo):
            o = []
            for k in range(4):
                o += ['v_lshlrev_b32 v%d, 16, v%d' % (t+2*k, lo+k), 'v_and_b32 v%d, s77, v%d' % (t+2*k+1, lo+k),
                      'v_lshlrev_b32 v%d, 16, v%d' % (t+8+2*k, lo+4+k), 'v_and_b32 v%d, s77, v%d' % (t+8+2*k+1, lo+4+k)]
            return o
        def acc():
            o = []
            for k in range(16): o += ['v_add_f32 v%d, v%d, v%d' % (SA+(k&3), SA+(k&3), t+k), 'v_fmac_f32 v%d, v%d, v%d' % (SA+4+(k&3), t+k, t+k)]
            return o
        def st(c): return unpack(RAW+32*c) + acc()
        def fl(c, with_stats):
            o = []
            for u in range(4):
                lo = RAW+32*c+8*u
                o += unpack(lo)
                if u == 0 and with_stats: o += acc()
                for k in range(8): o.append('v_fmac_f32 v%d, v12, v%d' % (t+k, t+8+k))
                for k in range(4): o.append('v_cvt_pk_bf16_f32 v%d, v%d, v%d' % (lo+k, t+2*k, t+2*k+1))
                o.append('ds_write_b128 v%d, %s offset:%d' % (213+u, v(lo,4), (c&1)*self.XFS))
            return o
        def emit(loads, valu):
            per = -(-len(valu) // max(1, len(loads))); k = 0
            for pre, ld, tag in loads:
                for p in pre: a(p)
                vm.op(ld, tag)
                for l in valu[k:k+per]: a(l)
                k += per
            for l in valu[k:]: a(l)
        emit(xl(0, range(4)), [])
        a('v_xor_b32 v3, v3, v4\nv_lshlrev_b32 v3, 4, v3')
        a('v_mul_u32_u24 v6, 2560, v2\nv_add_u32 v6, v6, v3\nv_xor_b32 v7, 64, v6')
        a('s_or_b32 s60, s55, s%d\ns_or_b32 s60, s60, s%d\ns_cmp_eq_u32 s60, 0\ns_cselect_b32 s60, %d, 0' % (WAVE, HH, 320*1280))
        a('v_cmp_gt_u32 vcc, 8, v0\nv_mov_b32 v8, s60\ns_nop 0\nv_cndmask_b32 v8, 0, v8, vcc\nv_add_u32 v8, v8, v6')
        a('s_and_b32 s60, s%d, 1\ns_mul_i32 s60, s60, 96\ns_lshl_b32 s61, s%d, 7\ns_add_u32 s60, s60, s61\ns_add_u32 s60, s60, s55\ns_mul_i32 s60, s60, 1280' % (WAVE, HH))
        a('s_mul_i32 s61, s%d, 6144\ns_add_u32 s76, s60, s75' % WAVE)
        emit(ml(0), [])
        for c in range(1, 5): a('s_add_u32 s74, s74, 128\ns_cmp_eq_u32 s74, 640\ns_cselect_b32 s74, 0, s74\nv_add_u32 v%d, s74, v5' % (208+c))
        a('s_lshl_b32 s53, s%d, 12\ns_add_u32 s53, s53, %d' % (WAVE, self.XFB))
        a('v_lshl_add_u32 v9, v2, 7, v3\nv_add_u32 v9, s53, v9')
        for u in range(4): a('s_and_b32 s53, s%d, 1\ns_lshl_b32 s53, s53, 6\nv_xor_b32 v%d, s53, v9\ns_lshl_b32 s53, s%d, 10\nv_add_u32 v%d, s53, v%d' % (68+u, 213+u, 68+u, 213+u, 213+u))
        a('s_cmp_eq_u32 s55, 0\ns_cselect_b32 s53, 1.0, -1.0\nv_mov_b32 v12, s53\ns_mov_b32 s77, 0xffff0000')
        for k in range(8): a('v_mov_b32 v%d, 0' % (SA+k))
        a('v_lshlrev_b32 v4, 10, v2\ns_lshl_b32 s65, s66, 4\ns_add_u32 s65, s65, 0x%x\ns_lshl_b32 s64, s63, 13\ns_add_u32 s64, s64, s65' % STATS)
        a('v_and_b32 v3, 31, v0\nv_lshlrev_b32 v10, 10, v3\ns_lshl_b32 s53, s%d, 7\ns_add_u32 s53, s53, %d\nv_lshl_add_u32 v3, v3, 2, s53' % (WAVE, self.DMISC))
        self.nonce()
        vm.wait('x0')
        emit(xl(1, range(4)), fl(0, True))
        vm.wait('m0', 'lgkmcnt(0)'); a('s_barrier')
        self.stamp(1)
        emit(ml(1) + xl(2, [0]) + xl(3, [0]) + xl(4, [0]), [])
        vm.wait('x1'); emit(xl(2, [1,2,3]) + ml(2), fl(1, True)); vm.wait('m1', 'lgkmcnt(0)'); a('s_barrier')
        vm.wait('y4')
        fin = st(2) + st(3) + st(4)
        fin += ['v_add_f32 v%d, v%d, v%d' % (SA+k, SA+k, SA+k+1) for k in (0, 4, 2, 6)] + ['v_add_f32 v%d, v%d, v%d' % (SA+k, SA+k, SA+k+2) for k in (0, 4)]
        for mod in ('quad_perm:[1,0,3,2]', 'quad_perm:[2,3,0,1]', 'row_half_mirror'):
            fin += ['s_nop 0'] + ['v_add_f32 v%d, v%d, v%d %s row_mask:0xf bank_mask:0xf' % (SA+k, SA+k, SA+k, mod) for k in (0, 4)]
        fin += ['v_mul_f32 v%d, 0x3acccccd, v%d' % (SA+8, SA), 'v_mul_f32 v%d, 0x3acccccd, v%d' % (SA+9, SA+4),
                'v_fma_f32 v%d, -v%d, v%d, v%d' % (SA+9, SA+8, SA+8, SA+9), 'v_max_f32 v%d, 0, v%d' % (SA+9, SA+9), 'v_add_f32 v%d, 0x3727c5ac, v%d' % (SA+9, SA+9),
                'v_mov_b32 v%d, s12' % (SA+10), 'v_mov_b32 v%d, s13' % (SA+11)]
        emit([], fin)
        a('s_mov_b32 exec_lo, 0x01010101\ns_mov_b32 exec_hi, 0x01010101')
        vm.op('buffer_store_dwordx4 %s, v4, %s, s64 offen sc1' % (v(SA+8,4), s(S_WS,4)), 'o')
        a('s_mov_b64 exec, -1')
        vm.wait('x2'); emit(xl(3, [1,2,3]) + ml(3), fl(2, False)); vm.wait('m2', 'lgkmcnt(0)'); a('s_barrier')
        vm.wait('x3'); emit(xl(4, [1,2,3]) + ml(4), fl(3, False)); vm.wait('m3', 'lgkmcnt(0)'); a('s_barrier')
        vm.op('buffer_load_dwordx4 %s, v10, %s, s65 offen sc1' % (v(SA,4), s(S_WS,4)), 'r')
        vm.wait('x4'); emit([], fl(4, False))
        vm.wait('m4', 'lgkmcnt(0)'); a('s_barrier')
        vm.wait('r')
        a('s_mov_b32 s53, 0')
        a.label('L_dl_rs')
        a('v_cmp_ne_u64 vcc, s[12:13], %s' % v(SA+2,2))
        a('s_cbranch_vccz L_dl_rx\ns_add_u32 s53, s53, 1\ns_cmp_gt_u32 s53, 0x%x\ns_cbranch_scc1 L_dl_rx\ns_sleep 2' % SPIN_MAX)
        a('buffer_load_dwordx4 %s, v10, %s, s65 offen sc1\ns_waitcnt vmcnt(0)\ns_branch L_dl_rs' % (v(SA,4), s(S_WS,4)))
        a.label('L_dl_rx')
        a('v_rsq_f32 v%d, v%d\ns_nop 0\nds_write_b32 v3, v%d' % (SA, SA+1, SA))
        a('s_lshl_b32 s58, s%d, 3\nv_lshrrev_b32 v7, 5, v0\nv_add_u32 v7, s58, v7\nv_and_b32 v6, 31, v0\nv_lshlrev_b32 v6, 4, v6' % WAVE)
        a('v_mul_u32_u24 v5, %d, v7\nv_add_u32 v5, v5, v6\nv_mul_u32_u24 v8, %d, v7\nv_add_u32 v8, v8, v6' % (LROW, GROW))
        a('s_lshr_b32 s59, s%d, 1\ns_mul_i32 s57, s59, %d\ns_lshl_b32 s59, s%d, 10\ns_add_u32 s57, s57, s59' % (DID, GBLK, HH))
        for k in range(4): a('s_add_u32 s%d, s57, 0x%x' % (60+k, G16 + 2*k*GROW))
        a('s_lshl_b32 s59, s%d, 3\ns_add_u32 s58, s59, 0x%x\nv_lshl_add_u32 v6, v0, 9, s58' % (DID, DFLAG))
        a('v_cmp_gt_u32 vcc, 32, v0\nv_mov_b32 v7, 0x%x\ns_add_u32 s59, s59, 0x%x\nv_cndmask_b32 v6, v7, v6, vcc\nv_mov_b32 v7, s59' % (OOB, SFLAG))
        a('v_lshlrev_b32 v11, 3, v0\nv_add_u32 v11, 0x%x, v11' % SFLAG)
        a('s_waitcnt lgkmcnt(0)\ns_barrier')
        self.stamp(9)
        for et in range(3):
            a('s_barrier')
            if et == 0: a('s_cmp_eq_u32 s%d, 0\ns_cbranch_scc0 L_dl_sk' % HH)
            for k in range(4): a('ds_read_b128 %s, v5 offset:%d' % (v(16+16*et+4*k,4), 2*k*LROW + et*512))
            for k in range(4):
                a('s_waitcnt lgkmcnt(%d)' % (3-k))
                a('buffer_store_dwordx4 %s, v8, %s, s%d offen offset:%d sc1' % (v(16+16*et+4*k,4), s(S_WS,4), 60+k, et*512))
            if et == 0: a.label('L_dl_sk')
        a('s_waitcnt vmcnt(0)\ns_setprio 0\ns_barrier')
        self.stamp(4)
        a('s_cmp_eq_u32 s%d, 0\ns_cbranch_scc0 L_dl_nf2' % WAVE)
        self.setflag(6, 2, '-1')
        a.label('L_dl_nf2')
        self.spin3('L_dl_sp', 11, 14)
        self.stamp(3)
        vm = VM(a)
        self.p2_coords(); self.ov_setup()
        a('v_lshlrev_b32 v2, 4, v0')
        a('s_lshr_b32 s53, s%d, 1\ns_mul_i32 s60, s53, 122880\ns_mul_i32 s61, s53, 71680\ns_and_b32 s53, s%d, 1\ns_mul_i32 s62, s53, 7\ns_sub_i32 s62, s76, s62' % (WAVE, WAVE))
        a('s_mul_i32 s53, s53, 35840\ns_add_u32 s60, s60, s53\ns_add_u32 s61, s61, s53\ns_add_u32 s63, s60, s75\ns_add_u32 s60, s60, s77')
        for j in range(7):
            a('s_cmp_le_i32 s62, %d\ns_cselect_b32 s74, s63, s60' % j)
            for n in range(5):
                a('s_add_u32 m0, s61, %d\ns_add_u32 s78, s74, %d' % (j*5120 + n*1024, j*5120 + n*1024))
                vm.op('buffer_load_dwordx4 v2, %s, s78 offen sc1 lds' % s(S_WS,4), 'wd')
        for i in range(5): self.ov_load(vm, i, 2)
        self.stamp(2)
        a('s_branch L_p2_help')

    def dft_consumer(self):
        a = self.a
        ACC = 8
        MP, XP = 104, 152
        NP = 12
        a.label('L_dft_cons')
        a('s_sub_u32 s56, s%d, 4' % WAVE)
        a('s_setprio 1')
        a('v_and_b32 v208, 31, v0\nv_lshrrev_b32 v209, 5, v0\nv_bfe_u32 v210, v0, 1, 3\nv_xor_b32 v210, v210, v209')
        a('v_lshlrev_b32 v210, 4, v210\nv_lshl_add_u32 v210, v208, 7, v210')
        AM = [[211+4*k+u for u in range(4)] for k in range(3)]; AX = [2, 3, 4, 5]
        a('s_lshl_b32 s57, s56, 12\ns_add_u32 s57, s57, %d' % self.XFB)
        for u in range(4):
            a('v_xor_b32 v6, %d, v210' % (32*u))
            a('v_add_u32 v%d, s57, v6' % AX[u])
            for k in range(3): a('v_add_u32 v%d, %d, v6' % (AM[k][u], self.MB + 2*k*self.MSLOT))
        a('v_lshlrev_b32 v7, 2, v209\ns_mov_b32 s62, 0x3d000000')
        for k in range(16):
            r = 224 + k
            a('v_add_u32 v%d, %d, v7\nv_mul_u32_u24 v%d, v%d, v208\nv_and_b32 v%d, 31, v%d\nv_cvt_f32_u32 v%d, v%d\nv_mul_f32 v%d, s62, v%d' % (r, 8*(k>>2)+(k&3), r, r, r, r, r, r, r, r))
        for k in range(16):
            a('v_sin_f32 v%d, v%d\nv_cos_f32 v%d, v%d' % (240+k, 224+k, 224+k, 224+k))
        if 'dxt' in self.opt:
            a('s_lshl_b32 s57, s55, 1\ns_add_u32 s57, s57, s%d\ns_lshl_b32 s57, s57, 9\ns_lshl_b32 s58, s54, 2\ns_add_u32 s57, s57, s58\ns_add_u32 s57, s57, s56\ns_mul_i32 s57, s57, 1280' % HH)
            a('v_and_b32 v6, 7, v0\nv_mul_u32_u24 v6, 81920, v6\nv_lshrrev_b32 v162, 3, v0\nv_lshrrev_b32 v163, 2, v162\nv_add_u32 v162, v162, v163\nv_lshl_add_u32 v6, v162, 7, v6')
            a('buffer_load_dword v223, v6, %s, s57 offen offset:128' % s(S_X,4))
        a('s_lshl_b32 s57, s56, 7\ns_add_u32 s57, s57, %d' % self.DMISC)
        a('v_lshl_add_u32 v160, v209, 4, s57')
        a('v_mul_u32_u24 v161, %d, v208\nv_lshl_add_u32 v161, v209, 6, v161' % LROW)
        a('v_lshrrev_b32 v6, 3, v208\nv_add_u32 v6, s56, v6\nv_and_b32 v6, 3, v6\nv_lshl_add_u32 v161, v6, 2, v161')
        self.nonce()
        def accr(m): return ACC + 32*(m%3) + 16*(m//3)
        rd = []; need = []
        for c in range(5):
            for u in range(4):
                rd.append('ds_read_b128 %s, v%d offset:%d' % (v(XP+4*(u&1),4), AX[u], (c&1)*self.XFS))
                for m in range(6):
                    rd.append('ds_read_b128 %s, v%d offset:%d' % (v(MP+4*((6*u+m)%NP),4), AM[c>>1][u], (c&1)*self.MSLOT + m*4096))
                    need.append(len(rd)-1)
        RR = 168
        rr_reads = ['ds_read_b128 %s, v160 offset:%d' % (v(RR+4*k,4), 32*k) for k in range(4)]
        LA = 5
        a('s_barrier')
        self.stamp(1)
        for r in rd[:7]: a(r)
        issued = 7; done = 0
        a.align(3)
        for g in range(120):
            c, mu = divmod(g, 24); u, m = divmod(mu, 6)
            if mu == 21:
                a('s_waitcnt lgkmcnt(0)\ns_barrier'); done = issued
                self.stamp(5+c)
                if c < 4:
                    for _ in range(7): a(rd[issued]); issued += 1
                else:
                    for r in rr_reads: a(r)
            elif need[g] >= done:
                a('s_waitcnt lgkmcnt(%d)' % (issued - need[g] - 1)); done = need[g] + 1
            a('v_mfma_f32_32x32x16_bf16 %s, %s, %s, %s' % (v(accr(m),16), v(XP+4*(u&1),4), v(MP+4*(mu%NP),4), v(accr(m),16) if g >= 6 else '0'))
            if mu < 21:
                tgt = min(28*(c+1), need[g+1] + LA + 1)
                while issued < tgt: a(rd[issued]); issued += 1
        self.stamp(2)
        a.label('L_dc_epi')
        CC, SS, NS = 184, 192, 200
        a('s_waitcnt lgkmcnt(0)')
        for k in range(8):
            a('v_pk_mul_f32 %s, %s, %s' % (v(224+2*k,2), v(224+2*k,2), v(RR+2*k,2)))
            a('v_pk_mul_f32 %s, %s, %s' % (v(240+2*k,2), v(240+2*k,2), v(RR+2*k,2)))
        for k in range(8):
            a('v_cvt_pk_bf16_f32 v%d, v%d, v%d' % (CC+k, 224+2*k, 225+2*k))
            a('v_cvt_pk_bf16_f32 v%d, v%d, v%d' % (SS+k, 240+2*k, 241+2*k))
            a('v_xor_b32 v%d, 0x80008000, v%d' % (NS+k, SS+k))
        def zc(et):
            A0 = ACC + 32*et; Z = 104 + 16*et; o = []
            for k in range(8):
                o.append('v_cvt_pk_bf16_f32 v%d, v%d, v%d' % (Z+k, A0+2*k, A0+2*k+1))
                o.append('v_cvt_pk_bf16_f32 v%d, v%d, v%d' % (Z+8+k, A0+16+2*k, A0+16+2*k+1))
            return o
        for l in zc(0): a(l)
        a('s_nop 1')
        for et in range(3):
            A0 = ACC + 32*et; Z = 104 + 16*et
            RE, IM = A0, A0+16
            ms = [(RE,Z,CC,0),(IM,Z+8,CC,0),(RE,Z+4,CC+4,1),(IM,Z+12,CC+4,1),(RE,Z+8,SS,1),(IM,Z,NS,1),(RE,Z+12,SS+4,1),(IM,Z+4,NS+4,1)]
            fill = (zc(et+1) if et < 2 else ['s_nop 3']) + (self._dft_out(ACC + 32*(et-1), et-1) if et > 0 else [])
            per = -(-len(fill)//8)
            for i, (D, A_, B_, ac) in enumerate(ms):
                a('v_mfma_f32_32x32x16_bf16 %s, %s, %s, %s' % (v(D,16), v(A_,4), v(B_,4), v(D,16) if ac else '0'))
                for f in fill[per*i:per*i+per]: a(f)
            if et > 0: a('s_waitcnt lgkmcnt(0)\ns_barrier')
        a.nop(12)
        for f in self._dft_out(ACC + 64, 2): a(f)
        a('s_waitcnt lgkmcnt(0)\ns_barrier')
        a('s_setprio 0')
        self.stamp(3)
        a('s_barrier')
        a('s_branch L_p2_mfma')
        a.label('L_dc_end')

    def _dft_out(self, A0, et):
        o = []
        for r in range(16):
            o.append('v_cvt_pk_bf16_f32 v%d, v%d, v%d' % (A0+r, A0+r, A0+16+r))
            o.append('ds_write_b32 v161, v%d offset:%d' % (A0+r, (32*et + 8*(r>>2) + (r&3))*16))
        return o

    def p2_help(self):
        a = self.a
        a.label('L_p2_help')
        if self.stage == 'p1':
            a('s_waitcnt vmcnt(0)'); self.dump_stamps(); a('s_endpgm'); return
        ACC, G, TW, TM, OV, GV = 16, 56, 96, 112, self.OV, 228
        def acc(t, n): return ACC + (t*5+n)*4
        a('s_and_b32 s56, s%d, 1\ns_lshr_b32 s57, s%d, 1' % (WAVE, WAVE))
        a('v_lshlrev_b32 v1, 3, v0\ns_lshl_b32 s79, s%d, 9\ns_add_u32 s79, s79, 0x%x' % (T1, DFLAG))
        a('buffer_load_dwordx2 v[254:255], v1, %s, s79 offen sc1' % s(S_WS,4))
        a('s_lshl_b32 s58, s56, 1\ns_add_u32 s59, s58, s57\ns_sub_u32 s58, s58, s57\ns_add_u32 s58, s58, 1')
        a('v_and_b32 v3, 15, v0\nv_lshrrev_b32 v4, 4, v0')
        a('s_lshl_b32 s60, s59, 9\ns_add_u32 s60, s60, s%d\ns_mul_i32 s60, s60, 1280\ns_mul_i32 s61, s%d, 160\ns_add_u32 s60, s60, s61' % (T1, CS))
        a('v_mul_u32_u24 v5, 40960, v3\nv_lshl_add_u32 v5, v4, 3, v5')
        for n in range(5): a('buffer_load_dwordx2 %s, v5, %s, s60 offen offset:%d' % (v(234+2*n,2), s(S_X,4), 32*n))
        a('s_lshr_b32 s64, s%d, 2' % CS)
        a('s_lshl_b32 s63, s64, 31\ns_or_b32 s63, s63, 0x3a000000')
        a('s_mul_i32 s65, s64, 640\ns_lshl_b32 s64, s64, 1\ns_sub_u32 s64, 1, s64')
        a('s_mul_i32 s66, s64, s%d\ns_and_b32 s66, s66, 31' % T1)
        a('s_mul_i32 s67, s%d, 80' % CS)
        a('v_mul_u32_u24 v8, %d, v4' % (2*GBLK))
        for n in range(5):
            a('v_add_u32 v9, s67, v3\nv_add_u32 v9, %d, v9' % (16*n))
            a('v_mul_lo_u32 v9, v9, s64\nv_add_u32 v9, s65, v9')
            a('v_and_b32 v10, 1, v9\nv_mul_u32_u24 v10, %d, v10\nv_add_u32 v10, v10, v8' % GBLK)
            a('v_lshrrev_b32 v11, 1, v9\nv_cmp_eq_u32 vcc, 160, v11\ns_nop 1\nv_cndmask_b32 v11, v11, 0, vcc')
            a('v_lshl_add_u32 v%d, v11, 4, v10' % (GV+n))
            if n == 0:
                a('v_cmp_eq_u32 vcc, 0, v9\nv_mov_b32 v11, 0x%x\ns_nop 0\nv_cndmask_b32 v%d, v%d, v11, vcc' % (OOB, GV, GV))
        a('s_mul_i32 s68, s66, %d\ns_mul_i32 s69, s57, %d\ns_add_u32 s68, s68, s69\ns_add_u32 s68, s68, 0x%x' % (GROW, 16*GBLK, G16))
        a('s_add_u32 s69, s68, %d' % (8*GBLK))
        a('s_lshr_b32 s70, s66, 3')
        for t in range(2):
            a('s_lshl_b32 s71, s%d, 9\ns_add_u32 s71, s71, s%d' % (59 - t, T1))
            a('v_lshl_add_u32 v%d, v3, 5, s71' % (9+t))
        for i in range(4):
            a('s_sub_u32 s71, %d, s70\ns_and_b32 s71, s71, 3\ns_lshl_b32 s72, s57, 5\ns_add_u32 s71, s71, s72' % (i+4))
            a('v_lshl_add_u32 v11, v4, 2, s71')
            a('v_add_u32 v12, 16, v11')
            for t in range(2):
                for d in range(2):
                    r = TM + (t*2+d)*2
                    a('v_mul_u32_u24 v%d, v%d, v%d' % (r, 9+t, 11+d))
                    a('v_and_b32 v%d, 2047, v%d\nv_cvt_f32_u32 v%d, v%d\nv_mul_f32 v%d, s63, v%d' % (r, r, r, r, r, r))
                    a('v_sin_f32 v%d, v%d\nv_cos_f32 v%d, v%d' % (r+1, r, r, r))
            a('s_nop 0')
            for t in range(2):
                for d in range(2):
                    r = TM + (t*2+d)*2
                    a('v_cvt_pk_bf16_f32 v%d, v%d, v%d' % (TW+(t*2+d)*4+i, r, r+1))
        self.stamp(5)
        a('s_waitcnt vmcnt(5)')
        self.spin('L_p2_pd', 1, 254, 's79', 8, first_done=True)
        self.stamp(6)
        for d in range(2):
            for n in range(5):
                a('buffer_load_dwordx4 %s, v%d, %s, s%d offen sc1' % (v(G+(d*5+n)*4,4), GV+n, s(S_WS,4), 68+d))
        a('s_mul_i32 s61, s57, 71680\ns_mul_i32 s62, s56, 5120\ns_add_u32 s61, s61, s62\nv_add_u32 v6, s61, v2')
        a('s_mul_i32 s61, s56, 71680\ns_mul_i32 s62, s57, 15360\ns_add_u32 s62, s62, s61\ns_add_u32 s62, s62, 51200\nv_add_u32 v7, s62, v2')
        a('s_mul_i32 s62, s57, 5120\ns_sub_u32 s62, s61, s62\ns_add_u32 s62, s62, 61440\nv_add_u32 v8, s62, v2')
        a('s_lshr_b32 s61, s%d, 1\ns_lshl_b32 s61, s61, 9' % T1)
        a('v_min_u32 v1, 47, v0\nv_lshlrev_b32 v1, 3, v1')
        a('s_waitcnt vmcnt(10)')
        for n in range(5):
            for k in range(2):
                a('v_lshlrev_b32 v%d, 16, v%d\nv_and_b32 v%d, 0xffff0000, v%d' % (acc(0,n)+2*k, 234+2*n+k, acc(0,n)+2*k+1, 234+2*n+k))
        a('s_waitcnt vmcnt(0)')
        for d in range(2):
            for n in range(5):
                for t in range(2):
                    a('v_mfma_f32_16x16x32_bf16 %s, %s, %s, %s' % (v(acc(t,n),4), v(G+(d*5+n)*4,4), v(TW+(t*2+d)*4,4), v(acc(t,n),4) if (t == 0 or d) else '0'))
        self.stamp(7)
        a('s_cmp_eq_u32 s%d, 0\ns_cbranch_scc0 L_p2_nf' % WAVE)
        self.spin('L_p2_pf', 1, 254, 's61', 1)
        a.label('L_p2_nf')
        a('s_setprio %s' % self.val.get('hp', '0'))
        a('s_barrier')
        self.stamp(8)
        w = ['ds_write_b128 v6, %s offset:%d' % (v(OV+4*g,4), (g//5)*10240 + (g%5)*1024) for g in range(25)]
        w += ['ds_write_b128 v%d, %s offset:%d' % (7+t, v(acc(t,n),4), n*1024) for t in range(2) for n in range(5)]
        for lo, hi in ((0,8),(8,16),(16,24),(24,30),(30,35)):
            a('s_barrier')
            for l in w[lo:hi]: a(l)
            a('s_waitcnt lgkmcnt(0)')
        a('s_barrier')
        a('s_or_b32 s53, s2, s%d\ns_cmp_eq_u32 s53, 0\ns_cbranch_scc0 L_ph_x' % WAVE)
        a('v_mov_b32 v2, 0x%x' % EPOCH)
        self.setflag(2, 4)
        a.label('L_ph_x')
        self.dump_stamps()
        a('s_endpgm')

    def p2_mfma(self):
        a = self.a
        a.label('L_p2_mfma')
        if self.stage == 'p1':
            self.dump_stamps(); a('s_endpgm'); return
        ACC, WB, H = 16, 56, 136
        NH, NWB = 14, 4
        def acc(t, n): return ACC + (t*5+n)*4
        a('s_setprio %s' % self.val.get('mp', '1'))
        a('s_and_b32 s56, s%d, 1\ns_bfe_u32 s57, s%d, 0x10001\nv_lshlrev_b32 v2, 4, v0' % (WAVE, WAVE))
        self.p2_coords()
        a('s_lshl_b32 s58, s56, 1\ns_add_u32 s59, s58, s57\ns_sub_u32 s58, s58, s57\ns_add_u32 s58, s58, 1')
        a('s_lshl_b32 s61, s%d, 2\ns_add_u32 s62, s61, s59\ns_mul_i32 s62, s62, 49152\nv_add_u32 v6, s62, v2' % T1)
        a('s_add_u32 s62, s61, s58\ns_mul_i32 s62, s62, 49152\nv_add_u32 v7, s62, v2')
        a('s_mul_i32 s62, s57, 24\ns_sub_u32 s62, s62, s76\ns_lshl_b32 s62, s62, 10\ns_add_u32 s63, s62, 0x%x\ns_add_u32 s62, s62, 0x%x' % (HF, HF + 24576))
        a('s_mul_i32 s61, s57, 71680\nv_add_u32 v3, s61, v2\nv_add_u32 v4, 0xc800, v3')
        a('s_lshl_b32 s60, s59, 9\ns_add_u32 s60, s60, s%d\ns_mul_i32 s60, s60, 1280\ns_mul_i32 s61, s%d, 160\ns_add_u32 s60, s60, s61' % (T1, CS))
        a('s_and_b32 s74, s%d, 3\ns_xor_b32 s73, s74, 2\ns_mul_i32 s73, s73, 5120\ns_add_u32 s73, s73, 143360' % WAVE)
        a('s_mul_i32 s74, s74, 5120\ns_add_u32 s74, s74, 143360')
        for m in range(3):
            a('v_add_u32 v8, %d, v0\nv_mul_u32_u24 v9, 205, v8\nv_lshrrev_b32 v9, 11, v9' % (64*m))
            a('v_mul_u32_u24 v%d, 10, v9\nv_sub_u32 v8, v8, v%d\nv_lshlrev_b32 v8, 4, v8' % (10+m, 10+m))
            a('v_mul_u32_u24 v%d, 40960, v9\nv_add_u32 v%d, v%d, v8' % (10+m, 10+m, 10+m))
            a('v_mul_u32_u24 v9, 176, v9\nv_add3_u32 v%d, v9, v8, s74' % (13+m))
        a('v_cmp_gt_u32 vcc, 32, v0\nv_mov_b32 v8, 0x%x\ns_nop 0\nv_cndmask_b32 v12, v8, v12, vcc' % OOB)
        a('v_and_b32 v8, 15, v0\nv_mul_u32_u24 v8, 176, v8\nv_lshrrev_b32 v9, 4, v0\nv_lshl_add_u32 v8, v9, 3, v8\nv_add_u32 v8, s74, v8')
        a('v_add_u32 v9, s73, v2\nv_add_u32 v5, s74, v2')
        a('s_mul_i32 s61, s56, 71680\ns_mul_i32 s53, s57, 10240\ns_add_u32 s61, s61, s53\ns_add_u32 s61, s61, 51200\nv_add_u32 v1, s61, v2')
        a('s_barrier')
        self.stamp(8)
        vm = VM(a)
        def hload(j):
            a('s_cmp_le_u32 s76, %d\ns_cselect_b32 s61, s63, s62\ns_add_u32 s61, s61, %d' % (j, j*1024))
            for t in range(2):
                vm.op('buffer_load_dwordx4 %s, v%d, %s, s61 offen sc1' % (v(H+(j%NH)*8+4*t,4), 6+t, s(S_WS,4)), j)
        def wread(j):
            sl = j if j < 14 else j - 14
            return ['ds_read_b128 %s, v%d offset:%d' % (v(WB+(j%NWB)*20+4*n,4), 3 if sl < 10 else 4, (sl if sl < 10 else sl-10)*5120 + n*1024) for n in range(5)]
        PRE = int(self.val.get('hpre', self.h_pre))
        for j in range(PRE): hload(j)
        for j in range(2):
            for r in wread(j): a(r)
        nxt = PRE
        for j in range(24):
            vm.wait(j, 'lgkmcnt(%d)' % (5 if j < 23 else 0))
            if j in (0, 4, 9, 17): self.stamp({0: 9, 4: 10, 9: 11, 17: 12}[j])
            if j in (3, 7, 11, 15, 19): a('s_barrier')
            rd = wread(j+2) if j < 22 else []
            k = 0
            for n in range(5):
                for t in range(2):
                    a('v_mfma_f32_16x16x32_bf16 %s, %s, %s, %s' % (v(acc(t,n),4), v(WB+(j%NWB)*20+4*n,4), v(H+(j%NH)*8+4*t,4), v(acc(t,n),4) if j else '0'))
                    if k < len(rd): a(rd[k]); k += 1
                    elif k in (5, 7) and nxt < 24 and nxt < j + NH and (k == 5 or nxt <= j + NH - 2):
                        hload(nxt); nxt += 1; k += 1
                    else: k += 1
        assert nxt == 24
        self.stamp(13)
        a.nop(7)
        for n in range(5): a('ds_write_b128 v9, %s offset:%d' % (v(acc(1,n),4), n*1024))
        a('s_waitcnt lgkmcnt(0)\ns_barrier')
        for n in range(5):
            a('ds_read_b128 %s, v1 offset:%d' % (v(WB+12*n,4), n*1024))
            a('ds_read_b128 %s, v1 offset:%d' % (v(WB+12*n+4,4), 5120 + n*1024))
            a('ds_read_b128 %s, v5 offset:%d' % (v(WB+12*n+8,4), n*1024))
        for n in range(5):
            a('s_waitcnt lgkmcnt(%d)' % (12-2*n))
            for k in range(2):
                a('v_pk_add_f32 %s, %s, %s' % (v(WB+12*n+2*k,2), v(WB+12*n+2*k,2), v(WB+12*n+4+2*k,2)))
                a('v_pk_add_f32 %s, %s, %s' % (v(acc(0,n)+2*k,2), v(acc(0,n)+2*k,2), v(WB+12*n+8+2*k,2)))
            for k in range(2): a('v_pk_add_f32 %s, %s, %s' % (v(acc(0,n)+2*k,2), v(acc(0,n)+2*k,2), v(WB+12*n+2*k,2)))
            for k in range(2): a('v_cvt_pk_bf16_f32 v%d, v%d, v%d' % (acc(1,n)+k, acc(0,n)+2*k, acc(0,n)+2*k+1))
            a('ds_write_b64 v8, %s offset:%d' % (v(acc(1,n),2), 32*n))
        a('s_waitcnt lgkmcnt(0)')
        for m in range(3): a('ds_read_b128 %s, v%d' % (v(WB+4*m,4), 13+m))
        for m in range(3):
            a('s_waitcnt lgkmcnt(%d)' % (2-m))
            a('buffer_store_dwordx4 %s, v%d, %s, s60 offen' % (v(WB+4*m,4), 10+m, s(S_OUT,4)))
        if self.stamps: a('s_waitcnt vmcnt(0)')
        self.dump_stamps()

    h_pre = 10

    def build(self, header):
        a = self.a
        self.prologue()
        self.ffn_wloader(); self.ffn_xloader(); self.dft_loader()
        self.dft_consumer(); self.ffn_consumer()
        self.p2_help(); self.p2_mfma()
        a.label('L_end')
        a('s_endpgm')
        errs = check(a.lines)
        for e in errs: print(e, file=sys.stderr)
        txt = header + '; @launch grid=(256,1,1) block=(512,1,1) lds=163840\n'
        txt += '.amdgcn_target "amdgcn-amd-amdhsa--gfx950"\n.text\n.globl %s\n.p2align 8\n.type %s,@function\n%s:\n' % (KN, KN, KN)
        txt += a.text()
        txt += '''.section .rodata,"a"
.p2align 6
.amdhsa_kernel %s
  .amdhsa_next_free_vgpr 256
  .amdhsa_next_free_sgpr 102
  .amdhsa_accum_offset 256
  .amdhsa_group_segment_fixed_size 0
  .amdhsa_kernarg_size 96
  .amdhsa_user_sgpr_count 2
  .amdhsa_user_sgpr_kernarg_segment_ptr 1
  .amdhsa_system_sgpr_workgroup_id_x 1
.end_amdhsa_kernel
''' % KN
        return txt, errs

if __name__ == '__main__':
    import argparse
    ap = argparse.ArgumentParser()
    ap.add_argument('-o', default='k.s'); ap.add_argument('--stage', default='full'); ap.add_argument('--stamps', action='store_true'); ap.add_argument('--opt', default='')
    args = ap.parse_args()
    ref = open('parallel_sum__spectral_fnet__swiglu_ffn__prompt.s.ref').read()
    header = ''.join(l + '\n' for l in ref.split('\n') if l.startswith(';') and '@launch' not in l and 'Override launch' not in l and 'grid=ceil' not in l)
    txt, errs = Gen(args.stage, args.stamps, [o for o in args.opt.split(',') if o]).build(header)
    open(args.o, 'w').write(txt)
    print('written', args.o, 'hazard errors:', len(errs))
```

```python
import sys
from dsl import *

KN = 'parallel_sum__spectral_fnet__swiglu_ffn__prompt_kernel'
HFLAG   = 0x0
EPOCH   = 0x18000
SFLAG   = 0x18400
STATS   = 0x20000
COLSUM  = 0x28000
STAMPS  = 0x60000
DFLAG   = 0x80000
WDF     = 0x100000
G16     = 0x300000
HF      = 0x600000
WS_SIZE = 0xC00000
LROW = 97*16
GROW = 160*16
GBLK = 32*GROW
SPIN_MAX = 0x10000
OOB = 0x7ffffff0

S_X, S_WS, S_OUT, S_A = 4, 8, 16, 20
NONCE = 12
P_X, P_HRE, P_HIM, P_WG, P_WU, P_WD, P_OUT, P_DBG, P_WS = 28, 32, 34, 36, 38, 40, 42, 44, 46
WAVE, XCD, IDX = 48, 49, 50
T1, CS = 51, 52
HH, DID = 14, 15

class VM:
    def __init__(self, a): self.a = a; self.q = []
    def op(self, txt, tag): self.a(txt); self.q.append(tag)
    def wait(self, tag, extra=''):
        idx = max([i for i, t in enumerate(self.q) if t == tag], default=-1)
        if idx < 0:
            if extra: self.a('s_waitcnt ' + extra)
            return
        n = len(self.q) - idx - 1
        assert n <= 63
        self.a('s_waitcnt vmcnt(%d) %s' % (n, extra))
        self.q = self.q[idx+1:]
    def drained(self): self.q = []

class Gen:
    def __init__(self, stage='full', stamps=False, opt=()):
        self.a = Asm(); self.stage = stage; self.stamps = stamps; self.opt = set(o.split('=')[0] for o in opt); self.val = dict(o.split('=') for o in opt if '=' in o)

    def srd(self, dst, ptr, size):
        a = self.a
        a('s_mov_b32 %s, %s' % (s(dst), s(ptr)))
        a('s_mov_b32 %s, %s' % (s(dst+1), s(ptr+1)))
        a('s_mov_b32 %s, 0x%x' % (s(dst+2), size))
        a('s_mov_b32 %s, 0x20000' % s(dst+3))

    def stamp(self, k):
        if self.stamps:
            self.a('%s s[98:99]\ns_waitcnt lgkmcnt(0)\ns_mov_b32 s%d, s98' % ('s_memtime' if 'cyc' in self.opt else 's_memrealtime', 80+k))

    def dump_stamps(self):
        if not self.stamps: return
        a = self.a
        a('s_memtime s[96:97]\ns_waitcnt lgkmcnt(0)\ns_sub_u32 s95, s96, s95')
        a('s_lshl_b32 s96, s2, 3\ns_add_u32 s96, s96, s%d\ns_lshl_b32 s96, s96, 6\ns_add_u32 s96, s96, 0x%x' % (WAVE, STAMPS))
        self.stamp(14)
        for k in range(16): a('v_mov_b32 v%d, s%d' % (100+k, 80+k))
        a('v_mov_b32 v99, s96')
        a('s_mov_b64 exec, 1')
        for k in range(4): a('buffer_store_dwordx4 v[%d:%d], v99, %s, 0 offen offset:%d' % (100+4*k, 103+4*k, s(S_WS,4), 16*k))
        a('s_waitcnt vmcnt(0)')

    def nonce(self):
        self.a('s_waitcnt lgkmcnt(0)\ns_add_u32 s12, s12, 1\ns_add_u32 s13, s13, 1')

    def spin(self, lbl, va, vd, soff, sleep, first_done=False):
        a = self.a
        a('s_mov_b32 s53, 0')
        if first_done: a('s_branch %s_c' % lbl)
        a.label(lbl)
        a('buffer_load_dwordx2 %s, v%d, %s, %s offen sc1' % (v(vd,2), va, s(S_WS,4), soff))
        a('s_add_u32 s53, s53, 1\ns_cmp_gt_u32 s53, 0x%x\ns_cbranch_scc1 %s_x' % (SPIN_MAX, lbl))
        a('s_waitcnt vmcnt(0)')
        a.label(lbl + '_c')
        a('v_cmp_ne_u64 vcc, s[12:13], %s' % v(vd,2))
        a('s_cbranch_vccz %s_x\ns_sleep %d\ns_branch %s' % (lbl, sleep, lbl))
        a.label(lbl + '_x')

    def spin3(self, lbl, va, vd, first_done=False):
        a = self.a
        a('s_mov_b32 s53, 0')
        if first_done: a('s_branch %s_c' % lbl)
        a.label(lbl)
        for k in range(3): a('buffer_load_dwordx2 %s, v%d, %s, 0 offen offset:%d sc1' % (v(vd+2*k,2), va, s(S_WS,4), 512*k))
        a('s_add_u32 s53, s53, 1\ns_cmp_gt_u32 s53, 0x%x\ns_cbranch_scc1 %s_x' % (SPIN_MAX, lbl))
        a('s_waitcnt vmcnt(0)')
        a.label(lbl + '_c')
        a('v_cmp_ne_u64 vcc, s[12:13], %s\nv_cmp_ne_u64 s[68:69], s[12:13], %s\ns_nop 0\ns_or_b64 vcc, vcc, s[68:69]' % (v(vd,2), v(vd+2,2)))
        a('v_cmp_ne_u64 s[68:69], s[12:13], %s\ns_nop 0\ns_or_b64 vcc, vcc, s[68:69]' % v(vd+4,2))
        a('s_cbranch_vccz %s_x\ns_sleep 8\ns_branch %s' % (lbl, lbl))
        a.label(lbl + '_x')

    def setflag(self, va, vd, mask='1'):
        a = self.a
        a('v_mov_b32 v%d, s12\nv_mov_b32 v%d, s13' % (vd, vd+1))
        a('s_mov_b64 exec, %s' % mask)
        a('buffer_store_dwordx2 %s, v%d, %s, 0 offen sc1' % (v(vd,2), va, s(S_WS,4)))
        a('s_mov_b64 exec, -1')

    def prologue(self):
        a = self.a
        a('s_load_dwordx2 s[28:29], s[0:1], 0')
        a('s_load_dwordx4 s[36:39], s[0:1], 48')
        a('s_load_dwordx8 s[40:47], s[0:1], 64')
        a('s_load_dwordx4 s[32:35], s[0:1], 24')
        a('s_cmp_ge_u32 s2, 256\ns_cbranch_scc1 L_end')
        a('v_lshrrev_b32 v1, 6, v0\nv_and_b32 v0, 63, v0')
        a('v_readfirstlane_b32 s%d, v1' % WAVE)
        a('s_and_b32 s%d, s2, 7\ns_lshr_b32 s%d, s2, 3' % (XCD, IDX))
        if self.stamps:
            for k in range(16): a('s_mov_b32 s%d, 0' % (80+k))
            a('s_memtime s[96:97]\ns_waitcnt lgkmcnt(0)\ns_mov_b32 s95, s96')
        a('s_cmp_lt_u32 s%d, 4\ns_cbranch_scc1 L_nopf\ns_cmp_ge_u32 s%d, 24\ns_cbranch_scc1 L_nopf' % (WAVE, IDX))
        a('s_getpc_b64 s[54:55]')
        a.label('L_pc')
        a('s_sub_u32 s53, s%d, 4\ns_lshl_b32 s53, s53, 13' % WAVE)
        a('v_lshl_add_u32 v2, v0, 7, s53')
        a('v_add_u32 v3, 0x8000, v2')
        a('v_min_u32 v2, L_end-L_pc, v2\nv_min_u32 v3, L_end-L_pc, v3')
        a('global_load_dword v255, v2, s[54:55]\nglobal_load_dword v255, v3, s[54:55]')
        a.label('L_nopf')
        a('s_mul_i32 s54, s%d, 43\ns_lshr_b32 s54, s54, 7' % IDX)
        a('s_mul_i32 s55, s54, 3\ns_sub_u32 s55, s%d, s55' % IDX)
        a('s_and_b32 s56, s%d, 1\ns_lshl_b32 s56, s56, 3\ns_add_u32 s54, s54, s56' % XCD)
        a('s_lshr_b32 s56, s%d, 1\ns_mul_i32 s56, s56, 3\ns_add_u32 s55, s55, s56' % XCD)
        if 'map48' in self.opt:
            a('s_lshr_b32 s%d, s%d, 3\ns_lshl_b32 s53, s%d, 2\ns_add_u32 s%d, s%d, s53\ns_and_b32 s%d, s%d, 7' % (T1, IDX, XCD, T1, T1, CS, IDX))
        else:
            a('s_lshr_b32 s%d, s%d, 2\ns_lshr_b32 s53, s%d, 1\ns_lshl_b32 s53, s53, 3\ns_add_u32 s%d, s%d, s53' % (T1, IDX, XCD, T1, T1))
            a('s_and_b32 s%d, s%d, 3\ns_and_b32 s53, s%d, 1\ns_lshl_b32 s53, s53, 2\ns_add_u32 s%d, s%d, s53' % (CS, IDX, XCD, CS, CS))
        a('s_mov_b32 s%d, 0x%x\ns_mov_b32 s%d, 0x20000' % (S_X+2, 2048*640*2, S_X+3))
        a('s_mov_b32 s%d, 0x%x\ns_mov_b32 s%d, 0x20000' % (S_WS+2, WS_SIZE, S_WS+3))
        a('s_mov_b32 s%d, 0x%x\ns_mov_b32 s%d, 0x20000' % (S_OUT+2, 2048*640*2, S_OUT+3))
        a('s_mov_b32 s%d, 0x20000' % (S_A+3))
        a('s_waitcnt lgkmcnt(0)')
        self.stamp(0)
        a('s_load_dwordx2 s[12:13], s[46:47], 0x%x' % EPOCH)
        for d, p in ((S_X, P_X), (S_WS, P_WS), (S_OUT, P_OUT)):
            a('s_mov_b32 s%d, s%d\ns_mov_b32 s%d, s%d' % (d, p, d+1, p+1))
        a('s_cmp_ge_u32 s%d, 24\ns_cbranch_scc1 L_notffn' % IDX)
        a('s_cmp_lt_u32 s%d, 2\ns_cbranch_scc1 L_ffn_wl' % WAVE)
        a('s_cmp_lt_u32 s%d, 4\ns_cbranch_scc1 L_ffn_xl' % WAVE)
        a('s_branch L_ffn_cons')
        a.label('L_notffn')
        if 'ffnonly' in self.opt: a('s_endpgm')
        a('s_and_b32 s54, s%d, 3\ns_lshr_b32 s55, s%d, 2\ns_lshl_b32 s55, s55, 3\ns_add_u32 s54, s54, s55' % (IDX, XCD))
        a('s_and_b32 s55, s%d, 1\ns_lshl_b32 s55, s55, 2\ns_add_u32 s54, s54, s55\ns_bfe_u32 s55, s%d, 0x10001' % (XCD, XCD))
        a('s_bfe_u32 s%d, s%d, 0x10002\ns_lshl_b32 s%d, s54, 1\ns_add_u32 s%d, s%d, s55\ns_lshl_b32 s%d, s%d, 1\ns_add_u32 s%d, s%d, s%d' % (HH, IDX, DID, DID, DID, DID, DID, DID, DID, HH))
        a('s_cmp_lt_u32 s%d, 4\ns_cbranch_scc1 L_dft_ld' % WAVE)
        a('s_branch L_dft_cons')

    WSLOT, NWS = 16384, 6
    XB, XSLOT, NXS = 98304, 16384, 3
    MISC = 147456

    def wvoff(self, dst0, rowbytes, tmp):
        a = self.a
        t = tmp
        a('v_lshrrev_b32 v%d, 3, v0' % t)
        a('v_bfe_u32 v%d, v0, 4, 1' % (t+1))
        a('v_bfe_u32 v%d, v0, 1, 2' % (t+2))
        a('v_xor_b32 v%d, v%d, v%d' % (t+2, t+2, t+1))
        a('v_and_b32 v%d, 1, v0' % (t+1))
        a('v_lshlrev_b32 v%d, 4, v%d' % (t+1, t+1))
        a('v_lshl_add_u32 v%d, v%d, 5, v%d' % (t+2, t+2, t+1))
        a('v_mul_u32_u24 v%d, %d, v%d' % (t, rowbytes, t))
        a('v_add_u32 v%d, v%d, v%d' % (dst0, t, t+2))
        a('v_xor_b32 v%d, 64, v%d' % (t+2, t+2))
        a('v_add_u32 v%d, v%d, v%d' % (dst0+1, t, t+2))
        a('v_add_u32 v%d, %d, v%d' % (dst0+1, 8*rowbytes, dst0+1))
        a('v_add_u32 v%d, %d, v%d' % (dst0+2, 16*rowbytes, dst0))
        a('v_add_u32 v%d, %d, v%d' % (dst0+3, 16*rowbytes, dst0+1))

    def phase(self, dst):
        a = self.a
        a('s_mul_i32 s64, s%d, 43\ns_lshr_b32 s64, s64, 7\ns_mul_i32 s65, s64, 3\ns_sub_u32 s65, s%d, s65' % (IDX, IDX))
        if 'ph0' in self.opt: a('s_mov_b32 s%d, 0' % dst)
        elif 'ph8' in self.opt:
            a('s_lshr_b32 s%d, s64, 2\ns_add_u32 s%d, s%d, s64' % (dst, dst, dst))
            a('s_mul_i32 s53, s65, 7\ns_lshr_b32 s53, s53, 1\ns_add_u32 s%d, s%d, s53' % (dst, dst))
            a('s_cmp_ge_u32 s%d, 10\ns_cselect_b32 s53, 10, 0\ns_sub_u32 s%d, s%d, s53' % (dst, dst, dst))
        elif 'ph4' in self.opt:
            a('s_and_b32 s%d, s64, 3\ns_mul_i32 s%d, s%d, 5\ns_lshr_b32 s%d, s%d, 1' % (dst, dst, dst, dst, dst))
        else: a('s_and_b32 s%d, s64, 1\ns_mul_i32 s%d, s%d, 5' % (dst, dst, dst))

    def p2_coords(self):
        a = self.a
        if 'rho' not in self.opt: a('s_mov_b32 s76, 0')
        else:
            a('s_and_b32 s76, s%d, 7\ns_and_b32 s53, s%d, 3\ns_lshl_b32 s53, s53, 1\ns_add_u32 s76, s76, s53\ns_and_b32 s76, s76, 7\ns_mul_i32 s76, s76, 3' % (T1, CS))
        a('s_mul_i32 s77, s%d, 245760\ns_mul_i32 s53, s76, 5120\ns_add_u32 s77, s77, s53\ns_add_u32 s77, s77, 0x%x\ns_sub_u32 s75, s77, 122880\ns_sub_u32 s76, 24, s76' % (CS, WDF))

    def wd_dma(self, vm, frags, voff):
        a = self.a; last = None
        for f in frags:
            half, r = divmod(f, 70); j, n = divmod(r, 5)
            if j != last: a('s_cmp_le_u32 s76, %d\ns_cselect_b32 s74, s75, s77' % j); last = j
            a('s_add_u32 m0, %d, 0\ns_add_u32 s78, s74, %d' % (f*1024, half*122880 + j*5120 + n*1024))
            vm.op('buffer_load_dwordx4 v%d, %s, s78 offen sc1 lds' % (voff, s(S_WS,4)), 'wd')

    OV = 128
    def ov_setup(self):
        a = self.a
        a('s_lshr_b32 s53, s%d, 1\ns_mul_i32 s72, s53, 122880\ns_and_b32 s53, s%d, 1\ns_sub_i32 s71, s76, s53\ns_mul_i32 s53, s53, 5120\ns_add_u32 s72, s72, s53' % (WAVE, WAVE))
        a('s_add_u32 s73, s72, s75\ns_add_u32 s72, s72, s77')
    def ov_load(self, vm, i, voff):
        a = self.a
        a('s_cmp_le_i32 s71, %d\ns_cselect_b32 s74, s73, s72\ns_add_u32 s74, s74, %d\ns_add_u32 s78, s74, 4096' % (14+2*i, (14+2*i)*5120))
        for n in range(5):
            vm.op('buffer_load_dwordx4 %s, v%d, %s, %s offen offset:%d sc1' % (v(self.OV+20*i+4*n,4), voff, s(S_WS,4), 's74' if n < 4 else 's78', (n&3)*1024), 'ov')

    def ffn_wloader(self):
        a = self.a; vm = VM(a)
        a.label('L_ffn_wl')
        a('s_cmp_eq_u32 s%d, 0' % WAVE)
        a('s_cselect_b32 s%d, s%d, s%d\ns_cselect_b32 s%d, s%d, s%d' % (S_A, P_WG, P_WU, S_A+1, P_WG+1, P_WU+1))
        a('s_mov_b32 s%d, 0x%x' % (S_A+2, 640*1536*2))
        self.wvoff(4, 3072, 8)
        self.phase(58)
        a('s_lshl_b32 s59, s55, 8\ns_mul_i32 s56, s58, %d\ns_add_u32 s56, s56, s59\ns_add_u32 s59, s59, %d' % (64*3072, 640*3072))
        a('s_lshl_b32 s57, s%d, 13' % WAVE)
        def issue(n):
            for b in range(2):
                for j in range(4):
                    a('s_add_u32 m0, s57, %d' % ((n % self.NWS)*self.WSLOT + b*4096 + j*1024 - b*128))
                    a('s_nop 0')
                    if 'now' not in self.opt: vm.op('buffer_load_dwordx4 v%d, %s, s56 offen offset:%d lds' % (4+j, s(S_A,4), b*128), n)
            a('s_add_u32 s56, s56, %d' % (32*3072))
            if n & 1: a('s_cmp_eq_u32 s56, s59\ns_cselect_b32 s60, %d, 0\ns_sub_u32 s56, s56, s60' % (640*3072))
        L0 = int(self.val.get('wl', 2)); L1 = int(self.val.get('wl1', 4)); R0 = int(self.val.get('wr', 6))
        sched = {-1: list(range(L0))}; front = L0
        for m in range(20):
            lead = L0 if m < R0 else min(L1, L0 + (m - R0)//2 + 1)
            sched[m] = []
            while front < 20 and front <= m + lead and front <= m + 5: sched[m].append(front); front += 1
        for n in sched[-1]: issue(n)
        self.nonce()
        self.p2_coords(); self.ov_setup()
        a('v_lshlrev_b32 v2, 4, v0')
        for m in range(15):
            vm.wait(m)
            if m == 0: self.stamp(1)
            a('s_barrier')
            for n in sched.get(m, []): issue(n)
        a('s_cmp_eq_u32 s%d, 0\ns_cbranch_scc0 L_wl_t1' % WAVE)
        q0 = list(vm.q)
        for w in range(2):
            vm.q = list(q0)
            if w: a.label('L_wl_t1')
            for m in range(15, 21):
                if m < 20: vm.wait(m)
                a('s_barrier')
                for n in sched.get(m, []): issue(n)
                sl = (m-1) % 6
                self.wd_dma(vm, range(16*sl + 8*w, 16*sl + 8*w + 8), 2)
                for i in self.ov_sched(m): self.ov_load(vm, i, 2)
            self.stamp(2)
            a('s_branch L_p2_help')

    def ov_sched(self, m):
        return {'0': {20: [0,1,2,3,4]}, '1': {19: [0], 20: [1,2,3,4]}, '2': {17: [0], 19: [1], 20: [2,3,4]}}[self.val.get('ove', '1')].get(m, [])

    def tw_addr(self, dst):
        a = self.a
        a('v_lshrrev_b32 v%d, 4, v0\nv_lshlrev_b32 v%d, 5, v%d\nv_bfe_u32 v1, v0, 1, 3\nv_add_u32 v%d, v%d, v1' % (dst, dst, dst, dst, dst))
        a('s_lshr_b32 s53, s64, 1\ns_lshl_b32 s53, s53, 3\nv_add_u32 v%d, s53, v%d\nv_mul_u32_u24 v%d, 3072, v%d' % (dst, dst, dst, dst))
        a('v_and_b32 v1, 1, v0\nv_lshl_add_u32 v%d, v1, 7, v%d' % (dst, dst))
    def tx_addr(self, dst, half):
        a = self.a
        a('v_and_b32 v%d, 15, v0\nv_lshlrev_b32 v%d, 5, v%d\nv_lshrrev_b32 v1, 4, v0\nv_lshl_add_u32 v%d, v1, 9, v%d' % (dst, dst, dst, dst, dst))
        a('s_lshl_b32 s53, s54, 1\ns_add_u32 s53, s53, s%d\nv_add_u32 v%d, s53, v%d\nv_mul_u32_u24 v%d, 1280, v%d' % (half, dst, dst, dst, dst))
    def tx_off(self, dst, ph, r):
        a = self.a
        a('s_add_u32 s%d, s%d, s65\ns_add_u32 s%d, s%d, %d\ns_cmp_ge_u32 s%d, 10\ns_cselect_b32 s53, 10, 0\ns_sub_u32 s%d, s%d, s53\ns_lshl_b32 s%d, s%d, 7' % (dst, ph, dst, dst, 3*r, dst, dst, dst, dst, dst))
        if r == 3: a('s_cmp_eq_u32 s65, 0\ns_cselect_b32 s%d, s%d, 0x%x' % (dst, dst, OOB))

    def wtouch(self, unit_sgpr, nlanes, step0, dst):
        a = self.a
        a('s_bitcmp0_b32 s%d, 0' % XCD)
        a('s_cselect_b32 s24, s%d, s%d\ns_cselect_b32 s25, s%d, s%d\ns_mov_b32 s26, 0x%x\ns_mov_b32 s27, 0x20000' % (P_WG, P_WU, P_WG+1, P_WU+1, 640*1536*2))
        a('s_mul_i32 s53, s%d, %d' % (unit_sgpr, nlanes))
        a('v_min_u32 v1, %d, v0\nv_add_u32 v1, s53, v1\nv_mul_u32_u24 v%d, 10923, v1\nv_lshrrev_b32 v%d, 16, v%d' % (nlanes-1, dst-1, dst-1, dst-1))
        a('v_mul_u32_u24 v%d, 2304, v%d\nv_lshl_add_u32 v1, v1, 7, v%d' % (dst-1, dst-1, dst-1))
        a('s_lshr_b32 s53, s%d, 1\ns_mul_i32 s53, s53, 768\ns_add_u32 s53, s53, %d' % (XCD, step0*32*3072))
        return 'buffer_load_dword v%d, v1, s[24:27], s53 offen' % dst

    def xtouch(self, unit_sgpr, rows, c0, c1, dst):
        a = self.a
        n = rows*(c1-c0); assert n <= 64
        mag = (2048 + rows - 1)//rows
        assert all((l*mag) >> 11 == l//rows for l in range(64))
        a('v_min_u32 v1, %d, v0\nv_mul_u32_u24 v%d, %d, v1\nv_lshrrev_b32 v%d, 11, v%d' % (n-1, dst, mag, dst, dst))
        a('v_mul_u32_u24 v%d, %d, v%d\nv_sub_u32 v1, v1, v%d\nv_mul_u32_u24 v1, 1280, v1\nv_lshl_add_u32 v1, v%d, 7, v1' % (dst-1, rows, dst, dst-1, dst))
        a('s_mul_i32 s53, s%d, %d' % (unit_sgpr, rows*1280))
        return 'buffer_load_dword v%d, v1, %s, s53 offen offset:%d' % (dst, s(S_X,4), 128*c0)

    def touch_spec(self, spec, unit_sgpr, nunits, dst):
        kind, rng = spec[0], spec[1:].split('-'); lo, hi = int(rng[0]), int(rng[1])
        if kind == 'W':
            nl = (hi-lo)*8; assert nl <= 64, spec
            return self.wtouch(IDX, nl, lo, dst)
        return self.xtouch(unit_sgpr, -(-2048//nunits), lo, hi, dst)

    def ffn_xloader(self):
        a = self.a; vm = VM(a)
        a.label('L_ffn_xl')
        a('s_sub_u32 s56, s%d, 2' % WAVE)
        a('v_lshrrev_b32 v2, 3, v0\nv_lshrrev_b32 v3, 4, v0')
        a('s_lshl_b32 s57, s56, 2')
        a('v_add_u32 v3, s57, v3\nv_and_b32 v12, 7, v0\nv_xor_b32 v3, v3, v12\nv_lshlrev_b32 v3, 4, v3')
        a('v_mul_u32_u24 v2, 40960, v2\nv_add_u32 v2, v2, v3')
        a('s_lshl_b32 s57, s56, 8\ns_lshl_b32 s58, s54, 1\ns_add_u32 s57, s57, s58\ns_mul_i32 s57, s57, 1280')
        a('v_add_u32 v4, s57, v2')
        for tt in range(1, 8):
            a('v_add_u32 v%d, %d, v4' % (4+tt, ((tt>>2) + 512*(tt&3))*1280))
        a('s_lshl_b32 s57, s56, 10')
        self.phase(58)
        a('s_lshl_b32 s58, s58, 7')
        def issue(c):
            for tt in range(8):
                a('s_add_u32 m0, s57, %d' % (self.XB + (c % self.NXS)*self.XSLOT + tt*2048))
                a('s_nop 0')
                if 'nox' not in self.opt: vm.op('buffer_load_dwordx4 v%d, %s, s58 offen lds' % (4+tt, s(S_X,4)), c)
            a('s_add_u32 s58, s58, 128\ns_cmp_eq_u32 s58, 1280\ns_cselect_b32 s58, 0, s58')
        a('s_lshr_b32 s59, s58, 7')
        issue(0)
        XP = int(self.val.get('xp', 1))
        if XP == 2: issue(1)
        self.p2_coords(); self.ov_setup()
        a('v_lshlrev_b32 v2, 4, v0')
        self.tw_addr(80); self.tx_addr(81, 56)
        a('s_cmp_eq_u32 s56, 0')
        a('s_cselect_b32 s%d, s%d, s%d\ns_cselect_b32 s%d, s%d, s%d\ns_mov_b32 s%d, 0x%x' % (S_A, P_WG, P_WU, S_A+1, P_WG+1, P_WU+1, S_A+2, 640*1536*2))
        a('s_mul_i32 s66, s59, %d\ns_lshl_b32 s67, s55, 8\ns_add_u32 s66, s66, s67' % (64*3072))
        TB = {}
        for spec in self.val.get('tp', 'w4@0+x1@0+w8@1+x2@4+x3@8').split('+'):
            if spec == '0': continue
            k, m = spec.split('@'); TB.setdefault(int(m), []).append(k)
        def touch(k):
            if k[0] == 'w':
                n0 = int(k[1:])
                a('s_add_u32 s67, s66, %d' % (n0*32*3072))
                if n0 == 8: a('v_and_b32 v1, 31, v0\nv_lshlrev_b32 v1, 2, v1\nds_bpermute_b32 v80, v1, v80\ns_waitcnt lgkmcnt(0)')
                vm.op('buffer_load_dword v255, v80, %s, s67 offen' % s(S_A,4), 't')
            else:
                self.tx_off(67, 59, int(k[1:]))
                vm.op('buffer_load_dword v255, v81, %s, s67 offen' % s(S_X,4), 't')
        self.nonce()
        a('s_cmp_eq_u32 s56, 0\ns_cbranch_scc0 L_ffn_xl3')
        q0 = list(vm.q)
        PW = int(self.val.get('pw', 12)); PS = int(self.val.get('ps', 15)); FB = int(self.val.get('fb', 5))
        for role in (2, 3):
            vm.q = list(q0)
            if role == 2:
                a('v_lshrrev_b32 v12, 4, v0\nv_bfe_u32 v13, v0, 2, 2')
                a('v_lshl_add_u32 v14, v12, 3, v13\nv_lshlrev_b32 v14, 7, v14')
                a('v_and_b32 v13, 3, v0\nv_lshl_add_u32 v14, v13, 3, v14')
                a('v_bfe_u32 v13, v0, 3, 1\nv_bfe_u32 v15, v0, 4, 1\nv_lshl_add_u32 v13, v15, 1, v13')
                a('s_and_b32 s60, s54, 2\nv_xor_b32 v13, s60, v13\nv_lshl_add_u32 v14, v13, 5, v14')
                a('s_lshr_b32 s60, s54, 2\ns_lshl_b32 s60, s60, 12\nv_add_u32 v16, s60, v14\nv_xor_b32 v17, 32, v16')
                a('v_add_u32 v18, %d, v16\nv_add_u32 v19, %d, v17' % (3*self.WSLOT, 3*self.WSLOT))
                for k in range(4): a('v_mov_b32 v%d, 0x3f803f80' % (20+k))
                for k in range(8): a('v_mov_b32 v%d, 0' % (24+k))
                a('s_and_b32 s61, s54, 1\ns_mul_i32 s61, s61, 24576\ns_lshr_b32 s62, s54, 3\ns_mul_i32 s62, s62, 12288\ns_add_u32 s61, s61, s62')
                a('s_lshl_b32 s62, s55, 10\ns_add_u32 s61, s61, s62\ns_bfe_u32 s62, s54, 0x20001\ns_lshl_b32 s62, s62, 8\ns_add_u32 s61, s61, s62\ns_add_u32 s61, s61, 0x%x' % COLSUM)
                a('v_lshlrev_b32 v56, 5, v12\nv_and_b32 v13, 1, v0\nv_lshl_add_u32 v56, v13, 4, v56')
                a('s_lshl_b32 s62, s55, 4\ns_add_u32 s62, s62, s54\ns_lshl_b32 s62, s62, 3\ns_add_u32 s62, s62, 0x%x\nv_mov_b32 v57, s62' % (SFLAG))
                a('v_and_b32 v12, 15, v0\nv_lshlrev_b32 v12, 5, v12')
                a('v_lshrrev_b32 v13, 4, v0\nv_lshl_add_u32 v12, v13, 9, v12')
                a('s_lshl_b32 s60, s54, 1\nv_add_u32 v12, s60, v12')
                a('v_lshlrev_b32 v12, 4, v12\nv_add_u32 v12, 0x%x, v12' % STATS)
                a('v_lshlrev_b32 v13, 4, v0\nv_add_u32 v13, %d, v13' % self.MISC)
                a('v_lshlrev_b32 v14, 3, v0\nv_add_u32 v14, 0x%x, v14' % SFLAG)
                rl = ['buffer_load_dwordx4 v[64:67], v12, %s, 0 offen sc1' % s(S_WS,4), 'buffer_load_dwordx4 v[68:71], v12, %s, 0 offen offset:16 sc1' % s(S_WS,4)]
                tags = [66, 70]
            else:
                a.label('L_ffn_xl3')
                a('v_lshrrev_b32 v13, 5, v0\nv_mul_u32_u24 v13, 12288, v13')
                a('v_and_b32 v12, 31, v0\nv_lshl_add_u32 v12, v12, 5, v13')
                a('s_lshl_b32 s60, s55, 10\ns_add_u32 s60, s60, 0x%x\nv_add_u32 v12, s60, v12' % COLSUM)
                a('v_lshlrev_b32 v13, 4, v0\nv_add_u32 v13, %d, v13' % (self.MISC+2048))
                a('s_mov_b32 s61, 24576')
                rl = ['buffer_load_dwordx4 %s, v12, %s, %s offen offset:%d sc1' % (v(64+8*p+4*h,4), s(S_WS,4), 's61' if p else '0', 16*h) for p in range(2) for h in range(2)]
                tags = [66, 70, 74, 78]
            for m in range(21):
                if m % 2 == 0 and m < 20: vm.wait(m//2)
                if m == 20: a('s_waitcnt lgkmcnt(0)')
                a('s_barrier')
                if role == 2:
                    if m == PW + 2:
                        vm.wait('pw')
                        if 'nospin' not in self.opt: self.spin3('L_xl_sw', 14, 72, True)
                    if m == PW:
                        for k in range(3): vm.op('buffer_load_dwordx2 %s, v14, %s, 0 offen offset:%d sc1' % (v(72+2*k,2), s(S_WS,4), 512*k), 'pw')
                    if m == FB:
                        self.setflag(57, 58); vm.q.append('fl')
                    if m == 10:
                        a('v_and_b32 v1, 1, v0\nv_cmp_eq_u32 vcc, 1, v1\nv_mov_b32 v34, s12\nv_mov_b32 v35, s13\nv_mov_b32 v38, s12\nv_mov_b32 v39, s13')
                        for ct in range(2): a('v_cndmask_b32 v%d, v%d, v%d, vcc\nv_cndmask_b32 v%d, v%d, v%d, vcc' % (32+4*ct, 24+4*ct, 26+4*ct, 33+4*ct, 25+4*ct, 27+4*ct))
                        a('s_mov_b32 exec_lo, 0x00030003\ns_mov_b32 exec_hi, 0x00030003')
                        for ct in range(2): vm.op('buffer_store_dwordx4 %s, v56, %s, s61 offen offset:%d sc1' % (v(32+4*ct,4), s(S_WS,4), 128*ct), 'cs')
                        a('s_mov_b64 exec, -1')
                if m == PS:
                    for l in rl: vm.op(l, 'st')
                if m == PS + 2:
                    vm.wait('st')
                    a('s_mov_b32 s53, 0')
                    a.label('L_xl_rs%d' % role)
                    a('v_cmp_ne_u64 vcc, s[12:13], %s' % v(tags[0],2))
                    for t in tags[1:]: a('v_cmp_ne_u64 s[68:69], s[12:13], %s\ns_nop 0\ns_or_b64 vcc, vcc, s[68:69]' % v(t,2))
                    a('s_cbranch_vccz L_xl_rx%d\ns_add_u32 s53, s53, 1\ns_cmp_gt_u32 s53, 0x%x\ns_cbranch_scc1 L_xl_rx%d\ns_sleep 2' % (role, 0 if 'nospin' in self.opt else SPIN_MAX, role))
                    for l in rl: a(l)
                    a('s_waitcnt vmcnt(0)\ns_branch L_xl_rs%d' % role)
                    a.label('L_xl_rx%d' % role)
                    if role == 2:
                        for b in (64, 68):
                            a('v_rsq_f32 v%d, v%d\nv_mov_b32 v%d, v%d\nv_mul_f32 v%d, 0xbfb8aa3b, v%d' % (b+3, b+1, b+2, b+1, b+1, b+3))
                        a('ds_write_b128 v13, v[64:67]\nds_write_b128 v13, v[68:71] offset:1024')
                    else:
                        a('v_add_f32 v64, v64, v72\nv_add_f32 v65, v65, v73\nv_add_f32 v66, v68, v76\nv_add_f32 v67, v69, v77')
                        a('ds_write_b128 v13, v[64:67]')
                for c in range(XP, 10):
                    when = max(0, 2*c - 2 - int(self.val.get('xl%d' % role, 1 if role == 2 else 0)))
                    if c >= int(self.val.get('xr', 4)): when = max(0, 2*c - (4 if role == 2 else 3))
                    if when == m: issue(c)
                for k in TB.get(m, []): touch(k)
                if role == 2 and m < 10:
                    sl = m % self.NWS
                    for ct in range(2):
                        for q in range(2):
                            a('ds_read_b64_tr_b16 %s, v%d offset:%d' % (v(40+4*ct+2*q,2), 16+ct+2*(sl//3), (sl%3)*self.WSLOT + q*512))
                    a('s_waitcnt lgkmcnt(0)')
                    for ct in range(2): a('v_mfma_f32_16x16x32_bf16 %s, %s, v[20:23], %s' % (v(24+4*ct,4), v(40+4*ct,4), v(24+4*ct,4)))
                    if m == 9: a.nop(6)
                if m in (16, 18, 20):
                    f0 = {16: 112, 18: 128, 20: 96}[m]; n = {16: 8, 18: 6, 20: 8}[m]
                    self.wd_dma(vm, range(f0 + (role-2)*n, f0 + (role-1)*n), 2)
                for i in self.ov_sched(m): self.ov_load(vm, i, 2)
            self.stamp(2)
            a('s_branch L_p2_help')

    def ffn_consumer(self):
        a = self.a
        ACC, FR = 8, 136
        AW = [2, 3, 232, 233]
        AX = [4, 5]
        def acc(tt, mat, c2): return ACC + ((tt*2 + mat)*2 + c2)*4
        def xf(st, tt): return FR + st*48 + tt*4
        def wf(st, mat, c2): return FR + st*48 + 32 + (mat*2 + c2)*4
        a.label('L_ffn_cons')
        a('s_sub_u32 s56, s%d, 4' % WAVE)
        if 'noa' not in self.opt:
            self.phase(59)
            a('s_cmp_lt_u32 s56, 2\ns_cbranch_scc0 L_fc_tx')
            self.tw_addr(2)
            a('s_cmp_eq_u32 s56, 0')
            a('s_cselect_b32 s%d, s%d, s%d\ns_cselect_b32 s%d, s%d, s%d\ns_mov_b32 s%d, 0x%x' % (S_A, P_WG, P_WU, S_A+1, P_WG+1, P_WU+1, S_A+2, 640*1536*2))
            a('s_mul_i32 s66, s59, %d\ns_lshl_b32 s67, s55, 8\ns_add_u32 s66, s66, s67' % (64*3072))
            a('buffer_load_dword v255, v2, %s, s66 offen' % s(S_A,4))
            a('s_branch L_fc_t3')
            a.label('L_fc_tx')
            a('s_sub_u32 s60, s56, 2')
            self.tx_addr(2, 60); self.tx_off(67, 59, 0)
            a('buffer_load_dword v255, v2, %s, s67 offen' % s(S_X,4))
            a.label('L_fc_t3')
        a('s_mul_i32 s57, s%d, 24\ns_add_u32 s57, s57, s%d\ns_and_b32 s58, s57, 1\ns_add_u32 s58, s58, 2\n%ss_cmp_lt_u32 s56, s58\ns_cselect_b32 s79, 1, 0\ns_cbranch_scc0 L_fc_nu' % (XCD, IDX, 's_mov_b32 s58, 0\n' if 'nowd' in self.opt else ''))
        a('s_mul_i32 s57, s57, 5\ns_lshr_b32 s57, s57, 1\ns_add_u32 s57, s57, s56')
        a('s_mul_i32 s70, s57, 52429\ns_lshr_b32 s70, s70, 19\ns_mul_i32 s53, s70, 10\ns_sub_u32 s71, s57, s53')
        a('s_mul_i32 s68, s70, %d\ns_lshl_b32 s53, s71, 7\ns_add_u32 s68, s68, s53' % (32*1280))
        a('s_mov_b32 s24, s%d\ns_mov_b32 s25, s%d\ns_mov_b32 s26, 0x%x\ns_mov_b32 s27, 0x20000' % (P_WD, P_WD+1, 1536*640*2))
        self.wvoff(8, 1280, 12)
        a('s_lshl_b32 s67, s56, 12\ns_add_u32 s67, s67, %d' % (self.MISC + 4096))
        for j in range(4):
            a('s_add_u32 m0, s67, %d\ns_nop 0' % (j*1024))
            a('buffer_load_dwordx4 v%d, s[24:27], s68 offen nt lds' % (8+j))
        a.label('L_fc_nu')
        a('s_setprio 1')
        a('v_lshrrev_b32 v6, 4, v0\nv_bfe_u32 v7, v0, 2, 2')
        a('v_lshl_add_u32 v8, v6, 3, v7\nv_lshlrev_b32 v8, 7, v8')
        a('v_and_b32 v9, 3, v0\nv_lshl_add_u32 v8, v9, 3, v8')
        a('v_bfe_u32 v9, v0, 3, 1\nv_bfe_u32 v10, v0, 4, 1\nv_lshl_add_u32 v9, v10, 1, v9')
        a('s_and_b32 s57, s56, 1\ns_lshl_b32 s57, s57, 1')
        a('v_xor_b32 v9, s57, v9\nv_lshl_add_u32 v8, v9, 5, v8')
        a('s_lshr_b32 s57, s56, 1\ns_lshl_b32 s57, s57, 12')
        a('v_add_u32 v%d, s57, v8' % AW[0])
        a('v_xor_b32 v%d, 32, v%d' % (AW[1], AW[0]))
        a('v_add_u32 v%d, %d, v%d\nv_add_u32 v%d, %d, v%d' % (AW[2], 3*self.WSLOT, AW[0], AW[3], 3*self.WSLOT, AW[1]))
        a('v_and_b32 v8, 15, v0\nv_lshrrev_b32 v9, 1, v8\nv_xor_b32 v9, v9, v6')
        a('v_lshlrev_b32 v9, 4, v9\nv_lshl_add_u32 v9, v8, 7, v9')
        a('v_add_u32 v%d, %d, v9' % (AX[0], self.XB))
        a('v_xor_b32 v%d, 64, v%d' % (AX[1], AX[0]))
        a('v_lshlrev_b32 v234, 4, v8\nv_add_u32 v234, %d, v234' % self.MISC)
        a('v_lshlrev_b32 v235, 4, v6\ns_lshl_b32 s57, s56, 7\nv_add_u32 v235, s57, v235\nv_add_u32 v235, %d, v235' % (self.MISC+2048))
        a('v_lshlrev_b32 v236, 4, v0')
        a('s_lshl_b32 s58, s54, 4\ns_add_u32 s58, s58, s55\ns_lshl_b32 s58, s58, 2\ns_add_u32 s58, s58, s56\ns_lshl_b32 s58, s58, 3\nv_mov_b32 v237, s58')
        a('s_mul_i32 s57, s54, %d\ns_lshl_b32 s58, s55, 2\ns_add_u32 s58, s58, s56\ns_lshl_b32 s58, s58, 10\ns_add_u32 s57, s57, s58\ns_add_u32 s57, s57, 0x%x' % (8*49152, HF))
        self.nonce()
        a('s_cmp_eq_u32 s79, 0\ns_cbranch_scc1 L_fc_nv')
        a('v_lshrrev_b32 v16, 2, v0\nv_lshlrev_b32 v16, 7, v16\nv_and_b32 v1, 3, v0\nv_lshl_add_u32 v16, v1, 3, v16')
        a('v_bfe_u32 v1, v0, 3, 1\nv_bfe_u32 v17, v0, 5, 1\nv_lshl_add_u32 v1, v17, 1, v1\nv_lshl_add_u32 v16, v1, 5, v16')
        a('v_add_u32 v1, s67, v16\nv_xor_b32 v6, 32, v1\nv_xor_b32 v7, 64, v1\nv_xor_b32 v254, 96, v1')
        for ct in range(4):
            a('s_lshl_b32 s63, s71, 2\ns_add_u32 s63, s63, %d\ns_mul_i32 s64, s63, 52\ns_lshr_b32 s64, s64, 8' % ct)
            a('s_mul_i32 s65, s64, 5\ns_sub_u32 s65, s63, s65\ns_lshl_b32 s65, s65, 10')
            a('s_mul_i32 s64, s64, 245760\ns_add_u32 s65, s65, s64\ns_mul_i32 s64, s70, 5120\ns_add_u32 s65, s65, s64\ns_add_u32 s%d, s65, 0x%x' % (72+ct, WDF))
        a.label('L_fc_nv')
        def reads(n):
            st = n & 1; sl = n % self.NWS
            r = []
            for mat in range(2):
                for c2 in range(2):
                    for q in range(2):
                        r.append('ds_read_b64_tr_b16 v[%d:%d], v%d offset:%d' % (wf(st,mat,c2)+2*q, wf(st,mat,c2)+2*q+1, AW[c2 + 2*(sl//3)], (sl%3)*self.WSLOT + mat*8192 + q*512))
            for tt in range(8):
                r.append('ds_read_b128 %s, v%d offset:%d' % (v(xf(st,tt),4), AX[n&1], ((n//2) % self.NXS)*self.XSLOT + tt*2048))
            return r
        ST, CSR, TM = FR, FR+32, 238
        ep_reads = ['ds_read_b128 %s, v234 offset:%d' % (v(ST+4*tt,4), tt*256) for tt in range(8)]
        ep_reads += ['ds_read_b128 %s, v235 offset:%d' % (v(CSR+(mat*2+c2)*4,4), mat*512 + c2*64) for mat in range(2) for c2 in range(2)]
        FB = int(self.val.get('fb', 5))
        a('s_barrier')
        self.stamp(1)
        for r in reads(0): a(r)
        a.align(3)
        for n in range(20):
            st = n & 1
            a('s_waitcnt %slgkmcnt(0)\ns_barrier' % ('vmcnt(0) ' if n == FB - 1 and 'nowd' not in self.opt else ''))
            if n == 10: self.stamp(5)
            if n == 5: self.stamp(6)
            if n == 15: self.stamp(7)
            rd = reads(n+1) if n < 19 else ep_reads
            WS = int(self.val.get('wds', 0))
            if n == WS:
                a('s_cmp_eq_u32 s79, 0\ns_cbranch_scc1 L_fc_w1\ns_waitcnt vmcnt(0)')
                for ct, ar in enumerate((1, 6, 7, 254)):
                    for q in range(2): a('ds_read_b64_tr_b16 %s, v%d offset:%d' % (v(238+4*ct+2*q,2), ar, q*2048))
                a.label('L_fc_w1')
            if n == WS + 1:
                a('s_cmp_eq_u32 s79, 0\ns_cbranch_scc1 L_fc_w2')
                for ct in range(4): a('buffer_store_dwordx4 %s, v236, %s, s%d offen sc1' % (v(238+4*ct,4), s(S_WS,4), 72+ct))
                a.label('L_fc_w2')
            k = 0
            for tt in range(8):
                for mat in range(2):
                    for c2 in range(2):
                        A = acc(tt, mat, c2)
                        if 'nomfma' not in self.opt: a('v_mfma_f32_16x16x32_bf16 %s, %s, %s, %s' % (v(A,4), v(wf(st,mat,c2),4), v(xf(st,tt),4), v(A,4) if n else '0'))
                        if k < len(rd) and 'nords' not in self.opt: a(rd[k]); k += 1
        self.stamp(2)
        a('s_waitcnt lgkmcnt(0)')
        a.label('L_fc_epi')
        OUT = FR + 48
        for tt in range(8):
            m, q = ST+4*tt, ST+4*tt+2
            O = OUT + tt*4
            t = TM + (tt&1)*8
            pairs = [(c2, hh) for c2 in range(2) for hh in range(2)]
            for k, (c2, hh) in enumerate(pairs):
                ga = acc(tt,0,c2)+2*hh; ua = acc(tt,1,c2)+2*hh
                a('v_pk_fma_f32 %s, %s, %s, %s op_sel_hi:[0,1,1] neg_lo:[1,0,0] neg_hi:[1,0,0]' % (v(ga,2), v(m,2), v(CSR+c2*4+2*hh,2), v(ga,2)))
                a('v_pk_fma_f32 %s, %s, %s, %s op_sel_hi:[0,1,1] neg_lo:[1,0,0] neg_hi:[1,0,0]' % (v(ua,2), v(m,2), v(CSR+8+c2*4+2*hh,2), v(ua,2)))
            for k, (c2, hh) in enumerate(pairs):
                ga = acc(tt,0,c2)+2*hh
                a('v_pk_mul_f32 %s, %s, %s op_sel:[0,1] op_sel_hi:[1,1]' % (v(t+2*k,2), v(ga,2), v(m,2)))
            for k in range(8): a('v_exp_f32 v%d, v%d' % (t+k, t+k))
            for k, (c2, hh) in enumerate(pairs):
                ga = acc(tt,0,c2)+2*hh; ua = acc(tt,1,c2)+2*hh
                a('v_pk_mul_f32 %s, %s, %s' % (v(ga,2), v(ga,2), v(ua,2)))
                a('v_pk_fma_f32 %s, %s, %s, %s op_sel_hi:[1,0,0]' % (v(t+2*k,2), v(t+2*k,2), v(q,2), v(q,2)))
            for k in range(8): a('v_rcp_f32 v%d, v%d' % (t+k, t+k))
            a('s_nop 0')
            for k, (c2, hh) in enumerate(pairs):
                ga = acc(tt,0,c2)+2*hh
                a('v_pk_mul_f32 %s, %s, %s' % (v(ga,2), v(ga,2), v(t+2*k,2)))
            for k, (c2, hh) in enumerate(pairs):
                ga = acc(tt,0,c2)+2*hh
                a('v_cvt_pk_bf16_f32 v%d, v%d, v%d' % (O+k, ga, ga+1))
            a('buffer_store_dwordx4 %s, v236, %s, s57 offen sc1' % (v(O,4), s(S_WS,4)))
            a('s_add_u32 s57, s57, 49152')
        self.stamp(3)
        a('s_waitcnt vmcnt(0)')
        self.stamp(4)
        self.setflag(237, 2)
        a('s_branch L_p2_mfma')

    MSLOT = 24576; MB = 32768; XFB = 0; XFS = 16384; DMISC = 155648

    def code_touch(self, lo, hi, n, dst, uniq):
        a = self.a
        a('s_getpc_b64 s[72:73]')
        a.label('L_ct%s' % uniq)
        a('s_add_u32 s72, s72, %s-L_ct%s\ns_addc_u32 s73, s73, 0' % (lo, uniq))
        out = []
        for k in range(n):
            a('v_lshlrev_b32 v%d, 7, v0\nv_add_u32 v%d, %d, v%d\nv_min_u32 v%d, %s-%s-4, v%d' % (dst-1-k, dst-1-k, 8192*k, dst-1-k, dst-1-k, hi, lo, dst-1-k))
            out.append('global_load_dword v%d, v%d, s[72:73]' % (dst, dst-1-k))
        return out

    def dft_loader(self):
        a = self.a; vm = VM(a)
        RAW, SA = 32, 192
        a.label('L_dft_ld')
        a('s_setprio %s' % self.val.get('dlp', '2'))
        a('s_cmp_lt_u32 s%d, 2' % WAVE)
        a('s_cselect_b32 s%d, s%d, s%d\ns_cselect_b32 s%d, s%d, s%d' % (S_A, P_HRE, P_HIM, S_A+1, P_HRE+1, P_HIM+1))
        a('s_mov_b32 s%d, 0x%x' % (S_A+2, 640*640*2))
        a('v_lshrrev_b32 v2, 3, v0\nv_lshrrev_b32 v3, 4, v0\nv_and_b32 v4, 7, v0')
        a('v_mul_u32_u24 v5, 81920, v2\nv_lshl_add_u32 v5, v4, 4, v5')
        a('s_lshl_b32 s66, s54, 2\ns_add_u32 s66, s66, s%d\ns_and_b32 s63, s%d, 3' % (WAVE, DID))
        for u in range(4): a('s_add_u32 s53, s63, %d\ns_and_b32 s%d, s53, 3\ns_lshl_b32 s53, s%d, 9\ns_add_u32 s53, s53, s66\ns_mul_i32 s%d, s53, 1280' % (u, 68+u, 68+u, 56+u))
        if 'dph0' in self.opt: a('s_mov_b32 s74, 0')
        else: a('s_and_b32 s74, s54, 3\ns_lshl_b32 s75, s%d, 1\ns_add_u32 s74, s74, s75\ns_cmp_ge_u32 s74, 5\ns_cselect_b32 s75, 5, 0\ns_sub_u32 s74, s74, s75\ns_lshl_b32 s74, s74, 7' % HH)
        a('s_mov_b32 s75, s74\nv_add_u32 v208, s74, v5')
        def xl(c, us):
            o = []
            for u in us:
                tag = 'x%d' % c if u else 'y%d' % c
                o.append(([], 'buffer_load_dwordx4 %s, v%d, %s, s%d offen' % (v(RAW+32*c+8*u,4), 208+c, s(S_X,4), 56+u), tag))
                o.append(([], 'buffer_load_dwordx4 %s, v%d, %s, s%d offen offset:640' % (v(RAW+32*c+8*u+4,4), 208+c, s(S_X,4), 56+u), tag))
            return o
        def ml(c):
            adv = ['s_add_u32 s75, s75, 128', 's_cmp_eq_u32 s75, 640', 's_cselect_b32 s75, 0, s75', 's_add_u32 s76, s60, s75']
            return [((adv if u == 0 and c > 0 else []) + ['s_add_u32 m0, s61, %d' % (self.MB + c*self.MSLOT + u*1024), 's_add_u32 s62, s76, %d' % (u*16*1280)],
                     'buffer_load_dwordx4 v%d, %s, s62 offen lds' % (8 if u == 0 else 6+(u&1), s(S_A,4)), 'm%d' % c) for u in range(6)]
        t = 16
        def unpack(lo):
            o = []
            for k in range(4):
                o += ['v_lshlrev_b32 v%d, 16, v%d' % (t+2*k, lo+k), 'v_and_b32 v%d, s77, v%d' % (t+2*k+1, lo+k),
                      'v_lshlrev_b32 v%d, 16, v%d' % (t+8+2*k, lo+4+k), 'v_and_b32 v%d, s77, v%d' % (t+8+2*k+1, lo+4+k)]
            return o
        def acc():
            o = []
            for k in range(16): o += ['v_add_f32 v%d, v%d, v%d' % (SA+(k&3), SA+(k&3), t+k), 'v_fmac_f32 v%d, v%d, v%d' % (SA+4+(k&3), t+k, t+k)]
            return o
        def st(c): return unpack(RAW+32*c) + acc()
        def fl(c, with_stats):
            o = []
            for u in range(4):
                lo = RAW+32*c+8*u
                o += unpack(lo)
                if u == 0 and with_stats: o += acc()
                for k in range(8): o.append('v_fmac_f32 v%d, v12, v%d' % (t+k, t+8+k))
                for k in range(4): o.append('v_cvt_pk_bf16_f32 v%d, v%d, v%d' % (lo+k, t+2*k, t+2*k+1))
                o.append('ds_write_b128 v%d, %s offset:%d' % (213+u, v(lo,4), (c&1)*self.XFS))
            return o
        def emit(loads, valu):
            per = -(-len(valu) // max(1, len(loads))); k = 0
            for pre, ld, tag in loads:
                for p in pre: a(p)
                vm.op(ld, tag)
                for l in valu[k:k+per]: a(l)
                k += per
            for l in valu[k:]: a(l)
        emit(xl(0, range(4)), [])
        a('v_xor_b32 v3, v3, v4\nv_lshlrev_b32 v3, 4, v3')
        a('v_mul_u32_u24 v6, 2560, v2\nv_add_u32 v6, v6, v3\nv_xor_b32 v7, 64, v6')
        a('s_or_b32 s60, s55, s%d\ns_or_b32 s60, s60, s%d\ns_cmp_eq_u32 s60, 0\ns_cselect_b32 s60, %d, 0' % (WAVE, HH, 320*1280))
        a('v_cmp_gt_u32 vcc, 8, v0\nv_mov_b32 v8, s60\ns_nop 0\nv_cndmask_b32 v8, 0, v8, vcc\nv_add_u32 v8, v8, v6')
        a('s_and_b32 s60, s%d, 1\ns_mul_i32 s60, s60, 96\ns_lshl_b32 s61, s%d, 7\ns_add_u32 s60, s60, s61\ns_add_u32 s60, s60, s55\ns_mul_i32 s60, s60, 1280' % (WAVE, HH))
        a('s_mul_i32 s61, s%d, 6144\ns_add_u32 s76, s60, s75' % WAVE)
        emit(ml(0), [])
        for c in range(1, 5): a('s_add_u32 s74, s74, 128\ns_cmp_eq_u32 s74, 640\ns_cselect_b32 s74, 0, s74\nv_add_u32 v%d, s74, v5' % (208+c))
        a('s_lshl_b32 s53, s%d, 12\ns_add_u32 s53, s53, %d' % (WAVE, self.XFB))
        a('v_lshl_add_u32 v9, v2, 7, v3\nv_add_u32 v9, s53, v9')
        for u in range(4): a('s_and_b32 s53, s%d, 1\ns_lshl_b32 s53, s53, 6\nv_xor_b32 v%d, s53, v9\ns_lshl_b32 s53, s%d, 10\nv_add_u32 v%d, s53, v%d' % (68+u, 213+u, 68+u, 213+u, 213+u))
        a('s_cmp_eq_u32 s55, 0\ns_cselect_b32 s53, 1.0, -1.0\nv_mov_b32 v12, s53\ns_mov_b32 s77, 0xffff0000')
        for k in range(8): a('v_mov_b32 v%d, 0' % (SA+k))
        a('v_lshlrev_b32 v4, 10, v2\ns_lshl_b32 s65, s66, 4\ns_add_u32 s65, s65, 0x%x\ns_lshl_b32 s64, s63, 13\ns_add_u32 s64, s64, s65' % STATS)
        a('v_and_b32 v3, 31, v0\nv_lshlrev_b32 v10, 10, v3\ns_lshl_b32 s53, s%d, 7\ns_add_u32 s53, s53, %d\nv_lshl_add_u32 v3, v3, 2, s53' % (WAVE, self.DMISC))
        self.nonce()
        vm.wait('x0')
        emit(xl(1, range(4)), fl(0, True))
        vm.wait('m0', 'lgkmcnt(0)'); a('s_barrier')
        self.stamp(1)
        emit(ml(1) + xl(2, [0]) + xl(3, [0]) + xl(4, [0]), [])
        vm.wait('x1'); emit(xl(2, [1,2,3]) + ml(2), fl(1, True)); vm.wait('m1', 'lgkmcnt(0)'); a('s_barrier')
        vm.wait('y4')
        fin = st(2) + st(3) + st(4)
        fin += ['v_add_f32 v%d, v%d, v%d' % (SA+k, SA+k, SA+k+1) for k in (0, 4, 2, 6)] + ['v_add_f32 v%d, v%d, v%d' % (SA+k, SA+k, SA+k+2) for k in (0, 4)]
        for mod in ('quad_perm:[1,0,3,2]', 'quad_perm:[2,3,0,1]', 'row_half_mirror'):
            fin += ['s_nop 0'] + ['v_add_f32 v%d, v%d, v%d %s row_mask:0xf bank_mask:0xf' % (SA+k, SA+k, SA+k, mod) for k in (0, 4)]
        fin += ['v_mul_f32 v%d, 0x3acccccd, v%d' % (SA+8, SA), 'v_mul_f32 v%d, 0x3acccccd, v%d' % (SA+9, SA+4),
                'v_fma_f32 v%d, -v%d, v%d, v%d' % (SA+9, SA+8, SA+8, SA+9), 'v_max_f32 v%d, 0, v%d' % (SA+9, SA+9), 'v_add_f32 v%d, 0x3727c5ac, v%d' % (SA+9, SA+9),
                'v_mov_b32 v%d, s12' % (SA+10), 'v_mov_b32 v%d, s13' % (SA+11)]
        emit([], fin)
        a('s_mov_b32 exec_lo, 0x01010101\ns_mov_b32 exec_hi, 0x01010101')
        vm.op('buffer_store_dwordx4 %s, v4, %s, s64 offen sc1' % (v(SA+8,4), s(S_WS,4)), 'o')
        a('s_mov_b64 exec, -1')
        vm.wait('x2'); emit(xl(3, [1,2,3]) + ml(3), fl(2, False)); vm.wait('m2', 'lgkmcnt(0)'); a('s_barrier')
        vm.wait('x3'); emit(xl(4, [1,2,3]) + ml(4), fl(3, False)); vm.wait('m3', 'lgkmcnt(0)'); a('s_barrier')
        vm.op('buffer_load_dwordx4 %s, v10, %s, s65 offen sc1' % (v(SA,4), s(S_WS,4)), 'r')
        vm.wait('x4'); emit([], fl(4, False))
        vm.wait('m4', 'lgkmcnt(0)'); a('s_barrier')
        vm.wait('r')
        a('s_mov_b32 s53, 0')
        a.label('L_dl_rs')
        a('v_cmp_ne_u64 vcc, s[12:13], %s' % v(SA+2,2))
        a('s_cbranch_vccz L_dl_rx\ns_add_u32 s53, s53, 1\ns_cmp_gt_u32 s53, 0x%x\ns_cbranch_scc1 L_dl_rx\ns_sleep 2' % SPIN_MAX)
        a('buffer_load_dwordx4 %s, v10, %s, s65 offen sc1\ns_waitcnt vmcnt(0)\ns_branch L_dl_rs' % (v(SA,4), s(S_WS,4)))
        a.label('L_dl_rx')
        a('v_rsq_f32 v%d, v%d\ns_nop 0\nds_write_b32 v3, v%d' % (SA, SA+1, SA))
        a('s_lshl_b32 s58, s%d, 3\nv_lshrrev_b32 v7, 5, v0\nv_add_u32 v7, s58, v7\nv_and_b32 v6, 31, v0\nv_lshlrev_b32 v6, 4, v6' % WAVE)
        a('v_mul_u32_u24 v5, %d, v7\nv_add_u32 v5, v5, v6\nv_mul_u32_u24 v8, %d, v7\nv_add_u32 v8, v8, v6' % (LROW, GROW))
        a('s_lshr_b32 s59, s%d, 1\ns_mul_i32 s57, s59, %d\ns_lshl_b32 s59, s%d, 10\ns_add_u32 s57, s57, s59' % (DID, GBLK, HH))
        for k in range(4): a('s_add_u32 s%d, s57, 0x%x' % (60+k, G16 + 2*k*GROW))
        a('s_lshl_b32 s59, s%d, 3\ns_add_u32 s58, s59, 0x%x\nv_lshl_add_u32 v6, v0, 9, s58' % (DID, DFLAG))
        a('v_cmp_gt_u32 vcc, 32, v0\nv_mov_b32 v7, 0x%x\ns_add_u32 s59, s59, 0x%x\nv_cndmask_b32 v6, v7, v6, vcc\nv_mov_b32 v7, s59' % (OOB, SFLAG))
        a('v_lshlrev_b32 v11, 3, v0\nv_add_u32 v11, 0x%x, v11' % SFLAG)
        a('s_waitcnt lgkmcnt(0)\ns_barrier')
        self.stamp(9)
        for et in range(3):
            a('s_barrier')
            if et == 0: a('s_cmp_eq_u32 s%d, 0\ns_cbranch_scc0 L_dl_sk' % HH)
            for k in range(4): a('ds_read_b128 %s, v5 offset:%d' % (v(16+16*et+4*k,4), 2*k*LROW + et*512))
            for k in range(4):
                a('s_waitcnt lgkmcnt(%d)' % (3-k))
                a('buffer_store_dwordx4 %s, v8, %s, s%d offen offset:%d sc1' % (v(16+16*et+4*k,4), s(S_WS,4), 60+k, et*512))
            if et == 0: a.label('L_dl_sk')
        a('s_waitcnt vmcnt(0)\ns_setprio 0\ns_barrier')
        self.stamp(4)
        a('s_cmp_eq_u32 s%d, 0\ns_cbranch_scc0 L_dl_nf2' % WAVE)
        self.setflag(6, 2, '-1')
        a.label('L_dl_nf2')
        self.spin3('L_dl_sp', 11, 14)
        self.stamp(3)
        vm = VM(a)
        self.p2_coords(); self.ov_setup()
        a('v_lshlrev_b32 v2, 4, v0')
        a('s_lshr_b32 s53, s%d, 1\ns_mul_i32 s60, s53, 122880\ns_mul_i32 s61, s53, 71680\ns_and_b32 s53, s%d, 1\ns_mul_i32 s62, s53, 7\ns_sub_i32 s62, s76, s62' % (WAVE, WAVE))
        a('s_mul_i32 s53, s53, 35840\ns_add_u32 s60, s60, s53\ns_add_u32 s61, s61, s53\ns_add_u32 s63, s60, s75\ns_add_u32 s60, s60, s77')
        for j in range(7):
            a('s_cmp_le_i32 s62, %d\ns_cselect_b32 s74, s63, s60' % j)
            for n in range(5):
                a('s_add_u32 m0, s61, %d\ns_add_u32 s78, s74, %d' % (j*5120 + n*1024, j*5120 + n*1024))
                vm.op('buffer_load_dwordx4 v2, %s, s78 offen sc1 lds' % s(S_WS,4), 'wd')
        for i in range(5): self.ov_load(vm, i, 2)
        self.stamp(2)
        a('s_branch L_p2_help')

    def dft_consumer(self):
        a = self.a
        ACC = 8
        MP, XP = 104, 152
        NP = 12
        a.label('L_dft_cons')
        a('s_sub_u32 s56, s%d, 4' % WAVE)
        a('s_setprio 1')
        a('v_and_b32 v208, 31, v0\nv_lshrrev_b32 v209, 5, v0\nv_bfe_u32 v210, v0, 1, 3\nv_xor_b32 v210, v210, v209')
        a('v_lshlrev_b32 v210, 4, v210\nv_lshl_add_u32 v210, v208, 7, v210')
        AM = [[211+4*k+u for u in range(4)] for k in range(3)]; AX = [2, 3, 4, 5]
        a('s_lshl_b32 s57, s56, 12\ns_add_u32 s57, s57, %d' % self.XFB)
        for u in range(4):
            a('v_xor_b32 v6, %d, v210' % (32*u))
            a('v_add_u32 v%d, s57, v6' % AX[u])
            for k in range(3): a('v_add_u32 v%d, %d, v6' % (AM[k][u], self.MB + 2*k*self.MSLOT))
        a('v_lshlrev_b32 v7, 2, v209\ns_mov_b32 s62, 0x3d000000')
        for k in range(16):
            r = 224 + k
            a('v_add_u32 v%d, %d, v7\nv_mul_u32_u24 v%d, v%d, v208\nv_and_b32 v%d, 31, v%d\nv_cvt_f32_u32 v%d, v%d\nv_mul_f32 v%d, s62, v%d' % (r, 8*(k>>2)+(k&3), r, r, r, r, r, r, r, r))
        for k in range(16):
            a('v_sin_f32 v%d, v%d\nv_cos_f32 v%d, v%d' % (240+k, 224+k, 224+k, 224+k))
        if 'dxt' in self.opt:
            a('s_lshl_b32 s57, s55, 1\ns_add_u32 s57, s57, s%d\ns_lshl_b32 s57, s57, 9\ns_lshl_b32 s58, s54, 2\ns_add_u32 s57, s57, s58\ns_add_u32 s57, s57, s56\ns_mul_i32 s57, s57, 1280' % HH)
            a('v_and_b32 v6, 7, v0\nv_mul_u32_u24 v6, 81920, v6\nv_lshrrev_b32 v162, 3, v0\nv_lshrrev_b32 v163, 2, v162\nv_add_u32 v162, v162, v163\nv_lshl_add_u32 v6, v162, 7, v6')
            a('buffer_load_dword v223, v6, %s, s57 offen offset:128' % s(S_X,4))
        a('s_lshl_b32 s57, s56, 7\ns_add_u32 s57, s57, %d' % self.DMISC)
        a('v_lshl_add_u32 v160, v209, 4, s57')
        a('v_mul_u32_u24 v161, %d, v208\nv_lshl_add_u32 v161, v209, 6, v161' % LROW)
        a('v_lshrrev_b32 v6, 3, v208\nv_add_u32 v6, s56, v6\nv_and_b32 v6, 3, v6\nv_lshl_add_u32 v161, v6, 2, v161')
        self.nonce()
        def accr(m): return ACC + 32*(m%3) + 16*(m//3)
        rd = []; need = []
        for c in range(5):
            for u in range(4):
                rd.append('ds_read_b128 %s, v%d offset:%d' % (v(XP+4*(u&1),4), AX[u], (c&1)*self.XFS))
                for m in range(6):
                    rd.append('ds_read_b128 %s, v%d offset:%d' % (v(MP+4*((6*u+m)%NP),4), AM[c>>1][u], (c&1)*self.MSLOT + m*4096))
                    need.append(len(rd)-1)
        RR = 168
        rr_reads = ['ds_read_b128 %s, v160 offset:%d' % (v(RR+4*k,4), 32*k) for k in range(4)]
        LA = 5
        a('s_barrier')
        self.stamp(1)
        for r in rd[:7]: a(r)
        issued = 7; done = 0
        a.align(3)
        for g in range(120):
            c, mu = divmod(g, 24); u, m = divmod(mu, 6)
            if mu == 21:
                a('s_waitcnt lgkmcnt(0)\ns_barrier'); done = issued
                self.stamp(5+c)
                if c < 4:
                    for _ in range(7): a(rd[issued]); issued += 1
                else:
                    for r in rr_reads: a(r)
            elif need[g] >= done:
                a('s_waitcnt lgkmcnt(%d)' % (issued - need[g] - 1)); done = need[g] + 1
            a('v_mfma_f32_32x32x16_bf16 %s, %s, %s, %s' % (v(accr(m),16), v(XP+4*(u&1),4), v(MP+4*(mu%NP),4), v(accr(m),16) if g >= 6 else '0'))
            if mu < 21:
                tgt = min(28*(c+1), need[g+1] + LA + 1)
                while issued < tgt: a(rd[issued]); issued += 1
        self.stamp(2)
        a.label('L_dc_epi')
        CC, SS, NS = 184, 192, 200
        a('s_waitcnt lgkmcnt(0)')
        for k in range(8):
            a('v_pk_mul_f32 %s, %s, %s' % (v(224+2*k,2), v(224+2*k,2), v(RR+2*k,2)))
            a('v_pk_mul_f32 %s, %s, %s' % (v(240+2*k,2), v(240+2*k,2), v(RR+2*k,2)))
        for k in range(8):
            a('v_cvt_pk_bf16_f32 v%d, v%d, v%d' % (CC+k, 224+2*k, 225+2*k))
            a('v_cvt_pk_bf16_f32 v%d, v%d, v%d' % (SS+k, 240+2*k, 241+2*k))
            a('v_xor_b32 v%d, 0x80008000, v%d' % (NS+k, SS+k))
        def zc(et):
            A0 = ACC + 32*et; Z = 104 + 16*et; o = []
            for k in range(8):
                o.append('v_cvt_pk_bf16_f32 v%d, v%d, v%d' % (Z+k, A0+2*k, A0+2*k+1))
                o.append('v_cvt_pk_bf16_f32 v%d, v%d, v%d' % (Z+8+k, A0+16+2*k, A0+16+2*k+1))
            return o
        for l in zc(0): a(l)
        a('s_nop 1')
        for et in range(3):
            A0 = ACC + 32*et; Z = 104 + 16*et
            RE, IM = A0, A0+16
            ms = [(RE,Z,CC,0),(IM,Z+8,CC,0),(RE,Z+4,CC+4,1),(IM,Z+12,CC+4,1),(RE,Z+8,SS,1),(IM,Z,NS,1),(RE,Z+12,SS+4,1),(IM,Z+4,NS+4,1)]
            fill = (zc(et+1) if et < 2 else ['s_nop 3']) + (self._dft_out(ACC + 32*(et-1), et-1) if et > 0 else [])
            per = -(-len(fill)//8)
            for i, (D, A_, B_, ac) in enumerate(ms):
                a('v_mfma_f32_32x32x16_bf16 %s, %s, %s, %s' % (v(D,16), v(A_,4), v(B_,4), v(D,16) if ac else '0'))
                for f in fill[per*i:per*i+per]: a(f)
            if et > 0: a('s_waitcnt lgkmcnt(0)\ns_barrier')
        a.nop(12)
        for f in self._dft_out(ACC + 64, 2): a(f)
        a('s_waitcnt lgkmcnt(0)\ns_barrier')
        a('s_setprio 0')
        self.stamp(3)
        a('s_barrier')
        a('s_branch L_p2_mfma')
        a.label('L_dc_end')

    def _dft_out(self, A0, et):
        o = []
        for r in range(16):
            o.append('v_cvt_pk_bf16_f32 v%d, v%d, v%d' % (A0+r, A0+r, A0+16+r))
            o.append('ds_write_b32 v161, v%d offset:%d' % (A0+r, (32*et + 8*(r>>2) + (r&3))*16))
        return o

    def p2_help(self):
        a = self.a
        a.label('L_p2_help')
        if self.stage == 'p1':
            a('s_waitcnt vmcnt(0)'); self.dump_stamps(); a('s_endpgm'); return
        ACC, G, TW, TM, OV, GV = 16, 56, 96, 112, self.OV, 228
        def acc(t, n): return ACC + (t*5+n)*4
        a('s_and_b32 s56, s%d, 1\ns_lshr_b32 s57, s%d, 1' % (WAVE, WAVE))
        a('v_lshlrev_b32 v1, 3, v0\ns_lshl_b32 s79, s%d, 9\ns_add_u32 s79, s79, 0x%x' % (T1, DFLAG))
        a('buffer_load_dwordx2 v[254:255], v1, %s, s79 offen sc1' % s(S_WS,4))
        a('s_lshl_b32 s58, s56, 1\ns_add_u32 s59, s58, s57\ns_sub_u32 s58, s58, s57\ns_add_u32 s58, s58, 1')
        a('v_and_b32 v3, 15, v0\nv_lshrrev_b32 v4, 4, v0')
        a('s_lshl_b32 s60, s59, 9\ns_add_u32 s60, s60, s%d\ns_mul_i32 s60, s60, 1280\ns_mul_i32 s61, s%d, 160\ns_add_u32 s60, s60, s61' % (T1, CS))
        a('v_mul_u32_u24 v5, 40960, v3\nv_lshl_add_u32 v5, v4, 3, v5')
        for n in range(5): a('buffer_load_dwordx2 %s, v5, %s, s60 offen offset:%d' % (v(234+2*n,2), s(S_X,4), 32*n))
        a('s_lshr_b32 s64, s%d, 2' % CS)
        a('s_lshl_b32 s63, s64, 31\ns_or_b32 s63, s63, 0x3a000000')
        a('s_mul_i32 s65, s64, 640\ns_lshl_b32 s64, s64, 1\ns_sub_u32 s64, 1, s64')
        a('s_mul_i32 s66, s64, s%d\ns_and_b32 s66, s66, 31' % T1)
        a('s_mul_i32 s67, s%d, 80' % CS)
        a('v_mul_u32_u24 v8, %d, v4' % (2*GBLK))
        for n in range(5):
            a('v_add_u32 v9, s67, v3\nv_add_u32 v9, %d, v9' % (16*n))
            a('v_mul_lo_u32 v9, v9, s64\nv_add_u32 v9, s65, v9')
            a('v_and_b32 v10, 1, v9\nv_mul_u32_u24 v10, %d, v10\nv_add_u32 v10, v10, v8' % GBLK)
            a('v_lshrrev_b32 v11, 1, v9\nv_cmp_eq_u32 vcc, 160, v11\ns_nop 1\nv_cndmask_b32 v11, v11, 0, vcc')
            a('v_lshl_add_u32 v%d, v11, 4, v10' % (GV+n))
            if n == 0:
                a('v_cmp_eq_u32 vcc, 0, v9\nv_mov_b32 v11, 0x%x\ns_nop 0\nv_cndmask_b32 v%d, v%d, v11, vcc' % (OOB, GV, GV))
        a('s_mul_i32 s68, s66, %d\ns_mul_i32 s69, s57, %d\ns_add_u32 s68, s68, s69\ns_add_u32 s68, s68, 0x%x' % (GROW, 16*GBLK, G16))
        a('s_add_u32 s69, s68, %d' % (8*GBLK))
        a('s_lshr_b32 s70, s66, 3')
        for t in range(2):
            a('s_lshl_b32 s71, s%d, 9\ns_add_u32 s71, s71, s%d' % (59 - t, T1))
            a('v_lshl_add_u32 v%d, v3, 5, s71' % (9+t))
        for i in range(4):
            a('s_sub_u32 s71, %d, s70\ns_and_b32 s71, s71, 3\ns_lshl_b32 s72, s57, 5\ns_add_u32 s71, s71, s72' % (i+4))
            a('v_lshl_add_u32 v11, v4, 2, s71')
            a('v_add_u32 v12, 16, v11')
            for t in range(2):
                for d in range(2):
                    r = TM + (t*2+d)*2
                    a('v_mul_u32_u24 v%d, v%d, v%d' % (r, 9+t, 11+d))
                    a('v_and_b32 v%d, 2047, v%d\nv_cvt_f32_u32 v%d, v%d\nv_mul_f32 v%d, s63, v%d' % (r, r, r, r, r, r))
                    a('v_sin_f32 v%d, v%d\nv_cos_f32 v%d, v%d' % (r+1, r, r, r))
            a('s_nop 0')
            for t in range(2):
                for d in range(2):
                    r = TM + (t*2+d)*2
                    a('v_cvt_pk_bf16_f32 v%d, v%d, v%d' % (TW+(t*2+d)*4+i, r, r+1))
        self.stamp(5)
        a('s_waitcnt vmcnt(5)')
        self.spin('L_p2_pd', 1, 254, 's79', 8, first_done=True)
        self.stamp(6)
        for d in range(2):
            for n in range(5):
                a('buffer_load_dwordx4 %s, v%d, %s, s%d offen sc1' % (v(G+(d*5+n)*4,4), GV+n, s(S_WS,4), 68+d))
        a('s_mul_i32 s61, s57, 71680\ns_mul_i32 s62, s56, 5120\ns_add_u32 s61, s61, s62\nv_add_u32 v6, s61, v2')
        a('s_mul_i32 s61, s56, 71680\ns_mul_i32 s62, s57, 15360\ns_add_u32 s62, s62, s61\ns_add_u32 s62, s62, 51200\nv_add_u32 v7, s62, v2')
        a('s_mul_i32 s62, s57, 5120\ns_sub_u32 s62, s61, s62\ns_add_u32 s62, s62, 61440\nv_add_u32 v8, s62, v2')
        a('s_lshr_b32 s61, s%d, 1\ns_lshl_b32 s61, s61, 9' % T1)
        a('v_min_u32 v1, 47, v0\nv_lshlrev_b32 v1, 3, v1')
        a('s_waitcnt vmcnt(10)')
        for n in range(5):
            for k in range(2):
                a('v_lshlrev_b32 v%d, 16, v%d\nv_and_b32 v%d, 0xffff0000, v%d' % (acc(0,n)+2*k, 234+2*n+k, acc(0,n)+2*k+1, 234+2*n+k))
        a('s_waitcnt vmcnt(0)')
        for d in range(2):
            for n in range(5):
                for t in range(2):
                    a('v_mfma_f32_16x16x32_bf16 %s, %s, %s, %s' % (v(acc(t,n),4), v(G+(d*5+n)*4,4), v(TW+(t*2+d)*4,4), v(acc(t,n),4) if (t == 0 or d) else '0'))
        self.stamp(7)
        a('s_cmp_eq_u32 s%d, 0\ns_cbranch_scc0 L_p2_nf' % WAVE)
        self.spin('L_p2_pf', 1, 254, 's61', 1)
        a.label('L_p2_nf')
        a('s_setprio %s' % self.val.get('hp', '0'))
        a('s_barrier')
        self.stamp(8)
        w = ['ds_write_b128 v6, %s offset:%d' % (v(OV+4*g,4), (g//5)*10240 + (g%5)*1024) for g in range(25)]
        w += ['ds_write_b128 v%d, %s offset:%d' % (7+t, v(acc(t,n),4), n*1024) for t in range(2) for n in range(5)]
        for lo, hi in ((0,8),(8,16),(16,24),(24,30),(30,35)):
            a('s_barrier')
            for l in w[lo:hi]: a(l)
            a('s_waitcnt lgkmcnt(0)')
        a('s_barrier')
        a('s_or_b32 s53, s2, s%d\ns_cmp_eq_u32 s53, 0\ns_cbranch_scc0 L_ph_x' % WAVE)
        a('v_mov_b32 v2, 0x%x' % EPOCH)
        self.setflag(2, 4)
        a.label('L_ph_x')
        self.dump_stamps()
        a('s_endpgm')

    def p2_mfma(self):
        a = self.a
        a.label('L_p2_mfma')
        if self.stage == 'p1':
            self.dump_stamps(); a('s_endpgm'); return
        ACC, WB, H = 16, 56, 136
        NH, NWB = 14, 4
        def acc(t, n): return ACC + (t*5+n)*4
        a('s_setprio %s' % self.val.get('mp', '1'))
        a('s_and_b32 s56, s%d, 1\ns_bfe_u32 s57, s%d, 0x10001\nv_lshlrev_b32 v2, 4, v0' % (WAVE, WAVE))
        self.p2_coords()
        a('s_lshl_b32 s58, s56, 1\ns_add_u32 s59, s58, s57\ns_sub_u32 s58, s58, s57\ns_add_u32 s58, s58, 1')
        a('s_lshl_b32 s61, s%d, 2\ns_add_u32 s62, s61, s59\ns_mul_i32 s62, s62, 49152\nv_add_u32 v6, s62, v2' % T1)
        a('s_add_u32 s62, s61, s58\ns_mul_i32 s62, s62, 49152\nv_add_u32 v7, s62, v2')
        a('s_mul_i32 s62, s57, 24\ns_sub_u32 s62, s62, s76\ns_lshl_b32 s62, s62, 10\ns_add_u32 s63, s62, 0x%x\ns_add_u32 s62, s62, 0x%x' % (HF, HF + 24576))
        a('s_mul_i32 s61, s57, 71680\nv_add_u32 v3, s61, v2\nv_add_u32 v4, 0xc800, v3')
        a('s_lshl_b32 s60, s59, 9\ns_add_u32 s60, s60, s%d\ns_mul_i32 s60, s60, 1280\ns_mul_i32 s61, s%d, 160\ns_add_u32 s60, s60, s61' % (T1, CS))
        a('s_and_b32 s74, s%d, 3\ns_xor_b32 s73, s74, 2\ns_mul_i32 s73, s73, 5120\ns_add_u32 s73, s73, 143360' % WAVE)
        a('s_mul_i32 s74, s74, 5120\ns_add_u32 s74, s74, 143360')
        for m in range(3):
            a('v_add_u32 v8, %d, v0\nv_mul_u32_u24 v9, 205, v8\nv_lshrrev_b32 v9, 11, v9' % (64*m))
            a('v_mul_u32_u24 v%d, 10, v9\nv_sub_u32 v8, v8, v%d\nv_lshlrev_b32 v8, 4, v8' % (10+m, 10+m))
            a('v_mul_u32_u24 v%d, 40960, v9\nv_add_u32 v%d, v%d, v8' % (10+m, 10+m, 10+m))
            a('v_mul_u32_u24 v9, 176, v9\nv_add3_u32 v%d, v9, v8, s74' % (13+m))
        a('v_cmp_gt_u32 vcc, 32, v0\nv_mov_b32 v8, 0x%x\ns_nop 0\nv_cndmask_b32 v12, v8, v12, vcc' % OOB)
        a('v_and_b32 v8, 15, v0\nv_mul_u32_u24 v8, 176, v8\nv_lshrrev_b32 v9, 4, v0\nv_lshl_add_u32 v8, v9, 3, v8\nv_add_u32 v8, s74, v8')
        a('v_add_u32 v9, s73, v2\nv_add_u32 v5, s74, v2')
        a('s_mul_i32 s61, s56, 71680\ns_mul_i32 s53, s57, 10240\ns_add_u32 s61, s61, s53\ns_add_u32 s61, s61, 51200\nv_add_u32 v1, s61, v2')
        a('s_barrier')
        self.stamp(8)
        vm = VM(a)
        def hload(j):
            a('s_cmp_le_u32 s76, %d\ns_cselect_b32 s61, s63, s62\ns_add_u32 s61, s61, %d' % (j, j*1024))
            for t in range(2):
                vm.op('buffer_load_dwordx4 %s, v%d, %s, s61 offen sc1' % (v(H+(j%NH)*8+4*t,4), 6+t, s(S_WS,4)), j)
        def wread(j):
            sl = j if j < 14 else j - 14
            return ['ds_read_b128 %s, v%d offset:%d' % (v(WB+(j%NWB)*20+4*n,4), 3 if sl < 10 else 4, (sl if sl < 10 else sl-10)*5120 + n*1024) for n in range(5)]
        PRE = int(self.val.get('hpre', self.h_pre))
        for j in range(PRE): hload(j)
        for j in range(2):
            for r in wread(j): a(r)
        nxt = PRE
        for j in range(24):
            vm.wait(j, 'lgkmcnt(%d)' % (5 if j < 23 else 0))
            if j in (0, 4, 9, 17): self.stamp({0: 9, 4: 10, 9: 11, 17: 12}[j])
            if j in (3, 7, 11, 15, 19): a('s_barrier')
            rd = wread(j+2) if j < 22 else []
            k = 0
            for n in range(5):
                for t in range(2):
                    a('v_mfma_f32_16x16x32_bf16 %s, %s, %s, %s' % (v(acc(t,n),4), v(WB+(j%NWB)*20+4*n,4), v(H+(j%NH)*8+4*t,4), v(acc(t,n),4) if j else '0'))
                    if k < len(rd): a(rd[k]); k += 1
                    elif k in (5, 7) and nxt < 24 and nxt < j + NH and (k == 5 or nxt <= j + NH - 2):
                        hload(nxt); nxt += 1; k += 1
                    else: k += 1
        assert nxt == 24
        self.stamp(13)
        a.nop(7)
        for n in range(5): a('ds_write_b128 v9, %s offset:%d' % (v(acc(1,n),4), n*1024))
        a('s_waitcnt lgkmcnt(0)\ns_barrier')
        for n in range(5):
            a('ds_read_b128 %s, v1 offset:%d' % (v(WB+12*n,4), n*1024))
            a('ds_read_b128 %s, v1 offset:%d' % (v(WB+12*n+4,4), 5120 + n*1024))
            a('ds_read_b128 %s, v5 offset:%d' % (v(WB+12*n+8,4), n*1024))
        for n in range(5):
            a('s_waitcnt lgkmcnt(%d)' % (12-2*n))
            for k in range(2):
                a('v_pk_add_f32 %s, %s, %s' % (v(WB+12*n+2*k,2), v(WB+12*n+2*k,2), v(WB+12*n+4+2*k,2)))
                a('v_pk_add_f32 %s, %s, %s' % (v(acc(0,n)+2*k,2), v(acc(0,n)+2*k,2), v(WB+12*n+8+2*k,2)))
            for k in range(2): a('v_pk_add_f32 %s, %s, %s' % (v(acc(0,n)+2*k,2), v(acc(0,n)+2*k,2), v(WB+12*n+2*k,2)))
            for k in range(2): a('v_cvt_pk_bf16_f32 v%d, v%d, v%d' % (acc(1,n)+k, acc(0,n)+2*k, acc(0,n)+2*k+1))
            a('ds_write_b64 v8, %s offset:%d' % (v(acc(1,n),2), 32*n))
        a('s_waitcnt lgkmcnt(0)')
        for m in range(3): a('ds_read_b128 %s, v%d' % (v(WB+4*m,4), 13+m))
        for m in range(3):
            a('s_waitcnt lgkmcnt(%d)' % (2-m))
            a('buffer_store_dwordx4 %s, v%d, %s, s60 offen' % (v(WB+4*m,4), 10+m, s(S_OUT,4)))
        if self.stamps: a('s_waitcnt vmcnt(0)')
        self.dump_stamps()

    h_pre = 10

    def build(self, header):
        a = self.a
        self.prologue()
        self.ffn_wloader(); self.ffn_xloader(); self.dft_loader()
        self.dft_consumer(); self.ffn_consumer()
        self.p2_help(); self.p2_mfma()
        a.label('L_end')
        a('s_endpgm')
        errs = check(a.lines)
        for e in errs: print(e, file=sys.stderr)
        txt = header + '; @launch grid=(256,1,1) block=(512,1,1) lds=163840\n'
        txt += '.amdgcn_target "amdgcn-amd-amdhsa--gfx950"\n.text\n.globl %s\n.p2align 8\n.type %s,@function\n%s:\n' % (KN, KN, KN)
        txt += a.text()
        txt += '''.section .rodata,"a"
.p2align 6
.amdhsa_kernel %s
  .amdhsa_next_free_vgpr 256
  .amdhsa_next_free_sgpr 102
  .amdhsa_accum_offset 256
  .amdhsa_group_segment_fixed_size 0
  .amdhsa_kernarg_size 96
  .amdhsa_user_sgpr_count 2
  .amdhsa_user_sgpr_kernarg_segment_ptr 1
  .amdhsa_system_sgpr_workgroup_id_x 1
.end_amdhsa_kernel
''' % KN
        return txt, errs

if __name__ == '__main__':
    import argparse
    ap = argparse.ArgumentParser()
    ap.add_argument('-o', default='k.s'); ap.add_argument('--stage', default='full'); ap.add_argument('--stamps', action='store_true'); ap.add_argument('--opt', default='')
    args = ap.parse_args()
    ref = open('parallel_sum__spectral_fnet__swiglu_ffn__prompt.s.ref').read()
    header = ''.join(l + '\n' for l in ref.split('\n') if l.startswith(';') and '@launch' not in l and 'Override launch' not in l and 'grid=ceil' not in l)
    txt, errs = Gen(args.stage, args.stamps, [o for o in args.opt.split(',') if o]).build(header)
    open(args.o, 'w').write(txt)
    print('written', args.o, 'hazard errors:', len(errs))
```

```python
import sys
from dsl import *

KN = 'parallel_sum__spectral_fnet__swiglu_ffn__prompt_kernel'
HFLAG   = 0x0
EPOCH   = 0x18000
SFLAG   = 0x8000
STATS   = 0x20000
COLSUM  = 0x28000
STAMPS  = 0x60000
DFLAG   = 0x80000
WDF     = 0x100000
G16     = 0x300000
HF      = 0x600000
WS_SIZE = 0xC00000
LROW = 97*16
GROW = 160*16
GBLK = 32*GROW
SPIN_MAX = 0x10000
OOB = 0x7ffffff0

S_X, S_WS, S_OUT, S_A = 4, 8, 16, 20
NONCE = 12
P_X, P_HRE, P_HIM, P_WG, P_WU, P_WD, P_OUT, P_DBG, P_WS = 28, 32, 34, 36, 38, 40, 42, 44, 46
WAVE, XCD, IDX = 48, 49, 50
T1, CS = 51, 52
HH, DID = 14, 15

class VM:
    def __init__(self, a): self.a = a; self.q = []
    def op(self, txt, tag): self.a(txt); self.q.append(tag)
    def wait(self, tag, extra=''):
        idx = max([i for i, t in enumerate(self.q) if t == tag], default=-1)
        if idx < 0:
            if extra: self.a('s_waitcnt ' + extra)
            return
        n = len(self.q) - idx - 1
        assert n <= 63
        self.a('s_waitcnt vmcnt(%d) %s' % (n, extra))
        self.q = self.q[idx+1:]
    def drained(self): self.q = []

class Gen:
    def __init__(self, stage='full', stamps=False, opt=()):
        self.a = Asm(); self.stage = stage; self.stamps = stamps; self.opt = set(o.split('=')[0] for o in opt); self.val = dict(o.split('=') for o in opt if '=' in o)
        self.bf = '' if 'plain' in self.opt else 'sc1'
        if 'ph8' not in self.opt:
            self.opt |= ({'ph2', 'pfw', 'nowd'} if 'pf' in self.opt else {'ph2', 'ft', 'nowd'})
            for k, d in (('fb','3'),('pf0','2')): self.val.setdefault(k, d)

    def srd(self, dst, ptr, size):
        a = self.a
        a('s_mov_b32 %s, %s' % (s(dst), s(ptr)))
        a('s_mov_b32 %s, %s' % (s(dst+1), s(ptr+1)))
        a('s_mov_b32 %s, 0x%x' % (s(dst+2), size))
        a('s_mov_b32 %s, 0x20000' % s(dst+3))

    def stamp(self, k):
        if self.stamps:
            self.a('%s s[98:99]\ns_waitcnt lgkmcnt(0)\ns_mov_b32 s%d, s98' % ('s_memtime' if 'cyc' in self.opt else 's_memrealtime', 80+k))

    def dump_stamps(self):
        if not self.stamps: return
        a = self.a
        a('s_memtime s[96:97]\ns_waitcnt lgkmcnt(0)\ns_sub_u32 s95, s96, s95')
        a('s_lshl_b32 s96, s2, 3\ns_add_u32 s96, s96, s%d\ns_lshl_b32 s96, s96, 6\ns_add_u32 s96, s96, 0x%x' % (WAVE, STAMPS))
        self.stamp(14)
        for k in range(16): a('v_mov_b32 v%d, s%d' % (100+k, 80+k))
        a('v_mov_b32 v99, s96')
        a('s_mov_b64 exec, 1')
        for k in range(4): a('buffer_store_dwordx4 v[%d:%d], v99, %s, 0 offen offset:%d' % (100+4*k, 103+4*k, s(S_WS,4), 16*k))
        a('s_waitcnt vmcnt(0)')

    def nonce(self):
        self.a('s_waitcnt lgkmcnt(0)\ns_add_u32 s12, s12, 1\ns_add_u32 s13, s13, 1')

    def spin(self, lbl, va, vd, soff, sleep, first_done=False):
        a = self.a
        a('s_mov_b32 s53, 0')
        if first_done: a('s_branch %s_c' % lbl)
        a.label(lbl)
        a('buffer_load_dwordx2 %s, v%d, %s, %s offen sc1' % (v(vd,2), va, s(S_WS,4), soff))
        a('s_add_u32 s53, s53, 1\ns_cmp_gt_u32 s53, 0x%x\ns_cbranch_scc1 %s_x' % (SPIN_MAX, lbl))
        a('s_waitcnt vmcnt(0)')
        a.label(lbl + '_c')
        a('v_cmp_ne_u64 vcc, s[12:13], %s' % v(vd,2))
        a('s_cbranch_vccz %s_x\ns_sleep %d\ns_branch %s' % (lbl, sleep, lbl))
        a.label(lbl + '_x')

    def spin3(self, lbl, va, vd, first_done=False):
        a = self.a
        a('s_mov_b32 s53, 0')
        if first_done: a('s_branch %s_c' % lbl)
        a.label(lbl)
        for k in range(3): a('buffer_load_dwordx2 %s, v%d, %s, 0 offen sc1' % (v(vd+2*k,2), va[k], s(S_WS,4)))
        a('s_add_u32 s53, s53, 1\ns_cmp_gt_u32 s53, 0x%x\ns_cbranch_scc1 %s_x' % (SPIN_MAX, lbl))
        a('s_waitcnt vmcnt(0)')
        a.label(lbl + '_c')
        a('v_cmp_ne_u64 vcc, s[12:13], %s\nv_cmp_ne_u64 s[68:69], s[12:13], %s\ns_nop 0\ns_or_b64 vcc, vcc, s[68:69]' % (v(vd,2), v(vd+2,2)))
        a('v_cmp_ne_u64 s[68:69], s[12:13], %s\ns_nop 0\ns_or_b64 vcc, vcc, s[68:69]' % v(vd+4,2))
        a('s_cbranch_vccz %s_x\ns_sleep 8\ns_branch %s' % (lbl, lbl))
        a.label(lbl + '_x')

    def setflag(self, va, vd, mask='1'):
        a = self.a
        a('v_mov_b32 v%d, s12\nv_mov_b32 v%d, s13' % (vd, vd+1))
        a('s_mov_b64 exec, %s' % mask)
        a('buffer_store_dwordx2 %s, v%d, %s, 0 offen sc1' % (v(vd,2), va, s(S_WS,4)))
        a('s_mov_b64 exec, -1')

    def prologue(self):
        a = self.a
        a('s_load_dwordx2 s[28:29], s[0:1], 0')
        a('s_load_dwordx4 s[36:39], s[0:1], 48')
        a('s_load_dwordx8 s[40:47], s[0:1], 64')
        a('s_load_dwordx4 s[32:35], s[0:1], 24')
        a('s_cmp_ge_u32 s2, 256\ns_cbranch_scc1 L_end')
        a('v_lshrrev_b32 v1, 6, v0\nv_and_b32 v0, 63, v0')
        a('v_readfirstlane_b32 s%d, v1' % WAVE)
        a('s_and_b32 s%d, s2, 7\ns_lshr_b32 s%d, s2, 3' % (XCD, IDX))
        if self.stamps:
            for k in range(16): a('s_mov_b32 s%d, 0' % (80+k))
            a('s_memtime s[96:97]\ns_waitcnt lgkmcnt(0)\ns_mov_b32 s95, s96')
        a('s_cmp_lt_u32 s%d, 4\ns_cbranch_scc1 L_nopf\ns_cmp_ge_u32 s%d, 24\ns_cbranch_scc1 L_nopf' % (WAVE, IDX))
        a('s_getpc_b64 s[54:55]')
        a.label('L_pc')
        a('s_sub_u32 s53, s%d, 4\ns_lshl_b32 s53, s53, 13' % WAVE)
        a('v_lshl_add_u32 v2, v0, 7, s53')
        a('v_add_u32 v3, 0x8000, v2')
        a('v_min_u32 v2, L_end-L_pc, v2\nv_min_u32 v3, L_end-L_pc, v3')
        a('global_load_dword v255, v2, s[54:55]\nglobal_load_dword v255, v3, s[54:55]')
        a.label('L_nopf')
        a('s_mul_i32 s54, s%d, 43\ns_lshr_b32 s54, s54, 7' % IDX)
        a('s_mul_i32 s55, s54, 3\ns_sub_u32 s55, s%d, s55' % IDX)
        a('s_and_b32 s56, s%d, 1\ns_lshl_b32 s56, s56, 3\ns_add_u32 s54, s54, s56' % XCD)
        a('s_lshr_b32 s56, s%d, 1\ns_mul_i32 s56, s56, 3\ns_add_u32 s55, s55, s56' % XCD)
        if 'map48' in self.opt:
            a('s_lshr_b32 s%d, s%d, 3\ns_lshl_b32 s53, s%d, 2\ns_add_u32 s%d, s%d, s53\ns_and_b32 s%d, s%d, 7' % (T1, IDX, XCD, T1, T1, CS, IDX))
        else:
            a('s_lshr_b32 s%d, s%d, 2\ns_lshr_b32 s53, s%d, 1\ns_lshl_b32 s53, s53, 3\ns_add_u32 s%d, s%d, s53' % (T1, IDX, XCD, T1, T1))
            a('s_and_b32 s%d, s%d, 3\ns_and_b32 s53, s%d, 1\ns_lshl_b32 s53, s53, 2\ns_add_u32 s%d, s%d, s53' % (CS, IDX, XCD, CS, CS))
        a('s_mov_b32 s%d, 0x%x\ns_mov_b32 s%d, 0x20000' % (S_X+2, 2048*640*2, S_X+3))
        a('s_mov_b32 s%d, 0x%x\ns_mov_b32 s%d, 0x20000' % (S_WS+2, WS_SIZE, S_WS+3))
        a('s_mov_b32 s%d, 0x%x\ns_mov_b32 s%d, 0x20000' % (S_OUT+2, 2048*640*2, S_OUT+3))
        a('s_mov_b32 s%d, 0x20000' % (S_A+3))
        a('s_waitcnt lgkmcnt(0)')
        self.stamp(0)
        a('s_load_dwordx2 s[12:13], s[46:47], 0x%x' % EPOCH)
        for d, p in ((S_X, P_X), (S_WS, P_WS), (S_OUT, P_OUT)):
            a('s_mov_b32 s%d, s%d\ns_mov_b32 s%d, s%d' % (d, p, d+1, p+1))
        a('s_cmp_ge_u32 s%d, 24\ns_cbranch_scc1 L_notffn' % IDX)
        a('s_cmp_lt_u32 s%d, 2\ns_cbranch_scc1 L_ffn_wl' % WAVE)
        a('s_cmp_lt_u32 s%d, 4\ns_cbranch_scc1 L_ffn_xl' % WAVE)
        a('s_branch L_ffn_cons')
        a.label('L_notffn')
        if 'ffnonly' in self.opt: a('s_endpgm')
        a('s_and_b32 s54, s%d, 3\ns_lshr_b32 s55, s%d, 2\ns_lshl_b32 s55, s55, 3\ns_add_u32 s54, s54, s55' % (IDX, XCD))
        a('s_and_b32 s55, s%d, 1\ns_lshl_b32 s55, s55, 2\ns_add_u32 s54, s54, s55\ns_bfe_u32 s55, s%d, 0x10001' % (XCD, XCD))
        a('s_bfe_u32 s%d, s%d, 0x10002\ns_lshl_b32 s%d, s54, 1\ns_add_u32 s%d, s%d, s55\ns_lshl_b32 s%d, s%d, 1\ns_add_u32 s%d, s%d, s%d' % (HH, IDX, DID, DID, DID, DID, DID, DID, DID, HH))
        if 'pf' in self.opt: self.prefetch()
        a('s_cmp_lt_u32 s%d, 4\ns_cbranch_scc1 L_dft_ld' % WAVE)
        a('s_branch L_dft_cons')

    WSLOT, NWS = 16384, 6
    XB, XSLOT, NXS = 98304, 16384, 3
    MISC = 147456

    def wvoff(self, dst0, rowbytes, tmp):
        a = self.a
        t = tmp
        a('v_lshrrev_b32 v%d, 3, v0' % t)
        a('v_bfe_u32 v%d, v0, 4, 1' % (t+1))
        a('v_bfe_u32 v%d, v0, 1, 2' % (t+2))
        a('v_xor_b32 v%d, v%d, v%d' % (t+2, t+2, t+1))
        a('v_and_b32 v%d, 1, v0' % (t+1))
        a('v_lshlrev_b32 v%d, 4, v%d' % (t+1, t+1))
        a('v_lshl_add_u32 v%d, v%d, 5, v%d' % (t+2, t+2, t+1))
        a('v_mul_u32_u24 v%d, %d, v%d' % (t, rowbytes, t))
        a('v_add_u32 v%d, v%d, v%d' % (dst0, t, t+2))
        a('v_xor_b32 v%d, 64, v%d' % (t+2, t+2))
        a('v_add_u32 v%d, v%d, v%d' % (dst0+1, t, t+2))
        a('v_add_u32 v%d, %d, v%d' % (dst0+1, 8*rowbytes, dst0+1))
        a('v_add_u32 v%d, %d, v%d' % (dst0+2, 16*rowbytes, dst0))
        a('v_add_u32 v%d, %d, v%d' % (dst0+3, 16*rowbytes, dst0+1))

    def phase(self, dst):
        a = self.a
        a('s_mul_i32 s64, s%d, 43\ns_lshr_b32 s64, s64, 7\ns_mul_i32 s65, s64, 3\ns_sub_u32 s65, s%d, s65' % (IDX, IDX))
        if 'ph0' in self.opt: a('s_mov_b32 s%d, 0' % dst)
        elif 'ph2' not in self.opt and 'ph4' not in self.opt:
            a('s_lshr_b32 s%d, s64, 2\ns_add_u32 s%d, s%d, s64' % (dst, dst, dst))
            a('s_mul_i32 s53, s65, 7\ns_lshr_b32 s53, s53, 1\ns_add_u32 s%d, s%d, s53' % (dst, dst))
            a('s_cmp_ge_u32 s%d, 10\ns_cselect_b32 s53, 10, 0\ns_sub_u32 s%d, s%d, s53' % (dst, dst, dst))
        elif 'ph4' in self.opt:
            a('s_and_b32 s%d, s64, 3\ns_mul_i32 s%d, s%d, 5\ns_lshr_b32 s%d, s%d, 1' % (dst, dst, dst, dst, dst))
        else: a('s_and_b32 s%d, s64, 1\ns_mul_i32 s%d, s%d, 5' % (dst, dst, dst))

    def prefetch(self):
        a = self.a
        a('s_sub_u32 s56, s%d, 24' % IDX)
        a('s_bitcmp0_b32 s%d, 0' % XCD)
        a('s_cselect_b32 s24, s%d, s%d\ns_cselect_b32 s25, s%d, s%d\ns_mov_b32 s26, 0x%x\ns_mov_b32 s27, 0x20000' % (P_WG, P_WU, P_WG+1, P_WU+1, 640*1536*2))
        a('v_min_u32 v1, 47, v0\nv_mul_u32_u24 v2, 43, v1\nv_lshrrev_b32 v2, 8, v2')
        a('v_mul_u32_u24 v3, 6, v2\nv_sub_u32 v1, v1, v3\nv_lshlrev_b32 v1, 7, v1')
        a('v_lshrrev_b32 v3, 2, v2\nv_mul_u32_u24 v3, 320, v3\nv_and_b32 v2, 3, v2\nv_add_u32 v2, v2, v3\nv_mul_u32_u24 v2, 3072, v2\nv_add_u32 v2, v2, v1')
        a('s_lshr_b32 s57, s%d, 1\ns_mul_i32 s58, s57, 768\ns_mul_i32 s59, s56, 12288\ns_add_u32 s58, s58, s59' % XCD)
        a('s_and_b32 s59, s%d, 1\ns_lshl_b32 s59, s59, 4\ns_lshl_b32 s57, s57, 9\ns_add_u32 s57, s57, s59\ns_lshl_b32 s59, s56, 5\ns_add_u32 s57, s57, s59\ns_mul_i32 s57, s57, 1280' % XCD)
        a('v_and_b32 v3, 15, v0\nv_mul_u32_u24 v3, 1280, v3\nv_bfe_u32 v4, v0, 1, 1\nv_mul_u32_u24 v4, 5, v4')
        S0 = int(self.val.get('pf0', 1))
        def slot(sreg):
            a('s_mul_i32 s60, s%d, %d\ns_add_u32 s60, s60, s58' % (sreg, 32*3072))
            a('buffer_load_dword v255, v2, s[24:27], s60 offen')
            if 'pfw' in self.opt: return
            a('s_lshr_b32 s60, s%d, 1\nv_add_u32 v5, s60, v4\nv_lshl_add_u32 v5, v5, 7, v3\ns_and_b32 s60, s%d, 1\ns_mul_i32 s60, s60, %d\ns_add_u32 s60, s60, s57' % (sreg, sreg, 256*1280))
            a('s_mov_b64 exec, 0xffff\nbuffer_load_dword v255, v5, %s, s60 offen\ns_mov_b64 exec, -1' % s(S_X,4))
        a('s_add_u32 s61, s%d, %d' % (WAVE, S0))
        slot(61)
        a('s_add_u32 s61, s61, 8\ns_cmp_lt_u32 s61, 10\ns_cbranch_scc0 L_pf_x')
        slot(61)
        a('s_branch L_pf_e')
        a.label('L_pf_x')
        a('s_cmp_lt_u32 s61, %d\ns_cbranch_scc0 L_pf_e' % (0 if 'pfw' in self.opt else 13))
        a('s_sub_u32 s61, s61, 10\ns_lshl_b32 s61, s61, 2\nv_lshrrev_b32 v5, 4, v0\nv_add_u32 v5, s61, v5\nv_min_u32 v5, 9, v5')
        a('v_and_b32 v6, 1, v5\nv_mul_u32_u24 v6, %d, v6\nv_add_u32 v3, v3, v6\nv_lshrrev_b32 v5, 1, v5\nv_sub_u32 v5, v5, v4\nv_add_u32 v5, 5, v5\nv_lshl_add_u32 v5, v5, 7, v3' % (256*1280))
        a('buffer_load_dword v255, v5, %s, s57 offen' % s(S_X,4))
        a.label('L_pf_e')

    def p2_coords(self):
        a = self.a
        if 'rho' not in self.opt: a('s_mov_b32 s76, 0')
        elif 'rho2' in self.opt:
            a('s_and_b32 s76, s%d, 7\ns_and_b32 s53, s%d, 3\ns_lshl_b32 s53, s53, 1\ns_add_u32 s76, s76, s53\ns_and_b32 s76, s76, 7\ns_mul_i32 s76, s76, 3' % ((CS, T1) if 'map48' in self.opt else (T1, CS)))
        elif 'map48' in self.opt: a('s_and_b32 s76, s%d, 3\ns_mul_i32 s76, s76, 6' % T1)
        else: a('s_and_b32 s76, s%d, 7\ns_mul_i32 s76, s76, 3' % T1)
        a('s_mul_i32 s77, s%d, 245760\ns_mul_i32 s53, s76, 5120\ns_add_u32 s77, s77, s53\ns_add_u32 s77, s77, 0x%x\ns_sub_u32 s75, s77, 122880\ns_sub_u32 s76, 24, s76' % (CS, WDF))

    def wd_dma(self, vm, frags, voff):
        a = self.a; last = None
        for f in frags:
            half, r = divmod(f, 70); j, n = divmod(r, 5)
            if j != last: a('s_cmp_le_u32 s76, %d\ns_cselect_b32 s74, s75, s77' % j); last = j
            a('s_add_u32 m0, %d, 0\ns_add_u32 s78, s74, %d' % (f*1024, half*122880 + j*5120 + n*1024))
            vm.op('buffer_load_dwordx4 v%d, %s, s78 offen %s lds' % (voff, s(S_WS,4), self.bf), 'wd')

    OV = 128
    def ov_setup(self):
        a = self.a
        a('s_lshr_b32 s53, s%d, 1\ns_mul_i32 s72, s53, 122880\ns_and_b32 s53, s%d, 1\ns_sub_i32 s71, s76, s53\ns_mul_i32 s53, s53, 5120\ns_add_u32 s72, s72, s53' % (WAVE, WAVE))
        a('s_add_u32 s73, s72, s75\ns_add_u32 s72, s72, s77')
    def ov_load(self, vm, i, voff):
        a = self.a
        a('s_cmp_le_i32 s71, %d\ns_cselect_b32 s74, s73, s72\ns_add_u32 s74, s74, %d\ns_add_u32 s78, s74, 4096' % (14+2*i, (14+2*i)*5120))
        for n in range(5):
            vm.op('buffer_load_dwordx4 %s, v%d, %s, %s offen offset:%d %s' % (v(self.OV+20*i+4*n,4), voff, s(S_WS,4), 's74' if n < 4 else 's78', (n&3)*1024, self.bf), 'ov')

    def ffn_wloader(self):
        a = self.a; vm = VM(a)
        a.label('L_ffn_wl')
        a('s_cmp_eq_u32 s%d, 0' % WAVE)
        a('s_cselect_b32 s%d, s%d, s%d\ns_cselect_b32 s%d, s%d, s%d' % (S_A, P_WG, P_WU, S_A+1, P_WG+1, P_WU+1))
        a('s_mov_b32 s%d, 0x%x' % (S_A+2, 640*1536*2))
        self.wvoff(4, 3072, 8)
        self.phase(58)
        a('s_lshl_b32 s59, s55, 8\ns_mul_i32 s56, s58, %d\ns_add_u32 s56, s56, s59\ns_add_u32 s59, s59, %d' % (64*3072, 640*3072))
        a('s_lshl_b32 s57, s%d, 13' % WAVE)
        def issue(n):
            for b in range(2):
                for j in range(4):
                    a('s_add_u32 m0, s57, %d' % ((n % self.NWS)*self.WSLOT + b*4096 + j*1024 - b*128))
                    a('s_nop 0')
                    if 'now' not in self.opt: vm.op('buffer_load_dwordx4 v%d, %s, s56 offen offset:%d %s lds' % (4+j, s(S_A,4), b*128, 'nt' if 'ntw' in self.opt else ''), n)
            a('s_add_u32 s56, s56, %d' % (32*3072))
            if n & 1: a('s_cmp_eq_u32 s56, s59\ns_cselect_b32 s60, %d, 0\ns_sub_u32 s56, s56, s60' % (640*3072))
        L0 = int(self.val.get('wl', 2)); L1 = int(self.val.get('wl1', 4)); R0 = int(self.val.get('wr', 6))
        LP = int(self.val.get('wpre', L0))
        sched = {-1: list(range(LP))}; front = LP
        for m in range(20):
            lead = L0 if m < R0 else min(L1, L0 + (m - R0)//2 + 1)
            sched[m] = []
            while front < 20 and front <= m + lead and front <= m + 5: sched[m].append(front); front += 1
        for n in sched[-1]: issue(n)
        self.nonce()
        self.p2_coords(); self.ov_setup()
        a('v_lshlrev_b32 v2, 4, v0')
        self.p2_prep()
        WI = int(self.val.get('wi', 0)); WP = int(self.val.get('wp', 3)); FB = int(self.val.get('fb', 7))
        for m in range(15):
            vm.wait(m)
            if m == 0: self.stamp(1)
            a('s_barrier')
            for n in sched.get(m, []): issue(n)
            if m == WI and 'nowd' not in self.opt:
                for i in range(2):
                    for j in range(4):
                        a('s_add_u32 m0, s67, %d\ns_nop 0' % (i*8192 + j*1024))
                        vm.op('buffer_load_dwordx4 v%d, s[24:27], s%d offen nt lds' % (12+j, 68+i), 'wu')
            if m == WP and 'nowd' not in self.opt:
                vm.wait('wu')
                for i in range(2):
                    for ct in range(4):
                        for q in range(2): a('ds_read_b64_tr_b16 %s, v%d offset:%d' % (v(24+16*i+4*ct+2*q,2), 16+ct, i*8192 + q*2048))
                a('s_waitcnt lgkmcnt(0)')
                for k in range(8): vm.op('buffer_store_dwordx4 %s, v2, %s, s%d offen sc1' % (v(24+4*k,4), s(S_WS,4), 28+k), 'wo')
            for i in self.ov_sched(m): self.ov_load(vm, i, 2)
        a('s_cmp_eq_u32 s%d, 0\ns_cbranch_scc0 L_wl_t1' % WAVE)
        q0 = list(vm.q)
        for w in range(2):
            vm.q = list(q0)
            if w: a.label('L_wl_t1')
            for m in range(15, 21):
                if m < 20: vm.wait(m)
                a('s_barrier')
                for n in sched.get(m, []): issue(n)
                sl = (m-1) % 6
                self.wd_dma(vm, range(16*sl + 8*w, 16*sl + 8*w + 8), 2)
                for i in self.ov_sched(m): self.ov_load(vm, i, 2)
            self.stamp(2)
            a('s_branch L_p2_help')

    def ov_sched(self, m):
        assert int(self.val.get('pw', 12)) + 3 <= (15 if self.val.get('ove', '1') in '012' else 14 if self.val.get('ove') == '5' else 13)
        return {'0': {20: [0,1,2,3,4]}, '1': {19: [0], 20: [1,2,3,4]}, '2': {17: [0], 19: [1], 20: [2,3,4]}, '3': {13: [0], 14: [1], 17: [2], 19: [3], 20: [4]}, '4': {13: [0], 14: [1], 17: [2], 18: [3], 19: [4]}, '5': {14: [0], 17: [1], 19: [2], 20: [3,4]}}[self.val.get('ove', '1')].get(m, [])

    def tw_addr(self, dst):
        a = self.a
        a('v_lshrrev_b32 v%d, 4, v0\nv_lshlrev_b32 v%d, 5, v%d\nv_bfe_u32 v1, v0, 1, 3\nv_add_u32 v%d, v%d, v1' % (dst, dst, dst, dst, dst))
        a('s_lshr_b32 s53, s64, 1\ns_lshl_b32 s53, s53, 3\nv_add_u32 v%d, s53, v%d\nv_mul_u32_u24 v%d, 3072, v%d' % (dst, dst, dst, dst))
        a('v_and_b32 v1, 1, v0\nv_lshl_add_u32 v%d, v1, 7, v%d' % (dst, dst))
    def tx_addr(self, dst, half):
        a = self.a
        a('v_and_b32 v%d, 15, v0\nv_lshlrev_b32 v%d, 5, v%d\nv_lshrrev_b32 v1, 4, v0\nv_lshl_add_u32 v%d, v1, 9, v%d' % (dst, dst, dst, dst, dst))
        a('s_lshl_b32 s53, s54, 1\ns_add_u32 s53, s53, s%d\nv_add_u32 v%d, s53, v%d\nv_mul_u32_u24 v%d, 1280, v%d' % (half, dst, dst, dst, dst))
    def tx_off(self, dst, ph, r):
        a = self.a
        a('s_add_u32 s%d, s%d, s65\ns_add_u32 s%d, s%d, %d\ns_cmp_ge_u32 s%d, 10\ns_cselect_b32 s53, 10, 0\ns_sub_u32 s%d, s%d, s53\ns_lshl_b32 s%d, s%d, 7' % (dst, ph, dst, dst, 3*r, dst, dst, dst, dst, dst))
        if r == 3: a('s_cmp_eq_u32 s65, 0\ns_cselect_b32 s%d, s%d, 0x%x' % (dst, dst, OOB))

    def wtouch(self, unit_sgpr, nlanes, step0, dst):
        a = self.a
        a('s_bitcmp0_b32 s%d, 0' % XCD)
        a('s_cselect_b32 s24, s%d, s%d\ns_cselect_b32 s25, s%d, s%d\ns_mov_b32 s26, 0x%x\ns_mov_b32 s27, 0x20000' % (P_WG, P_WU, P_WG+1, P_WU+1, 640*1536*2))
        a('s_mul_i32 s53, s%d, %d' % (unit_sgpr, nlanes))
        a('v_min_u32 v1, %d, v0\nv_add_u32 v1, s53, v1\nv_mul_u32_u24 v%d, 10923, v1\nv_lshrrev_b32 v%d, 16, v%d' % (nlanes-1, dst-1, dst-1, dst-1))
        a('v_mul_u32_u24 v%d, 2304, v%d\nv_lshl_add_u32 v1, v1, 7, v%d' % (dst-1, dst-1, dst-1))
        a('s_lshr_b32 s53, s%d, 1\ns_mul_i32 s53, s53, 768\ns_add_u32 s53, s53, %d' % (XCD, step0*32*3072))
        return 'buffer_load_dword v%d, v1, s[24:27], s53 offen' % dst

    def xtouch(self, unit_sgpr, rows, c0, c1, dst):
        a = self.a
        n = rows*(c1-c0); assert n <= 64
        mag = (2048 + rows - 1)//rows
        assert all((l*mag) >> 11 == l//rows for l in range(64))
        a('v_min_u32 v1, %d, v0\nv_mul_u32_u24 v%d, %d, v1\nv_lshrrev_b32 v%d, 11, v%d' % (n-1, dst, mag, dst, dst))
        a('v_mul_u32_u24 v%d, %d, v%d\nv_sub_u32 v1, v1, v%d\nv_mul_u32_u24 v1, 1280, v1\nv_lshl_add_u32 v1, v%d, 7, v1' % (dst-1, rows, dst, dst-1, dst))
        a('s_mul_i32 s53, s%d, %d' % (unit_sgpr, rows*1280))
        return 'buffer_load_dword v%d, v1, %s, s53 offen offset:%d' % (dst, s(S_X,4), 128*c0)

    def touch_spec(self, spec, unit_sgpr, nunits, dst):
        kind, rng = spec[0], spec[1:].split('-'); lo, hi = int(rng[0]), int(rng[1])
        if kind == 'W':
            nl = (hi-lo)*8; assert nl <= 64, spec
            return self.wtouch(IDX, nl, lo, dst)
        return self.xtouch(unit_sgpr, -(-2048//nunits), lo, hi, dst)

    def ffn_xloader(self):
        a = self.a; vm = VM(a)
        a.label('L_ffn_xl')
        a('s_sub_u32 s56, s%d, 2' % WAVE)
        a('v_lshrrev_b32 v2, 3, v0\nv_lshrrev_b32 v3, 4, v0')
        a('s_lshl_b32 s57, s56, 2')
        a('v_add_u32 v3, s57, v3\nv_and_b32 v12, 7, v0\nv_xor_b32 v3, v3, v12\nv_lshlrev_b32 v3, 4, v3')
        a('v_mul_u32_u24 v2, 40960, v2\nv_add_u32 v2, v2, v3')
        a('s_lshl_b32 s57, s56, 8\ns_lshl_b32 s58, s54, 1\ns_add_u32 s57, s57, s58\ns_mul_i32 s57, s57, 1280')
        a('v_add_u32 v4, s57, v2')
        for tt in range(1, 8):
            a('v_add_u32 v%d, %d, v4' % (4+tt, ((tt>>2) + 512*(tt&3))*1280))
        a('s_lshl_b32 s57, s56, 10')
        self.phase(58)
        a('s_lshl_b32 s58, s58, 7')
        def issue(c):
            for tt in range(8):
                a('s_add_u32 m0, s57, %d' % (self.XB + (c % self.NXS)*self.XSLOT + tt*2048))
                a('s_nop 0')
                if 'nox' not in self.opt: vm.op('buffer_load_dwordx4 v%d, %s, s58 offen %s lds' % (4+tt, s(S_X,4), 'nt' if 'ntx' in self.opt else ''), c)
            a('s_add_u32 s58, s58, 128\ns_cmp_eq_u32 s58, 1280\ns_cselect_b32 s58, 0, s58')
        a('s_lshr_b32 s59, s58, 7')
        issue(0)
        XP = int(self.val.get('xp', 1))
        if XP == 2: issue(1)
        self.p2_coords(); self.ov_setup()
        a('v_lshlrev_b32 v2, 4, v0')
        self.tw_addr(80); self.tx_addr(81, 56)
        a('s_cmp_eq_u32 s56, 0')
        a('s_cselect_b32 s%d, s%d, s%d\ns_cselect_b32 s%d, s%d, s%d\ns_mov_b32 s%d, 0x%x' % (S_A, P_WG, P_WU, S_A+1, P_WG+1, P_WU+1, S_A+2, 640*1536*2))
        a('s_mul_i32 s66, s59, %d\ns_lshl_b32 s67, s55, 8\ns_add_u32 s66, s66, s67' % (64*3072))
        TB = {}
        for spec in self.val.get('tp', '0').split('+'):
            if spec == '0': continue
            k, m = spec.split('@'); TB.setdefault(int(m), []).append(k)
        def touch(k):
            if k[0] == 'w':
                n0 = int(k[1:])
                a('s_add_u32 s67, s66, %d' % (n0*32*3072))
                if n0 == 8: a('v_and_b32 v1, 31, v0\nv_lshlrev_b32 v1, 2, v1\nds_bpermute_b32 v80, v1, v80\ns_waitcnt lgkmcnt(0)')
                vm.op('buffer_load_dword v255, v80, %s, s67 offen' % s(S_A,4), 't')
            else:
                self.tx_off(67, 59, int(k[1:]))
                vm.op('buffer_load_dword v255, v81, %s, s67 offen' % s(S_X,4), 't')
        self.p2_prep()
        self.nonce()
        a('s_cmp_eq_u32 s56, 0\ns_cbranch_scc0 L_ffn_xl3')
        q0 = list(vm.q)
        PW = int(self.val.get('pw', 12)); PS = int(self.val.get('ps', 15)); PH2 = 'ph2' in self.opt; NP = 2 if PH2 else 8; PC = int(self.val.get('pc', 15 if PH2 else 10)); FB = int(self.val.get('fb', 7))
        for role in (2, 3):
            vm.q = list(q0)
            if role == 2:
                if PH2:
                    a('v_lshrrev_b32 v12, 4, v0\nv_bfe_u32 v13, v0, 2, 2')
                    a('v_lshl_add_u32 v14, v12, 3, v13\nv_lshlrev_b32 v14, 7, v14')
                    a('v_and_b32 v13, 3, v0\nv_lshl_add_u32 v14, v13, 3, v14')
                    a('v_bfe_u32 v13, v0, 3, 1\nv_bfe_u32 v15, v0, 4, 1\nv_lshl_add_u32 v13, v15, 1, v13')
                    a('s_and_b32 s60, s54, 2\nv_xor_b32 v13, s60, v13\nv_lshl_add_u32 v14, v13, 5, v14')
                    a('s_lshr_b32 s60, s54, 2\ns_lshl_b32 s60, s60, 12\nv_add_u32 v16, s60, v14\nv_xor_b32 v17, 32, v16')
                    a('v_add_u32 v18, %d, v16\nv_add_u32 v19, %d, v17' % (3*self.WSLOT, 3*self.WSLOT))
                    for k in range(4): a('v_mov_b32 v%d, 0x3f803f80' % (20+k))
                    for k in range(8): a('v_mov_b32 v%d, 0' % (24+k))
                    a('s_and_b32 s61, s54, 1\ns_mul_i32 s61, s61, 24576\ns_lshr_b32 s62, s54, 3\ns_mul_i32 s62, s62, 12288\ns_add_u32 s61, s61, s62')
                    a('s_lshl_b32 s62, s55, 10\ns_add_u32 s61, s61, s62\ns_bfe_u32 s62, s54, 0x20001\ns_lshl_b32 s62, s62, 8\ns_add_u32 s61, s61, s62\ns_add_u32 s61, s61, 0x%x' % COLSUM)
                else:
                    a('v_lshrrev_b32 v12, 4, v0\nv_bfe_u32 v13, v0, 2, 2')
                    a('v_lshl_add_u32 v14, v12, 3, v13\nv_lshlrev_b32 v14, 7, v14')
                    a('v_and_b32 v13, 3, v0\nv_lshl_add_u32 v14, v13, 3, v14')
                    a('v_bfe_u32 v13, v0, 3, 1\nv_bfe_u32 v15, v0, 4, 1\nv_lshl_add_u32 v13, v15, 1, v13')
                    a('v_lshl_add_u32 v14, v13, 5, v14')
                    a('s_lshr_b32 s60, s54, 3\ns_lshl_b32 s60, s60, 13\nv_add_u32 v16, s60, v14')
                    for ct in range(1, 4): a('v_xor_b32 v%d, %d, v16' % (16+ct, 32*ct))
                    for k in range(4): a('v_mov_b32 v%d, 0x3f803f80' % (20+k))
                    for k in range(32): a('v_mov_b32 v%d, 0' % (88+k))
                    a('s_mul_i32 s61, s64, 24576\ns_lshr_b32 s62, s54, 3\ns_mul_i32 s62, s62, 12288\ns_add_u32 s61, s61, s62')
                    a('s_lshl_b32 s62, s55, 10\ns_add_u32 s61, s61, s62\ns_add_u32 s61, s61, 0x%x' % COLSUM)
                a('v_lshlrev_b32 v56, 5, v12\nv_and_b32 v13, 1, v0\nv_lshl_add_u32 v56, v13, 4, v56')
                a('s_lshl_b32 s62, s55, 4\ns_add_u32 s62, s62, s54\ns_lshl_b32 s62, s62, 7\ns_add_u32 s62, s62, 0x%x\nv_mov_b32 v57, s62' % (SFLAG))
                a('v_and_b32 v12, 15, v0\nv_lshlrev_b32 v12, 5, v12')
                a('v_lshrrev_b32 v13, 4, v0\nv_lshl_add_u32 v12, v13, 9, v12')
                a('s_lshl_b32 s60, s54, 1\nv_add_u32 v12, s60, v12')
                a('v_lshlrev_b32 v12, 4, v12\nv_add_u32 v12, 0x%x, v12' % STATS)
                a('v_lshlrev_b32 v13, 4, v0\nv_add_u32 v13, %d, v13' % self.MISC)
                a('v_lshlrev_b32 v14, 7, v0\nv_add_u32 v14, 0x%x, v14\nv_add_u32 v15, 8192, v14\nv_add_u32 v58, 16384, v14' % SFLAG)
                rl = ['buffer_load_dwordx4 v[64:67], v12, %s, 0 offen sc1' % s(S_WS,4), 'buffer_load_dwordx4 v[68:71], v12, %s, 0 offen offset:16 sc1' % s(S_WS,4)]
                tags = [66, 70]
            else:
                a.label('L_ffn_xl3')
                a('v_mov_b32 v12, %d\nv_mov_b32 v13, 0\nds_write_b32 v12, v13' % (self.MISC + 3072))
                a('v_lshrrev_b32 v13, 5, v0\nv_mul_u32_u24 v13, 12288, v13')
                a('v_and_b32 v12, 31, v0\nv_lshl_add_u32 v12, v12, 5, v13')
                a('s_lshl_b32 s60, s55, 10\ns_add_u32 s60, s60, 0x%x\nv_add_u32 v12, s60, v12' % COLSUM)
                a('v_lshlrev_b32 v13, 4, v0\nv_add_u32 v13, %d, v13' % (self.MISC+2048))
                for k in range(1, 8): a('s_mov_b32 s%d, %d' % (27+k, 24576*k))
                rl = ['buffer_load_dwordx4 %s, v12, %s, %s offen offset:%d sc1' % (v(16+8*p+4*h,4), s(S_WS,4), 's%d' % (27+p) if p else '0', 16*h) for p in range(NP) for h in range(2)]
                tags = [18+4*k for k in range(2*NP)]
            for m in range(21):
                if m % 2 == 0 and m < 20: vm.wait(m//2)
                if m == 20: a('s_waitcnt lgkmcnt(0)')
                a('s_barrier')
                if role == 2:
                    if m == PW + 2:
                        vm.wait('pw')
                        if 'nospin' not in self.opt: self.spin3('L_xl_sw', (14,15,58), 72, True)
                    if m == PW:
                        for k in range(3): vm.op('buffer_load_dwordx2 %s, v%d, %s, 0 offen sc1' % (v(72+2*k,2), (14,15,58)[k], s(S_WS,4)), 'pw')
                    if m == FB:
                        self.setflag(57, 60); vm.q.append('fl')
                    if m == 4 and not PH2:
                        a('v_and_b32 v1, 1, v0\nv_cmp_eq_u32 vcc, 1, v1\ns_nop 1')
                        for ct in range(8):
                            b = 88+4*ct
                            a('v_cndmask_b32 v%d, v%d, v%d, vcc\nv_cndmask_b32 v%d, v%d, v%d, vcc\nv_mov_b32 v%d, s12\nv_mov_b32 v%d, s13' % (b, b, b+2, b+1, b+1, b+3, b+2, b+3))
                        a('s_mov_b32 exec_lo, 0x00030003\ns_mov_b32 exec_hi, 0x00030003')
                        for ct in range(8): vm.op('buffer_store_dwordx4 %s, v56, %s, s61 offen offset:%d sc1' % (v(88+4*ct,4), s(S_WS,4), 128*ct), 'cs')
                        a('s_mov_b64 exec, -1')
                    if m == 10 and PH2:
                        a('v_and_b32 v1, 1, v0\nv_cmp_eq_u32 vcc, 1, v1\nv_mov_b32 v34, s12\nv_mov_b32 v35, s13\nv_mov_b32 v38, s12\nv_mov_b32 v39, s13')
                        for ct in range(2): a('v_cndmask_b32 v%d, v%d, v%d, vcc\nv_cndmask_b32 v%d, v%d, v%d, vcc' % (32+4*ct, 24+4*ct, 26+4*ct, 33+4*ct, 25+4*ct, 27+4*ct))
                        a('s_mov_b32 exec_lo, 0x00030003\ns_mov_b32 exec_hi, 0x00030003')
                        for ct in range(2): vm.op('buffer_store_dwordx4 %s, v56, %s, s61 offen offset:%d sc1' % (v(32+4*ct,4), s(S_WS,4), 128*ct), 'cs')
                        a('s_mov_b64 exec, -1')
                if m == (PS if role == 2 else PC):
                    for l in rl: vm.op(l, 'st')
                if m == (PS if role == 2 else PC) + 2:
                    vm.wait('st')
                    a('s_mov_b32 s53, 0')
                    a.label('L_xl_rs%d' % role)
                    a('v_cmp_ne_u64 vcc, s[12:13], %s' % v(tags[0],2))
                    for t in tags[1:]: a('v_cmp_ne_u64 s[68:69], s[12:13], %s\ns_nop 0\ns_or_b64 vcc, vcc, s[68:69]' % v(t,2))
                    a('s_cbranch_vccz L_xl_rx%d\ns_add_u32 s53, s53, 1\ns_cmp_gt_u32 s53, 0x%x\ns_cbranch_scc1 L_xl_rx%d\ns_sleep 2' % (role, 0 if 'nospin' in self.opt else SPIN_MAX, role))
                    for l in rl: a(l)
                    a('s_waitcnt vmcnt(0)\ns_branch L_xl_rs%d' % role)
                    a.label('L_xl_rx%d' % role)
                    if role == 2:
                        for b in (64, 68):
                            a('v_rsq_f32 v%d, v%d\nv_mov_b32 v%d, v%d\nv_mul_f32 v%d, 0xbfb8aa3b, v%d' % (b+3, b+1, b+2, b+1, b+1, b+3))
                        a('ds_write_b128 v13, v[64:67]\nds_write_b128 v13, v[68:71] offset:1024')
                    else:
                        for w_ in ((8,) if PH2 else (32, 16, 8)):
                            for k in range(0, w_, 4): a('v_add_f32 v%d, v%d, v%d\nv_add_f32 v%d, v%d, v%d' % (16+k, 16+k, 16+w_+k, 17+k, 17+k, 17+w_+k))
                        a('v_mov_b32 v18, v20\nv_mov_b32 v19, v21')
                        a('ds_write_b128 v13, v[16:19]')
                for c in range(XP, 10):
                    when = max(0, 2*c - 2 - int(self.val.get('xl%d' % role, 1 if role == 2 else 0)))
                    if c >= int(self.val.get('xr', 4)): when = max(0, 2*c - (4 if role == 2 else 3))
                    if when == m: issue(c)
                for k in TB.get(m, []): touch(k)
                if role == 2 and m < 4 and not PH2:
                    if m >= 2: a('s_and_b32 s60, s64, 3\ns_cmp_eq_u32 s60, 3\ns_cbranch_scc0 L_cs_sk%d' % m)
                    for b in range(2):
                        for ct in range(4):
                            for q in range(2):
                                a('ds_read_b64_tr_b16 %s, v%d offset:%d' % (v(24+16*b+4*ct+2*q,2), 16+ct, m*self.WSLOT + b*4096 + q*512))
                        a('s_waitcnt lgkmcnt(0)')
                        for ct in range(4): a('v_mfma_f32_16x16x32_bf16 %s, %s, v[20:23], %s' % (v(88+16*b+4*ct,4), v(24+16*b+4*ct,4), v(88+16*b+4*ct,4)))
                    if m >= 2: a.label('L_cs_sk%d' % m)
                    if m == 3: a.nop(6)
                if role == 2 and m < 10 and PH2:
                    sl = m % self.NWS
                    for ct in range(2):
                        for q in range(2):
                            a('ds_read_b64_tr_b16 %s, v%d offset:%d' % (v(40+4*ct+2*q,2), 16+ct+2*(sl//3), (sl%3)*self.WSLOT + q*512))
                    a('s_waitcnt lgkmcnt(0)')
                    for ct in range(2): a('v_mfma_f32_16x16x32_bf16 %s, %s, v[20:23], %s' % (v(24+4*ct,4), v(40+4*ct,4), v(24+4*ct,4)))
                    if m == 9: a.nop(6)
                if m in (16, 18, 20):
                    f0 = {16: 112, 18: 128, 20: 96}[m]; n = {16: 8, 18: 6, 20: 8}[m]
                    self.wd_dma(vm, range(f0 + (role-2)*n, f0 + (role-1)*n), 2)
                for i in self.ov_sched(m): self.ov_load(vm, i, 2)
            self.stamp(2)
            a('s_branch L_p2_help')

    def ffn_consumer(self):
        a = self.a
        ACC, FR = 8, 136
        AW = [2, 3, 232, 233]
        AX = [4, 5]
        def acc(tt, mat, c2): return ACC + ((tt*2 + mat)*2 + c2)*4
        def xf(st, tt): return FR + st*48 + tt*4
        def wf(st, mat, c2): return FR + st*48 + 32 + (mat*2 + c2)*4
        a.label('L_ffn_cons')
        a('s_sub_u32 s56, s%d, 4' % WAVE)
        a('s_mul_i32 s57, s%d, 24\ns_add_u32 s57, s57, s%d\ns_and_b32 s58, s57, 1\ns_add_u32 s58, s58, 2\ns_cmp_lt_u32 s56, s58\ns_cselect_b32 s79, 1, 0\ns_cbranch_scc0 L_fc_nu' % (XCD, IDX))
        a('s_mul_i32 s57, s57, 5\ns_lshr_b32 s57, s57, 1\ns_add_u32 s57, s57, s56')
        a('s_mul_i32 s70, s57, 52429\ns_lshr_b32 s70, s70, 19\ns_mul_i32 s53, s70, 10\ns_sub_u32 s71, s57, s53')
        a('s_mul_i32 s68, s70, %d\ns_lshl_b32 s53, s71, 7\ns_add_u32 s68, s68, s53' % (32*1280))
        a('s_mov_b32 s72, s%d\ns_mov_b32 s73, s%d\ns_mov_b32 s74, 0x%x\ns_mov_b32 s75, 0x20000' % (P_WD, P_WD+1, 1536*640*2))
        self.wvoff(8, 1280, 12)
        a('s_lshl_b32 s67, s56, 12\ns_add_u32 s67, s67, %d' % (self.MISC + 4096))
        for j in range(4):
            a('s_add_u32 m0, s67, %d\ns_nop 0' % (j*1024))
            a('buffer_load_dwordx4 v%d, s[72:75], s68 offen nt lds' % (8+j))
        a.label('L_fc_nu')
        if 'ft' in self.opt:
            for k, spec in enumerate(self.val.get('ft', 'W2-6+W12-16+W6-10+W16-20').split('+')):
                lo, hi = [int(z) for z in spec[1:].split('-')]
                a('s_cmp_eq_u32 s56, %d\ns_cbranch_scc0 L_fc_n%d' % (k, k))
                a(self.wtouch(IDX, (hi-lo)*8, lo, 255))
                a.label('L_fc_n%d' % k)
        if 'ta' in self.opt:
            self.phase(59)
            a('s_cmp_lt_u32 s56, 2\ns_cbranch_scc0 L_fc_tx')
            self.tw_addr(2)
            a('s_cmp_eq_u32 s56, 0')
            a('s_cselect_b32 s%d, s%d, s%d\ns_cselect_b32 s%d, s%d, s%d\ns_mov_b32 s%d, 0x%x' % (S_A, P_WG, P_WU, S_A+1, P_WG+1, P_WU+1, S_A+2, 640*1536*2))
            a('s_mul_i32 s66, s59, %d\ns_lshl_b32 s67, s55, 8\ns_add_u32 s66, s66, s67' % (64*3072))
            a('buffer_load_dword v255, v2, %s, s66 offen' % s(S_A,4))
            a('s_branch L_fc_t3')
            a.label('L_fc_tx')
            a('s_sub_u32 s60, s56, 2')
            self.tx_addr(2, 60); self.tx_off(67, 59, 0)
            a('buffer_load_dword v255, v2, %s, s67 offen' % s(S_X,4))
            a.label('L_fc_t3')
        a('s_setprio 1')
        a('v_lshrrev_b32 v6, 4, v0\nv_bfe_u32 v7, v0, 2, 2')
        a('v_lshl_add_u32 v8, v6, 3, v7\nv_lshlrev_b32 v8, 7, v8')
        a('v_and_b32 v9, 3, v0\nv_lshl_add_u32 v8, v9, 3, v8')
        a('v_bfe_u32 v9, v0, 3, 1\nv_bfe_u32 v10, v0, 4, 1\nv_lshl_add_u32 v9, v10, 1, v9')
        a('s_and_b32 s57, s56, 1\ns_lshl_b32 s57, s57, 1')
        a('v_xor_b32 v9, s57, v9\nv_lshl_add_u32 v8, v9, 5, v8')
        a('s_lshr_b32 s57, s56, 1\ns_lshl_b32 s57, s57, 12')
        a('v_add_u32 v%d, s57, v8' % AW[0])
        a('v_xor_b32 v%d, 32, v%d' % (AW[1], AW[0]))
        a('v_add_u32 v%d, %d, v%d\nv_add_u32 v%d, %d, v%d' % (AW[2], 3*self.WSLOT, AW[0], AW[3], 3*self.WSLOT, AW[1]))
        a('v_and_b32 v8, 15, v0\nv_lshrrev_b32 v9, 1, v8\nv_xor_b32 v9, v9, v6')
        a('v_lshlrev_b32 v9, 4, v9\nv_lshl_add_u32 v9, v8, 7, v9')
        a('v_add_u32 v%d, %d, v9' % (AX[0], self.XB))
        a('v_xor_b32 v%d, 64, v%d' % (AX[1], AX[0]))
        a('v_lshlrev_b32 v234, 4, v8\nv_add_u32 v234, %d, v234' % self.MISC)
        a('v_lshlrev_b32 v235, 4, v6\ns_lshl_b32 s57, s56, 7\nv_add_u32 v235, s57, v235\nv_add_u32 v235, %d, v235' % (self.MISC+2048))
        a('v_lshlrev_b32 v236, 4, v0')
        hf = self.val.get('hf', 'p')
        if hf == 'p': a('s_lshl_b32 s58, s54, 4\ns_add_u32 s58, s58, s55\ns_lshl_b32 s58, s58, 2\ns_add_u32 s58, s58, s56\ns_lshl_b32 s58, s58, 3\nv_mov_b32 v237, s58')
        elif hf == 'w': a('s_lshl_b32 s58, s54, 4\ns_add_u32 s58, s58, s55\ns_lshl_b32 s58, s58, 4\ns_add_u32 s58, s58, s56\ns_lshl_b32 s58, s58, 3\ns_add_u32 s58, s58, 0xa0000\nv_mov_b32 v237, s58')
        else: a('s_lshl_b32 s58, s54, 4\ns_add_u32 s58, s58, s55\ns_lshl_b32 s58, s58, 2\ns_add_u32 s58, s58, s56\ns_lshl_b32 s58, s58, 7\ns_add_u32 s58, s58, 0xa0000\nv_mov_b32 v237, s58')
        a('s_mul_i32 s57, s54, %d\ns_lshl_b32 s58, s55, 2\ns_add_u32 s58, s58, s56\ns_lshl_b32 s58, s58, 10\ns_add_u32 s57, s57, s58\ns_add_u32 s57, s57, 0x%x' % (8*49152, HF))
        self.nonce()
        a('s_cmp_eq_u32 s79, 0\ns_cbranch_scc1 L_fc_nv')
        a('v_lshrrev_b32 v16, 2, v0\nv_lshlrev_b32 v16, 7, v16\nv_and_b32 v1, 3, v0\nv_lshl_add_u32 v16, v1, 3, v16')
        a('v_bfe_u32 v1, v0, 3, 1\nv_bfe_u32 v17, v0, 5, 1\nv_lshl_add_u32 v1, v17, 1, v1\nv_lshl_add_u32 v16, v1, 5, v16')
        a('v_add_u32 v16, s67, v16')
        for ct in range(1,4): a('v_xor_b32 v%d, %d, v16' % (16+ct, 32*ct))
        for ct in range(4):
            a('s_lshl_b32 s63, s71, 2\ns_add_u32 s63, s63, %d\ns_mul_i32 s64, s63, 52\ns_lshr_b32 s64, s64, 8' % ct)
            a('s_mul_i32 s65, s64, 5\ns_sub_u32 s65, s63, s65\ns_lshl_b32 s65, s65, 10')
            a('s_mul_i32 s64, s64, 245760\ns_add_u32 s65, s65, s64\ns_mul_i32 s64, s70, 5120\ns_add_u32 s65, s65, s64\ns_add_u32 s%d, s65, 0x%x' % (72+ct, WDF))
        a('s_waitcnt vmcnt(%d)' % (1 if 'ft' in self.opt else 0))
        for ct in range(4):
            for q in range(2): a('ds_read_b64_tr_b16 %s, v%d offset:%d' % (v(24+4*ct+2*q,2), 16+ct, q*2048))
        a('s_waitcnt lgkmcnt(0)')
        for ct in range(4): a('buffer_store_dwordx4 %s, v236, %s, s%d offen sc1' % (v(24+4*ct,4), s(S_WS,4), 72+ct))
        a.label('L_fc_nv')
        def reads(n):
            st = n & 1; sl = n % self.NWS
            r = []
            for mat in range(2):
                for c2 in range(2):
                    for q in range(2):
                        r.append('ds_read_b64_tr_b16 v[%d:%d], v%d offset:%d' % (wf(st,mat,c2)+2*q, wf(st,mat,c2)+2*q+1, AW[c2 + 2*(sl//3)], (sl%3)*self.WSLOT + mat*8192 + q*512))
            for tt in range(8):
                r.append('ds_read_b128 %s, v%d offset:%d' % (v(xf(st,tt),4), AX[n&1], ((n//2) % self.NXS)*self.XSLOT + tt*2048))
            return r
        ST, CSR, TM = FR, FR+32, 238
        ep_reads = ['ds_read_b128 %s, v234 offset:%d' % (v(ST+4*tt,4), tt*256) for tt in range(8)]
        ep_reads += ['ds_read_b128 %s, v235 offset:%d' % (v(CSR+(mat*2+c2)*4,4), mat*512 + c2*64) for mat in range(2) for c2 in range(2)]
        FB = int(self.val.get('fb', 5))
        a('s_barrier')
        self.stamp(1)
        for r in reads(0): a(r)
        a.align(3)
        for n in range(20):
            st = n & 1
            a('s_waitcnt %slgkmcnt(0)\ns_barrier' % ('vmcnt(0) ' if n == int(self.val['fb']) - 1 else ''))
            if n == 10: self.stamp(5)
            if n == 5: self.stamp(6)
            if n == 15: self.stamp(7)
            rd = reads(n+1) if n < 19 else ep_reads
            k = 0
            for tt in range(8):
                for mat in range(2):
                    for c2 in range(2):
                        A = acc(tt, mat, c2)
                        if 'nomfma' not in self.opt: a('v_mfma_f32_16x16x32_bf16 %s, %s, %s, %s' % (v(A,4), v(wf(st,mat,c2),4), v(xf(st,tt),4), v(A,4) if n else '0'))
                        if k < len(rd) and 'nords' not in self.opt: a(rd[k]); k += 1
        self.stamp(2)
        a('s_waitcnt lgkmcnt(0)')
        a.label('L_fc_epi')
        OUT = FR + 48
        for tt in range(8):
            m, q = ST+4*tt, ST+4*tt+2
            O = OUT + tt*4
            t = TM + (tt&1)*8
            pairs = [(c2, hh) for c2 in range(2) for hh in range(2)]
            for k, (c2, hh) in enumerate(pairs):
                ga = acc(tt,0,c2)+2*hh; ua = acc(tt,1,c2)+2*hh
                a('v_pk_fma_f32 %s, %s, %s, %s op_sel_hi:[0,1,1] neg_lo:[1,0,0] neg_hi:[1,0,0]' % (v(ga,2), v(m,2), v(CSR+c2*4+2*hh,2), v(ga,2)))
                a('v_pk_fma_f32 %s, %s, %s, %s op_sel_hi:[0,1,1] neg_lo:[1,0,0] neg_hi:[1,0,0]' % (v(ua,2), v(m,2), v(CSR+8+c2*4+2*hh,2), v(ua,2)))
            for k, (c2, hh) in enumerate(pairs):
                ga = acc(tt,0,c2)+2*hh
                a('v_pk_mul_f32 %s, %s, %s op_sel:[0,1] op_sel_hi:[1,1]' % (v(t+2*k,2), v(ga,2), v(m,2)))
            for k in range(8): a('v_exp_f32 v%d, v%d' % (t+k, t+k))
            for k, (c2, hh) in enumerate(pairs):
                ga = acc(tt,0,c2)+2*hh; ua = acc(tt,1,c2)+2*hh
                a('v_pk_mul_f32 %s, %s, %s' % (v(ga,2), v(ga,2), v(ua,2)))
                a('v_pk_fma_f32 %s, %s, %s, %s op_sel_hi:[1,0,0]' % (v(t+2*k,2), v(t+2*k,2), v(q,2), v(q,2)))
            for k in range(8): a('v_rcp_f32 v%d, v%d' % (t+k, t+k))
            a('s_nop 0')
            for k, (c2, hh) in enumerate(pairs):
                ga = acc(tt,0,c2)+2*hh
                a('v_pk_mul_f32 %s, %s, %s' % (v(ga,2), v(ga,2), v(t+2*k,2)))
            for k, (c2, hh) in enumerate(pairs):
                ga = acc(tt,0,c2)+2*hh
                a('v_cvt_pk_bf16_f32 v%d, v%d, v%d' % (O+k, ga, ga+1))
            a('buffer_store_dwordx4 %s, v236, %s, s57 offen sc1' % (v(O,4), s(S_WS,4)))
            a('s_add_u32 s57, s57, 49152')
        self.stamp(3)
        a('v_mov_b32 v2, %d\nv_mov_b32 v3, 1\ns_mov_b64 exec, 1\nds_add_u32 v2, v3\ns_mov_b64 exec, -1' % (self.MISC + 3072))
        a('s_waitcnt vmcnt(0)')
        self.stamp(4)
        self.setflag(237, 2)
        a('s_branch L_p2_mfma')

    MSLOT = 24576; MB = 32768; XFB = 0; XFS = 16384; DMISC = 155648

    def code_touch(self, lo, hi, n, dst, uniq):
        a = self.a
        a('s_getpc_b64 s[72:73]')
        a.label('L_ct%s' % uniq)
        a('s_add_u32 s72, s72, %s-L_ct%s\ns_addc_u32 s73, s73, 0' % (lo, uniq))
        out = []
        for k in range(n):
            a('v_lshlrev_b32 v%d, 7, v0\nv_add_u32 v%d, %d, v%d\nv_min_u32 v%d, %s-%s-4, v%d' % (dst-1-k, dst-1-k, 8192*k, dst-1-k, dst-1-k, hi, lo, dst-1-k))
            out.append('global_load_dword v%d, v%d, s[72:73]' % (dst, dst-1-k))
        return out

    def dft_loader(self):
        a = self.a; vm = VM(a)
        RAW, SA = 32, 192
        a.label('L_dft_ld')
        a('s_setprio %s' % self.val.get('dlp', '2'))
        a('s_cmp_lt_u32 s%d, 2' % WAVE)
        a('s_cselect_b32 s%d, s%d, s%d\ns_cselect_b32 s%d, s%d, s%d' % (S_A, P_HRE, P_HIM, S_A+1, P_HRE+1, P_HIM+1))
        a('s_mov_b32 s%d, 0x%x' % (S_A+2, 640*640*2))
        a('v_lshrrev_b32 v2, 3, v0\nv_lshrrev_b32 v3, 4, v0\nv_and_b32 v4, 7, v0')
        a('v_mul_u32_u24 v5, 81920, v2\nv_lshl_add_u32 v5, v4, 4, v5')
        a('s_lshl_b32 s66, s54, 2\ns_add_u32 s66, s66, s%d\ns_and_b32 s63, s%d, 3' % (WAVE, DID))
        for u in range(4): a('s_add_u32 s53, s63, %d\ns_and_b32 s%d, s53, 3\ns_lshl_b32 s53, s%d, 9\ns_add_u32 s53, s53, s66\ns_mul_i32 s%d, s53, 1280' % (u, 68+u, 68+u, 56+u))
        if 'dph0' in self.opt: a('s_mov_b32 s74, 0')
        else: a('s_and_b32 s74, s54, 3\ns_lshl_b32 s75, s%d, 1\ns_add_u32 s74, s74, s75\ns_cmp_ge_u32 s74, 5\ns_cselect_b32 s75, 5, 0\ns_sub_u32 s74, s74, s75\ns_lshl_b32 s74, s74, 7' % HH)
        a('s_mov_b32 s75, s74\nv_add_u32 v208, s74, v5')
        for c in range(1, 5): a('s_add_u32 s74, s74, 128\ns_cmp_eq_u32 s74, 640\ns_cselect_b32 s74, 0, s74\nv_add_u32 v%d, s74, v5' % (208+c))
        def xl(c, us):
            o = []
            for u in us:
                tag = 'x%d' % c if u else 'y%d' % c
                o.append(([], 'buffer_load_dwordx4 %s, v%d, %s, s%d offen' % (v(RAW+32*c+8*u,4), 208+c, s(S_X,4), 56+u), tag))
                o.append(([], 'buffer_load_dwordx4 %s, v%d, %s, s%d offen offset:640' % (v(RAW+32*c+8*u+4,4), 208+c, s(S_X,4), 56+u), tag))
            return o
        def ml(c):
            adv = ['s_add_u32 s75, s75, 128', 's_cmp_eq_u32 s75, 640', 's_cselect_b32 s75, 0, s75', 's_add_u32 s76, s60, s75']
            return [((adv if u == 0 and c > 0 else []) + ['s_add_u32 m0, s61, %d' % (self.MB + c*self.MSLOT + u*1024), 's_add_u32 s62, s76, %d' % (u*16*1280)],
                     'buffer_load_dwordx4 v%d, %s, s62 offen lds' % (8 if u == 0 else 6+(u&1), s(S_A,4)), 'm%d' % c) for u in range(6)]
        t = 16
        def unpack(lo):
            o = []
            for k in range(4):
                o += ['v_lshlrev_b32 v%d, 16, v%d' % (t+2*k, lo+k), 'v_and_b32 v%d, s77, v%d' % (t+2*k+1, lo+k),
                      'v_lshlrev_b32 v%d, 16, v%d' % (t+8+2*k, lo+4+k), 'v_and_b32 v%d, s77, v%d' % (t+8+2*k+1, lo+4+k)]
            return o
        def acc():
            o = []
            for k in range(16): o += ['v_add_f32 v%d, v%d, v%d' % (SA+(k&3), SA+(k&3), t+k), 'v_fmac_f32 v%d, v%d, v%d' % (SA+4+(k&3), t+k, t+k)]
            return o
        def st(c): return unpack(RAW+32*c) + acc()
        def fl(c, with_stats):
            o = []
            for u in range(4):
                lo = RAW+32*c+8*u
                o += unpack(lo)
                if u == 0 and with_stats: o += acc()
                for k in range(8): o.append('v_fmac_f32 v%d, v12, v%d' % (t+k, t+8+k))
                for k in range(4): o.append('v_cvt_pk_bf16_f32 v%d, v%d, v%d' % (lo+k, t+2*k, t+2*k+1))
                o.append('ds_write_b128 v%d, %s offset:%d' % (213+u, v(lo,4), (c&1)*self.XFS))
            return o
        def emit(loads, valu):
            per = -(-len(valu) // max(1, len(loads))); k = 0
            for pre, ld, tag in loads:
                for p in pre: a(p)
                vm.op(ld, tag)
                for l in valu[k:k+per]: a(l)
                k += per
            for l in valu[k:]: a(l)
        emit(xl(0, range(4)), [])
        a('v_xor_b32 v3, v3, v4\nv_lshlrev_b32 v3, 4, v3')
        a('v_mul_u32_u24 v6, 2560, v2\nv_add_u32 v6, v6, v3\nv_xor_b32 v7, 64, v6')
        a('s_or_b32 s60, s55, s%d\ns_or_b32 s60, s60, s%d\ns_cmp_eq_u32 s60, 0\ns_cselect_b32 s60, %d, 0' % (WAVE, HH, 320*1280))
        a('v_cmp_gt_u32 vcc, 8, v0\nv_mov_b32 v8, s60\ns_nop 0\nv_cndmask_b32 v8, 0, v8, vcc\nv_add_u32 v8, v8, v6')
        a('s_and_b32 s60, s%d, 1\ns_mul_i32 s60, s60, 96\ns_lshl_b32 s61, s%d, 7\ns_add_u32 s60, s60, s61\ns_add_u32 s60, s60, s55\ns_mul_i32 s60, s60, 1280' % (WAVE, HH))
        a('s_mul_i32 s61, s%d, 6144\ns_add_u32 s76, s60, s75' % WAVE)
        YL = 'ylate' in self.opt
        emit(ml(0) + ([] if YL else xl(2, [0]) + xl(3, [0]) + xl(4, [0])), [])
        a('s_lshl_b32 s53, s%d, 12\ns_add_u32 s53, s53, %d' % (WAVE, self.XFB))
        a('v_lshl_add_u32 v9, v2, 7, v3\nv_add_u32 v9, s53, v9')
        for u in range(4): a('s_and_b32 s53, s%d, 1\ns_lshl_b32 s53, s53, 6\nv_xor_b32 v%d, s53, v9\ns_lshl_b32 s53, s%d, 10\nv_add_u32 v%d, s53, v%d' % (68+u, 213+u, 68+u, 213+u, 213+u))
        a('s_cmp_eq_u32 s55, 0\ns_cselect_b32 s53, 1.0, -1.0\nv_mov_b32 v12, s53\ns_mov_b32 s77, 0xffff0000')
        for k in range(8): a('v_mov_b32 v%d, 0' % (SA+k))
        a('v_lshlrev_b32 v4, 10, v2\ns_lshl_b32 s65, s66, 4\ns_add_u32 s65, s65, 0x%x\ns_lshl_b32 s64, s63, 13\ns_add_u32 s64, s64, s65' % STATS)
        a('v_and_b32 v3, 31, v0\nv_lshlrev_b32 v10, 10, v3\ns_lshl_b32 s53, s%d, 7\ns_add_u32 s53, s53, %d\nv_lshl_add_u32 v3, v3, 2, s53' % (WAVE, self.DMISC))
        self.p2_prep()
        self.nonce()
        vm.wait('x0')
        emit([], fl(0, True))
        vm.wait('m0', 'lgkmcnt(0)'); a('s_barrier')
        self.stamp(1)
        if YL:
            emit(xl(1, range(4)) + ml(1) + xl(2, [0]) + xl(3, [0]) + xl(4, [0]), [])
            vm.wait('x1'); emit([], fl(1, True)); vm.wait('y4'); emit(xl(2, [1,2,3]) + ml(2), st(2) + st(3) + st(4))
        else:
            vm.wait('y4')
            emit(xl(1, range(4)) + ml(1), st(2) + st(3) + st(4))
            vm.wait('x1'); emit(xl(2, [1,2,3]) + ml(2), fl(1, True))
        fin = []
        fin += ['v_add_f32 v%d, v%d, v%d' % (SA+k, SA+k, SA+k+1) for k in (0, 4, 2, 6)] + ['v_add_f32 v%d, v%d, v%d' % (SA+k, SA+k, SA+k+2) for k in (0, 4)]
        for mod in ('quad_perm:[1,0,3,2]', 'quad_perm:[2,3,0,1]', 'row_half_mirror'):
            fin += ['s_nop 0'] + ['v_add_f32 v%d, v%d, v%d %s row_mask:0xf bank_mask:0xf' % (SA+k, SA+k, SA+k, mod) for k in (0, 4)]
        fin += ['v_mul_f32 v%d, 0x3acccccd, v%d' % (SA+8, SA), 'v_mul_f32 v%d, 0x3acccccd, v%d' % (SA+9, SA+4),
                'v_fma_f32 v%d, -v%d, v%d, v%d' % (SA+9, SA+8, SA+8, SA+9), 'v_max_f32 v%d, 0, v%d' % (SA+9, SA+9), 'v_add_f32 v%d, 0x3727c5ac, v%d' % (SA+9, SA+9),
                'v_mov_b32 v%d, s12' % (SA+10), 'v_mov_b32 v%d, s13' % (SA+11)]
        emit([], fin)
        a('s_mov_b32 exec_lo, 0x01010101\ns_mov_b32 exec_hi, 0x01010101')
        vm.op('buffer_store_dwordx4 %s, v4, %s, s64 offen sc1' % (v(SA+8,4), s(S_WS,4)), 'o')
        a('s_mov_b64 exec, -1')
        vm.wait('m1', 'lgkmcnt(0)'); a('s_barrier')
        vm.wait('x2'); emit(xl(3, [1,2,3]) + ml(3), fl(2, False)); vm.wait('m2', 'lgkmcnt(0)'); a('s_barrier')
        vm.wait('x3'); emit(ml(4) + xl(4, [1,2,3]), fl(3, False)); vm.wait('m3', 'lgkmcnt(0)'); a('s_barrier')
        vm.op('buffer_load_dwordx4 %s, v10, %s, s65 offen sc1' % (v(SA,4), s(S_WS,4)), 'r')
        vm.wait('x4')
        a('v_lshlrev_b32 v11, 7, v0\nv_add_u32 v11, 0x%x, v11\nv_add_u32 v13, 8192, v11\nv_add_u32 v14, 16384, v11' % SFLAG)
        a('s_cmp_eq_u32 s%d, 1\ns_cbranch_scc0 L_dl_np' % WAVE)
        for k in range(3): a('buffer_load_dwordx2 %s, v%d, %s, 0 offen sc1' % (v(SA+4+2*k,2), (11,13,14)[k], s(S_WS,4)))
        a.label('L_dl_np')
        emit([], fl(4, False))
        a('s_waitcnt lgkmcnt(0)\ns_barrier')
        a('s_waitcnt vmcnt(0)')
        a('s_cmp_eq_u32 s%d, 1\ns_cbranch_scc0 L_dl_nq' % WAVE)
        self.spin3('L_dl_sp', (11,13,14), SA+4, True)
        a.label('L_dl_nq')
        a('s_mov_b32 s53, 0')
        a.label('L_dl_rs')
        a('v_cmp_ne_u64 vcc, s[12:13], %s' % v(SA+2,2))
        a('s_cbranch_vccz L_dl_rx\ns_add_u32 s53, s53, 1\ns_cmp_gt_u32 s53, 0x%x\ns_cbranch_scc1 L_dl_rx\ns_sleep 2' % SPIN_MAX)
        a('buffer_load_dwordx4 %s, v10, %s, s65 offen sc1\ns_waitcnt vmcnt(0)\ns_branch L_dl_rs' % (v(SA,4), s(S_WS,4)))
        a.label('L_dl_rx')
        a('v_rsq_f32 v%d, v%d\ns_nop 0\nds_write_b32 v3, v%d' % (SA, SA+1, SA))
        a('s_lshl_b32 s58, s%d, 3\nv_lshrrev_b32 v7, 5, v0\nv_add_u32 v7, s58, v7\nv_and_b32 v6, 31, v0\nv_lshlrev_b32 v6, 4, v6' % WAVE)
        a('v_mul_u32_u24 v5, %d, v7\nv_add_u32 v5, v5, v6\nv_mul_u32_u24 v8, %d, v7\nv_add_u32 v8, v8, v6' % (LROW, GROW))
        a('s_lshr_b32 s59, s%d, 1\ns_mul_i32 s57, s59, %d\ns_lshl_b32 s59, s%d, 10\ns_add_u32 s57, s57, s59' % (DID, GBLK, HH))
        for k in range(4): a('s_add_u32 s%d, s57, 0x%x' % (60+k, G16 + 2*k*GROW))
        a('s_lshl_b32 s59, s%d, 3\ns_add_u32 s58, s59, 0x%x\nv_lshl_add_u32 v6, v0, 9, s58' % (DID, DFLAG))
        a('v_cmp_gt_u32 vcc, 32, v0\nv_mov_b32 v7, 0x%x\ns_add_u32 s59, s59, 0x%x\nv_cndmask_b32 v6, v7, v6, vcc\nv_mov_b32 v7, s59' % (OOB, SFLAG))
        vm = VM(a)
        self.p2_coords(); self.ov_setup()
        a('v_lshlrev_b32 v2, 4, v0')
        def dma_step(first, k, lim, tag):
            a('s_add_u32 s64, s%d, %d\ns_cmp_lt_u32 s64, %d\ns_cbranch_scc0 L_ds_%s%d' % (WAVE, first + 4*k, lim, tag, k))
            a('s_cmp_ge_u32 s64, 14\ns_cselect_b32 s65, 51200, 0\ns_cselect_b32 s66, 14, 0\ns_sub_u32 s66, s64, s66\ns_mul_i32 s64, s64, 5120\ns_add_u32 s65, s65, s64')
            a('s_cmp_le_u32 s76, s66\ns_cselect_b32 s66, s75, s77\ns_add_u32 s65, s65, s66')
            for n in range(5):
                if n in (0, 4): a('s_add_u32 m0, s64, %d\ns_add_u32 s78, s65, %d' % (n*1024, n*1024))
                a('buffer_load_dwordx4 v2, %s, s78 offen offset:%d %s lds' % (s(S_WS,4), (n&3)*1024, self.bf))
            a.label('L_ds_%s%d' % (tag, k))
        a('s_waitcnt lgkmcnt(0)\ns_barrier')
        self.stamp(9)
        DE = self.val.get('de', '3')
        plan = {'0': [[], [], []], '1': [['o0','o1','o2'], ['e0','e1'], ['e2','e3','e4','o3','o4']], '2': [['o0','o1'], ['e0'], ['e1','e2']], '3': [['o0','o1'], [], []], '4': [['o0'], ['o1'], []]}[DE]
        done = set()
        def run(items):
            for it in items:
                done.add(it)
                if it[0] == 'o': self.ov_load(vm, int(it[1]), 2)
                else: dma_step(10, int(it[1]), 28, 'e')
        run(plan[0])
        for et in range(3):
            a('s_barrier')
            if et == 0: a('s_cmp_eq_u32 s%d, 0\ns_cbranch_scc0 L_dl_sk' % HH)
            for k in range(4): a('ds_read_b128 %s, v5 offset:%d' % (v(16+16*et+4*k,4), 2*k*LROW + et*512))
            for k in range(4):
                a('s_waitcnt lgkmcnt(%d)' % (3-k))
                a('buffer_store_dwordx4 %s, v8, %s, s%d offen offset:%d sc1' % (v(16+16*et+4*k,4), s(S_WS,4), 60+k, et*512))
            if et == 0: a.label('L_dl_sk')
            if et < 2: run(plan[et+1])
        a('s_waitcnt vmcnt(0)\ns_setprio 0\ns_barrier')
        self.stamp(4)
        a('s_cmp_eq_u32 s%d, 0\ns_cbranch_scc0 L_dl_nf2' % WAVE)
        self.setflag(6, 12, '-1')
        a.label('L_dl_nf2')
        self.stamp(3)
        for k in range(3): dma_step(0, k, 10, 'l')
        run([it for it in ['e0','e1','e2','e3','e4','o0','o1','o2','o3','o4'] if it not in done])
        self.stamp(2)
        a('s_branch L_p2_help')

    def dft_consumer(self):
        a = self.a
        ACC = 8
        MP, XP = 104, 152
        NP = 12
        a.label('L_dft_cons')
        a('s_sub_u32 s56, s%d, 4' % WAVE)
        a('s_setprio 1')
        a('v_and_b32 v208, 31, v0\nv_lshrrev_b32 v209, 5, v0\nv_bfe_u32 v210, v0, 1, 3\nv_xor_b32 v210, v210, v209')
        a('v_lshlrev_b32 v210, 4, v210\nv_lshl_add_u32 v210, v208, 7, v210')
        AM = [[211+4*k+u for u in range(4)] for k in range(3)]; AX = [2, 3, 4, 5]
        a('s_lshl_b32 s57, s56, 12\ns_add_u32 s57, s57, %d' % self.XFB)
        for u in range(4):
            a('v_xor_b32 v6, %d, v210' % (32*u))
            a('v_add_u32 v%d, s57, v6' % AX[u])
            for k in range(3): a('v_add_u32 v%d, %d, v6' % (AM[k][u], self.MB + 2*k*self.MSLOT))
        a('v_lshlrev_b32 v7, 2, v209\ns_mov_b32 s62, 0x3d000000')
        for k in range(16):
            r = 224 + k
            a('v_add_u32 v%d, %d, v7\nv_mul_u32_u24 v%d, v%d, v208\nv_and_b32 v%d, 31, v%d\nv_cvt_f32_u32 v%d, v%d\nv_mul_f32 v%d, s62, v%d' % (r, 8*(k>>2)+(k&3), r, r, r, r, r, r, r, r))
        if 'pf' in self.opt: a('s_waitcnt vmcnt(0)')
        for k in range(16):
            a('v_sin_f32 v%d, v%d\nv_cos_f32 v%d, v%d' % (240+k, 224+k, 224+k, 224+k))
        if 'dxt' in self.opt:
            a('s_lshl_b32 s57, s55, 1\ns_add_u32 s57, s57, s%d\ns_lshl_b32 s57, s57, 9\ns_lshl_b32 s58, s54, 2\ns_add_u32 s57, s57, s58\ns_add_u32 s57, s57, s56\ns_mul_i32 s57, s57, 1280' % HH)
            a('v_and_b32 v6, 7, v0\nv_mul_u32_u24 v6, 81920, v6\nv_lshrrev_b32 v162, 3, v0\nv_lshrrev_b32 v163, 2, v162\nv_add_u32 v162, v162, v163\nv_lshl_add_u32 v6, v162, 7, v6')
            a('buffer_load_dword v223, v6, %s, s57 offen offset:128' % s(S_X,4))
        a('s_lshl_b32 s57, s56, 7\ns_add_u32 s57, s57, %d' % self.DMISC)
        a('v_lshl_add_u32 v160, v209, 4, s57')
        a('v_mul_u32_u24 v161, %d, v208\nv_lshl_add_u32 v161, v209, 6, v161' % LROW)
        a('v_lshrrev_b32 v6, 3, v208\nv_add_u32 v6, s56, v6\nv_and_b32 v6, 3, v6\nv_lshl_add_u32 v161, v6, 2, v161')
        self.nonce()
        def accr(m): return ACC + 32*(m%3) + 16*(m//3)
        rd = []; need = []
        for c in range(5):
            for u in range(4):
                rd.append('ds_read_b128 %s, v%d offset:%d' % (v(XP+4*(u&1),4), AX[u], (c&1)*self.XFS))
                for m in range(6):
                    rd.append('ds_read_b128 %s, v%d offset:%d' % (v(MP+4*((6*u+m)%NP),4), AM[c>>1][u], (c&1)*self.MSLOT + m*4096))
                    need.append(len(rd)-1)
        RR = 168
        rr_reads = ['ds_read_b128 %s, v160 offset:%d' % (v(RR+4*k,4), 32*k) for k in range(4)]
        LA = 5
        a('s_barrier')
        self.stamp(1)
        for r in rd[:7]: a(r)
        issued = 7; done = 0
        a.align(3)
        for g in range(120):
            c, mu = divmod(g, 24); u, m = divmod(mu, 6)
            if mu == 21:
                a('s_waitcnt lgkmcnt(0)\ns_barrier'); done = issued
                self.stamp(5+c)
                if c < 4:
                    for _ in range(7): a(rd[issued]); issued += 1
                else:
                    for r in rr_reads: a(r)
            elif need[g] >= done:
                a('s_waitcnt lgkmcnt(%d)' % (issued - need[g] - 1)); done = need[g] + 1
            a('v_mfma_f32_32x32x16_bf16 %s, %s, %s, %s' % (v(accr(m),16), v(XP+4*(u&1),4), v(MP+4*(mu%NP),4), v(accr(m),16) if g >= 6 else '0'))
            if mu < 21:
                tgt = min(28*(c+1), need[g+1] + LA + 1)
                while issued < tgt: a(rd[issued]); issued += 1
        self.stamp(2)
        a.label('L_dc_epi')
        CC, SS, NS = 184, 192, 200
        a('s_waitcnt lgkmcnt(0)')
        for k in range(8):
            a('v_pk_mul_f32 %s, %s, %s' % (v(224+2*k,2), v(224+2*k,2), v(RR+2*k,2)))
            a('v_pk_mul_f32 %s, %s, %s' % (v(240+2*k,2), v(240+2*k,2), v(RR+2*k,2)))
        for k in range(8):
            a('v_cvt_pk_bf16_f32 v%d, v%d, v%d' % (CC+k, 224+2*k, 225+2*k))
            a('v_cvt_pk_bf16_f32 v%d, v%d, v%d' % (SS+k, 240+2*k, 241+2*k))
            a('v_xor_b32 v%d, 0x80008000, v%d' % (NS+k, SS+k))
        def zc(et):
            A0 = ACC + 32*et; Z = 104 + 16*et; o = []
            for k in range(8):
                o.append('v_cvt_pk_bf16_f32 v%d, v%d, v%d' % (Z+k, A0+2*k, A0+2*k+1))
                o.append('v_cvt_pk_bf16_f32 v%d, v%d, v%d' % (Z+8+k, A0+16+2*k, A0+16+2*k+1))
            return o
        for l in zc(0): a(l)
        a('s_nop 1')
        for et in range(3):
            A0 = ACC + 32*et; Z = 104 + 16*et
            RE, IM = A0, A0+16
            ms = [(RE,Z,CC,0),(IM,Z+8,CC,0),(RE,Z+4,CC+4,1),(IM,Z+12,CC+4,1),(RE,Z+8,SS,1),(IM,Z,NS,1),(RE,Z+12,SS+4,1),(IM,Z+4,NS+4,1)]
            fill = (zc(et+1) if et < 2 else ['s_nop 3']) + (self._dft_out(ACC + 32*(et-1), et-1) if et > 0 else [])
            per = -(-len(fill)//8)
            for i, (D, A_, B_, ac) in enumerate(ms):
                a('v_mfma_f32_32x32x16_bf16 %s, %s, %s, %s' % (v(D,16), v(A_,4), v(B_,4), v(D,16) if ac else '0'))
                for f in fill[per*i:per*i+per]: a(f)
            if et > 0: a('s_waitcnt lgkmcnt(0)\ns_barrier')
        a.nop(12)
        for f in self._dft_out(ACC + 64, 2): a(f)
        a('s_waitcnt lgkmcnt(0)\ns_barrier')
        a('s_setprio 0')
        self.stamp(3)
        a('s_barrier')
        a('s_branch L_p2_mfma')
        a.label('L_dc_end')

    def _dft_out(self, A0, et):
        o = []
        for r in range(16):
            o.append('v_cvt_pk_bf16_f32 v%d, v%d, v%d' % (A0+r, A0+r, A0+16+r))
            o.append('ds_write_b32 v161, v%d offset:%d' % (A0+r, (32*et + 8*(r>>2) + (r&3))*16))
        return o

    TW, GV, XV = 232, 248, 228
    def p2_prep(self):
        a = self.a; TW, GV, XV = self.TW, self.GV, self.XV
        J, G_, A, B, C, D = 217, 218, 219, 220, 221, 222
        TM = 223
        a('s_and_b32 s41, s%d, 1\ns_lshr_b32 s42, s%d, 1' % (WAVE, WAVE))
        a('s_lshl_b32 s38, s%d, 9\ns_add_u32 s38, s38, 0x%x' % (T1, DFLAG))
        a('s_lshl_b32 s43, s41, 1\ns_add_u32 s44, s43, s42\ns_sub_u32 s43, s43, s42\ns_add_u32 s43, s43, 1')
        a('v_and_b32 v%d, 15, v0\nv_lshrrev_b32 v%d, 4, v0' % (J, G_))
        a('s_lshl_b32 s39, s44, 9\ns_add_u32 s39, s39, s%d\ns_mul_i32 s39, s39, 1280\ns_mul_i32 s53, s%d, 160\ns_add_u32 s39, s39, s53' % (T1, CS))
        a('s_mul_i32 s40, s%d, 3072\ns_add_u32 s40, s40, %d' % (WAVE, self.MISC + 4096))
        for m in range(3):
            a('v_add_u32 v%d, %d, v0\nv_min_u32 v%d, 159, v%d\nv_mul_u32_u24 v%d, 205, v%d\nv_lshrrev_b32 v%d, 11, v%d' % (A, 64*m, A, A, B, A, B, B))
            a('v_mul_u32_u24 v%d, %d, v%d\nv_lshl_add_u32 v%d, v%d, 4, v%d' % (B, 40960-160, B, XV+m, A, B))
        a('v_mul_u32_u24 v%d, 160, v%d\nv_lshl_add_u32 v%d, v%d, 3, v%d\nv_add_u32 v%d, s40, v%d' % (A, J, A, G_, A, XV+3, A))
        a('s_lshr_b32 s45, s%d, 2\ns_lshl_b32 s47, s45, 31\ns_or_b32 s47, s47, 0x3a000000' % CS)
        a('s_mul_i32 s46, s45, 640\ns_lshl_b32 s45, s45, 1\ns_sub_u32 s45, 1, s45')
        a('s_mul_i32 s53, s%d, 80' % CS)
        a('v_mul_u32_u24 v%d, %d, v%d' % (D, 2*GBLK, G_))
        for n in range(5):
            a('v_add_u32 v%d, s53, v%d\nv_add_u32 v%d, %d, v%d' % (A, J, A, 16*n, A))
            a('v_mul_lo_u32 v%d, v%d, s45\nv_add_u32 v%d, s46, v%d' % (A, A, A, A))
            a('v_and_b32 v%d, 1, v%d\nv_mul_u32_u24 v%d, %d, v%d\nv_add_u32 v%d, v%d, v%d' % (B, A, B, GBLK, B, B, B, D))
            a('v_lshrrev_b32 v%d, 1, v%d\nv_cmp_eq_u32 vcc, 160, v%d\ns_nop 1\nv_cndmask_b32 v%d, v%d, 0, vcc' % (C, A, C, C, C))
            a('v_lshl_add_u32 v%d, v%d, 4, v%d' % (GV+n, C, B))
            if n == 0:
                a('v_cmp_eq_u32 vcc, 0, v%d\nv_mov_b32 v%d, 0x%x\ns_nop 0\nv_cndmask_b32 v%d, v%d, v%d, vcc' % (A, C, OOB, GV, GV, C))
        a('s_mul_i32 s45, s45, s%d\ns_and_b32 s45, s45, 31' % T1)
        a('s_mul_i32 s36, s45, %d\ns_mul_i32 s37, s42, %d\ns_add_u32 s36, s36, s37\ns_add_u32 s36, s36, 0x%x\ns_add_u32 s37, s36, %d' % (GROW, 16*GBLK, G16, 8*GBLK))
        a('s_lshr_b32 s45, s45, 3')
        for t in range(2):
            a('s_lshl_b32 s53, s%d, 9\ns_add_u32 s53, s53, s%d\nv_lshl_add_u32 v%d, v%d, 5, s53' % (44 - t, T1, A+t, J))
        for i in range(4):
            a('s_sub_u32 s53, %d, s45\ns_and_b32 s53, s53, 3\ns_lshl_b32 s46, s42, 5\ns_add_u32 s53, s53, s46' % (i+4))
            a('v_lshl_add_u32 v%d, v%d, 2, s53\nv_add_u32 v%d, 16, v%d' % (C, G_, D, C))
            for t in range(2):
                for d in range(2):
                    r = TM + 2*d
                    a('v_mul_u32_u24 v%d, v%d, v%d' % (r, A+t, C+d))
                    a('v_and_b32 v%d, 2047, v%d\nv_cvt_f32_u32 v%d, v%d\nv_mul_f32 v%d, s47, v%d' % (r, r, r, r, r, r))
                    a('v_sin_f32 v%d, v%d\nv_cos_f32 v%d, v%d' % (r+1, r, r, r))
                a('s_nop 0')
                for d in range(2):
                    a('v_cvt_pk_bf16_f32 v%d, v%d, v%d' % (TW+(t*2+d)*4+i, TM+2*d, TM+2*d+1))

    def p2_help(self):
        a = self.a
        a.label('L_p2_help')
        if self.stage == 'p1':
            a('s_waitcnt vmcnt(0)'); self.dump_stamps(); a('s_endpgm'); return
        ACC, G, TW, OV, GV, XV = 16, 56, self.TW, self.OV, self.GV, self.XV
        def acc(t, n): return ACC + (t*5+n)*4
        a('s_and_b32 s56, s%d, 1\ns_lshr_b32 s57, s%d, 1\nv_lshlrev_b32 v1, 3, v0' % (WAVE, WAVE))
        for m in range(3):
            a('s_add_u32 m0, s40, %d\ns_nop 0\nbuffer_load_dwordx4 v%d, %s, s39 offen lds' % (1024*m, XV+m, s(S_X,4)))
        a('s_mul_i32 s61, s57, 71680\ns_mul_i32 s62, s56, 5120\ns_add_u32 s61, s61, s62\nv_add_u32 v6, s61, v2')
        a('s_mul_i32 s61, s56, 71680\ns_mul_i32 s62, s57, 15360\ns_add_u32 s62, s62, s61\ns_add_u32 s62, s62, 51200\nv_add_u32 v7, s62, v2')
        a('s_mul_i32 s62, s57, 5120\ns_sub_u32 s62, s61, s62\ns_add_u32 s62, s62, 61440\nv_add_u32 v8, s62, v2')
        a('s_waitcnt vmcnt(0)')
        self.stamp(5)
        for n in range(5): a('ds_read_b64 %s, v%d offset:%d' % (v(96+2*n,2), XV+3, 32*n))
        if 'nos' not in self.opt:
            a('s_cmp_ge_u32 s%d, 24\ns_cbranch_scc1 L_p2_sx\nv_mov_b32 v12, %d\ns_mov_b32 s53, 0' % (IDX, self.MISC + 3072))
            a.label('L_p2_sq')
            a('ds_read_b32 v13, v12\ns_add_u32 s53, s53, 1\ns_cmp_gt_u32 s53, 0x%x\ns_cbranch_scc1 L_p2_sx\ns_waitcnt lgkmcnt(0)' % SPIN_MAX)
            a('v_cmp_ne_u32 vcc, 4, v13\ns_cbranch_vccz L_p2_sx\ns_sleep 1\ns_branch L_p2_sq')
            a.label('L_p2_sx')
        self.spin('L_p2_pd', 1, 254, 's38', 8)
        self.stamp(6)
        for d in range(2):
            for n in range(5):
                a('buffer_load_dwordx4 %s, v%d, %s, s%d offen %s' % (v(G+(d*5+n)*4,4), GV+n, s(S_WS,4), 36+d, self.bf))
        a('s_waitcnt lgkmcnt(0)')
        for n in range(5):
            for k in range(2):
                a('v_lshlrev_b32 v%d, 16, v%d\nv_and_b32 v%d, 0xffff0000, v%d' % (acc(0,n)+2*k, 96+2*n+k, acc(0,n)+2*k+1, 96+2*n+k))
        self.stamp(7)
        a('s_barrier')
        self.stamp(8)
        a('s_waitcnt vmcnt(0)')
        for d in range(2):
            for n in range(5):
                for t in range(2):
                    a('v_mfma_f32_16x16x32_bf16 %s, %s, %s, %s' % (v(acc(t,n),4), v(G+(d*5+n)*4,4), v(TW+(t*2+d)*4,4), v(acc(t,n),4) if (t == 0 or d) else '0'))
        w = ['ds_write_b128 v6, %s offset:%d' % (v(OV+4*g,4), (g//5)*10240 + (g%5)*1024) for g in range(25)]
        w += ['ds_write_b128 v%d, %s offset:%d' % (7+t, v(acc(t,n),4), n*1024) for t in range(2) for n in range(5)]
        for lo, hi in ((0,8),(8,16),(16,24),(24,30),(30,35)):
            a('s_barrier')
            for l in w[lo:hi]: a(l)
            a('s_waitcnt lgkmcnt(0)')
        a('s_barrier')
        a('s_or_b32 s53, s2, s%d\ns_cmp_eq_u32 s53, 0\ns_cbranch_scc0 L_ph_x' % WAVE)
        a('v_mov_b32 v2, 0x%x' % EPOCH)
        self.setflag(2, 4)
        a.label('L_ph_x')
        self.dump_stamps()
        a('s_endpgm')

    def p2_mfma(self):
        a = self.a
        a.label('L_p2_mfma')
        if self.stage == 'p1':
            self.dump_stamps(); a('s_endpgm'); return
        ACC, WB, H = 16, 56, 136
        NH, NWB = 14, 4
        def acc(t, n): return ACC + (t*5+n)*4
        a('s_setprio %s' % self.val.get('mp', '1'))
        a('s_and_b32 s56, s%d, 1\ns_bfe_u32 s57, s%d, 0x10001\nv_lshlrev_b32 v2, 4, v0' % (WAVE, WAVE))
        self.p2_coords()
        a('s_lshl_b32 s58, s56, 1\ns_add_u32 s59, s58, s57\ns_sub_u32 s58, s58, s57\ns_add_u32 s58, s58, 1')
        a('s_lshl_b32 s61, s%d, 2\ns_add_u32 s62, s61, s59\ns_mul_i32 s62, s62, 49152\nv_add_u32 v6, s62, v2' % T1)
        a('s_add_u32 s62, s61, s58\ns_mul_i32 s62, s62, 49152\nv_add_u32 v7, s62, v2')
        a('s_mul_i32 s62, s57, 24\ns_sub_u32 s62, s62, s76\ns_lshl_b32 s62, s62, 10\ns_add_u32 s63, s62, 0x%x\ns_add_u32 s62, s62, 0x%x' % (HF, HF + 24576))
        a('s_mul_i32 s61, s57, 71680\nv_add_u32 v3, s61, v2\nv_add_u32 v4, 0xc800, v3')
        a('s_lshl_b32 s60, s59, 9\ns_add_u32 s60, s60, s%d\ns_mul_i32 s60, s60, 1280\ns_mul_i32 s61, s%d, 160\ns_add_u32 s60, s60, s61' % (T1, CS))
        a('s_and_b32 s74, s%d, 3\ns_xor_b32 s73, s74, 2\ns_mul_i32 s73, s73, 5120\ns_add_u32 s73, s73, 143360' % WAVE)
        a('s_mul_i32 s74, s74, 5120\ns_add_u32 s74, s74, 143360')
        for m in range(3):
            a('v_add_u32 v8, %d, v0\nv_mul_u32_u24 v9, 205, v8\nv_lshrrev_b32 v9, 11, v9' % (64*m))
            a('v_mul_u32_u24 v%d, 10, v9\nv_sub_u32 v8, v8, v%d\nv_lshlrev_b32 v8, 4, v8' % (10+m, 10+m))
            a('v_mul_u32_u24 v%d, 40960, v9\nv_add_u32 v%d, v%d, v8' % (10+m, 10+m, 10+m))
            a('v_mul_u32_u24 v9, 176, v9\nv_add3_u32 v%d, v9, v8, s74' % (13+m))
        a('v_cmp_gt_u32 vcc, 32, v0\nv_mov_b32 v8, 0x%x\ns_nop 0\nv_cndmask_b32 v12, v8, v12, vcc' % OOB)
        a('v_and_b32 v8, 15, v0\nv_mul_u32_u24 v8, 176, v8\nv_lshrrev_b32 v9, 4, v0\nv_lshl_add_u32 v8, v9, 3, v8\nv_add_u32 v8, s74, v8')
        a('v_add_u32 v9, s73, v2\nv_add_u32 v5, s74, v2')
        a('s_mul_i32 s61, s56, 71680\ns_mul_i32 s53, s57, 10240\ns_add_u32 s61, s61, s53\ns_add_u32 s61, s61, 51200\nv_add_u32 v1, s61, v2')
        a('s_cmp_eq_u32 s%d, 4\ns_cbranch_scc0 L_p2_nf' % WAVE)
        hf = self.val.get('hf', 'p')
        a('s_lshr_b32 s61, s%d, 1\ns_lshl_b32 s61, s61, %d\ns_add_u32 s61, s61, 0x%x' % (T1, {'p': 9, 'w': 11, 'l': 13}[hf], 0 if hf == 'p' else 0xa0000))
        a('v_min_u32 v250, 47, v0')
        if hf == 'w': a('v_and_b32 v251, 3, v250\nv_lshrrev_b32 v250, 2, v250\nv_lshlrev_b32 v250, 7, v250\nv_lshl_add_u32 v250, v251, 3, v250')
        else: a('v_lshlrev_b32 v250, %d, v250' % (3 if hf == 'p' else 7))
        self.spin('L_p2_pf', 250, 254, 's61', int(self.val.get('hs', 1)))
        a.label('L_p2_nf')
        a('s_barrier')
        self.stamp(8)
        vm = VM(a)
        def hload(j):
            a('s_cmp_le_u32 s76, %d\ns_cselect_b32 s61, s63, s62\ns_add_u32 s61, s61, %d' % (j, j*1024))
            for t in range(2):
                vm.op('buffer_load_dwordx4 %s, v%d, %s, s61 offen %s' % (v(H+(j%NH)*8+4*t,4), 6+t, s(S_WS,4), self.bf), j)
        def wread(j):
            sl = j if j < 14 else j - 14
            return ['ds_read_b128 %s, v%d offset:%d' % (v(WB+(j%NWB)*20+4*n,4), 3 if sl < 10 else 4, (sl if sl < 10 else sl-10)*5120 + n*1024) for n in range(5)]
        PRE = int(self.val.get('hpre', self.h_pre))
        for j in range(PRE): hload(j)
        for j in range(2):
            for r in wread(j): a(r)
        nxt = PRE
        for j in range(24):
            vm.wait(j, 'lgkmcnt(%d)' % (5 if j < 23 else 0))
            if j in (0, 4, 9, 17): self.stamp({0: 9, 4: 10, 9: 11, 17: 12}[j])
            if j in (3, 7, 11, 15, 19): a('s_barrier')
            rd = wread(j+2) if j < 22 else []
            k = 0
            for n in range(5):
                for t in range(2):
                    a('v_mfma_f32_16x16x32_bf16 %s, %s, %s, %s' % (v(acc(t,n),4), v(WB+(j%NWB)*20+4*n,4), v(H+(j%NH)*8+4*t,4), v(acc(t,n),4) if j else '0'))
                    if k < len(rd): a(rd[k]); k += 1
                    elif k in (5, 7) and nxt < 24 and nxt < j + NH and (k == 5 or nxt <= j + NH - 2):
                        hload(nxt); nxt += 1; k += 1
                    else: k += 1
        assert nxt == 24
        self.stamp(13)
        a.nop(7)
        for n in range(5): a('ds_write_b128 v9, %s offset:%d' % (v(acc(1,n),4), n*1024))
        a('s_waitcnt lgkmcnt(0)\ns_barrier')
        for n in range(5):
            a('ds_read_b128 %s, v1 offset:%d' % (v(WB+12*n,4), n*1024))
            a('ds_read_b128 %s, v1 offset:%d' % (v(WB+12*n+4,4), 5120 + n*1024))
            a('ds_read_b128 %s, v5 offset:%d' % (v(WB+12*n+8,4), n*1024))
        for n in range(5):
            a('s_waitcnt lgkmcnt(%d)' % (12-2*n))
            for k in range(2):
                a('v_pk_add_f32 %s, %s, %s' % (v(WB+12*n+2*k,2), v(WB+12*n+2*k,2), v(WB+12*n+4+2*k,2)))
                a('v_pk_add_f32 %s, %s, %s' % (v(acc(0,n)+2*k,2), v(acc(0,n)+2*k,2), v(WB+12*n+8+2*k,2)))
            for k in range(2): a('v_pk_add_f32 %s, %s, %s' % (v(acc(0,n)+2*k,2), v(acc(0,n)+2*k,2), v(WB+12*n+2*k,2)))
            for k in range(2): a('v_cvt_pk_bf16_f32 v%d, v%d, v%d' % (acc(1,n)+k, acc(0,n)+2*k, acc(0,n)+2*k+1))
            a('ds_write_b64 v8, %s offset:%d' % (v(acc(1,n),2), 32*n))
        a('s_waitcnt lgkmcnt(0)')
        for m in range(3): a('ds_read_b128 %s, v%d' % (v(WB+4*m,4), 13+m))
        for m in range(3):
            a('s_waitcnt lgkmcnt(%d)' % (2-m))
            a('buffer_store_dwordx4 %s, v%d, %s, s60 offen' % (v(WB+4*m,4), 10+m, s(S_OUT,4)))
        if self.stamps: a('s_waitcnt vmcnt(0)')
        self.dump_stamps()

    h_pre = 10

    def build(self, header):
        a = self.a
        self.prologue()
        self.ffn_wloader(); self.ffn_xloader(); self.dft_loader()
        self.dft_consumer(); self.ffn_consumer()
        self.p2_help(); self.p2_mfma()
        a.label('L_end')
        a('s_endpgm')
        errs = check(a.lines)
        for e in errs: print(e, file=sys.stderr)
        txt = header + '; @launch grid=(256,1,1) block=(512,1,1) lds=163840\n'
        txt += '.amdgcn_target "amdgcn-amd-amdhsa--gfx950"\n.text\n.globl %s\n.p2align 8\n.type %s,@function\n%s:\n' % (KN, KN, KN)
        txt += a.text()
        txt += '''.section .rodata,"a"
.p2align 6
.amdhsa_kernel %s
  .amdhsa_next_free_vgpr 256
  .amdhsa_next_free_sgpr 102
  .amdhsa_accum_offset 256
  .amdhsa_group_segment_fixed_size 0
  .amdhsa_kernarg_size 96
  .amdhsa_user_sgpr_count 2
  .amdhsa_user_sgpr_kernarg_segment_ptr 1
  .amdhsa_system_sgpr_workgroup_id_x 1
.end_amdhsa_kernel
''' % KN
        return txt, errs

if __name__ == '__main__':
    import argparse
    ap = argparse.ArgumentParser()
    ap.add_argument('-o', default='k.s'); ap.add_argument('--stage', default='full'); ap.add_argument('--stamps', action='store_true'); ap.add_argument('--opt', default='')
    args = ap.parse_args()
    ref = open('parallel_sum__spectral_fnet__swiglu_ffn__prompt.s.ref').read()
    header = ''.join(l + '\n' for l in ref.split('\n') if l.startswith(';') and '@launch' not in l and 'Override launch' not in l and 'grid=ceil' not in l)
    txt, errs = Gen(args.stage, args.stamps, [o for o in args.opt.split(',') if o]).build(header)
    open(args.o, 'w').write(txt)
    print('written', args.o, 'hazard errors:', len(errs))
```

```python
import sys
from dsl import *

KN = 'parallel_sum__spectral_fnet__swiglu_ffn__prompt_kernel'
HFLAG   = 0x0
EPOCH   = 0x18000
SFLAG   = 0x8000
STATS   = 0x20000
COLSUM  = 0x28000
STAMPS  = 0x60000
DFLAG   = 0x80000
WDF     = 0x100000
G16     = 0x300000
HF      = 0x600000
WS_SIZE = 0xC00000
LROW = 97*16
GROW = 160*16
GBLK = 32*GROW
SPIN_MAX = 0x10000
OOB = 0x7ffffff0

S_X, S_WS, S_OUT, S_A = 4, 8, 16, 20
NONCE = 12
P_X, P_HRE, P_HIM, P_WG, P_WU, P_WD, P_OUT, P_DBG, P_WS = 28, 32, 34, 36, 38, 40, 42, 44, 46
WAVE, XCD, IDX = 48, 49, 50
T1, CS = 51, 52
HH, DID = 14, 15

class VM:
    def __init__(self, a): self.a = a; self.q = []
    def op(self, txt, tag): self.a(txt); self.q.append(tag)
    def wait(self, tag, extra=''):
        idx = max([i for i, t in enumerate(self.q) if t == tag], default=-1)
        if idx < 0:
            if extra: self.a('s_waitcnt ' + extra)
            return
        n = len(self.q) - idx - 1
        assert n <= 63
        self.a('s_waitcnt vmcnt(%d) %s' % (n, extra))
        self.q = self.q[idx+1:]
    def drained(self): self.q = []

class Gen:
    def __init__(self, stage='full', stamps=False, opt=()):
        self.a = Asm(); self.stage = stage; self.stamps = stamps; self.opt = set(o.split('=')[0] for o in opt); self.val = dict(o.split('=') for o in opt if '=' in o)
        self.bf = '' if 'plain' in self.opt else 'sc1'
        if 'ph8' not in self.opt:
            self.opt |= ({'ph2', 'pfw', 'nowd'} if 'pf' in self.opt else {'ph2', 'ft', 'nowd'})
            for k, d in (('fb','3'),('pf0','2')): self.val.setdefault(k, d)

    def srd(self, dst, ptr, size):
        a = self.a
        a('s_mov_b32 %s, %s' % (s(dst), s(ptr)))
        a('s_mov_b32 %s, %s' % (s(dst+1), s(ptr+1)))
        a('s_mov_b32 %s, 0x%x' % (s(dst+2), size))
        a('s_mov_b32 %s, 0x20000' % s(dst+3))

    def stamp(self, k):
        if self.stamps:
            self.a('%s s[98:99]\ns_waitcnt lgkmcnt(0)\ns_mov_b32 s%d, s98' % ('s_memtime' if 'cyc' in self.opt else 's_memrealtime', 80+k))

    def dump_stamps(self):
        if not self.stamps: return
        a = self.a
        a('s_memtime s[96:97]\ns_waitcnt lgkmcnt(0)\ns_sub_u32 s95, s96, s95')
        a('s_lshl_b32 s96, s2, 3\ns_add_u32 s96, s96, s%d\ns_lshl_b32 s96, s96, 6\ns_add_u32 s96, s96, 0x%x' % (WAVE, STAMPS))
        self.stamp(14)
        if 'probe' in self.opt:
            self.nprobe = getattr(self, 'nprobe', 0) + 1
            k = int(self.val['probe']); L = 'L_pr%d' % self.nprobe
            a('s_cmp_eq_u32 s2, %s\ns_cbranch_scc0 %s_x\ns_cmp_eq_u32 s%d, %s\ns_cbranch_scc0 %s_x' % (self.val.get('pwg', '0'), L, WAVE, self.val.get('pwave', '4'), L))
            a('s_sub_u32 s60, s%d, s80\ns_mul_i32 s60, s60, 10\ns_add_u32 s60, s60, 6000' % (80+k))
            a.label(L)
            a('s_memrealtime s[98:99]\ns_waitcnt lgkmcnt(0)\ns_sub_u32 s61, s98, s80\ns_cmp_lt_u32 s61, s60\ns_cbranch_scc1 %s' % L)
            a.label(L + '_x')
        for k in range(16): a('v_mov_b32 v%d, s%d' % (100+k, 80+k))
        a('v_mov_b32 v99, s96')
        a('s_mov_b64 exec, 1')
        for k in range(4): a('buffer_store_dwordx4 v[%d:%d], v99, %s, 0 offen offset:%d' % (100+4*k, 103+4*k, s(S_WS,4), 16*k))
        a('s_waitcnt vmcnt(0)')

    def nonce(self):
        self.a('s_waitcnt lgkmcnt(0)\ns_add_u32 s12, s12, 1\ns_add_u32 s13, s13, 1')

    def spin(self, lbl, va, vd, soff, sleep, first_done=False):
        a = self.a
        a('s_mov_b32 s53, 0')
        if first_done: a('s_branch %s_c' % lbl)
        a.label(lbl)
        a('buffer_load_dwordx2 %s, v%d, %s, %s offen sc1' % (v(vd,2), va, s(S_WS,4), soff))
        a('s_add_u32 s53, s53, 1\ns_cmp_gt_u32 s53, 0x%x\ns_cbranch_scc1 %s_x' % (SPIN_MAX, lbl))
        a('s_waitcnt vmcnt(0)')
        a.label(lbl + '_c')
        a('v_cmp_ne_u64 vcc, s[12:13], %s' % v(vd,2))
        a('s_cbranch_vccz %s_x\ns_sleep %d\ns_branch %s' % (lbl, sleep, lbl))
        a.label(lbl + '_x')

    def spin3(self, lbl, va, vd, first_done=False):
        a = self.a
        a('s_mov_b32 s53, 0')
        if first_done: a('s_branch %s_c' % lbl)
        a.label(lbl)
        for k in range(3): a('buffer_load_dwordx2 %s, v%d, %s, 0 offen sc1' % (v(vd+2*k,2), va[k], s(S_WS,4)))
        a('s_add_u32 s53, s53, 1\ns_cmp_gt_u32 s53, 0x%x\ns_cbranch_scc1 %s_x' % (SPIN_MAX, lbl))
        a('s_waitcnt vmcnt(0)')
        a.label(lbl + '_c')
        a('v_cmp_ne_u64 vcc, s[12:13], %s\nv_cmp_ne_u64 s[68:69], s[12:13], %s\ns_nop 0\ns_or_b64 vcc, vcc, s[68:69]' % (v(vd,2), v(vd+2,2)))
        a('v_cmp_ne_u64 s[68:69], s[12:13], %s\ns_nop 0\ns_or_b64 vcc, vcc, s[68:69]' % v(vd+4,2))
        a('s_cbranch_vccz %s_x\ns_sleep 8\ns_branch %s' % (lbl, lbl))
        a.label(lbl + '_x')

    def setflag(self, va, vd, mask='1'):
        a = self.a
        a('v_mov_b32 v%d, s12\nv_mov_b32 v%d, s13' % (vd, vd+1))
        a('s_mov_b64 exec, %s' % mask)
        a('buffer_store_dwordx2 %s, v%d, %s, 0 offen sc1' % (v(vd,2), va, s(S_WS,4)))
        a('s_mov_b64 exec, -1')

    def prologue(self):
        a = self.a
        if 'early0' in self.opt: a('s_memrealtime s[100:101]')
        a('s_load_dwordx2 s[28:29], s[0:1], 0')
        a('s_load_dwordx4 s[36:39], s[0:1], 48')
        a('s_load_dwordx8 s[40:47], s[0:1], 64')
        a('s_load_dwordx4 s[32:35], s[0:1], 24')
        a('s_cmp_ge_u32 s2, 256\ns_cbranch_scc1 L_end')
        a('v_lshrrev_b32 v1, 6, v0\nv_and_b32 v0, 63, v0')
        a('v_readfirstlane_b32 s%d, v1' % WAVE)
        a('s_and_b32 s%d, s2, 7\ns_lshr_b32 s%d, s2, 3' % (XCD, IDX))
        if self.stamps:
            for k in range(16): a('s_mov_b32 s%d, 0' % (80+k))
            a('s_memtime s[96:97]\ns_waitcnt lgkmcnt(0)\ns_mov_b32 s95, s96')
        a('s_cmp_lt_u32 s%d, 4\ns_cbranch_scc1 L_nopf\ns_cmp_ge_u32 s%d, 24\ns_cbranch_scc1 L_nopf' % (WAVE, IDX))
        a('s_getpc_b64 s[54:55]')
        a.label('L_pc')
        a('s_sub_u32 s53, s%d, 4\ns_lshl_b32 s53, s53, 13' % WAVE)
        a('v_lshl_add_u32 v2, v0, 7, s53')
        a('v_add_u32 v3, 0x8000, v2')
        a('v_min_u32 v2, L_end-L_pc, v2\nv_min_u32 v3, L_end-L_pc, v3')
        a('global_load_dword v255, v2, s[54:55]\nglobal_load_dword v255, v3, s[54:55]')
        a.label('L_nopf')
        a('s_mul_i32 s54, s%d, 43\ns_lshr_b32 s54, s54, 7' % IDX)
        a('s_mul_i32 s55, s54, 3\ns_sub_u32 s55, s%d, s55' % IDX)
        a('s_and_b32 s56, s%d, 1\ns_lshl_b32 s56, s56, 3\ns_add_u32 s54, s54, s56' % XCD)
        a('s_lshr_b32 s56, s%d, 1\ns_mul_i32 s56, s56, 3\ns_add_u32 s55, s55, s56' % XCD)
        if 'map48' in self.opt:
            a('s_lshr_b32 s%d, s%d, 3\ns_lshl_b32 s53, s%d, 2\ns_add_u32 s%d, s%d, s53\ns_and_b32 s%d, s%d, 7' % (T1, IDX, XCD, T1, T1, CS, IDX))
        else:
            a('s_lshr_b32 s%d, s%d, 2\ns_lshr_b32 s53, s%d, 1\ns_lshl_b32 s53, s53, 3\ns_add_u32 s%d, s%d, s53' % (T1, IDX, XCD, T1, T1))
            a('s_and_b32 s%d, s%d, 3\ns_and_b32 s53, s%d, 1\ns_lshl_b32 s53, s53, 2\ns_add_u32 s%d, s%d, s53' % (CS, IDX, XCD, CS, CS))
        a('s_mov_b32 s%d, 0x%x\ns_mov_b32 s%d, 0x20000' % (S_X+2, 2048*640*2, S_X+3))
        a('s_mov_b32 s%d, 0x%x\ns_mov_b32 s%d, 0x20000' % (S_WS+2, WS_SIZE, S_WS+3))
        a('s_mov_b32 s%d, 0x%x\ns_mov_b32 s%d, 0x20000' % (S_OUT+2, 2048*640*2, S_OUT+3))
        a('s_mov_b32 s%d, 0x20000' % (S_A+3))
        a('s_waitcnt lgkmcnt(0)')
        self.stamp(0)
        if 'early0' in self.opt: a('s_mov_b32 s93, s80\ns_mov_b32 s80, s100')
        a('s_load_dwordx2 s[12:13], s[46:47], 0x%x' % EPOCH)
        for d, p in ((S_X, P_X), (S_WS, P_WS), (S_OUT, P_OUT)):
            a('s_mov_b32 s%d, s%d\ns_mov_b32 s%d, s%d' % (d, p, d+1, p+1))
        a('s_cmp_ge_u32 s%d, 24\ns_cbranch_scc1 L_notffn' % IDX)
        a('s_cmp_lt_u32 s%d, 2\ns_cbranch_scc1 L_ffn_wl' % WAVE)
        a('s_cmp_lt_u32 s%d, 4\ns_cbranch_scc1 L_ffn_xl' % WAVE)
        a('s_branch L_ffn_cons')
        a.label('L_notffn')
        if 'ffnonly' in self.opt: a('s_endpgm')
        a('s_and_b32 s54, s%d, 3\ns_lshr_b32 s55, s%d, 2\ns_lshl_b32 s55, s55, 3\ns_add_u32 s54, s54, s55' % (IDX, XCD))
        a('s_and_b32 s55, s%d, 1\ns_lshl_b32 s55, s55, 2\ns_add_u32 s54, s54, s55\ns_bfe_u32 s55, s%d, 0x10001' % (XCD, XCD))
        a('s_bfe_u32 s%d, s%d, 0x10002\ns_lshl_b32 s%d, s54, 1\ns_add_u32 s%d, s%d, s55\ns_lshl_b32 s%d, s%d, 1\ns_add_u32 s%d, s%d, s%d' % (HH, IDX, DID, DID, DID, DID, DID, DID, DID, HH))
        if 'pf' in self.opt: self.prefetch()
        a('s_cmp_lt_u32 s%d, 4\ns_cbranch_scc1 L_dft_ld' % WAVE)
        a('s_branch L_dft_cons')

    WSLOT, NWS = 16384, 6
    XB, XSLOT, NXS = 98304, 16384, 3
    MISC = 147456

    def wvoff(self, dst0, rowbytes, tmp):
        a = self.a
        t = tmp
        a('v_lshrrev_b32 v%d, 3, v0' % t)
        a('v_bfe_u32 v%d, v0, 4, 1' % (t+1))
        a('v_bfe_u32 v%d, v0, 1, 2' % (t+2))
        a('v_xor_b32 v%d, v%d, v%d' % (t+2, t+2, t+1))
        a('v_and_b32 v%d, 1, v0' % (t+1))
        a('v_lshlrev_b32 v%d, 4, v%d' % (t+1, t+1))
        a('v_lshl_add_u32 v%d, v%d, 5, v%d' % (t+2, t+2, t+1))
        a('v_mul_u32_u24 v%d, %d, v%d' % (t, rowbytes, t))
        a('v_add_u32 v%d, v%d, v%d' % (dst0, t, t+2))
        a('v_xor_b32 v%d, 64, v%d' % (t+2, t+2))
        a('v_add_u32 v%d, v%d, v%d' % (dst0+1, t, t+2))
        a('v_add_u32 v%d, %d, v%d' % (dst0+1, 8*rowbytes, dst0+1))
        a('v_add_u32 v%d, %d, v%d' % (dst0+2, 16*rowbytes, dst0))
        a('v_add_u32 v%d, %d, v%d' % (dst0+3, 16*rowbytes, dst0+1))

    def phase(self, dst):
        a = self.a
        a('s_mul_i32 s64, s%d, 43\ns_lshr_b32 s64, s64, 7\ns_mul_i32 s65, s64, 3\ns_sub_u32 s65, s%d, s65' % (IDX, IDX))
        if 'ph0' in self.opt: a('s_mov_b32 s%d, 0' % dst)
        elif 'ph2' not in self.opt and 'ph4' not in self.opt:
            a('s_lshr_b32 s%d, s64, 2\ns_add_u32 s%d, s%d, s64' % (dst, dst, dst))
            a('s_mul_i32 s53, s65, 7\ns_lshr_b32 s53, s53, 1\ns_add_u32 s%d, s%d, s53' % (dst, dst))
            a('s_cmp_ge_u32 s%d, 10\ns_cselect_b32 s53, 10, 0\ns_sub_u32 s%d, s%d, s53' % (dst, dst, dst))
        elif 'ph4' in self.opt:
            a('s_and_b32 s%d, s64, 3\ns_mul_i32 s%d, s%d, 5\ns_lshr_b32 s%d, s%d, 1' % (dst, dst, dst, dst, dst))
        else: a('s_and_b32 s%d, s64, 1\ns_mul_i32 s%d, s%d, 5' % (dst, dst, dst))

    def prefetch(self):
        a = self.a
        a('s_sub_u32 s56, s%d, 24' % IDX)
        a('s_bitcmp0_b32 s%d, 0' % XCD)
        a('s_cselect_b32 s24, s%d, s%d\ns_cselect_b32 s25, s%d, s%d\ns_mov_b32 s26, 0x%x\ns_mov_b32 s27, 0x20000' % (P_WG, P_WU, P_WG+1, P_WU+1, 640*1536*2))
        a('v_min_u32 v1, 47, v0\nv_mul_u32_u24 v2, 43, v1\nv_lshrrev_b32 v2, 8, v2')
        a('v_mul_u32_u24 v3, 6, v2\nv_sub_u32 v1, v1, v3\nv_lshlrev_b32 v1, 7, v1')
        a('v_lshrrev_b32 v3, 2, v2\nv_mul_u32_u24 v3, 320, v3\nv_and_b32 v2, 3, v2\nv_add_u32 v2, v2, v3\nv_mul_u32_u24 v2, 3072, v2\nv_add_u32 v2, v2, v1')
        a('s_lshr_b32 s57, s%d, 1\ns_mul_i32 s58, s57, 768\ns_mul_i32 s59, s56, 12288\ns_add_u32 s58, s58, s59' % XCD)
        a('s_and_b32 s59, s%d, 1\ns_lshl_b32 s59, s59, 4\ns_lshl_b32 s57, s57, 9\ns_add_u32 s57, s57, s59\ns_lshl_b32 s59, s56, 5\ns_add_u32 s57, s57, s59\ns_mul_i32 s57, s57, 1280' % XCD)
        a('v_and_b32 v3, 15, v0\nv_mul_u32_u24 v3, 1280, v3\nv_bfe_u32 v4, v0, 1, 1\nv_mul_u32_u24 v4, 5, v4')
        S0 = int(self.val.get('pf0', 1))
        def slot(sreg):
            a('s_mul_i32 s60, s%d, %d\ns_add_u32 s60, s60, s58' % (sreg, 32*3072))
            a('buffer_load_dword v255, v2, s[24:27], s60 offen')
            if 'pfw' in self.opt: return
            a('s_lshr_b32 s60, s%d, 1\nv_add_u32 v5, s60, v4\nv_lshl_add_u32 v5, v5, 7, v3\ns_and_b32 s60, s%d, 1\ns_mul_i32 s60, s60, %d\ns_add_u32 s60, s60, s57' % (sreg, sreg, 256*1280))
            a('s_mov_b64 exec, 0xffff\nbuffer_load_dword v255, v5, %s, s60 offen\ns_mov_b64 exec, -1' % s(S_X,4))
        a('s_add_u32 s61, s%d, %d' % (WAVE, S0))
        slot(61)
        a('s_add_u32 s61, s61, 8\ns_cmp_lt_u32 s61, 10\ns_cbranch_scc0 L_pf_x')
        slot(61)
        a('s_branch L_pf_e')
        a.label('L_pf_x')
        a('s_cmp_lt_u32 s61, %d\ns_cbranch_scc0 L_pf_e' % (0 if 'pfw' in self.opt else 13))
        a('s_sub_u32 s61, s61, 10\ns_lshl_b32 s61, s61, 2\nv_lshrrev_b32 v5, 4, v0\nv_add_u32 v5, s61, v5\nv_min_u32 v5, 9, v5')
        a('v_and_b32 v6, 1, v5\nv_mul_u32_u24 v6, %d, v6\nv_add_u32 v3, v3, v6\nv_lshrrev_b32 v5, 1, v5\nv_sub_u32 v5, v5, v4\nv_add_u32 v5, 5, v5\nv_lshl_add_u32 v5, v5, 7, v3' % (256*1280))
        a('buffer_load_dword v255, v5, %s, s57 offen' % s(S_X,4))
        a.label('L_pf_e')

    def p2_coords(self):
        a = self.a
        if 'rho' not in self.opt: a('s_mov_b32 s76, 0')
        elif 'rho2' in self.opt:
            a('s_and_b32 s76, s%d, 7\ns_and_b32 s53, s%d, 3\ns_lshl_b32 s53, s53, 1\ns_add_u32 s76, s76, s53\ns_and_b32 s76, s76, 7\ns_mul_i32 s76, s76, 3' % ((CS, T1) if 'map48' in self.opt else (T1, CS)))
        elif 'map48' in self.opt: a('s_and_b32 s76, s%d, 3\ns_mul_i32 s76, s76, 6' % T1)
        else: a('s_and_b32 s76, s%d, 7\ns_mul_i32 s76, s76, 3' % T1)
        a('s_mul_i32 s77, s%d, 245760\ns_mul_i32 s53, s76, 5120\ns_add_u32 s77, s77, s53\ns_add_u32 s77, s77, 0x%x\ns_sub_u32 s75, s77, 122880\ns_sub_u32 s76, 24, s76' % (CS, WDF))

    def wd_dma(self, vm, frags, voff):
        a = self.a; last = None
        for f in frags:
            half, r = divmod(f, 70); j, n = divmod(r, 5)
            if j != last: a('s_cmp_le_u32 s76, %d\ns_cselect_b32 s74, s75, s77' % j); last = j
            a('s_add_u32 m0, %d, 0\ns_add_u32 s78, s74, %d' % (f*1024, half*122880 + j*5120 + n*1024))
            vm.op('buffer_load_dwordx4 v%d, %s, s78 offen %s lds' % (voff, s(S_WS,4), self.bf), 'wd')

    OV = 128
    def ov_setup(self):
        a = self.a
        a('s_lshr_b32 s53, s%d, 1\ns_mul_i32 s72, s53, 122880\ns_and_b32 s53, s%d, 1\ns_sub_i32 s71, s76, s53\ns_mul_i32 s53, s53, 5120\ns_add_u32 s72, s72, s53' % (WAVE, WAVE))
        a('s_add_u32 s73, s72, s75\ns_add_u32 s72, s72, s77')
    def ov_load(self, vm, i, voff):
        a = self.a
        a('s_cmp_le_i32 s71, %d\ns_cselect_b32 s74, s73, s72\ns_add_u32 s74, s74, %d\ns_add_u32 s78, s74, 4096' % (14+2*i, (14+2*i)*5120))
        for n in range(5):
            vm.op('buffer_load_dwordx4 %s, v%d, %s, %s offen offset:%d %s' % (v(self.OV+20*i+4*n,4), voff, s(S_WS,4), 's74' if n < 4 else 's78', (n&3)*1024, self.bf), 'ov')

    def ffn_wloader(self):
        a = self.a; vm = VM(a)
        a.label('L_ffn_wl')
        a('s_cmp_eq_u32 s%d, 0' % WAVE)
        a('s_cselect_b32 s%d, s%d, s%d\ns_cselect_b32 s%d, s%d, s%d' % (S_A, P_WG, P_WU, S_A+1, P_WG+1, P_WU+1))
        a('s_mov_b32 s%d, 0x%x' % (S_A+2, 640*1536*2))
        self.wvoff(4, 3072, 8)
        self.phase(58)
        a('s_lshl_b32 s59, s55, 8\ns_mul_i32 s56, s58, %d\ns_add_u32 s56, s56, s59\ns_add_u32 s59, s59, %d' % (64*3072, 640*3072))
        a('s_lshl_b32 s57, s%d, 13' % WAVE)
        def issue(n):
            for b in range(2):
                for j in range(4):
                    a('s_add_u32 m0, s57, %d' % ((n % self.NWS)*self.WSLOT + b*4096 + j*1024 - b*128))
                    a('s_nop 0')
                    if 'now' not in self.opt: vm.op('buffer_load_dwordx4 v%d, %s, s56 offen offset:%d %s lds' % (4+j, s(S_A,4), b*128, 'nt' if 'ntw' in self.opt else ''), n)
            a('s_add_u32 s56, s56, %d' % (32*3072))
            if n & 1: a('s_cmp_eq_u32 s56, s59\ns_cselect_b32 s60, %d, 0\ns_sub_u32 s56, s56, s60' % (640*3072))
        L0 = int(self.val.get('wl', 2)); L1 = int(self.val.get('wl1', 4)); R0 = int(self.val.get('wr', 6))
        LP = int(self.val.get('wpre', L0))
        sched = {-1: list(range(LP))}; front = LP
        for m in range(20):
            lead = L0 if m < R0 else min(L1, L0 + (m - R0)//2 + 1)
            sched[m] = []
            while front < 20 and front <= m + lead and front <= m + 5: sched[m].append(front); front += 1
        for n in sched[-1]: issue(n)
        self.nonce()
        self.p2_coords(); self.ov_setup()
        a('v_lshlrev_b32 v2, 4, v0')
        self.p2_prep()
        WI = int(self.val.get('wi', 0)); WP = int(self.val.get('wp', 3)); FB = int(self.val.get('fb', 7))
        for m in range(15):
            vm.wait(m)
            if m == 0: self.stamp(1)
            a('s_barrier')
            for n in sched.get(m, []): issue(n)
            if m == WI and 'nowd' not in self.opt:
                for i in range(2):
                    for j in range(4):
                        a('s_add_u32 m0, s67, %d\ns_nop 0' % (i*8192 + j*1024))
                        vm.op('buffer_load_dwordx4 v%d, s[24:27], s%d offen nt lds' % (12+j, 68+i), 'wu')
            if m == WP and 'nowd' not in self.opt:
                vm.wait('wu')
                for i in range(2):
                    for ct in range(4):
                        for q in range(2): a('ds_read_b64_tr_b16 %s, v%d offset:%d' % (v(24+16*i+4*ct+2*q,2), 16+ct, i*8192 + q*2048))
                a('s_waitcnt lgkmcnt(0)')
                for k in range(8): vm.op('buffer_store_dwordx4 %s, v2, %s, s%d offen sc1' % (v(24+4*k,4), s(S_WS,4), 28+k), 'wo')
            for i in self.ov_sched(m): self.ov_load(vm, i, 2)
        a('s_cmp_eq_u32 s%d, 0\ns_cbranch_scc0 L_wl_t1' % WAVE)
        q0 = list(vm.q)
        for w in range(2):
            vm.q = list(q0)
            if w: a.label('L_wl_t1')
            for m in range(15, 21):
                if m < 20: vm.wait(m)
                a('s_barrier')
                for n in sched.get(m, []): issue(n)
                sl = (m-1) % 6
                self.wd_dma(vm, range(16*sl + 8*w, 16*sl + 8*w + 8), 2)
                for i in self.ov_sched(m): self.ov_load(vm, i, 2)
            self.stamp(2)
            a('s_branch L_p2_help')

    def ov_sched(self, m):
        assert int(self.val.get('pw', 12)) + 3 <= (15 if self.val.get('ove', '1') in '012' else 14 if self.val.get('ove') == '5' else 13)
        return {'0': {20: [0,1,2,3,4]}, '1': {19: [0], 20: [1,2,3,4]}, '2': {17: [0], 19: [1], 20: [2,3,4]}, '3': {13: [0], 14: [1], 17: [2], 19: [3], 20: [4]}, '4': {13: [0], 14: [1], 17: [2], 18: [3], 19: [4]}, '5': {14: [0], 17: [1], 19: [2], 20: [3,4]}}[self.val.get('ove', '1')].get(m, [])

    def tw_addr(self, dst):
        a = self.a
        a('v_lshrrev_b32 v%d, 4, v0\nv_lshlrev_b32 v%d, 5, v%d\nv_bfe_u32 v1, v0, 1, 3\nv_add_u32 v%d, v%d, v1' % (dst, dst, dst, dst, dst))
        a('s_lshr_b32 s53, s64, 1\ns_lshl_b32 s53, s53, 3\nv_add_u32 v%d, s53, v%d\nv_mul_u32_u24 v%d, 3072, v%d' % (dst, dst, dst, dst))
        a('v_and_b32 v1, 1, v0\nv_lshl_add_u32 v%d, v1, 7, v%d' % (dst, dst))
    def tx_addr(self, dst, half):
        a = self.a
        a('v_and_b32 v%d, 15, v0\nv_lshlrev_b32 v%d, 5, v%d\nv_lshrrev_b32 v1, 4, v0\nv_lshl_add_u32 v%d, v1, 9, v%d' % (dst, dst, dst, dst, dst))
        a('s_lshl_b32 s53, s54, 1\ns_add_u32 s53, s53, s%d\nv_add_u32 v%d, s53, v%d\nv_mul_u32_u24 v%d, 1280, v%d' % (half, dst, dst, dst, dst))
    def tx_off(self, dst, ph, r):
        a = self.a
        a('s_add_u32 s%d, s%d, s65\ns_add_u32 s%d, s%d, %d\ns_cmp_ge_u32 s%d, 10\ns_cselect_b32 s53, 10, 0\ns_sub_u32 s%d, s%d, s53\ns_lshl_b32 s%d, s%d, 7' % (dst, ph, dst, dst, 3*r, dst, dst, dst, dst, dst))
        if r == 3: a('s_cmp_eq_u32 s65, 0\ns_cselect_b32 s%d, s%d, 0x%x' % (dst, dst, OOB))

    def wtouch(self, unit_sgpr, nlanes, step0, dst):
        a = self.a
        a('s_bitcmp0_b32 s%d, 0' % XCD)
        a('s_cselect_b32 s24, s%d, s%d\ns_cselect_b32 s25, s%d, s%d\ns_mov_b32 s26, 0x%x\ns_mov_b32 s27, 0x20000' % (P_WG, P_WU, P_WG+1, P_WU+1, 640*1536*2))
        a('s_mul_i32 s53, s%d, %d' % (unit_sgpr, nlanes))
        a('v_min_u32 v1, %d, v0\nv_add_u32 v1, s53, v1\nv_mul_u32_u24 v%d, 10923, v1\nv_lshrrev_b32 v%d, 16, v%d' % (nlanes-1, dst-1, dst-1, dst-1))
        a('v_mul_u32_u24 v%d, 2304, v%d\nv_lshl_add_u32 v1, v1, 7, v%d' % (dst-1, dst-1, dst-1))
        a('s_lshr_b32 s53, s%d, 1\ns_mul_i32 s53, s53, 768\ns_add_u32 s53, s53, %d' % (XCD, step0*32*3072))
        return 'buffer_load_dword v%d, v1, s[24:27], s53 offen' % dst

    def xtouch(self, unit_sgpr, rows, c0, c1, dst):
        a = self.a
        n = rows*(c1-c0); assert n <= 64
        mag = (2048 + rows - 1)//rows
        assert all((l*mag) >> 11 == l//rows for l in range(64))
        a('v_min_u32 v1, %d, v0\nv_mul_u32_u24 v%d, %d, v1\nv_lshrrev_b32 v%d, 11, v%d' % (n-1, dst, mag, dst, dst))
        a('v_mul_u32_u24 v%d, %d, v%d\nv_sub_u32 v1, v1, v%d\nv_mul_u32_u24 v1, 1280, v1\nv_lshl_add_u32 v1, v%d, 7, v1' % (dst-1, rows, dst, dst-1, dst))
        a('s_mul_i32 s53, s%d, %d' % (unit_sgpr, rows*1280))
        return 'buffer_load_dword v%d, v1, %s, s53 offen offset:%d' % (dst, s(S_X,4), 128*c0)

    def touch_spec(self, spec, unit_sgpr, nunits, dst):
        kind, rng = spec[0], spec[1:].split('-'); lo, hi = int(rng[0]), int(rng[1])
        if kind == 'W':
            nl = (hi-lo)*8; assert nl <= 64, spec
            return self.wtouch(IDX, nl, lo, dst)
        return self.xtouch(unit_sgpr, -(-2048//nunits), lo, hi, dst)

    def ffn_xloader(self):
        a = self.a; vm = VM(a)
        a.label('L_ffn_xl')
        a('s_sub_u32 s56, s%d, 2' % WAVE)
        a('v_lshrrev_b32 v2, 3, v0\nv_lshrrev_b32 v3, 4, v0')
        a('s_lshl_b32 s57, s56, 2')
        a('v_add_u32 v3, s57, v3\nv_and_b32 v12, 7, v0\nv_xor_b32 v3, v3, v12\nv_lshlrev_b32 v3, 4, v3')
        a('v_mul_u32_u24 v2, 40960, v2\nv_add_u32 v2, v2, v3')
        a('s_lshl_b32 s57, s56, 8\ns_lshl_b32 s58, s54, 1\ns_add_u32 s57, s57, s58\ns_mul_i32 s57, s57, 1280')
        a('v_add_u32 v4, s57, v2')
        for tt in range(1, 8):
            a('v_add_u32 v%d, %d, v4' % (4+tt, ((tt>>2) + 512*(tt&3))*1280))
        a('s_lshl_b32 s57, s56, 10')
        self.phase(58)
        a('s_lshl_b32 s58, s58, 7')
        def issue(c):
            for tt in range(8):
                a('s_add_u32 m0, s57, %d' % (self.XB + (c % self.NXS)*self.XSLOT + tt*2048))
                a('s_nop 0')
                if 'nox' not in self.opt: vm.op('buffer_load_dwordx4 v%d, %s, s58 offen %s lds' % (4+tt, s(S_X,4), 'nt' if 'ntx' in self.opt else ''), c)
            a('s_add_u32 s58, s58, 128\ns_cmp_eq_u32 s58, 1280\ns_cselect_b32 s58, 0, s58')
        a('s_lshr_b32 s59, s58, 7')
        issue(0)
        XP = int(self.val.get('xp', 1))
        if XP == 2: issue(1)
        self.p2_coords(); self.ov_setup()
        a('v_lshlrev_b32 v2, 4, v0')
        self.tw_addr(80); self.tx_addr(81, 56)
        a('s_cmp_eq_u32 s56, 0')
        a('s_cselect_b32 s%d, s%d, s%d\ns_cselect_b32 s%d, s%d, s%d\ns_mov_b32 s%d, 0x%x' % (S_A, P_WG, P_WU, S_A+1, P_WG+1, P_WU+1, S_A+2, 640*1536*2))
        a('s_mul_i32 s66, s59, %d\ns_lshl_b32 s67, s55, 8\ns_add_u32 s66, s66, s67' % (64*3072))
        TB = {}
        for spec in self.val.get('tp', '0').split('+'):
            if spec == '0': continue
            k, m = spec.split('@'); TB.setdefault(int(m), []).append(k)
        def touch(k):
            if k[0] == 'w':
                n0 = int(k[1:])
                a('s_add_u32 s67, s66, %d' % (n0*32*3072))
                if n0 == 8: a('v_and_b32 v1, 31, v0\nv_lshlrev_b32 v1, 2, v1\nds_bpermute_b32 v80, v1, v80\ns_waitcnt lgkmcnt(0)')
                vm.op('buffer_load_dword v255, v80, %s, s67 offen' % s(S_A,4), 't')
            else:
                self.tx_off(67, 59, int(k[1:]))
                vm.op('buffer_load_dword v255, v81, %s, s67 offen' % s(S_X,4), 't')
        self.p2_prep()
        self.nonce()
        a('s_cmp_eq_u32 s56, 0\ns_cbranch_scc0 L_ffn_xl3')
        q0 = list(vm.q)
        PW = int(self.val.get('pw', 12)); PS = int(self.val.get('ps', 15)); PH2 = 'ph2' in self.opt; NP = 2 if PH2 else 8; PC = int(self.val.get('pc', 15 if PH2 else 10)); FB = int(self.val.get('fb', 7))
        for role in (2, 3):
            vm.q = list(q0)
            if role == 2:
                if PH2:
                    a('v_lshrrev_b32 v12, 4, v0\nv_bfe_u32 v13, v0, 2, 2')
                    a('v_lshl_add_u32 v14, v12, 3, v13\nv_lshlrev_b32 v14, 7, v14')
                    a('v_and_b32 v13, 3, v0\nv_lshl_add_u32 v14, v13, 3, v14')
                    a('v_bfe_u32 v13, v0, 3, 1\nv_bfe_u32 v15, v0, 4, 1\nv_lshl_add_u32 v13, v15, 1, v13')
                    a('s_and_b32 s60, s54, 2\nv_xor_b32 v13, s60, v13\nv_lshl_add_u32 v14, v13, 5, v14')
                    a('s_lshr_b32 s60, s54, 2\ns_lshl_b32 s60, s60, 12\nv_add_u32 v16, s60, v14\nv_xor_b32 v17, 32, v16')
                    a('v_add_u32 v18, %d, v16\nv_add_u32 v19, %d, v17' % (3*self.WSLOT, 3*self.WSLOT))
                    for k in range(4): a('v_mov_b32 v%d, 0x3f803f80' % (20+k))
                    for k in range(8): a('v_mov_b32 v%d, 0' % (24+k))
                    a('s_and_b32 s61, s54, 1\ns_mul_i32 s61, s61, 24576\ns_lshr_b32 s62, s54, 3\ns_mul_i32 s62, s62, 12288\ns_add_u32 s61, s61, s62')
                    a('s_lshl_b32 s62, s55, 10\ns_add_u32 s61, s61, s62\ns_bfe_u32 s62, s54, 0x20001\ns_lshl_b32 s62, s62, 8\ns_add_u32 s61, s61, s62\ns_add_u32 s61, s61, 0x%x' % COLSUM)
                else:
                    a('v_lshrrev_b32 v12, 4, v0\nv_bfe_u32 v13, v0, 2, 2')
                    a('v_lshl_add_u32 v14, v12, 3, v13\nv_lshlrev_b32 v14, 7, v14')
                    a('v_and_b32 v13, 3, v0\nv_lshl_add_u32 v14, v13, 3, v14')
                    a('v_bfe_u32 v13, v0, 3, 1\nv_bfe_u32 v15, v0, 4, 1\nv_lshl_add_u32 v13, v15, 1, v13')
                    a('v_lshl_add_u32 v14, v13, 5, v14')
                    a('s_lshr_b32 s60, s54, 3\ns_lshl_b32 s60, s60, 13\nv_add_u32 v16, s60, v14')
                    for ct in range(1, 4): a('v_xor_b32 v%d, %d, v16' % (16+ct, 32*ct))
                    for k in range(4): a('v_mov_b32 v%d, 0x3f803f80' % (20+k))
                    for k in range(32): a('v_mov_b32 v%d, 0' % (88+k))
                    a('s_mul_i32 s61, s64, 24576\ns_lshr_b32 s62, s54, 3\ns_mul_i32 s62, s62, 12288\ns_add_u32 s61, s61, s62')
                    a('s_lshl_b32 s62, s55, 10\ns_add_u32 s61, s61, s62\ns_add_u32 s61, s61, 0x%x' % COLSUM)
                a('v_lshlrev_b32 v56, 5, v12\nv_and_b32 v13, 1, v0\nv_lshl_add_u32 v56, v13, 4, v56')
                a('s_lshl_b32 s62, s55, 4\ns_add_u32 s62, s62, s54\ns_lshl_b32 s62, s62, 7\ns_add_u32 s62, s62, 0x%x\nv_mov_b32 v57, s62' % (SFLAG))
                a('v_and_b32 v12, 15, v0\nv_lshlrev_b32 v12, 5, v12')
                a('v_lshrrev_b32 v13, 4, v0\nv_lshl_add_u32 v12, v13, 9, v12')
                a('s_lshl_b32 s60, s54, 1\nv_add_u32 v12, s60, v12')
                a('v_lshlrev_b32 v12, 4, v12\nv_add_u32 v12, 0x%x, v12' % STATS)
                a('v_lshlrev_b32 v13, 4, v0\nv_add_u32 v13, %d, v13' % self.MISC)
                a('v_lshlrev_b32 v14, 7, v0\nv_add_u32 v14, 0x%x, v14\nv_add_u32 v15, 8192, v14\nv_add_u32 v58, 16384, v14' % SFLAG)
                rl = ['buffer_load_dwordx4 v[64:67], v12, %s, 0 offen sc1' % s(S_WS,4), 'buffer_load_dwordx4 v[68:71], v12, %s, 0 offen offset:16 sc1' % s(S_WS,4)]
                tags = [66, 70]
            else:
                a.label('L_ffn_xl3')
                a('v_mov_b32 v12, %d\nv_mov_b32 v13, 0\nds_write_b32 v12, v13' % (self.MISC + 3072))
                a('v_lshrrev_b32 v13, 5, v0\nv_mul_u32_u24 v13, 12288, v13')
                a('v_and_b32 v12, 31, v0\nv_lshl_add_u32 v12, v12, 5, v13')
                a('s_lshl_b32 s60, s55, 10\ns_add_u32 s60, s60, 0x%x\nv_add_u32 v12, s60, v12' % COLSUM)
                a('v_lshlrev_b32 v13, 4, v0\nv_add_u32 v13, %d, v13' % (self.MISC+2048))
                for k in range(1, 8): a('s_mov_b32 s%d, %d' % (27+k, 24576*k))
                rl = ['buffer_load_dwordx4 %s, v12, %s, %s offen offset:%d sc1' % (v(16+8*p+4*h,4), s(S_WS,4), 's%d' % (27+p) if p else '0', 16*h) for p in range(NP) for h in range(2)]
                tags = [18+4*k for k in range(2*NP)]
            for m in range(21):
                if m % 2 == 0 and m < 20: vm.wait(m//2)
                if m == 20: a('s_waitcnt lgkmcnt(0)')
                a('s_barrier')
                if role == 2:
                    if m == PW + 2:
                        vm.wait('pw')
                        if 'nospin' not in self.opt: self.spin3('L_xl_sw', (14,15,58), 72, True)
                    if m == PW:
                        for k in range(3): vm.op('buffer_load_dwordx2 %s, v%d, %s, 0 offen sc1' % (v(72+2*k,2), (14,15,58)[k], s(S_WS,4)), 'pw')
                    if m == FB:
                        self.setflag(57, 60); vm.q.append('fl')
                    if m == 4 and not PH2:
                        a('v_and_b32 v1, 1, v0\nv_cmp_eq_u32 vcc, 1, v1\ns_nop 1')
                        for ct in range(8):
                            b = 88+4*ct
                            a('v_cndmask_b32 v%d, v%d, v%d, vcc\nv_cndmask_b32 v%d, v%d, v%d, vcc\nv_mov_b32 v%d, s12\nv_mov_b32 v%d, s13' % (b, b, b+2, b+1, b+1, b+3, b+2, b+3))
                        a('s_mov_b32 exec_lo, 0x00030003\ns_mov_b32 exec_hi, 0x00030003')
                        for ct in range(8): vm.op('buffer_store_dwordx4 %s, v56, %s, s61 offen offset:%d sc1' % (v(88+4*ct,4), s(S_WS,4), 128*ct), 'cs')
                        a('s_mov_b64 exec, -1')
                    if m == 10 and PH2:
                        a('v_and_b32 v1, 1, v0\nv_cmp_eq_u32 vcc, 1, v1\nv_mov_b32 v34, s12\nv_mov_b32 v35, s13\nv_mov_b32 v38, s12\nv_mov_b32 v39, s13')
                        for ct in range(2): a('v_cndmask_b32 v%d, v%d, v%d, vcc\nv_cndmask_b32 v%d, v%d, v%d, vcc' % (32+4*ct, 24+4*ct, 26+4*ct, 33+4*ct, 25+4*ct, 27+4*ct))
                        a('s_mov_b32 exec_lo, 0x00030003\ns_mov_b32 exec_hi, 0x00030003')
                        for ct in range(2): vm.op('buffer_store_dwordx4 %s, v56, %s, s61 offen offset:%d sc1' % (v(32+4*ct,4), s(S_WS,4), 128*ct), 'cs')
                        a('s_mov_b64 exec, -1')
                if m == (PS if role == 2 else PC):
                    for l in rl: vm.op(l, 'st')
                if m == (PS if role == 2 else PC) + 2:
                    vm.wait('st')
                    a('s_mov_b32 s53, 0')
                    a.label('L_xl_rs%d' % role)
                    a('v_cmp_ne_u64 vcc, s[12:13], %s' % v(tags[0],2))
                    for t in tags[1:]: a('v_cmp_ne_u64 s[68:69], s[12:13], %s\ns_nop 0\ns_or_b64 vcc, vcc, s[68:69]' % v(t,2))
                    a('s_cbranch_vccz L_xl_rx%d\ns_add_u32 s53, s53, 1\ns_cmp_gt_u32 s53, 0x%x\ns_cbranch_scc1 L_xl_rx%d\ns_sleep 2' % (role, 0 if 'nospin' in self.opt else SPIN_MAX, role))
                    for l in rl: a(l)
                    a('s_waitcnt vmcnt(0)\ns_branch L_xl_rs%d' % role)
                    a.label('L_xl_rx%d' % role)
                    if role == 2:
                        for b in (64, 68):
                            a('v_rsq_f32 v%d, v%d\nv_mov_b32 v%d, v%d\nv_mul_f32 v%d, 0xbfb8aa3b, v%d' % (b+3, b+1, b+2, b+1, b+1, b+3))
                        a('ds_write_b128 v13, v[64:67]\nds_write_b128 v13, v[68:71] offset:1024')
                    else:
                        for w_ in ((8,) if PH2 else (32, 16, 8)):
                            for k in range(0, w_, 4): a('v_add_f32 v%d, v%d, v%d\nv_add_f32 v%d, v%d, v%d' % (16+k, 16+k, 16+w_+k, 17+k, 17+k, 17+w_+k))
                        a('v_mov_b32 v18, v20\nv_mov_b32 v19, v21')
                        a('ds_write_b128 v13, v[16:19]')
                for c in range(XP, 10):
                    when = max(0, 2*c - 2 - int(self.val.get('xl%d' % role, 1 if role == 2 else 0)))
                    if c >= int(self.val.get('xr', 4)): when = max(0, 2*c - (4 if role == 2 else 3))
                    if when == m: issue(c)
                for k in TB.get(m, []): touch(k)
                if role == 2 and m < 4 and not PH2:
                    if m >= 2: a('s_and_b32 s60, s64, 3\ns_cmp_eq_u32 s60, 3\ns_cbranch_scc0 L_cs_sk%d' % m)
                    for b in range(2):
                        for ct in range(4):
                            for q in range(2):
                                a('ds_read_b64_tr_b16 %s, v%d offset:%d' % (v(24+16*b+4*ct+2*q,2), 16+ct, m*self.WSLOT + b*4096 + q*512))
                        a('s_waitcnt lgkmcnt(0)')
                        for ct in range(4): a('v_mfma_f32_16x16x32_bf16 %s, %s, v[20:23], %s' % (v(88+16*b+4*ct,4), v(24+16*b+4*ct,4), v(88+16*b+4*ct,4)))
                    if m >= 2: a.label('L_cs_sk%d' % m)
                    if m == 3: a.nop(6)
                if role == 2 and m < 10 and PH2:
                    sl = m % self.NWS
                    for ct in range(2):
                        for q in range(2):
                            a('ds_read_b64_tr_b16 %s, v%d offset:%d' % (v(40+4*ct+2*q,2), 16+ct+2*(sl//3), (sl%3)*self.WSLOT + q*512))
                    a('s_waitcnt lgkmcnt(0)')
                    for ct in range(2): a('v_mfma_f32_16x16x32_bf16 %s, %s, v[20:23], %s' % (v(24+4*ct,4), v(40+4*ct,4), v(24+4*ct,4)))
                    if m == 9: a.nop(6)
                if m in (16, 18, 20):
                    f0 = {16: 112, 18: 128, 20: 96}[m]; n = {16: 8, 18: 6, 20: 8}[m]
                    self.wd_dma(vm, range(f0 + (role-2)*n, f0 + (role-1)*n), 2)
                for i in self.ov_sched(m): self.ov_load(vm, i, 2)
            self.stamp(2)
            a('s_branch L_p2_help')

    def ffn_consumer(self):
        a = self.a
        ACC, FR = 8, 136
        AW = [2, 3, 232, 233]
        AX = [4, 5]
        def acc(tt, mat, c2): return ACC + ((tt*2 + mat)*2 + c2)*4
        def xf(st, tt): return FR + st*48 + tt*4
        def wf(st, mat, c2): return FR + st*48 + 32 + (mat*2 + c2)*4
        a.label('L_ffn_cons')
        a('s_sub_u32 s56, s%d, 4' % WAVE)
        a('s_mul_i32 s57, s%d, 24\ns_add_u32 s57, s57, s%d\ns_and_b32 s58, s57, 1\ns_add_u32 s58, s58, 2\ns_cmp_lt_u32 s56, s58\ns_cselect_b32 s79, 1, 0\ns_cbranch_scc0 L_fc_nu' % (XCD, IDX))
        a('s_mul_i32 s57, s57, 5\ns_lshr_b32 s57, s57, 1\ns_add_u32 s57, s57, s56')
        a('s_mul_i32 s70, s57, 52429\ns_lshr_b32 s70, s70, 19\ns_mul_i32 s53, s70, 10\ns_sub_u32 s71, s57, s53')
        a('s_mul_i32 s68, s70, %d\ns_lshl_b32 s53, s71, 7\ns_add_u32 s68, s68, s53' % (32*1280))
        a('s_mov_b32 s72, s%d\ns_mov_b32 s73, s%d\ns_mov_b32 s74, 0x%x\ns_mov_b32 s75, 0x20000' % (P_WD, P_WD+1, 1536*640*2))
        self.wvoff(8, 1280, 12)
        a('s_lshl_b32 s67, s56, 12\ns_add_u32 s67, s67, %d' % (self.MISC + 4096))
        for j in range(4):
            a('s_add_u32 m0, s67, %d\ns_nop 0' % (j*1024))
            a('buffer_load_dwordx4 v%d, s[72:75], s68 offen nt lds' % (8+j))
        a.label('L_fc_nu')
        if 'ft' in self.opt:
            for k, spec in enumerate(self.val.get('ft', 'W2-6+W12-16+W6-10+W16-20').split('+')):
                lo, hi = [int(z) for z in spec[1:].split('-')]
                a('s_cmp_eq_u32 s56, %d\ns_cbranch_scc0 L_fc_n%d' % (k, k))
                a(self.wtouch(IDX, (hi-lo)*8, lo, 255))
                a.label('L_fc_n%d' % k)
        if 'ta' in self.opt:
            self.phase(59)
            a('s_cmp_lt_u32 s56, 2\ns_cbranch_scc0 L_fc_tx')
            self.tw_addr(2)
            a('s_cmp_eq_u32 s56, 0')
            a('s_cselect_b32 s%d, s%d, s%d\ns_cselect_b32 s%d, s%d, s%d\ns_mov_b32 s%d, 0x%x' % (S_A, P_WG, P_WU, S_A+1, P_WG+1, P_WU+1, S_A+2, 640*1536*2))
            a('s_mul_i32 s66, s59, %d\ns_lshl_b32 s67, s55, 8\ns_add_u32 s66, s66, s67' % (64*3072))
            a('buffer_load_dword v255, v2, %s, s66 offen' % s(S_A,4))
            a('s_branch L_fc_t3')
            a.label('L_fc_tx')
            a('s_sub_u32 s60, s56, 2')
            self.tx_addr(2, 60); self.tx_off(67, 59, 0)
            a('buffer_load_dword v255, v2, %s, s67 offen' % s(S_X,4))
            a.label('L_fc_t3')
        a('s_setprio 1')
        a('v_lshrrev_b32 v6, 4, v0\nv_bfe_u32 v7, v0, 2, 2')
        a('v_lshl_add_u32 v8, v6, 3, v7\nv_lshlrev_b32 v8, 7, v8')
        a('v_and_b32 v9, 3, v0\nv_lshl_add_u32 v8, v9, 3, v8')
        a('v_bfe_u32 v9, v0, 3, 1\nv_bfe_u32 v10, v0, 4, 1\nv_lshl_add_u32 v9, v10, 1, v9')
        a('s_and_b32 s57, s56, 1\ns_lshl_b32 s57, s57, 1')
        a('v_xor_b32 v9, s57, v9\nv_lshl_add_u32 v8, v9, 5, v8')
        a('s_lshr_b32 s57, s56, 1\ns_lshl_b32 s57, s57, 12')
        a('v_add_u32 v%d, s57, v8' % AW[0])
        a('v_xor_b32 v%d, 32, v%d' % (AW[1], AW[0]))
        a('v_add_u32 v%d, %d, v%d\nv_add_u32 v%d, %d, v%d' % (AW[2], 3*self.WSLOT, AW[0], AW[3], 3*self.WSLOT, AW[1]))
        a('v_and_b32 v8, 15, v0\nv_lshrrev_b32 v9, 1, v8\nv_xor_b32 v9, v9, v6')
        a('v_lshlrev_b32 v9, 4, v9\nv_lshl_add_u32 v9, v8, 7, v9')
        a('v_add_u32 v%d, %d, v9' % (AX[0], self.XB))
        a('v_xor_b32 v%d, 64, v%d' % (AX[1], AX[0]))
        a('v_lshlrev_b32 v234, 4, v8\nv_add_u32 v234, %d, v234' % self.MISC)
        a('v_lshlrev_b32 v235, 4, v6\ns_lshl_b32 s57, s56, 7\nv_add_u32 v235, s57, v235\nv_add_u32 v235, %d, v235' % (self.MISC+2048))
        a('v_lshlrev_b32 v236, 4, v0')
        hf = self.val.get('hf', 'p')
        if hf == 'p': a('s_lshl_b32 s58, s54, 4\ns_add_u32 s58, s58, s55\ns_lshl_b32 s58, s58, 2\ns_add_u32 s58, s58, s56\ns_lshl_b32 s58, s58, 3\nv_mov_b32 v237, s58')
        elif hf == 'w': a('s_lshl_b32 s58, s54, 4\ns_add_u32 s58, s58, s55\ns_lshl_b32 s58, s58, 4\ns_add_u32 s58, s58, s56\ns_lshl_b32 s58, s58, 3\ns_add_u32 s58, s58, 0xa0000\nv_mov_b32 v237, s58')
        else: a('s_lshl_b32 s58, s54, 4\ns_add_u32 s58, s58, s55\ns_lshl_b32 s58, s58, 2\ns_add_u32 s58, s58, s56\ns_lshl_b32 s58, s58, 7\ns_add_u32 s58, s58, 0xa0000\nv_mov_b32 v237, s58')
        a('s_mul_i32 s57, s54, %d\ns_lshl_b32 s58, s55, 2\ns_add_u32 s58, s58, s56\ns_lshl_b32 s58, s58, 10\ns_add_u32 s57, s57, s58\ns_add_u32 s57, s57, 0x%x' % (8*49152, HF))
        self.nonce()
        a('s_cmp_eq_u32 s79, 0\ns_cbranch_scc1 L_fc_nv')
        a('v_lshrrev_b32 v16, 2, v0\nv_lshlrev_b32 v16, 7, v16\nv_and_b32 v1, 3, v0\nv_lshl_add_u32 v16, v1, 3, v16')
        a('v_bfe_u32 v1, v0, 3, 1\nv_bfe_u32 v17, v0, 5, 1\nv_lshl_add_u32 v1, v17, 1, v1\nv_lshl_add_u32 v16, v1, 5, v16')
        a('v_add_u32 v16, s67, v16')
        for ct in range(1,4): a('v_xor_b32 v%d, %d, v16' % (16+ct, 32*ct))
        for ct in range(4):
            a('s_lshl_b32 s63, s71, 2\ns_add_u32 s63, s63, %d\ns_mul_i32 s64, s63, 52\ns_lshr_b32 s64, s64, 8' % ct)
            a('s_mul_i32 s65, s64, 5\ns_sub_u32 s65, s63, s65\ns_lshl_b32 s65, s65, 10')
            a('s_mul_i32 s64, s64, 245760\ns_add_u32 s65, s65, s64\ns_mul_i32 s64, s70, 5120\ns_add_u32 s65, s65, s64\ns_add_u32 s%d, s65, 0x%x' % (72+ct, WDF))
        a('s_waitcnt vmcnt(%d)' % (1 if 'ft' in self.opt else 0))
        for ct in range(4):
            for q in range(2): a('ds_read_b64_tr_b16 %s, v%d offset:%d' % (v(24+4*ct+2*q,2), 16+ct, q*2048))
        a('s_waitcnt lgkmcnt(0)')
        for ct in range(4): a('buffer_store_dwordx4 %s, v236, %s, s%d offen sc1' % (v(24+4*ct,4), s(S_WS,4), 72+ct))
        a.label('L_fc_nv')
        def reads(n):
            st = n & 1; sl = n % self.NWS
            r = []
            for mat in range(2):
                for c2 in range(2):
                    for q in range(2):
                        r.append('ds_read_b64_tr_b16 v[%d:%d], v%d offset:%d' % (wf(st,mat,c2)+2*q, wf(st,mat,c2)+2*q+1, AW[c2 + 2*(sl//3)], (sl%3)*self.WSLOT + mat*8192 + q*512))
            for tt in range(8):
                r.append('ds_read_b128 %s, v%d offset:%d' % (v(xf(st,tt),4), AX[n&1], ((n//2) % self.NXS)*self.XSLOT + tt*2048))
            return r
        ST, CSR, TM = FR, FR+32, 238
        ep_reads = ['ds_read_b128 %s, v234 offset:%d' % (v(ST+4*tt,4), tt*256) for tt in range(8)]
        ep_reads += ['ds_read_b128 %s, v235 offset:%d' % (v(CSR+(mat*2+c2)*4,4), mat*512 + c2*64) for mat in range(2) for c2 in range(2)]
        FB = int(self.val.get('fb', 5))
        a('s_barrier')
        self.stamp(1)
        for r in reads(0): a(r)
        a.align(3)
        for n in range(20):
            st = n & 1
            a('s_waitcnt %slgkmcnt(0)\ns_barrier' % ('vmcnt(0) ' if n == int(self.val['fb']) - 1 else ''))
            if n == 10: self.stamp(5)
            if n == 5: self.stamp(6)
            if n == 15: self.stamp(7)
            rd = reads(n+1) if n < 19 else ep_reads
            k = 0
            for tt in range(8):
                for mat in range(2):
                    for c2 in range(2):
                        A = acc(tt, mat, c2)
                        if 'nomfma' not in self.opt: a('v_mfma_f32_16x16x32_bf16 %s, %s, %s, %s' % (v(A,4), v(wf(st,mat,c2),4), v(xf(st,tt),4), v(A,4) if n else '0'))
                        if k < len(rd) and 'nords' not in self.opt: a(rd[k]); k += 1
        self.stamp(2)
        a('s_waitcnt lgkmcnt(0)')
        a.label('L_fc_epi')
        OUT = FR + 48
        for tt in range(8):
            m, q = ST+4*tt, ST+4*tt+2
            O = OUT + tt*4
            t = TM + (tt&1)*8
            pairs = [(c2, hh) for c2 in range(2) for hh in range(2)]
            for k, (c2, hh) in enumerate(pairs):
                ga = acc(tt,0,c2)+2*hh; ua = acc(tt,1,c2)+2*hh
                a('v_pk_fma_f32 %s, %s, %s, %s op_sel_hi:[0,1,1] neg_lo:[1,0,0] neg_hi:[1,0,0]' % (v(ga,2), v(m,2), v(CSR+c2*4+2*hh,2), v(ga,2)))
                a('v_pk_fma_f32 %s, %s, %s, %s op_sel_hi:[0,1,1] neg_lo:[1,0,0] neg_hi:[1,0,0]' % (v(ua,2), v(m,2), v(CSR+8+c2*4+2*hh,2), v(ua,2)))
            for k, (c2, hh) in enumerate(pairs):
                ga = acc(tt,0,c2)+2*hh
                a('v_pk_mul_f32 %s, %s, %s op_sel:[0,1] op_sel_hi:[1,1]' % (v(t+2*k,2), v(ga,2), v(m,2)))
            for k in range(8): a('v_exp_f32 v%d, v%d' % (t+k, t+k))
            for k, (c2, hh) in enumerate(pairs):
                ga = acc(tt,0,c2)+2*hh; ua = acc(tt,1,c2)+2*hh
                a('v_pk_mul_f32 %s, %s, %s' % (v(ga,2), v(ga,2), v(ua,2)))
                a('v_pk_fma_f32 %s, %s, %s, %s op_sel_hi:[1,0,0]' % (v(t+2*k,2), v(t+2*k,2), v(q,2), v(q,2)))
            for k in range(8): a('v_rcp_f32 v%d, v%d' % (t+k, t+k))
            a('s_nop 0')
            for k, (c2, hh) in enumerate(pairs):
                ga = acc(tt,0,c2)+2*hh
                a('v_pk_mul_f32 %s, %s, %s' % (v(ga,2), v(ga,2), v(t+2*k,2)))
            for k, (c2, hh) in enumerate(pairs):
                ga = acc(tt,0,c2)+2*hh
                a('v_cvt_pk_bf16_f32 v%d, v%d, v%d' % (O+k, ga, ga+1))
            a('buffer_store_dwordx4 %s, v236, %s, s57 offen sc1' % (v(O,4), s(S_WS,4)))
            a('s_add_u32 s57, s57, 49152')
        self.stamp(3)
        a('v_mov_b32 v2, %d\nv_mov_b32 v3, 1\ns_mov_b64 exec, 1\nds_add_u32 v2, v3\ns_mov_b64 exec, -1' % (self.MISC + 3072))
        a('s_waitcnt vmcnt(0)')
        self.stamp(4)
        self.setflag(237, 2)
        a('s_branch L_p2_mfma')

    MSLOT = 24576; MB = 32768; XFB = 0; XFS = 16384; DMISC = 155648

    def code_touch(self, lo, hi, n, dst, uniq):
        a = self.a
        a('s_getpc_b64 s[72:73]')
        a.label('L_ct%s' % uniq)
        a('s_add_u32 s72, s72, %s-L_ct%s\ns_addc_u32 s73, s73, 0' % (lo, uniq))
        out = []
        for k in range(n):
            a('v_lshlrev_b32 v%d, 7, v0\nv_add_u32 v%d, %d, v%d\nv_min_u32 v%d, %s-%s-4, v%d' % (dst-1-k, dst-1-k, 8192*k, dst-1-k, dst-1-k, hi, lo, dst-1-k))
            out.append('global_load_dword v%d, v%d, s[72:73]' % (dst, dst-1-k))
        return out

    def dft_loader(self):
        a = self.a; vm = VM(a)
        RAW, SA = 32, 192
        a.label('L_dft_ld')
        a('s_setprio %s' % self.val.get('dlp', '2'))
        a('s_cmp_lt_u32 s%d, 2' % WAVE)
        a('s_cselect_b32 s%d, s%d, s%d\ns_cselect_b32 s%d, s%d, s%d' % (S_A, P_HRE, P_HIM, S_A+1, P_HRE+1, P_HIM+1))
        a('s_mov_b32 s%d, 0x%x' % (S_A+2, 640*640*2))
        a('v_lshrrev_b32 v2, 3, v0\nv_lshrrev_b32 v3, 4, v0\nv_and_b32 v4, 7, v0')
        a('v_mul_u32_u24 v5, 81920, v2\nv_lshl_add_u32 v5, v4, 4, v5')
        a('s_lshl_b32 s66, s54, 2\ns_add_u32 s66, s66, s%d\ns_and_b32 s63, s%d, 3' % (WAVE, DID))
        for u in range(4): a('s_add_u32 s53, s63, %d\ns_and_b32 s%d, s53, 3\ns_lshl_b32 s53, s%d, 9\ns_add_u32 s53, s53, s66\ns_mul_i32 s%d, s53, 1280' % (u, 68+u, 68+u, 56+u))
        if 'dph0' in self.opt: a('s_mov_b32 s74, 0')
        else: a('s_and_b32 s74, s54, 3\ns_lshl_b32 s75, s%d, 1\ns_add_u32 s74, s74, s75\ns_cmp_ge_u32 s74, 5\ns_cselect_b32 s75, 5, 0\ns_sub_u32 s74, s74, s75\ns_lshl_b32 s74, s74, 7' % HH)
        a('s_mov_b32 s75, s74\nv_add_u32 v208, s74, v5')
        for c in range(1, 5): a('s_add_u32 s74, s74, 128\ns_cmp_eq_u32 s74, 640\ns_cselect_b32 s74, 0, s74\nv_add_u32 v%d, s74, v5' % (208+c))
        def xl(c, us):
            o = []
            for u in us:
                tag = 'x%d' % c if u else 'y%d' % c
                o.append(([], 'buffer_load_dwordx4 %s, v%d, %s, s%d offen' % (v(RAW+32*c+8*u,4), 208+c, s(S_X,4), 56+u), tag))
                o.append(([], 'buffer_load_dwordx4 %s, v%d, %s, s%d offen offset:640' % (v(RAW+32*c+8*u+4,4), 208+c, s(S_X,4), 56+u), tag))
            return o
        def ml(c):
            adv = ['s_add_u32 s75, s75, 128', 's_cmp_eq_u32 s75, 640', 's_cselect_b32 s75, 0, s75', 's_add_u32 s76, s60, s75']
            return [((adv if u == 0 and c > 0 else []) + ['s_add_u32 m0, s61, %d' % (self.MB + c*self.MSLOT + u*1024), 's_add_u32 s62, s76, %d' % (u*16*1280)],
                     'buffer_load_dwordx4 v%d, %s, s62 offen lds' % (8 if u == 0 else 6+(u&1), s(S_A,4)), 'm%d' % c) for u in range(6)]
        t = 16
        def unpack(lo):
            o = []
            for k in range(4):
                o += ['v_lshlrev_b32 v%d, 16, v%d' % (t+2*k, lo+k), 'v_and_b32 v%d, s77, v%d' % (t+2*k+1, lo+k),
                      'v_lshlrev_b32 v%d, 16, v%d' % (t+8+2*k, lo+4+k), 'v_and_b32 v%d, s77, v%d' % (t+8+2*k+1, lo+4+k)]
            return o
        def acc():
            o = []
            for k in range(16): o += ['v_add_f32 v%d, v%d, v%d' % (SA+(k&3), SA+(k&3), t+k), 'v_fmac_f32 v%d, v%d, v%d' % (SA+4+(k&3), t+k, t+k)]
            return o
        def st(c): return unpack(RAW+32*c) + acc()
        def fl(c, with_stats):
            o = []
            for u in range(4):
                lo = RAW+32*c+8*u
                o += unpack(lo)
                if u == 0 and with_stats: o += acc()
                for k in range(8): o.append('v_fmac_f32 v%d, v12, v%d' % (t+k, t+8+k))
                for k in range(4): o.append('v_cvt_pk_bf16_f32 v%d, v%d, v%d' % (lo+k, t+2*k, t+2*k+1))
                o.append('ds_write_b128 v%d, %s offset:%d' % (213+u, v(lo,4), (c&1)*self.XFS))
            return o
        def emit(loads, valu):
            per = -(-len(valu) // max(1, len(loads))); k = 0
            for pre, ld, tag in loads:
                for p in pre: a(p)
                vm.op(ld, tag)
                for l in valu[k:k+per]: a(l)
                k += per
            for l in valu[k:]: a(l)
        emit(xl(0, range(4)), [])
        a('v_xor_b32 v3, v3, v4\nv_lshlrev_b32 v3, 4, v3')
        a('v_mul_u32_u24 v6, 2560, v2\nv_add_u32 v6, v6, v3\nv_xor_b32 v7, 64, v6')
        a('s_or_b32 s60, s55, s%d\ns_or_b32 s60, s60, s%d\ns_cmp_eq_u32 s60, 0\ns_cselect_b32 s60, %d, 0' % (WAVE, HH, 320*1280))
        a('v_cmp_gt_u32 vcc, 8, v0\nv_mov_b32 v8, s60\ns_nop 0\nv_cndmask_b32 v8, 0, v8, vcc\nv_add_u32 v8, v8, v6')
        a('s_and_b32 s60, s%d, 1\ns_mul_i32 s60, s60, 96\ns_lshl_b32 s61, s%d, 7\ns_add_u32 s60, s60, s61\ns_add_u32 s60, s60, s55\ns_mul_i32 s60, s60, 1280' % (WAVE, HH))
        a('s_mul_i32 s61, s%d, 6144\ns_add_u32 s76, s60, s75' % WAVE)
        YL = 'ylate' in self.opt
        emit(ml(0) + ([] if YL else xl(2, [0]) + xl(3, [0]) + xl(4, [0])), [])
        a('s_lshl_b32 s53, s%d, 12\ns_add_u32 s53, s53, %d' % (WAVE, self.XFB))
        a('v_lshl_add_u32 v9, v2, 7, v3\nv_add_u32 v9, s53, v9')
        for u in range(4): a('s_and_b32 s53, s%d, 1\ns_lshl_b32 s53, s53, 6\nv_xor_b32 v%d, s53, v9\ns_lshl_b32 s53, s%d, 10\nv_add_u32 v%d, s53, v%d' % (68+u, 213+u, 68+u, 213+u, 213+u))
        a('s_cmp_eq_u32 s55, 0\ns_cselect_b32 s53, 1.0, -1.0\nv_mov_b32 v12, s53\ns_mov_b32 s77, 0xffff0000')
        for k in range(8): a('v_mov_b32 v%d, 0' % (SA+k))
        a('v_lshlrev_b32 v4, 10, v2\ns_lshl_b32 s65, s66, 4\ns_add_u32 s65, s65, 0x%x\ns_lshl_b32 s64, s63, 13\ns_add_u32 s64, s64, s65' % STATS)
        a('v_and_b32 v3, 31, v0\nv_lshlrev_b32 v10, 10, v3\ns_lshl_b32 s53, s%d, 7\ns_add_u32 s53, s53, %d\nv_lshl_add_u32 v3, v3, 2, s53' % (WAVE, self.DMISC))
        self.p2_prep()
        self.nonce()
        vm.wait('x0')
        emit([], fl(0, True))
        vm.wait('m0', 'lgkmcnt(0)'); a('s_barrier')
        self.stamp(1)
        if YL:
            emit(xl(1, range(4)) + ml(1) + xl(2, [0]) + xl(3, [0]) + xl(4, [0]), [])
            vm.wait('x1'); emit([], fl(1, True)); vm.wait('y4'); emit(xl(2, [1,2,3]) + ml(2), st(2) + st(3) + st(4))
        else:
            vm.wait('y4')
            emit(xl(1, range(4)) + ml(1), st(2) + st(3) + st(4))
            vm.wait('x1'); emit(xl(2, [1,2,3]) + ml(2), fl(1, True))
        fin = []
        fin += ['v_add_f32 v%d, v%d, v%d' % (SA+k, SA+k, SA+k+1) for k in (0, 4, 2, 6)] + ['v_add_f32 v%d, v%d, v%d' % (SA+k, SA+k, SA+k+2) for k in (0, 4)]
        for mod in ('quad_perm:[1,0,3,2]', 'quad_perm:[2,3,0,1]', 'row_half_mirror'):
            fin += ['s_nop 0'] + ['v_add_f32 v%d, v%d, v%d %s row_mask:0xf bank_mask:0xf' % (SA+k, SA+k, SA+k, mod) for k in (0, 4)]
        fin += ['v_mul_f32 v%d, 0x3acccccd, v%d' % (SA+8, SA), 'v_mul_f32 v%d, 0x3acccccd, v%d' % (SA+9, SA+4),
                'v_fma_f32 v%d, -v%d, v%d, v%d' % (SA+9, SA+8, SA+8, SA+9), 'v_max_f32 v%d, 0, v%d' % (SA+9, SA+9), 'v_add_f32 v%d, 0x3727c5ac, v%d' % (SA+9, SA+9),
                'v_mov_b32 v%d, s12' % (SA+10), 'v_mov_b32 v%d, s13' % (SA+11)]
        emit([], fin)
        a('s_mov_b32 exec_lo, 0x01010101\ns_mov_b32 exec_hi, 0x01010101')
        vm.op('buffer_store_dwordx4 %s, v4, %s, s64 offen sc1' % (v(SA+8,4), s(S_WS,4)), 'o')
        a('s_mov_b64 exec, -1')
        vm.wait('m1', 'lgkmcnt(0)'); a('s_barrier')
        vm.wait('x2'); emit(xl(3, [1,2,3]) + ml(3), fl(2, False)); vm.wait('m2', 'lgkmcnt(0)'); a('s_barrier')
        vm.wait('x3'); emit(ml(4) + xl(4, [1,2,3]), fl(3, False)); vm.wait('m3', 'lgkmcnt(0)'); a('s_barrier')
        vm.op('buffer_load_dwordx4 %s, v10, %s, s65 offen sc1' % (v(SA,4), s(S_WS,4)), 'r')
        vm.wait('x4')
        a('v_lshlrev_b32 v11, 7, v0\nv_add_u32 v11, 0x%x, v11\nv_add_u32 v13, 8192, v11\nv_add_u32 v14, 16384, v11' % SFLAG)
        a('s_cmp_eq_u32 s%d, 1\ns_cbranch_scc0 L_dl_np' % WAVE)
        for k in range(3): a('buffer_load_dwordx2 %s, v%d, %s, 0 offen sc1' % (v(SA+4+2*k,2), (11,13,14)[k], s(S_WS,4)))
        a.label('L_dl_np')
        emit([], fl(4, False))
        a('s_waitcnt lgkmcnt(0)\ns_barrier')
        a('s_waitcnt vmcnt(0)')
        a('s_cmp_eq_u32 s%d, 1\ns_cbranch_scc0 L_dl_nq' % WAVE)
        self.spin3('L_dl_sp', (11,13,14), SA+4, True)
        a.label('L_dl_nq')
        a('s_mov_b32 s53, 0')
        a.label('L_dl_rs')
        a('v_cmp_ne_u64 vcc, s[12:13], %s' % v(SA+2,2))
        a('s_cbranch_vccz L_dl_rx\ns_add_u32 s53, s53, 1\ns_cmp_gt_u32 s53, 0x%x\ns_cbranch_scc1 L_dl_rx\ns_sleep 2' % SPIN_MAX)
        a('buffer_load_dwordx4 %s, v10, %s, s65 offen sc1\ns_waitcnt vmcnt(0)\ns_branch L_dl_rs' % (v(SA,4), s(S_WS,4)))
        a.label('L_dl_rx')
        a('v_rsq_f32 v%d, v%d\ns_nop 0\nds_write_b32 v3, v%d' % (SA, SA+1, SA))
        a('s_lshl_b32 s58, s%d, 3\nv_lshrrev_b32 v7, 5, v0\nv_add_u32 v7, s58, v7\nv_and_b32 v6, 31, v0\nv_lshlrev_b32 v6, 4, v6' % WAVE)
        a('v_mul_u32_u24 v5, %d, v7\nv_add_u32 v5, v5, v6\nv_mul_u32_u24 v8, %d, v7\nv_add_u32 v8, v8, v6' % (LROW, GROW))
        a('s_lshr_b32 s59, s%d, 1\ns_mul_i32 s57, s59, %d\ns_lshl_b32 s59, s%d, 10\ns_add_u32 s57, s57, s59' % (DID, GBLK, HH))
        for k in range(4): a('s_add_u32 s%d, s57, 0x%x' % (60+k, G16 + 2*k*GROW))
        a('s_lshl_b32 s59, s%d, 3\ns_add_u32 s58, s59, 0x%x\nv_lshl_add_u32 v6, v0, 9, s58' % (DID, DFLAG))
        a('v_cmp_gt_u32 vcc, 32, v0\nv_mov_b32 v7, 0x%x\ns_add_u32 s59, s59, 0x%x\nv_cndmask_b32 v6, v7, v6, vcc\nv_mov_b32 v7, s59' % (OOB, SFLAG))
        vm = VM(a)
        self.p2_coords(); self.ov_setup()
        a('v_lshlrev_b32 v2, 4, v0')
        def dma_step(first, k, lim, tag):
            a('s_add_u32 s64, s%d, %d\ns_cmp_lt_u32 s64, %d\ns_cbranch_scc0 L_ds_%s%d' % (WAVE, first + 4*k, lim, tag, k))
            a('s_cmp_ge_u32 s64, 14\ns_cselect_b32 s65, 51200, 0\ns_cselect_b32 s66, 14, 0\ns_sub_u32 s66, s64, s66\ns_mul_i32 s64, s64, 5120\ns_add_u32 s65, s65, s64')
            a('s_cmp_le_u32 s76, s66\ns_cselect_b32 s66, s75, s77\ns_add_u32 s65, s65, s66')
            for n in range(5):
                if n in (0, 4): a('s_add_u32 m0, s64, %d\ns_add_u32 s78, s65, %d' % (n*1024, n*1024))
                a('buffer_load_dwordx4 v2, %s, s78 offen offset:%d %s lds' % (s(S_WS,4), (n&3)*1024, self.bf))
            a.label('L_ds_%s%d' % (tag, k))
        a('s_waitcnt lgkmcnt(0)\ns_barrier')
        self.stamp(9)
        DE = self.val.get('de', '3')
        plan = {'0': [[], [], []], '1': [['o0','o1','o2'], ['e0','e1'], ['e2','e3','e4','o3','o4']], '2': [['o0','o1'], ['e0'], ['e1','e2']], '3': [['o0','o1'], [], []], '4': [['o0'], ['o1'], []]}[DE]
        done = set()
        def run(items):
            for it in items:
                done.add(it)
                if it[0] == 'o': self.ov_load(vm, int(it[1]), 2)
                else: dma_step(10, int(it[1]), 28, 'e')
        run(plan[0])
        for et in range(3):
            a('s_barrier')
            if et == 0: a('s_cmp_eq_u32 s%d, 0\ns_cbranch_scc0 L_dl_sk' % HH)
            for k in range(4): a('ds_read_b128 %s, v5 offset:%d' % (v(16+16*et+4*k,4), 2*k*LROW + et*512))
            for k in range(4):
                a('s_waitcnt lgkmcnt(%d)' % (3-k))
                a('buffer_store_dwordx4 %s, v8, %s, s%d offen offset:%d sc1' % (v(16+16*et+4*k,4), s(S_WS,4), 60+k, et*512))
            if et == 0: a.label('L_dl_sk')
            if et < 2: run(plan[et+1])
        a('s_waitcnt vmcnt(0)\ns_setprio 0\ns_barrier')
        self.stamp(4)
        a('s_cmp_eq_u32 s%d, 0\ns_cbranch_scc0 L_dl_nf2' % WAVE)
        self.setflag(6, 12, '-1')
        a.label('L_dl_nf2')
        self.stamp(3)
        for k in range(3): dma_step(0, k, 10, 'l')
        run([it for it in ['e0','e1','e2','e3','e4','o0','o1','o2','o3','o4'] if it not in done])
        self.stamp(2)
        a('s_branch L_p2_help')

    def dft_consumer(self):
        a = self.a
        ACC = 8
        MP, XP = 104, 152
        NP = 12
        a.label('L_dft_cons')
        a('s_sub_u32 s56, s%d, 4' % WAVE)
        a('s_setprio 1')
        a('v_and_b32 v208, 31, v0\nv_lshrrev_b32 v209, 5, v0\nv_bfe_u32 v210, v0, 1, 3\nv_xor_b32 v210, v210, v209')
        a('v_lshlrev_b32 v210, 4, v210\nv_lshl_add_u32 v210, v208, 7, v210')
        AM = [[211+4*k+u for u in range(4)] for k in range(3)]; AX = [2, 3, 4, 5]
        a('s_lshl_b32 s57, s56, 12\ns_add_u32 s57, s57, %d' % self.XFB)
        for u in range(4):
            a('v_xor_b32 v6, %d, v210' % (32*u))
            a('v_add_u32 v%d, s57, v6' % AX[u])
            for k in range(3): a('v_add_u32 v%d, %d, v6' % (AM[k][u], self.MB + 2*k*self.MSLOT))
        a('v_lshlrev_b32 v7, 2, v209\ns_mov_b32 s62, 0x3d000000')
        for k in range(16):
            r = 224 + k
            a('v_add_u32 v%d, %d, v7\nv_mul_u32_u24 v%d, v%d, v208\nv_and_b32 v%d, 31, v%d\nv_cvt_f32_u32 v%d, v%d\nv_mul_f32 v%d, s62, v%d' % (r, 8*(k>>2)+(k&3), r, r, r, r, r, r, r, r))
        if 'pf' in self.opt: a('s_waitcnt vmcnt(0)')
        for k in range(16):
            a('v_sin_f32 v%d, v%d\nv_cos_f32 v%d, v%d' % (240+k, 224+k, 224+k, 224+k))
        if 'dxt' in self.opt:
            a('s_lshl_b32 s57, s55, 1\ns_add_u32 s57, s57, s%d\ns_lshl_b32 s57, s57, 9\ns_lshl_b32 s58, s54, 2\ns_add_u32 s57, s57, s58\ns_add_u32 s57, s57, s56\ns_mul_i32 s57, s57, 1280' % HH)
            a('v_and_b32 v6, 7, v0\nv_mul_u32_u24 v6, 81920, v6\nv_lshrrev_b32 v162, 3, v0\nv_lshrrev_b32 v163, 2, v162\nv_add_u32 v162, v162, v163\nv_lshl_add_u32 v6, v162, 7, v6')
            a('buffer_load_dword v223, v6, %s, s57 offen offset:128' % s(S_X,4))
        a('s_lshl_b32 s57, s56, 7\ns_add_u32 s57, s57, %d' % self.DMISC)
        a('v_lshl_add_u32 v160, v209, 4, s57')
        a('v_mul_u32_u24 v161, %d, v208\nv_lshl_add_u32 v161, v209, 6, v161' % LROW)
        a('v_lshrrev_b32 v6, 3, v208\nv_add_u32 v6, s56, v6\nv_and_b32 v6, 3, v6\nv_lshl_add_u32 v161, v6, 2, v161')
        self.nonce()
        def accr(m): return ACC + 32*(m%3) + 16*(m//3)
        rd = []; need = []
        for c in range(5):
            for u in range(4):
                rd.append('ds_read_b128 %s, v%d offset:%d' % (v(XP+4*(u&1),4), AX[u], (c&1)*self.XFS))
                for m in range(6):
                    rd.append('ds_read_b128 %s, v%d offset:%d' % (v(MP+4*((6*u+m)%NP),4), AM[c>>1][u], (c&1)*self.MSLOT + m*4096))
                    need.append(len(rd)-1)
        RR = 168
        rr_reads = ['ds_read_b128 %s, v160 offset:%d' % (v(RR+4*k,4), 32*k) for k in range(4)]
        LA = 5
        a('s_barrier')
        self.stamp(1)
        for r in rd[:7]: a(r)
        issued = 7; done = 0
        a.align(3)
        for g in range(120):
            c, mu = divmod(g, 24); u, m = divmod(mu, 6)
            if mu == 21:
                a('s_waitcnt lgkmcnt(0)\ns_barrier'); done = issued
                self.stamp(5+c)
                if c < 4:
                    for _ in range(7): a(rd[issued]); issued += 1
                else:
                    for r in rr_reads: a(r)
            elif need[g] >= done:
                a('s_waitcnt lgkmcnt(%d)' % (issued - need[g] - 1)); done = need[g] + 1
            a('v_mfma_f32_32x32x16_bf16 %s, %s, %s, %s' % (v(accr(m),16), v(XP+4*(u&1),4), v(MP+4*(mu%NP),4), v(accr(m),16) if g >= 6 else '0'))
            if mu < 21:
                tgt = min(28*(c+1), need[g+1] + LA + 1)
                while issued < tgt: a(rd[issued]); issued += 1
        self.stamp(2)
        a.label('L_dc_epi')
        CC, SS, NS = 184, 192, 200
        a('s_waitcnt lgkmcnt(0)')
        for k in range(8):
            a('v_pk_mul_f32 %s, %s, %s' % (v(224+2*k,2), v(224+2*k,2), v(RR+2*k,2)))
            a('v_pk_mul_f32 %s, %s, %s' % (v(240+2*k,2), v(240+2*k,2), v(RR+2*k,2)))
        for k in range(8):
            a('v_cvt_pk_bf16_f32 v%d, v%d, v%d' % (CC+k, 224+2*k, 225+2*k))
            a('v_cvt_pk_bf16_f32 v%d, v%d, v%d' % (SS+k, 240+2*k, 241+2*k))
            a('v_xor_b32 v%d, 0x80008000, v%d' % (NS+k, SS+k))
        def zc(et):
            A0 = ACC + 32*et; Z = 104 + 16*et; o = []
            for k in range(8):
                o.append('v_cvt_pk_bf16_f32 v%d, v%d, v%d' % (Z+k, A0+2*k, A0+2*k+1))
                o.append('v_cvt_pk_bf16_f32 v%d, v%d, v%d' % (Z+8+k, A0+16+2*k, A0+16+2*k+1))
            return o
        for l in zc(0): a(l)
        a('s_nop 1')
        for et in range(3):
            A0 = ACC + 32*et; Z = 104 + 16*et
            RE, IM = A0, A0+16
            ms = [(RE,Z,CC,0),(IM,Z+8,CC,0),(RE,Z+4,CC+4,1),(IM,Z+12,CC+4,1),(RE,Z+8,SS,1),(IM,Z,NS,1),(RE,Z+12,SS+4,1),(IM,Z+4,NS+4,1)]
            fill = (zc(et+1) if et < 2 else ['s_nop 3']) + (self._dft_out(ACC + 32*(et-1), et-1) if et > 0 else [])
            per = -(-len(fill)//8)
            for i, (D, A_, B_, ac) in enumerate(ms):
                a('v_mfma_f32_32x32x16_bf16 %s, %s, %s, %s' % (v(D,16), v(A_,4), v(B_,4), v(D,16) if ac else '0'))
                for f in fill[per*i:per*i+per]: a(f)
            if et > 0: a('s_waitcnt lgkmcnt(0)\ns_barrier')
        a.nop(12)
        for f in self._dft_out(ACC + 64, 2): a(f)
        a('s_waitcnt lgkmcnt(0)\ns_barrier')
        a('s_setprio 0')
        self.stamp(3)
        a('s_barrier')
        a('s_branch L_p2_mfma')
        a.label('L_dc_end')

    def _dft_out(self, A0, et):
        o = []
        for r in range(16):
            o.append('v_cvt_pk_bf16_f32 v%d, v%d, v%d' % (A0+r, A0+r, A0+16+r))
            o.append('ds_write_b32 v161, v%d offset:%d' % (A0+r, (32*et + 8*(r>>2) + (r&3))*16))
        return o

    TW, GV, XV = 232, 248, 228
    def p2_prep(self):
        a = self.a; TW, GV, XV = self.TW, self.GV, self.XV
        J, G_, A, B, C, D = 217, 218, 219, 220, 221, 222
        TM = 223
        a('s_and_b32 s41, s%d, 1\ns_lshr_b32 s42, s%d, 1' % (WAVE, WAVE))
        a('s_lshl_b32 s38, s%d, 9\ns_add_u32 s38, s38, 0x%x' % (T1, DFLAG))
        a('s_lshl_b32 s43, s41, 1\ns_add_u32 s44, s43, s42\ns_sub_u32 s43, s43, s42\ns_add_u32 s43, s43, 1')
        a('v_and_b32 v%d, 15, v0\nv_lshrrev_b32 v%d, 4, v0' % (J, G_))
        a('s_lshl_b32 s39, s44, 9\ns_add_u32 s39, s39, s%d\ns_mul_i32 s39, s39, 1280\ns_mul_i32 s53, s%d, 160\ns_add_u32 s39, s39, s53' % (T1, CS))
        a('s_mul_i32 s40, s%d, 3072\ns_add_u32 s40, s40, %d' % (WAVE, self.MISC + 4096))
        for m in range(3):
            a('v_add_u32 v%d, %d, v0\nv_min_u32 v%d, 159, v%d\nv_mul_u32_u24 v%d, 205, v%d\nv_lshrrev_b32 v%d, 11, v%d' % (A, 64*m, A, A, B, A, B, B))
            a('v_mul_u32_u24 v%d, %d, v%d\nv_lshl_add_u32 v%d, v%d, 4, v%d' % (B, 40960-160, B, XV+m, A, B))
        a('v_mul_u32_u24 v%d, 160, v%d\nv_lshl_add_u32 v%d, v%d, 3, v%d\nv_add_u32 v%d, s40, v%d' % (A, J, A, G_, A, XV+3, A))
        a('s_lshr_b32 s45, s%d, 2\ns_lshl_b32 s47, s45, 31\ns_or_b32 s47, s47, 0x3a000000' % CS)
        a('s_mul_i32 s46, s45, 640\ns_lshl_b32 s45, s45, 1\ns_sub_u32 s45, 1, s45')
        a('s_mul_i32 s53, s%d, 80' % CS)
        a('v_mul_u32_u24 v%d, %d, v%d' % (D, 2*GBLK, G_))
        for n in range(5):
            a('v_add_u32 v%d, s53, v%d\nv_add_u32 v%d, %d, v%d' % (A, J, A, 16*n, A))
            a('v_mul_lo_u32 v%d, v%d, s45\nv_add_u32 v%d, s46, v%d' % (A, A, A, A))
            a('v_and_b32 v%d, 1, v%d\nv_mul_u32_u24 v%d, %d, v%d\nv_add_u32 v%d, v%d, v%d' % (B, A, B, GBLK, B, B, B, D))
            a('v_lshrrev_b32 v%d, 1, v%d\nv_cmp_eq_u32 vcc, 160, v%d\ns_nop 1\nv_cndmask_b32 v%d, v%d, 0, vcc' % (C, A, C, C, C))
            a('v_lshl_add_u32 v%d, v%d, 4, v%d' % (GV+n, C, B))
            if n == 0:
                a('v_cmp_eq_u32 vcc, 0, v%d\nv_mov_b32 v%d, 0x%x\ns_nop 0\nv_cndmask_b32 v%d, v%d, v%d, vcc' % (A, C, OOB, GV, GV, C))
        a('s_mul_i32 s45, s45, s%d\ns_and_b32 s45, s45, 31' % T1)
        a('s_mul_i32 s36, s45, %d\ns_mul_i32 s37, s42, %d\ns_add_u32 s36, s36, s37\ns_add_u32 s36, s36, 0x%x\ns_add_u32 s37, s36, %d' % (GROW, 16*GBLK, G16, 8*GBLK))
        a('s_lshr_b32 s45, s45, 3')
        for t in range(2):
            a('s_lshl_b32 s53, s%d, 9\ns_add_u32 s53, s53, s%d\nv_lshl_add_u32 v%d, v%d, 5, s53' % (44 - t, T1, A+t, J))
        for i in range(4):
            a('s_sub_u32 s53, %d, s45\ns_and_b32 s53, s53, 3\ns_lshl_b32 s46, s42, 5\ns_add_u32 s53, s53, s46' % (i+4))
            a('v_lshl_add_u32 v%d, v%d, 2, s53\nv_add_u32 v%d, 16, v%d' % (C, G_, D, C))
            for t in range(2):
                for d in range(2):
                    r = TM + 2*d
                    a('v_mul_u32_u24 v%d, v%d, v%d' % (r, A+t, C+d))
                    a('v_and_b32 v%d, 2047, v%d\nv_cvt_f32_u32 v%d, v%d\nv_mul_f32 v%d, s47, v%d' % (r, r, r, r, r, r))
                    a('v_sin_f32 v%d, v%d\nv_cos_f32 v%d, v%d' % (r+1, r, r, r))
                a('s_nop 0')
                for d in range(2):
                    a('v_cvt_pk_bf16_f32 v%d, v%d, v%d' % (TW+(t*2+d)*4+i, TM+2*d, TM+2*d+1))

    def p2_help(self):
        a = self.a
        a.label('L_p2_help')
        if self.stage == 'p1':
            a('s_waitcnt vmcnt(0)'); self.dump_stamps(); a('s_endpgm'); return
        ACC, G, TW, OV, GV, XV = 16, 56, self.TW, self.OV, self.GV, self.XV
        def acc(t, n): return ACC + (t*5+n)*4
        a('s_and_b32 s56, s%d, 1\ns_lshr_b32 s57, s%d, 1\nv_lshlrev_b32 v1, 3, v0' % (WAVE, WAVE))
        for m in range(3):
            a('s_add_u32 m0, s40, %d\ns_nop 0\nbuffer_load_dwordx4 v%d, %s, s39 offen lds' % (1024*m, XV+m, s(S_X,4)))
        a('s_mul_i32 s61, s57, 71680\ns_mul_i32 s62, s56, 5120\ns_add_u32 s61, s61, s62\nv_add_u32 v6, s61, v2')
        a('s_mul_i32 s61, s56, 71680\ns_mul_i32 s62, s57, 15360\ns_add_u32 s62, s62, s61\ns_add_u32 s62, s62, 51200\nv_add_u32 v7, s62, v2')
        a('s_mul_i32 s62, s57, 5120\ns_sub_u32 s62, s61, s62\ns_add_u32 s62, s62, 61440\nv_add_u32 v8, s62, v2')
        a('s_waitcnt vmcnt(0)')
        self.stamp(5)
        for n in range(5): a('ds_read_b64 %s, v%d offset:%d' % (v(96+2*n,2), XV+3, 32*n))
        if 'nos' not in self.opt:
            a('s_cmp_ge_u32 s%d, 24\ns_cbranch_scc1 L_p2_sx\nv_mov_b32 v12, %d\ns_mov_b32 s53, 0' % (IDX, self.MISC + 3072))
            a.label('L_p2_sq')
            a('ds_read_b32 v13, v12\ns_add_u32 s53, s53, 1\ns_cmp_gt_u32 s53, 0x%x\ns_cbranch_scc1 L_p2_sx\ns_waitcnt lgkmcnt(0)' % SPIN_MAX)
            a('v_cmp_ne_u32 vcc, 4, v13\ns_cbranch_vccz L_p2_sx\ns_sleep 1\ns_branch L_p2_sq')
            a.label('L_p2_sx')
        self.spin('L_p2_pd', 1, 254, 's38', 8)
        self.stamp(6)
        for d in range(2):
            for n in range(5):
                a('buffer_load_dwordx4 %s, v%d, %s, s%d offen %s' % (v(G+(d*5+n)*4,4), GV+n, s(S_WS,4), 36+d, self.bf))
        a('s_waitcnt lgkmcnt(0)')
        for n in range(5):
            for k in range(2):
                a('v_lshlrev_b32 v%d, 16, v%d\nv_and_b32 v%d, 0xffff0000, v%d' % (acc(0,n)+2*k, 96+2*n+k, acc(0,n)+2*k+1, 96+2*n+k))
        self.stamp(7)
        a('s_barrier')
        self.stamp(8)
        a('s_waitcnt vmcnt(0)')
        for d in range(2):
            for n in range(5):
                for t in range(2):
                    a('v_mfma_f32_16x16x32_bf16 %s, %s, %s, %s' % (v(acc(t,n),4), v(G+(d*5+n)*4,4), v(TW+(t*2+d)*4,4), v(acc(t,n),4) if (t == 0 or d) else '0'))
        w = ['ds_write_b128 v6, %s offset:%d' % (v(OV+4*g,4), (g//5)*10240 + (g%5)*1024) for g in range(25)]
        w += ['ds_write_b128 v%d, %s offset:%d' % (7+t, v(acc(t,n),4), n*1024) for t in range(2) for n in range(5)]
        for lo, hi in ((0,8),(8,16),(16,24),(24,30),(30,35)):
            a('s_barrier')
            for l in w[lo:hi]: a(l)
            a('s_waitcnt lgkmcnt(0)')
        a('s_barrier')
        a('s_or_b32 s53, s2, s%d\ns_cmp_eq_u32 s53, 0\ns_cbranch_scc0 L_ph_x' % WAVE)
        a('v_mov_b32 v2, 0x%x' % EPOCH)
        self.setflag(2, 4)
        a.label('L_ph_x')
        self.dump_stamps()
        a('s_endpgm')

    def p2_mfma(self):
        a = self.a
        a.label('L_p2_mfma')
        if self.stage == 'p1':
            self.dump_stamps(); a('s_endpgm'); return
        ACC, WB, H = 16, 56, 136
        NH, NWB = 14, 4
        def acc(t, n): return ACC + (t*5+n)*4
        a('s_setprio %s' % self.val.get('mp', '1'))
        a('s_and_b32 s56, s%d, 1\ns_bfe_u32 s57, s%d, 0x10001\nv_lshlrev_b32 v2, 4, v0' % (WAVE, WAVE))
        self.p2_coords()
        a('s_lshl_b32 s58, s56, 1\ns_add_u32 s59, s58, s57\ns_sub_u32 s58, s58, s57\ns_add_u32 s58, s58, 1')
        a('s_lshl_b32 s61, s%d, 2\ns_add_u32 s62, s61, s59\ns_mul_i32 s62, s62, 49152\nv_add_u32 v6, s62, v2' % T1)
        a('s_add_u32 s62, s61, s58\ns_mul_i32 s62, s62, 49152\nv_add_u32 v7, s62, v2')
        a('s_mul_i32 s62, s57, 24\ns_sub_u32 s62, s62, s76\ns_lshl_b32 s62, s62, 10\ns_add_u32 s63, s62, 0x%x\ns_add_u32 s62, s62, 0x%x' % (HF, HF + 24576))
        a('s_mul_i32 s61, s57, 71680\nv_add_u32 v3, s61, v2\nv_add_u32 v4, 0xc800, v3')
        a('s_lshl_b32 s60, s59, 9\ns_add_u32 s60, s60, s%d\ns_mul_i32 s60, s60, 1280\ns_mul_i32 s61, s%d, 160\ns_add_u32 s60, s60, s61' % (T1, CS))
        a('s_and_b32 s74, s%d, 3\ns_xor_b32 s73, s74, 2\ns_mul_i32 s73, s73, 5120\ns_add_u32 s73, s73, 143360' % WAVE)
        a('s_mul_i32 s74, s74, 5120\ns_add_u32 s74, s74, 143360')
        for m in range(3):
            a('v_add_u32 v8, %d, v0\nv_mul_u32_u24 v9, 205, v8\nv_lshrrev_b32 v9, 11, v9' % (64*m))
            a('v_mul_u32_u24 v%d, 10, v9\nv_sub_u32 v8, v8, v%d\nv_lshlrev_b32 v8, 4, v8' % (10+m, 10+m))
            a('v_mul_u32_u24 v%d, 40960, v9\nv_add_u32 v%d, v%d, v8' % (10+m, 10+m, 10+m))
            a('v_mul_u32_u24 v9, 176, v9\nv_add3_u32 v%d, v9, v8, s74' % (13+m))
        a('v_cmp_gt_u32 vcc, 32, v0\nv_mov_b32 v8, 0x%x\ns_nop 0\nv_cndmask_b32 v12, v8, v12, vcc' % OOB)
        a('v_and_b32 v8, 15, v0\nv_mul_u32_u24 v8, 176, v8\nv_lshrrev_b32 v9, 4, v0\nv_lshl_add_u32 v8, v9, 3, v8\nv_add_u32 v8, s74, v8')
        a('v_add_u32 v9, s73, v2\nv_add_u32 v5, s74, v2')
        a('s_mul_i32 s61, s56, 71680\ns_mul_i32 s53, s57, 10240\ns_add_u32 s61, s61, s53\ns_add_u32 s61, s61, 51200\nv_add_u32 v1, s61, v2')
        a('s_cmp_eq_u32 s%d, 4\ns_cbranch_scc0 L_p2_nf' % WAVE)
        hf = self.val.get('hf', 'p')
        a('s_lshr_b32 s61, s%d, 1\ns_lshl_b32 s61, s61, %d\ns_add_u32 s61, s61, 0x%x' % (T1, {'p': 9, 'w': 11, 'l': 13}[hf], 0 if hf == 'p' else 0xa0000))
        a('v_min_u32 v250, 47, v0')
        if hf == 'w': a('v_and_b32 v251, 3, v250\nv_lshrrev_b32 v250, 2, v250\nv_lshlrev_b32 v250, 7, v250\nv_lshl_add_u32 v250, v251, 3, v250')
        else: a('v_lshlrev_b32 v250, %d, v250' % (3 if hf == 'p' else 7))
        self.spin('L_p2_pf', 250, 254, 's61', int(self.val.get('hs', 1)))
        a.label('L_p2_nf')
        a('s_barrier')
        self.stamp(8)
        vm = VM(a)
        def hload(j):
            a('s_cmp_le_u32 s76, %d\ns_cselect_b32 s61, s63, s62\ns_add_u32 s61, s61, %d' % (j, j*1024))
            for t in range(2):
                vm.op('buffer_load_dwordx4 %s, v%d, %s, s61 offen %s' % (v(H+(j%NH)*8+4*t,4), 6+t, s(S_WS,4), self.bf), j)
        def wread(j):
            sl = j if j < 14 else j - 14
            return ['ds_read_b128 %s, v%d offset:%d' % (v(WB+(j%NWB)*20+4*n,4), 3 if sl < 10 else 4, (sl if sl < 10 else sl-10)*5120 + n*1024) for n in range(5)]
        PRE = int(self.val.get('hpre', self.h_pre))
        for j in range(PRE): hload(j)
        for j in range(2):
            for r in wread(j): a(r)
        nxt = PRE
        for j in range(24):
            vm.wait(j, 'lgkmcnt(%d)' % (5 if j < 23 else 0))
            if j in (0, 4, 9, 17): self.stamp({0: 9, 4: 10, 9: 11, 17: 12}[j])
            if j in (3, 7, 11, 15, 19): a('s_barrier')
            rd = wread(j+2) if j < 22 else []
            k = 0
            for n in range(5):
                for t in range(2):
                    a('v_mfma_f32_16x16x32_bf16 %s, %s, %s, %s' % (v(acc(t,n),4), v(WB+(j%NWB)*20+4*n,4), v(H+(j%NH)*8+4*t,4), v(acc(t,n),4) if j else '0'))
                    if k < len(rd): a(rd[k]); k += 1
                    elif k in (5, 7) and nxt < 24 and nxt < j + NH and (k == 5 or nxt <= j + NH - 2):
                        hload(nxt); nxt += 1; k += 1
                    else: k += 1
        assert nxt == 24
        self.stamp(13)
        a.nop(7)
        for n in range(5): a('ds_write_b128 v9, %s offset:%d' % (v(acc(1,n),4), n*1024))
        a('s_waitcnt lgkmcnt(0)\ns_barrier')
        for n in range(5):
            a('ds_read_b128 %s, v1 offset:%d' % (v(WB+12*n,4), n*1024))
            a('ds_read_b128 %s, v1 offset:%d' % (v(WB+12*n+4,4), 5120 + n*1024))
            a('ds_read_b128 %s, v5 offset:%d' % (v(WB+12*n+8,4), n*1024))
        for n in range(5):
            a('s_waitcnt lgkmcnt(%d)' % (12-2*n))
            for k in range(2):
                a('v_pk_add_f32 %s, %s, %s' % (v(WB+12*n+2*k,2), v(WB+12*n+2*k,2), v(WB+12*n+4+2*k,2)))
                a('v_pk_add_f32 %s, %s, %s' % (v(acc(0,n)+2*k,2), v(acc(0,n)+2*k,2), v(WB+12*n+8+2*k,2)))
            for k in range(2): a('v_pk_add_f32 %s, %s, %s' % (v(acc(0,n)+2*k,2), v(acc(0,n)+2*k,2), v(WB+12*n+2*k,2)))
            for k in range(2): a('v_cvt_pk_bf16_f32 v%d, v%d, v%d' % (acc(1,n)+k, acc(0,n)+2*k, acc(0,n)+2*k+1))
            a('ds_write_b64 v8, %s offset:%d' % (v(acc(1,n),2), 32*n))
        a('s_waitcnt lgkmcnt(0)')
        for m in range(3): a('ds_read_b128 %s, v%d' % (v(WB+4*m,4), 13+m))
        for m in range(3):
            a('s_waitcnt lgkmcnt(%d)' % (2-m))
            a('buffer_store_dwordx4 %s, v%d, %s, s60 offen %s' % (v(WB+4*m,4), 10+m, s(S_OUT,4), self.val.get('of', '').replace('+', ' ')))
        if self.stamps: a('s_waitcnt vmcnt(0)')
        self.dump_stamps()

    h_pre = 10

    def build(self, header):
        a = self.a
        self.prologue()
        self.ffn_wloader(); self.ffn_xloader(); self.dft_loader()
        self.dft_consumer(); self.ffn_consumer()
        self.p2_help(); self.p2_mfma()
        a.label('L_end')
        a('s_endpgm')
        errs = check(a.lines)
        for e in errs: print(e, file=sys.stderr)
        txt = header + '; @launch grid=(256,1,1) block=(512,1,1) lds=163840\n'
        txt += '.amdgcn_target "amdgcn-amd-amdhsa--gfx950"\n.text\n.globl %s\n.p2align 8\n.type %s,@function\n%s:\n' % (KN, KN, KN)
        txt += a.text()
        txt += '''.section .rodata,"a"
.p2align 6
.amdhsa_kernel %s
  .amdhsa_next_free_vgpr 256
  .amdhsa_next_free_sgpr 102
  .amdhsa_accum_offset 256
  .amdhsa_group_segment_fixed_size 0
  .amdhsa_kernarg_size 96
  .amdhsa_user_sgpr_count 2
  .amdhsa_user_sgpr_kernarg_segment_ptr 1
  .amdhsa_system_sgpr_workgroup_id_x 1
.end_amdhsa_kernel
''' % KN
        return txt, errs

if __name__ == '__main__':
    import argparse
    ap = argparse.ArgumentParser()
    ap.add_argument('-o', default='k.s'); ap.add_argument('--stage', default='full'); ap.add_argument('--stamps', action='store_true'); ap.add_argument('--opt', default='')
    args = ap.parse_args()
    ref = open('parallel_sum__spectral_fnet__swiglu_ffn__prompt.s.ref').read()
    header = ''.join(l + '\n' for l in ref.split('\n') if l.startswith(';') and '@launch' not in l and 'Override launch' not in l and 'grid=ceil' not in l)
    txt, errs = Gen(args.stage, args.stamps, [o for o in args.opt.split(',') if o]).build(header)
    open(args.o, 'w').write(txt)
    print('written', args.o, 'hazard errors:', len(errs))
```

```python
import sys
from dsl import *

KN = 'parallel_sum__spectral_fnet__swiglu_ffn__prompt_kernel'
HFLAG   = 0x0
EPOCH   = 0x18000
SFLAG   = 0x8000
STATS   = 0x20000
COLSUM  = 0x28000
STAMPS  = 0x60000
DFLAG   = 0x80000
WDF     = 0x100000
G16     = 0x300000
HF      = 0x600000
WS_SIZE = 0xC00000
LROW = 97*16
GROW = 160*16
GBLK = 32*GROW
SPIN_MAX = 0x10000
OOB = 0x7ffffff0

S_X, S_WS, S_OUT, S_A = 4, 8, 16, 20
NONCE = 12
P_X, P_HRE, P_HIM, P_WG, P_WU, P_WD, P_OUT, P_DBG, P_WS = 28, 32, 34, 36, 38, 40, 42, 44, 46
WAVE, XCD, IDX = 48, 49, 50
T1, CS = 51, 52
HH, DID = 14, 15

class VM:
    def __init__(self, a): self.a = a; self.q = []
    def op(self, txt, tag): self.a(txt); self.q.append(tag)
    def wait(self, tag, extra=''):
        idx = max([i for i, t in enumerate(self.q) if t == tag], default=-1)
        if idx < 0:
            if extra: self.a('s_waitcnt ' + extra)
            return
        n = len(self.q) - idx - 1
        assert n <= 63
        self.a('s_waitcnt vmcnt(%d) %s' % (n, extra))
        self.q = self.q[idx+1:]
    def drained(self): self.q = []

class Gen:
    def __init__(self, stage='full', stamps=False, opt=()):
        self.a = Asm(); self.stage = stage; self.stamps = stamps; self.opt = set(o.split('=')[0] for o in opt); self.val = dict(o.split('=') for o in opt if '=' in o)
        self.bf = '' if 'plain' in self.opt else 'sc1'
        if 'ph8' not in self.opt:
            self.opt |= ({'ph2', 'pfw', 'nowd'} if 'pf' in self.opt else {'ph2', 'ft', 'nowd'})
            for k, d in (('fb','7'),('pf0','2')): self.val.setdefault(k, d)

    def srd(self, dst, ptr, size):
        a = self.a
        a('s_mov_b32 %s, %s' % (s(dst), s(ptr)))
        a('s_mov_b32 %s, %s' % (s(dst+1), s(ptr+1)))
        a('s_mov_b32 %s, 0x%x' % (s(dst+2), size))
        a('s_mov_b32 %s, 0x20000' % s(dst+3))

    def stamp(self, k):
        if self.stamps:
            self.a('%s s[98:99]\ns_waitcnt lgkmcnt(0)\ns_mov_b32 s%d, s98' % ('s_memtime' if 'cyc' in self.opt else 's_memrealtime', 80+k))

    def dump_stamps(self):
        if not self.stamps: return
        a = self.a
        a('s_memtime s[96:97]\ns_waitcnt lgkmcnt(0)\ns_sub_u32 s95, s96, s95')
        a('s_lshl_b32 s96, s2, 3\ns_add_u32 s96, s96, s%d\ns_lshl_b32 s96, s96, 6\ns_add_u32 s96, s96, 0x%x' % (WAVE, STAMPS))
        self.stamp(14)
        if 'probe' in self.opt:
            self.nprobe = getattr(self, 'nprobe', 0) + 1
            k = int(self.val['probe']); L = 'L_pr%d' % self.nprobe
            a('s_cmp_eq_u32 s2, %s\ns_cbranch_scc0 %s_x\ns_cmp_eq_u32 s%d, %s\ns_cbranch_scc0 %s_x' % (self.val.get('pwg', '0'), L, WAVE, self.val.get('pwave', '4'), L))
            a('s_sub_u32 s60, s%d, s80\ns_mul_i32 s60, s60, 10\ns_add_u32 s60, s60, 6000' % (80+k))
            a.label(L)
            a('s_memrealtime s[98:99]\ns_waitcnt lgkmcnt(0)\ns_sub_u32 s61, s98, s80\ns_cmp_lt_u32 s61, s60\ns_cbranch_scc1 %s' % L)
            a.label(L + '_x')
        for k in range(16): a('v_mov_b32 v%d, s%d' % (100+k, 80+k))
        a('v_mov_b32 v99, s96')
        a('s_mov_b64 exec, 1')
        for k in range(4): a('buffer_store_dwordx4 v[%d:%d], v99, %s, 0 offen offset:%d' % (100+4*k, 103+4*k, s(S_WS,4), 16*k))
        a('s_waitcnt vmcnt(0)')

    def nonce(self):
        self.a('s_waitcnt lgkmcnt(0)\ns_add_u32 s12, s12, 1\ns_add_u32 s13, s13, 1')

    def spin(self, lbl, va, vd, soff, sleep, first_done=False):
        a = self.a
        a('s_mov_b32 s53, 0')
        if first_done: a('s_branch %s_c' % lbl)
        a.label(lbl)
        a('buffer_load_dwordx2 %s, v%d, %s, %s offen sc1' % (v(vd,2), va, s(S_WS,4), soff))
        a('s_add_u32 s53, s53, 1\ns_cmp_gt_u32 s53, 0x%x\ns_cbranch_scc1 %s_x' % (SPIN_MAX, lbl))
        a('s_waitcnt vmcnt(0)')
        a.label(lbl + '_c')
        a('v_cmp_ne_u64 vcc, s[12:13], %s' % v(vd,2))
        a('s_cbranch_vccz %s_x\ns_sleep %d\ns_branch %s' % (lbl, sleep, lbl))
        a.label(lbl + '_x')

    def spin3(self, lbl, va, vd, first_done=False):
        a = self.a
        a('s_mov_b32 s53, 0')
        if first_done: a('s_branch %s_c' % lbl)
        a.label(lbl)
        for k in range(3): a('buffer_load_dwordx2 %s, v%d, %s, 0 offen sc1' % (v(vd+2*k,2), va[k], s(S_WS,4)))
        a('s_add_u32 s53, s53, 1\ns_cmp_gt_u32 s53, 0x%x\ns_cbranch_scc1 %s_x' % (SPIN_MAX, lbl))
        a('s_waitcnt vmcnt(0)')
        a.label(lbl + '_c')
        a('v_cmp_ne_u64 vcc, s[12:13], %s\nv_cmp_ne_u64 s[68:69], s[12:13], %s\ns_nop 0\ns_or_b64 vcc, vcc, s[68:69]' % (v(vd,2), v(vd+2,2)))
        a('v_cmp_ne_u64 s[68:69], s[12:13], %s\ns_nop 0\ns_or_b64 vcc, vcc, s[68:69]' % v(vd+4,2))
        a('s_cbranch_vccz %s_x\ns_sleep 8\ns_branch %s' % (lbl, lbl))
        a.label(lbl + '_x')

    def setflag(self, va, vd, mask='1'):
        a = self.a
        a('v_mov_b32 v%d, s12\nv_mov_b32 v%d, s13' % (vd, vd+1))
        a('s_mov_b64 exec, %s' % mask)
        a('buffer_store_dwordx2 %s, v%d, %s, 0 offen sc1' % (v(vd,2), va, s(S_WS,4)))
        a('s_mov_b64 exec, -1')

    def prologue(self):
        a = self.a
        if 'early0' in self.opt: a('s_memrealtime s[100:101]')
        a('s_load_dwordx2 s[28:29], s[0:1], 0')
        a('s_load_dwordx4 s[36:39], s[0:1], 48')
        a('s_load_dwordx8 s[40:47], s[0:1], 64')
        a('s_load_dwordx4 s[32:35], s[0:1], 24')
        a('s_cmp_ge_u32 s2, 256\ns_cbranch_scc1 L_end')
        a('v_lshrrev_b32 v1, 6, v0\nv_and_b32 v0, 63, v0')
        a('v_readfirstlane_b32 s%d, v1' % WAVE)
        a('s_and_b32 s%d, s2, 7\ns_lshr_b32 s%d, s2, 3' % (XCD, IDX))
        if self.stamps:
            for k in range(16): a('s_mov_b32 s%d, 0' % (80+k))
            a('s_memtime s[96:97]\ns_waitcnt lgkmcnt(0)\ns_mov_b32 s95, s96')
        a('s_cmp_eq_u32 s%d, 7\ns_cbranch_scc0 L_nopf' % WAVE)
        a('s_getpc_b64 s[54:55]')
        a.label('L_pc')
        a('s_mul_i32 s53, s%d, %d' % (IDX, 14*128))
        a('v_min_u32 v2, 13, v0\nv_lshl_add_u32 v2, v2, 7, s53\nv_min_u32 v2, L_end-L_pc, v2')
        a('global_load_dword v1, v2, s[54:55]')
        a.label('L_nopf')
        a('s_mul_i32 s54, s%d, 43\ns_lshr_b32 s54, s54, 7' % IDX)
        a('s_mul_i32 s55, s54, 3\ns_sub_u32 s55, s%d, s55' % IDX)
        a('s_and_b32 s56, s%d, 1\ns_lshl_b32 s56, s56, 3\ns_add_u32 s54, s54, s56' % XCD)
        a('s_lshr_b32 s56, s%d, 1\ns_mul_i32 s56, s56, 3\ns_add_u32 s55, s55, s56' % XCD)
        if 'map48' in self.opt:
            a('s_lshr_b32 s%d, s%d, 3\ns_lshl_b32 s53, s%d, 2\ns_add_u32 s%d, s%d, s53\ns_and_b32 s%d, s%d, 7' % (T1, IDX, XCD, T1, T1, CS, IDX))
        else:
            a('s_lshr_b32 s%d, s%d, 2\ns_lshr_b32 s53, s%d, 1\ns_lshl_b32 s53, s53, 3\ns_add_u32 s%d, s%d, s53' % (T1, IDX, XCD, T1, T1))
            a('s_and_b32 s%d, s%d, 3\ns_and_b32 s53, s%d, 1\ns_lshl_b32 s53, s53, 2\ns_add_u32 s%d, s%d, s53' % (CS, IDX, XCD, CS, CS))
        a('s_mov_b32 s%d, 0x%x\ns_mov_b32 s%d, 0x20000' % (S_X+2, 2048*640*2, S_X+3))
        a('s_mov_b32 s%d, 0x%x\ns_mov_b32 s%d, 0x20000' % (S_WS+2, WS_SIZE, S_WS+3))
        a('s_mov_b32 s%d, 0x%x\ns_mov_b32 s%d, 0x20000' % (S_OUT+2, 2048*640*2, S_OUT+3))
        a('s_mov_b32 s%d, 0x20000' % (S_A+3))
        a('s_waitcnt lgkmcnt(0)')
        self.stamp(0)
        if 'early0' in self.opt: a('s_mov_b32 s93, s80\ns_mov_b32 s80, s100')
        a('s_load_dwordx2 s[12:13], s[46:47], 0x%x' % EPOCH)
        for d, p in ((S_X, P_X), (S_WS, P_WS), (S_OUT, P_OUT)):
            a('s_mov_b32 s%d, s%d\ns_mov_b32 s%d, s%d' % (d, p, d+1, p+1))
        a('s_cmp_ge_u32 s%d, 24\ns_cbranch_scc1 L_notffn' % IDX)
        a('s_cmp_lt_u32 s%d, 2\ns_cbranch_scc1 L_ffn_wl' % WAVE)
        a('s_cmp_lt_u32 s%d, 4\ns_cbranch_scc1 L_ffn_xl' % WAVE)
        a('s_branch L_ffn_cons')
        a.label('L_notffn')
        if 'ffnonly' in self.opt: a('s_endpgm')
        a('s_and_b32 s54, s%d, 3\ns_lshr_b32 s55, s%d, 2\ns_lshl_b32 s55, s55, 3\ns_add_u32 s54, s54, s55' % (IDX, XCD))
        a('s_and_b32 s55, s%d, 1\ns_lshl_b32 s55, s55, 2\ns_add_u32 s54, s54, s55\ns_bfe_u32 s55, s%d, 0x10001' % (XCD, XCD))
        a('s_bfe_u32 s%d, s%d, 0x10002\ns_lshl_b32 s%d, s54, 1\ns_add_u32 s%d, s%d, s55\ns_lshl_b32 s%d, s%d, 1\ns_add_u32 s%d, s%d, s%d' % (HH, IDX, DID, DID, DID, DID, DID, DID, DID, HH))
        if 'pf' in self.opt: self.prefetch()
        a('s_cmp_lt_u32 s%d, 4\ns_cbranch_scc1 L_dft_ld' % WAVE)
        a('s_branch L_dft_cons')

    WSLOT, NWS = 16384, 6
    XB, XSLOT, NXS = 98304, 16384, 3
    MISC = 147456

    def wvoff(self, dst0, rowbytes, tmp):
        a = self.a
        t = tmp
        a('v_lshrrev_b32 v%d, 3, v0' % t)
        a('v_bfe_u32 v%d, v0, 4, 1' % (t+1))
        a('v_bfe_u32 v%d, v0, 1, 2' % (t+2))
        a('v_xor_b32 v%d, v%d, v%d' % (t+2, t+2, t+1))
        a('v_and_b32 v%d, 1, v0' % (t+1))
        a('v_lshlrev_b32 v%d, 4, v%d' % (t+1, t+1))
        a('v_lshl_add_u32 v%d, v%d, 5, v%d' % (t+2, t+2, t+1))
        a('v_mul_u32_u24 v%d, %d, v%d' % (t, rowbytes, t))
        a('v_add_u32 v%d, v%d, v%d' % (dst0, t, t+2))
        a('v_xor_b32 v%d, 64, v%d' % (t+2, t+2))
        a('v_add_u32 v%d, v%d, v%d' % (dst0+1, t, t+2))
        a('v_add_u32 v%d, %d, v%d' % (dst0+1, 8*rowbytes, dst0+1))
        a('v_add_u32 v%d, %d, v%d' % (dst0+2, 16*rowbytes, dst0))
        a('v_add_u32 v%d, %d, v%d' % (dst0+3, 16*rowbytes, dst0+1))

    def phase(self, dst):
        a = self.a
        a('s_mul_i32 s64, s%d, 43\ns_lshr_b32 s64, s64, 7\ns_mul_i32 s65, s64, 3\ns_sub_u32 s65, s%d, s65' % (IDX, IDX))
        if 'ph0' in self.opt: a('s_mov_b32 s%d, 0' % dst)
        elif 'ph2' not in self.opt and 'ph4' not in self.opt:
            a('s_lshr_b32 s%d, s64, 2\ns_add_u32 s%d, s%d, s64' % (dst, dst, dst))
            a('s_mul_i32 s53, s65, 7\ns_lshr_b32 s53, s53, 1\ns_add_u32 s%d, s%d, s53' % (dst, dst))
            a('s_cmp_ge_u32 s%d, 10\ns_cselect_b32 s53, 10, 0\ns_sub_u32 s%d, s%d, s53' % (dst, dst, dst))
        elif 'ph4' in self.opt:
            a('s_and_b32 s%d, s64, 3\ns_mul_i32 s%d, s%d, 5\ns_lshr_b32 s%d, s%d, 1' % (dst, dst, dst, dst, dst))
        else: a('s_and_b32 s%d, s64, 1\ns_mul_i32 s%d, s%d, 5' % (dst, dst, dst))

    def prefetch(self):
        a = self.a
        a('s_sub_u32 s56, s%d, 24' % IDX)
        a('s_bitcmp0_b32 s%d, 0' % XCD)
        a('s_cselect_b32 s24, s%d, s%d\ns_cselect_b32 s25, s%d, s%d\ns_mov_b32 s26, 0x%x\ns_mov_b32 s27, 0x20000' % (P_WG, P_WU, P_WG+1, P_WU+1, 640*1536*2))
        a('v_min_u32 v1, 47, v0\nv_mul_u32_u24 v2, 43, v1\nv_lshrrev_b32 v2, 8, v2')
        a('v_mul_u32_u24 v3, 6, v2\nv_sub_u32 v1, v1, v3\nv_lshlrev_b32 v1, 7, v1')
        a('v_lshrrev_b32 v3, 2, v2\nv_mul_u32_u24 v3, 320, v3\nv_and_b32 v2, 3, v2\nv_add_u32 v2, v2, v3\nv_mul_u32_u24 v2, 3072, v2\nv_add_u32 v2, v2, v1')
        a('s_lshr_b32 s57, s%d, 1\ns_mul_i32 s58, s57, 768\ns_mul_i32 s59, s56, 12288\ns_add_u32 s58, s58, s59' % XCD)
        a('s_and_b32 s59, s%d, 1\ns_lshl_b32 s59, s59, 4\ns_lshl_b32 s57, s57, 9\ns_add_u32 s57, s57, s59\ns_lshl_b32 s59, s56, 5\ns_add_u32 s57, s57, s59\ns_mul_i32 s57, s57, 1280' % XCD)
        a('v_and_b32 v3, 15, v0\nv_mul_u32_u24 v3, 1280, v3\nv_bfe_u32 v4, v0, 1, 1\nv_mul_u32_u24 v4, 5, v4')
        S0 = int(self.val.get('pf0', 1))
        def slot(sreg):
            a('s_mul_i32 s60, s%d, %d\ns_add_u32 s60, s60, s58' % (sreg, 32*3072))
            a('buffer_load_dword v255, v2, s[24:27], s60 offen')
            if 'pfw' in self.opt: return
            a('s_lshr_b32 s60, s%d, 1\nv_add_u32 v5, s60, v4\nv_lshl_add_u32 v5, v5, 7, v3\ns_and_b32 s60, s%d, 1\ns_mul_i32 s60, s60, %d\ns_add_u32 s60, s60, s57' % (sreg, sreg, 256*1280))
            a('s_mov_b64 exec, 0xffff\nbuffer_load_dword v255, v5, %s, s60 offen\ns_mov_b64 exec, -1' % s(S_X,4))
        a('s_add_u32 s61, s%d, %d' % (WAVE, S0))
        slot(61)
        a('s_add_u32 s61, s61, 8\ns_cmp_lt_u32 s61, 10\ns_cbranch_scc0 L_pf_x')
        slot(61)
        a('s_branch L_pf_e')
        a.label('L_pf_x')
        a('s_cmp_lt_u32 s61, %d\ns_cbranch_scc0 L_pf_e' % (0 if 'pfw' in self.opt else 13))
        a('s_sub_u32 s61, s61, 10\ns_lshl_b32 s61, s61, 2\nv_lshrrev_b32 v5, 4, v0\nv_add_u32 v5, s61, v5\nv_min_u32 v5, 9, v5')
        a('v_and_b32 v6, 1, v5\nv_mul_u32_u24 v6, %d, v6\nv_add_u32 v3, v3, v6\nv_lshrrev_b32 v5, 1, v5\nv_sub_u32 v5, v5, v4\nv_add_u32 v5, 5, v5\nv_lshl_add_u32 v5, v5, 7, v3' % (256*1280))
        a('buffer_load_dword v255, v5, %s, s57 offen' % s(S_X,4))
        a.label('L_pf_e')

    def p2_coords(self):
        a = self.a
        if 'rho' not in self.opt: a('s_mov_b32 s76, 0')
        elif 'rho2' in self.opt:
            a('s_and_b32 s76, s%d, 7\ns_and_b32 s53, s%d, 3\ns_lshl_b32 s53, s53, 1\ns_add_u32 s76, s76, s53\ns_and_b32 s76, s76, 7\ns_mul_i32 s76, s76, 3' % ((CS, T1) if 'map48' in self.opt else (T1, CS)))
        elif 'map48' in self.opt: a('s_and_b32 s76, s%d, 3\ns_mul_i32 s76, s76, 6' % T1)
        else: a('s_and_b32 s76, s%d, 7\ns_mul_i32 s76, s76, 3' % T1)
        a('s_mul_i32 s77, s%d, 245760\ns_mul_i32 s53, s76, 5120\ns_add_u32 s77, s77, s53\ns_add_u32 s77, s77, 0x%x\ns_sub_u32 s75, s77, 122880\ns_sub_u32 s76, 24, s76' % (CS, WDF))

    def wd_dma(self, vm, frags, voff):
        a = self.a; last = None
        for f in frags:
            half, r = divmod(f, 70); j, n = divmod(r, 5)
            if j != last: a('s_cmp_le_u32 s76, %d\ns_cselect_b32 s74, s75, s77' % j); last = j
            a('s_add_u32 m0, %d, 0\ns_add_u32 s78, s74, %d' % (f*1024, half*122880 + j*5120 + n*1024))
            vm.op('buffer_load_dwordx4 v%d, %s, s78 offen %s lds' % (voff, s(S_WS,4), self.bf), 'wd')

    OV = 128
    def ov_setup(self):
        a = self.a
        a('s_lshr_b32 s53, s%d, 1\ns_mul_i32 s72, s53, 122880\ns_and_b32 s53, s%d, 1\ns_sub_i32 s71, s76, s53\ns_mul_i32 s53, s53, 5120\ns_add_u32 s72, s72, s53' % (WAVE, WAVE))
        a('s_add_u32 s73, s72, s75\ns_add_u32 s72, s72, s77')
    def ov_load(self, vm, i, voff):
        a = self.a
        a('s_cmp_le_i32 s71, %d\ns_cselect_b32 s74, s73, s72\ns_add_u32 s74, s74, %d\ns_add_u32 s78, s74, 4096' % (14+2*i, (14+2*i)*5120))
        for n in range(5):
            vm.op('buffer_load_dwordx4 %s, v%d, %s, %s offen offset:%d %s' % (v(self.OV+20*i+4*n,4), voff, s(S_WS,4), 's74' if n < 4 else 's78', (n&3)*1024, self.bf), 'ov')

    def ffn_wloader(self):
        a = self.a; vm = VM(a)
        a.label('L_ffn_wl')
        a('s_cmp_eq_u32 s%d, 0' % WAVE)
        a('s_cselect_b32 s%d, s%d, s%d\ns_cselect_b32 s%d, s%d, s%d' % (S_A, P_WG, P_WU, S_A+1, P_WG+1, P_WU+1))
        a('s_mov_b32 s%d, 0x%x' % (S_A+2, 640*1536*2))
        self.wvoff(4, 3072, 8)
        self.phase(58)
        a('s_lshl_b32 s59, s55, 8\ns_mul_i32 s56, s58, %d\ns_add_u32 s56, s56, s59\ns_add_u32 s59, s59, %d' % (64*3072, 640*3072))
        a('s_lshl_b32 s57, s%d, 13' % WAVE)
        def issue(n):
            for b in range(2):
                for j in range(4):
                    a('s_add_u32 m0, s57, %d' % ((n % self.NWS)*self.WSLOT + b*4096 + j*1024 - b*128))
                    a('s_nop 0')
                    if 'now' not in self.opt: vm.op('buffer_load_dwordx4 v%d, %s, s56 offen offset:%d %s lds' % (4+j, s(S_A,4), b*128, 'nt' if 'ntw' in self.opt else ''), n)
            a('s_add_u32 s56, s56, %d' % (32*3072))
            if n & 1: a('s_cmp_eq_u32 s56, s59\ns_cselect_b32 s60, %d, 0\ns_sub_u32 s56, s56, s60' % (640*3072))
        L0 = int(self.val.get('wl', 2)); L1 = int(self.val.get('wl1', 4)); R0 = int(self.val.get('wr', 6))
        LP = int(self.val.get('wpre', L0))
        sched = {-1: list(range(LP))}; front = LP
        for m in range(20):
            lead = L0 if m < R0 else min(L1, L0 + (m - R0)//2 + 1)
            sched[m] = []
            while front < 20 and front <= m + lead and front <= m + 5: sched[m].append(front); front += 1
        self.stamp(12)
        IB = int(self.val.get('ib', 1))
        for k_, n in enumerate(sched[-1]):
            issue(n)
            if k_ + 1 == IB: a('s_barrier')
        self.stamp(13)
        self.nonce()
        self.p2_coords(); self.ov_setup()
        a('v_lshlrev_b32 v2, 4, v0')
        self.p2_prep()
        WI = int(self.val.get('wi', 0)); WP = int(self.val.get('wp', 3)); FB = int(self.val.get('fb', 7))
        for m in range(15):
            vm.wait(m)
            if m == 0: self.stamp(1)
            a('s_barrier')
            for n in sched.get(m, []): issue(n)
            if m == WI and 'nowd' not in self.opt:
                for i in range(2):
                    for j in range(4):
                        a('s_add_u32 m0, s67, %d\ns_nop 0' % (i*8192 + j*1024))
                        vm.op('buffer_load_dwordx4 v%d, s[24:27], s%d offen nt lds' % (12+j, 68+i), 'wu')
            if m == WP and 'nowd' not in self.opt:
                vm.wait('wu')
                for i in range(2):
                    for ct in range(4):
                        for q in range(2): a('ds_read_b64_tr_b16 %s, v%d offset:%d' % (v(24+16*i+4*ct+2*q,2), 16+ct, i*8192 + q*2048))
                a('s_waitcnt lgkmcnt(0)')
                for k in range(8): vm.op('buffer_store_dwordx4 %s, v2, %s, s%d offen sc1' % (v(24+4*k,4), s(S_WS,4), 28+k), 'wo')
            for i in self.ov_sched(m): self.ov_load(vm, i, 2)
        a('s_cmp_eq_u32 s%d, 0\ns_cbranch_scc0 L_wl_t1' % WAVE)
        q0 = list(vm.q)
        for w in range(2):
            vm.q = list(q0)
            if w: a.label('L_wl_t1')
            for m in range(15, 21):
                if m < 20: vm.wait(m)
                a('s_barrier')
                for n in sched.get(m, []): issue(n)
                sl = (m-1) % 6
                self.wd_dma(vm, range(16*sl + 8*w, 16*sl + 8*w + 8), 2)
                for i in self.ov_sched(m): self.ov_load(vm, i, 2)
            self.stamp(2)
            a('s_branch L_p2_help')

    def ov_sched(self, m):
        assert int(self.val.get('pw', 12)) + 3 <= (15 if self.val.get('ove', '1') in '012' else 14 if self.val.get('ove') == '5' else 13)
        return {'0': {20: [0,1,2,3,4]}, '1': {19: [0], 20: [1,2,3,4]}, '2': {17: [0], 19: [1], 20: [2,3,4]}, '3': {13: [0], 14: [1], 17: [2], 19: [3], 20: [4]}, '4': {13: [0], 14: [1], 17: [2], 18: [3], 19: [4]}, '5': {14: [0], 17: [1], 19: [2], 20: [3,4]}}[self.val.get('ove', '1')].get(m, [])

    def tw_addr(self, dst):
        a = self.a
        a('v_lshrrev_b32 v%d, 4, v0\nv_lshlrev_b32 v%d, 5, v%d\nv_bfe_u32 v1, v0, 1, 3\nv_add_u32 v%d, v%d, v1' % (dst, dst, dst, dst, dst))
        a('s_lshr_b32 s53, s64, 1\ns_lshl_b32 s53, s53, 3\nv_add_u32 v%d, s53, v%d\nv_mul_u32_u24 v%d, 3072, v%d' % (dst, dst, dst, dst))
        a('v_and_b32 v1, 1, v0\nv_lshl_add_u32 v%d, v1, 7, v%d' % (dst, dst))
    def tx_addr(self, dst, half):
        a = self.a
        a('v_and_b32 v%d, 15, v0\nv_lshlrev_b32 v%d, 5, v%d\nv_lshrrev_b32 v1, 4, v0\nv_lshl_add_u32 v%d, v1, 9, v%d' % (dst, dst, dst, dst, dst))
        a('s_lshl_b32 s53, s54, 1\ns_add_u32 s53, s53, s%d\nv_add_u32 v%d, s53, v%d\nv_mul_u32_u24 v%d, 1280, v%d' % (half, dst, dst, dst, dst))
    def tx_off(self, dst, ph, r):
        a = self.a
        a('s_add_u32 s%d, s%d, s65\ns_add_u32 s%d, s%d, %d\ns_cmp_ge_u32 s%d, 10\ns_cselect_b32 s53, 10, 0\ns_sub_u32 s%d, s%d, s53\ns_lshl_b32 s%d, s%d, 7' % (dst, ph, dst, dst, 3*r, dst, dst, dst, dst, dst))
        if r == 3: a('s_cmp_eq_u32 s65, 0\ns_cselect_b32 s%d, s%d, 0x%x' % (dst, dst, OOB))

    def wtouch(self, unit_sgpr, nlanes, step0, dst):
        a = self.a
        a('s_bitcmp0_b32 s%d, 0' % XCD)
        a('s_cselect_b32 s24, s%d, s%d\ns_cselect_b32 s25, s%d, s%d\ns_mov_b32 s26, 0x%x\ns_mov_b32 s27, 0x20000' % (P_WG, P_WU, P_WG+1, P_WU+1, 640*1536*2))
        a('s_mul_i32 s53, s%d, %d' % (unit_sgpr, nlanes))
        a('v_min_u32 v1, %d, v0\nv_add_u32 v1, s53, v1\nv_mul_u32_u24 v%d, 10923, v1\nv_lshrrev_b32 v%d, 16, v%d' % (nlanes-1, dst-1, dst-1, dst-1))
        a('v_mul_u32_u24 v%d, 2304, v%d\nv_lshl_add_u32 v1, v1, 7, v%d' % (dst-1, dst-1, dst-1))
        a('s_lshr_b32 s53, s%d, 1\ns_mul_i32 s53, s53, 768\ns_add_u32 s53, s53, %d' % (XCD, step0*32*3072))
        return 'buffer_load_dword v%d, v1, s[24:27], s53 offen' % dst

    def xtouch(self, unit_sgpr, rows, c0, c1, dst):
        a = self.a
        n = rows*(c1-c0); assert n <= 64
        mag = (2048 + rows - 1)//rows
        assert all((l*mag) >> 11 == l//rows for l in range(64))
        a('v_min_u32 v1, %d, v0\nv_mul_u32_u24 v%d, %d, v1\nv_lshrrev_b32 v%d, 11, v%d' % (n-1, dst, mag, dst, dst))
        a('v_mul_u32_u24 v%d, %d, v%d\nv_sub_u32 v1, v1, v%d\nv_mul_u32_u24 v1, 1280, v1\nv_lshl_add_u32 v1, v%d, 7, v1' % (dst-1, rows, dst, dst-1, dst))
        a('s_mul_i32 s53, s%d, %d' % (unit_sgpr, rows*1280))
        return 'buffer_load_dword v%d, v1, %s, s53 offen offset:%d' % (dst, s(S_X,4), 128*c0)

    def touch_spec(self, spec, unit_sgpr, nunits, dst):
        kind, rng = spec[0], spec[1:].split('-'); lo, hi = int(rng[0]), int(rng[1])
        if kind == 'W':
            nl = (hi-lo)*8; assert nl <= 64, spec
            return self.wtouch(IDX, nl, lo, dst)
        return self.xtouch(unit_sgpr, -(-2048//nunits), lo, hi, dst)

    def ffn_xloader(self):
        a = self.a; vm = VM(a)
        a.label('L_ffn_xl')
        a('s_sub_u32 s56, s%d, 2' % WAVE)
        a('v_lshrrev_b32 v2, 3, v0\nv_lshrrev_b32 v3, 4, v0')
        a('s_lshl_b32 s57, s56, 2')
        a('v_add_u32 v3, s57, v3\nv_and_b32 v12, 7, v0\nv_xor_b32 v3, v3, v12\nv_lshlrev_b32 v3, 4, v3')
        a('v_mul_u32_u24 v2, 40960, v2\nv_add_u32 v2, v2, v3')
        a('s_lshl_b32 s57, s56, 8\ns_lshl_b32 s58, s54, 1\ns_add_u32 s57, s57, s58\ns_mul_i32 s57, s57, 1280')
        a('v_add_u32 v4, s57, v2')
        for tt in range(1, 8):
            a('v_add_u32 v%d, %d, v4' % (4+tt, ((tt>>2) + 512*(tt&3))*1280))
        a('s_lshl_b32 s57, s56, 10')
        self.phase(58)
        a('s_lshl_b32 s58, s58, 7')
        def issue(c):
            for tt in range(8):
                a('s_add_u32 m0, s57, %d' % (self.XB + (c % self.NXS)*self.XSLOT + tt*2048))
                a('s_nop 0')
                if 'nox' not in self.opt: vm.op('buffer_load_dwordx4 v%d, %s, s58 offen %s lds' % (4+tt, s(S_X,4), 'nt' if 'ntx' in self.opt else ''), c)
            a('s_add_u32 s58, s58, 128\ns_cmp_eq_u32 s58, 1280\ns_cselect_b32 s58, 0, s58')
        a('s_lshr_b32 s59, s58, 7')
        self.stamp(12)
        issue(0)
        if int(self.val.get('ib', 1)): a('s_barrier')
        self.stamp(13)
        XP = int(self.val.get('xp', 1))
        if XP == 2: issue(1)
        self.p2_coords(); self.ov_setup()
        a('v_lshlrev_b32 v2, 4, v0')
        self.tw_addr(80); self.tx_addr(81, 56)
        a('s_cmp_eq_u32 s56, 0')
        a('s_cselect_b32 s%d, s%d, s%d\ns_cselect_b32 s%d, s%d, s%d\ns_mov_b32 s%d, 0x%x' % (S_A, P_WG, P_WU, S_A+1, P_WG+1, P_WU+1, S_A+2, 640*1536*2))
        a('s_mul_i32 s66, s59, %d\ns_lshl_b32 s67, s55, 8\ns_add_u32 s66, s66, s67' % (64*3072))
        TB = {}
        for spec in self.val.get('tp', '0').split('+'):
            if spec == '0': continue
            k, m = spec.split('@'); TB.setdefault(int(m), []).append(k)
        def touch(k):
            if k[0] == 'w':
                n0 = int(k[1:])
                a('s_add_u32 s67, s66, %d' % (n0*32*3072))
                if n0 == 8: a('v_and_b32 v1, 31, v0\nv_lshlrev_b32 v1, 2, v1\nds_bpermute_b32 v80, v1, v80\ns_waitcnt lgkmcnt(0)')
                vm.op('buffer_load_dword v255, v80, %s, s67 offen' % s(S_A,4), 't')
            else:
                self.tx_off(67, 59, int(k[1:]))
                vm.op('buffer_load_dword v255, v81, %s, s67 offen' % s(S_X,4), 't')
        self.p2_prep()
        self.nonce()
        a('s_cmp_eq_u32 s56, 0\ns_cbranch_scc0 L_ffn_xl3')
        q0 = list(vm.q)
        PW = int(self.val.get('pw', 12)); PS = int(self.val.get('ps', 15)); PH2 = 'ph2' in self.opt; NP = 2 if PH2 else 8; PC = int(self.val.get('pc', 15 if PH2 else 10)); FB = int(self.val.get('fb', 7))
        for role in (2, 3):
            vm.q = list(q0)
            if role == 2:
                if PH2:
                    a('v_lshrrev_b32 v12, 4, v0\nv_bfe_u32 v13, v0, 2, 2')
                    a('v_lshl_add_u32 v14, v12, 3, v13\nv_lshlrev_b32 v14, 7, v14')
                    a('v_and_b32 v13, 3, v0\nv_lshl_add_u32 v14, v13, 3, v14')
                    a('v_bfe_u32 v13, v0, 3, 1\nv_bfe_u32 v15, v0, 4, 1\nv_lshl_add_u32 v13, v15, 1, v13')
                    a('s_and_b32 s60, s54, 2\nv_xor_b32 v13, s60, v13\nv_lshl_add_u32 v14, v13, 5, v14')
                    a('s_lshr_b32 s60, s54, 2\ns_lshl_b32 s60, s60, 12\nv_add_u32 v16, s60, v14\nv_xor_b32 v17, 32, v16')
                    a('v_add_u32 v18, %d, v16\nv_add_u32 v19, %d, v17' % (3*self.WSLOT, 3*self.WSLOT))
                    for k in range(4): a('v_mov_b32 v%d, 0x3f803f80' % (20+k))
                    for k in range(8): a('v_mov_b32 v%d, 0' % (24+k))
                    a('s_and_b32 s61, s54, 1\ns_mul_i32 s61, s61, 24576\ns_lshr_b32 s62, s54, 3\ns_mul_i32 s62, s62, 12288\ns_add_u32 s61, s61, s62')
                    a('s_lshl_b32 s62, s55, 10\ns_add_u32 s61, s61, s62\ns_bfe_u32 s62, s54, 0x20001\ns_lshl_b32 s62, s62, 8\ns_add_u32 s61, s61, s62\ns_add_u32 s61, s61, 0x%x' % COLSUM)
                else:
                    a('v_lshrrev_b32 v12, 4, v0\nv_bfe_u32 v13, v0, 2, 2')
                    a('v_lshl_add_u32 v14, v12, 3, v13\nv_lshlrev_b32 v14, 7, v14')
                    a('v_and_b32 v13, 3, v0\nv_lshl_add_u32 v14, v13, 3, v14')
                    a('v_bfe_u32 v13, v0, 3, 1\nv_bfe_u32 v15, v0, 4, 1\nv_lshl_add_u32 v13, v15, 1, v13')
                    a('v_lshl_add_u32 v14, v13, 5, v14')
                    a('s_lshr_b32 s60, s54, 3\ns_lshl_b32 s60, s60, 13\nv_add_u32 v16, s60, v14')
                    for ct in range(1, 4): a('v_xor_b32 v%d, %d, v16' % (16+ct, 32*ct))
                    for k in range(4): a('v_mov_b32 v%d, 0x3f803f80' % (20+k))
                    for k in range(32): a('v_mov_b32 v%d, 0' % (88+k))
                    a('s_mul_i32 s61, s64, 24576\ns_lshr_b32 s62, s54, 3\ns_mul_i32 s62, s62, 12288\ns_add_u32 s61, s61, s62')
                    a('s_lshl_b32 s62, s55, 10\ns_add_u32 s61, s61, s62\ns_add_u32 s61, s61, 0x%x' % COLSUM)
                a('v_lshlrev_b32 v56, 5, v12\nv_and_b32 v13, 1, v0\nv_lshl_add_u32 v56, v13, 4, v56')
                a('s_lshl_b32 s62, s55, 4\ns_add_u32 s62, s62, s54\ns_lshl_b32 s62, s62, 7\ns_add_u32 s62, s62, 0x%x\nv_mov_b32 v57, s62' % (SFLAG))
                a('v_and_b32 v12, 15, v0\nv_lshlrev_b32 v12, 5, v12')
                a('v_lshrrev_b32 v13, 4, v0\nv_lshl_add_u32 v12, v13, 9, v12')
                a('s_lshl_b32 s60, s54, 1\nv_add_u32 v12, s60, v12')
                a('v_lshlrev_b32 v12, 4, v12\nv_add_u32 v12, 0x%x, v12' % STATS)
                a('v_lshlrev_b32 v13, 4, v0\nv_add_u32 v13, %d, v13' % self.MISC)
                a('v_lshlrev_b32 v14, 7, v0\nv_add_u32 v14, 0x%x, v14\nv_add_u32 v15, 8192, v14\nv_add_u32 v58, 16384, v14' % SFLAG)
                rl = ['buffer_load_dwordx4 v[64:67], v12, %s, 0 offen sc1' % s(S_WS,4), 'buffer_load_dwordx4 v[68:71], v12, %s, 0 offen offset:16 sc1' % s(S_WS,4)]
                tags = [66, 70]
            else:
                a.label('L_ffn_xl3')
                a('v_mov_b32 v12, %d\nv_mov_b32 v13, 0\nds_write_b32 v12, v13' % (self.MISC + 3072))
                a('v_lshrrev_b32 v13, 5, v0\nv_mul_u32_u24 v13, 12288, v13')
                a('v_and_b32 v12, 31, v0\nv_lshl_add_u32 v12, v12, 5, v13')
                a('s_lshl_b32 s60, s55, 10\ns_add_u32 s60, s60, 0x%x\nv_add_u32 v12, s60, v12' % COLSUM)
                a('v_lshlrev_b32 v13, 4, v0\nv_add_u32 v13, %d, v13' % (self.MISC+2048))
                for k in range(1, 8): a('s_mov_b32 s%d, %d' % (27+k, 24576*k))
                rl = ['buffer_load_dwordx4 %s, v12, %s, %s offen offset:%d sc1' % (v(16+8*p+4*h,4), s(S_WS,4), 's%d' % (27+p) if p else '0', 16*h) for p in range(NP) for h in range(2)]
                tags = [18+4*k for k in range(2*NP)]
            for m in range(21):
                if m % 2 == 0 and m < 20: vm.wait(m//2)
                if m == 20: a('s_waitcnt lgkmcnt(0)')
                a('s_barrier')
                if role == 2:
                    if m == PW + 2:
                        vm.wait('pw')
                        if 'nospin' not in self.opt: self.spin3('L_xl_sw', (14,15,58), 72, True)
                    if m == PW:
                        for k in range(3): vm.op('buffer_load_dwordx2 %s, v%d, %s, 0 offen sc1' % (v(72+2*k,2), (14,15,58)[k], s(S_WS,4)), 'pw')
                    if m == FB:
                        self.setflag(57, 60); vm.q.append('fl')
                    if m == 4 and not PH2:
                        a('v_and_b32 v1, 1, v0\nv_cmp_eq_u32 vcc, 1, v1\ns_nop 1')
                        for ct in range(8):
                            b = 88+4*ct
                            a('v_cndmask_b32 v%d, v%d, v%d, vcc\nv_cndmask_b32 v%d, v%d, v%d, vcc\nv_mov_b32 v%d, s12\nv_mov_b32 v%d, s13' % (b, b, b+2, b+1, b+1, b+3, b+2, b+3))
                        a('s_mov_b32 exec_lo, 0x00030003\ns_mov_b32 exec_hi, 0x00030003')
                        for ct in range(8): vm.op('buffer_store_dwordx4 %s, v56, %s, s61 offen offset:%d sc1' % (v(88+4*ct,4), s(S_WS,4), 128*ct), 'cs')
                        a('s_mov_b64 exec, -1')
                    if m == 10 and PH2:
                        a('v_and_b32 v1, 1, v0\nv_cmp_eq_u32 vcc, 1, v1\nv_mov_b32 v34, s12\nv_mov_b32 v35, s13\nv_mov_b32 v38, s12\nv_mov_b32 v39, s13')
                        for ct in range(2): a('v_cndmask_b32 v%d, v%d, v%d, vcc\nv_cndmask_b32 v%d, v%d, v%d, vcc' % (32+4*ct, 24+4*ct, 26+4*ct, 33+4*ct, 25+4*ct, 27+4*ct))
                        a('s_mov_b32 exec_lo, 0x00030003\ns_mov_b32 exec_hi, 0x00030003')
                        for ct in range(2): vm.op('buffer_store_dwordx4 %s, v56, %s, s61 offen offset:%d sc1' % (v(32+4*ct,4), s(S_WS,4), 128*ct), 'cs')
                        a('s_mov_b64 exec, -1')
                if m == (PS if role == 2 else PC):
                    for l in rl: vm.op(l, 'st')
                if m == (PS if role == 2 else PC) + 2:
                    vm.wait('st')
                    a('s_mov_b32 s53, 0')
                    a.label('L_xl_rs%d' % role)
                    a('v_cmp_ne_u64 vcc, s[12:13], %s' % v(tags[0],2))
                    for t in tags[1:]: a('v_cmp_ne_u64 s[68:69], s[12:13], %s\ns_nop 0\ns_or_b64 vcc, vcc, s[68:69]' % v(t,2))
                    a('s_cbranch_vccz L_xl_rx%d\ns_add_u32 s53, s53, 1\ns_cmp_gt_u32 s53, 0x%x\ns_cbranch_scc1 L_xl_rx%d\ns_sleep 2' % (role, 0 if 'nospin' in self.opt else SPIN_MAX, role))
                    for l in rl: a(l)
                    a('s_waitcnt vmcnt(0)\ns_branch L_xl_rs%d' % role)
                    a.label('L_xl_rx%d' % role)
                    if role == 2:
                        for b in (64, 68):
                            a('v_rsq_f32 v%d, v%d\nv_mov_b32 v%d, v%d\nv_mul_f32 v%d, 0xbfb8aa3b, v%d' % (b+3, b+1, b+2, b+1, b+1, b+3))
                        a('ds_write_b128 v13, v[64:67]\nds_write_b128 v13, v[68:71] offset:1024')
                    else:
                        for w_ in ((8,) if PH2 else (32, 16, 8)):
                            for k in range(0, w_, 4): a('v_add_f32 v%d, v%d, v%d\nv_add_f32 v%d, v%d, v%d' % (16+k, 16+k, 16+w_+k, 17+k, 17+k, 17+w_+k))
                        a('v_mov_b32 v18, v20\nv_mov_b32 v19, v21')
                        a('ds_write_b128 v13, v[16:19]')
                for c in range(XP, 10):
                    when = max(0, 2*c - 2 - int(self.val.get('xl%d' % role, 1 if role == 2 else 0)))
                    if c >= int(self.val.get('xr', 4)): when = max(0, 2*c - (4 if role == 2 else 3))
                    if when == m: issue(c)
                for k in TB.get(m, []): touch(k)
                if role == 2 and m < 4 and not PH2:
                    if m >= 2: a('s_and_b32 s60, s64, 3\ns_cmp_eq_u32 s60, 3\ns_cbranch_scc0 L_cs_sk%d' % m)
                    for b in range(2):
                        for ct in range(4):
                            for q in range(2):
                                a('ds_read_b64_tr_b16 %s, v%d offset:%d' % (v(24+16*b+4*ct+2*q,2), 16+ct, m*self.WSLOT + b*4096 + q*512))
                        a('s_waitcnt lgkmcnt(0)')
                        for ct in range(4): a('v_mfma_f32_16x16x32_bf16 %s, %s, v[20:23], %s' % (v(88+16*b+4*ct,4), v(24+16*b+4*ct,4), v(88+16*b+4*ct,4)))
                    if m >= 2: a.label('L_cs_sk%d' % m)
                    if m == 3: a.nop(6)
                if role == 2 and m < 10 and PH2:
                    sl = m % self.NWS
                    for ct in range(2):
                        for q in range(2):
                            a('ds_read_b64_tr_b16 %s, v%d offset:%d' % (v(40+4*ct+2*q,2), 16+ct+2*(sl//3), (sl%3)*self.WSLOT + q*512))
                    a('s_waitcnt lgkmcnt(0)')
                    for ct in range(2): a('v_mfma_f32_16x16x32_bf16 %s, %s, v[20:23], %s' % (v(24+4*ct,4), v(40+4*ct,4), v(24+4*ct,4)))
                    if m == 9: a.nop(6)
                if m in (16, 18, 20):
                    f0 = {16: 112, 18: 128, 20: 96}[m]; n = {16: 8, 18: 6, 20: 8}[m]
                    self.wd_dma(vm, range(f0 + (role-2)*n, f0 + (role-1)*n), 2)
                for i in self.ov_sched(m): self.ov_load(vm, i, 2)
            self.stamp(2)
            a('s_branch L_p2_help')

    def ffn_consumer(self):
        a = self.a
        ACC, FR = 8, 136
        AW = [2, 3, 232, 233]
        AX = [4, 5]
        def acc(tt, mat, c2): return ACC + ((tt*2 + mat)*2 + c2)*4
        def xf(st, tt): return FR + st*48 + tt*4
        def wf(st, mat, c2): return FR + st*48 + 32 + (mat*2 + c2)*4
        a.label('L_ffn_cons')
        a('s_sub_u32 s56, s%d, 4' % WAVE)
        a('s_mul_i32 s57, s%d, 24\ns_add_u32 s57, s57, s%d\ns_and_b32 s58, s57, 1\ns_add_u32 s58, s58, 2\n%ss_cmp_lt_u32 s56, s58\ns_cselect_b32 s79, 1, 0\ns_cbranch_scc0 L_fc_nu' % (XCD, IDX, 's_mov_b32 s58, 0\n' if 'skipwd' in self.opt else ''))
        a('s_mul_i32 s57, s57, 5\ns_lshr_b32 s57, s57, 1\ns_add_u32 s57, s57, s56')
        a('s_mul_i32 s70, s57, 52429\ns_lshr_b32 s70, s70, 19\ns_mul_i32 s53, s70, 10\ns_sub_u32 s71, s57, s53')
        a('s_mul_i32 s68, s70, %d\ns_lshl_b32 s53, s71, 7\ns_add_u32 s68, s68, s53' % (32*1280))
        a('s_mov_b32 s72, s%d\ns_mov_b32 s73, s%d\ns_mov_b32 s74, 0x%x\ns_mov_b32 s75, 0x20000' % (P_WD, P_WD+1, 1536*640*2))
        self.wvoff(8, 1280, 12)
        a('s_lshl_b32 s67, s56, 12\ns_add_u32 s67, s67, %d' % (self.MISC + 4096))
        a.label('L_fc_nu')
        if int(self.val.get('ib', 1)): a('s_barrier')
        a('s_cmp_eq_u32 s79, 0\ns_cbranch_scc1 L_fc_nu2')
        for j in range(4):
            a('s_add_u32 m0, s67, %d\ns_nop 0' % (j*1024))
            a('buffer_load_dwordx4 v%d, s[72:75], s68 offen nt lds' % (8+j))
        a.label('L_fc_nu2')
        def ctouch():
            a('s_cmp_lt_u32 s58, 320\ns_cbranch_scc0 L_ct_w%d\ns_lshl_b32 s58, s58, 13\nv_lshlrev_b32 v1, 7, v0' % self.nct)
            a('buffer_load_dword v255, v1, %s, s58 offen\ns_branch L_ct_e%d' % (s(S_X,4), self.nct))
            a.label('L_ct_w%d' % self.nct)
            a('s_sub_u32 s58, s58, 320\ns_cmp_lt_u32 s58, 240')
            a('s_cselect_b32 s24, s%d, s%d\ns_cselect_b32 s25, s%d, s%d\ns_cselect_b32 s53, 0, 240\ns_mov_b32 s26, 0x%x\ns_mov_b32 s27, 0x20000' % (P_WG, P_WU, P_WG+1, P_WU+1, 640*1536*2))
            a('s_sub_u32 s58, s58, s53\ns_lshl_b32 s58, s58, 13\nv_lshlrev_b32 v1, 7, v0\nbuffer_load_dword v255, v1, s[24:27], s58 offen')
            a.label('L_ct_e%d' % self.nct); self.nct += 1
        self.nct = 0
        def touches():
            if 'ct' in self.opt:
                a('s_mul_i32 s58, s%d, 24\ns_add_u32 s58, s58, s%d\ns_lshl_b32 s58, s58, 2\ns_add_u32 s58, s58, s56' % (XCD, IDX))
                if 'ctm' in self.opt: a('s_mul_i32 s58, s58, 25\ns_lshr_b32 s58, s58, 0\ns_mul_hi_u32 s53, s58, 0x55555556\ns_nop 0')
                ctouch(); return
            if 'ft' in self.opt:
                for k, spec in enumerate(self.val.get('ft', 'W2-6+W12-16+W6-10+W16-20').split('+')):
                    lo, hi = [int(z) for z in spec[1:].split('-')]
                    a('s_cmp_eq_u32 s56, %d\ns_cbranch_scc0 L_fc_n%d' % (k, k))
                    a(self.wtouch(IDX, (hi-lo)*8, lo, 255))
                    a.label('L_fc_n%d' % k)
        if 'tlate' not in self.opt: touches()
        if 'ta' in self.opt:
            self.phase(59)
            a('s_cmp_lt_u32 s56, 2\ns_cbranch_scc0 L_fc_tx')
            self.tw_addr(2)
            a('s_cmp_eq_u32 s56, 0')
            a('s_cselect_b32 s%d, s%d, s%d\ns_cselect_b32 s%d, s%d, s%d\ns_mov_b32 s%d, 0x%x' % (S_A, P_WG, P_WU, S_A+1, P_WG+1, P_WU+1, S_A+2, 640*1536*2))
            a('s_mul_i32 s66, s59, %d\ns_lshl_b32 s67, s55, 8\ns_add_u32 s66, s66, s67' % (64*3072))
            a('buffer_load_dword v255, v2, %s, s66 offen' % s(S_A,4))
            a('s_branch L_fc_t3')
            a.label('L_fc_tx')
            a('s_sub_u32 s60, s56, 2')
            self.tx_addr(2, 60); self.tx_off(67, 59, 0)
            a('buffer_load_dword v255, v2, %s, s67 offen' % s(S_X,4))
            a.label('L_fc_t3')
        a('s_setprio 1')
        a('v_lshrrev_b32 v6, 4, v0\nv_bfe_u32 v7, v0, 2, 2')
        a('v_lshl_add_u32 v8, v6, 3, v7\nv_lshlrev_b32 v8, 7, v8')
        a('v_and_b32 v9, 3, v0\nv_lshl_add_u32 v8, v9, 3, v8')
        a('v_bfe_u32 v9, v0, 3, 1\nv_bfe_u32 v10, v0, 4, 1\nv_lshl_add_u32 v9, v10, 1, v9')
        a('s_and_b32 s57, s56, 1\ns_lshl_b32 s57, s57, 1')
        a('v_xor_b32 v9, s57, v9\nv_lshl_add_u32 v8, v9, 5, v8')
        a('s_lshr_b32 s57, s56, 1\ns_lshl_b32 s57, s57, 12')
        a('v_add_u32 v%d, s57, v8' % AW[0])
        a('v_xor_b32 v%d, 32, v%d' % (AW[1], AW[0]))
        a('v_add_u32 v%d, %d, v%d\nv_add_u32 v%d, %d, v%d' % (AW[2], 3*self.WSLOT, AW[0], AW[3], 3*self.WSLOT, AW[1]))
        a('v_and_b32 v8, 15, v0\nv_lshrrev_b32 v9, 1, v8\nv_xor_b32 v9, v9, v6')
        a('v_lshlrev_b32 v9, 4, v9\nv_lshl_add_u32 v9, v8, 7, v9')
        a('v_add_u32 v%d, %d, v9' % (AX[0], self.XB))
        a('v_xor_b32 v%d, 64, v%d' % (AX[1], AX[0]))
        a('v_lshlrev_b32 v234, 4, v8\nv_add_u32 v234, %d, v234' % self.MISC)
        a('v_lshlrev_b32 v235, 4, v6\ns_lshl_b32 s57, s56, 7\nv_add_u32 v235, s57, v235\nv_add_u32 v235, %d, v235' % (self.MISC+2048))
        a('v_lshlrev_b32 v236, 4, v0')
        hf = self.val.get('hf', 'p')
        if hf == 'p': a('s_lshl_b32 s58, s54, 4\ns_add_u32 s58, s58, s55\ns_lshl_b32 s58, s58, 2\ns_add_u32 s58, s58, s56\ns_lshl_b32 s58, s58, 3\nv_mov_b32 v237, s58')
        elif hf == 'w': a('s_lshl_b32 s58, s54, 4\ns_add_u32 s58, s58, s55\ns_lshl_b32 s58, s58, 4\ns_add_u32 s58, s58, s56\ns_lshl_b32 s58, s58, 3\ns_add_u32 s58, s58, 0xa0000\nv_mov_b32 v237, s58')
        else: a('s_lshl_b32 s58, s54, 4\ns_add_u32 s58, s58, s55\ns_lshl_b32 s58, s58, 2\ns_add_u32 s58, s58, s56\ns_lshl_b32 s58, s58, 7\ns_add_u32 s58, s58, 0xa0000\nv_mov_b32 v237, s58')
        a('s_mul_i32 s57, s54, %d\ns_lshl_b32 s58, s55, 2\ns_add_u32 s58, s58, s56\ns_lshl_b32 s58, s58, 10\ns_add_u32 s57, s57, s58\ns_add_u32 s57, s57, 0x%x' % (8*49152, HF))
        self.nonce()
        a('s_cmp_eq_u32 s79, 0\ns_cbranch_scc1 L_fc_nv')
        a('v_lshrrev_b32 v16, 2, v0\nv_lshlrev_b32 v16, 7, v16\nv_and_b32 v1, 3, v0\nv_lshl_add_u32 v16, v1, 3, v16')
        a('v_bfe_u32 v1, v0, 3, 1\nv_bfe_u32 v17, v0, 5, 1\nv_lshl_add_u32 v1, v17, 1, v1\nv_lshl_add_u32 v16, v1, 5, v16')
        a('v_add_u32 v1, s67, v16\nv_xor_b32 v6, 32, v1\nv_xor_b32 v7, 64, v1\nv_xor_b32 v254, 96, v1')
        for ct in range(4):
            a('s_lshl_b32 s63, s71, 2\ns_add_u32 s63, s63, %d\ns_mul_i32 s64, s63, 52\ns_lshr_b32 s64, s64, 8' % ct)
            a('s_mul_i32 s65, s64, 5\ns_sub_u32 s65, s63, s65\ns_lshl_b32 s65, s65, 10')
            a('s_mul_i32 s64, s64, 245760\ns_add_u32 s65, s65, s64\ns_mul_i32 s64, s70, 5120\ns_add_u32 s65, s65, s64\ns_add_u32 s%d, s65, 0x%x' % (72+ct, WDF))
        a.label('L_fc_nv')
        def reads(n):
            st = n & 1; sl = n % self.NWS
            r = []
            for mat in range(2):
                for c2 in range(2):
                    for q in range(2):
                        r.append('ds_read_b64_tr_b16 v[%d:%d], v%d offset:%d' % (wf(st,mat,c2)+2*q, wf(st,mat,c2)+2*q+1, AW[c2 + 2*(sl//3)], (sl%3)*self.WSLOT + mat*8192 + q*512))
            for tt in range(8):
                r.append('ds_read_b128 %s, v%d offset:%d' % (v(xf(st,tt),4), AX[n&1], ((n//2) % self.NXS)*self.XSLOT + tt*2048))
            return r
        ST, CSR, TM = FR, FR+32, 238
        ep_reads = ['ds_read_b128 %s, v234 offset:%d' % (v(ST+4*tt,4), tt*256) for tt in range(8)]
        ep_reads += ['ds_read_b128 %s, v235 offset:%d' % (v(CSR+(mat*2+c2)*4,4), mat*512 + c2*64) for mat in range(2) for c2 in range(2)]
        FB = int(self.val.get('fb', 5))
        a('s_barrier')
        self.stamp(1)
        for r in reads(0): a(r)
        if 'tlate' in self.opt: touches()
        a.align(3)
        for n in range(20):
            st = n & 1
            a('s_waitcnt %slgkmcnt(0)\ns_barrier' % ('vmcnt(0) ' if n == int(self.val['fb']) - 1 else ''))
            if n == 10: self.stamp(5)
            if n == 5: self.stamp(6)
            if n == 15: self.stamp(7)
            rd = reads(n+1) if n < 19 else ep_reads
            WS = int(self.val.get('wds', 2))
            if n == WS:
                a('s_cmp_eq_u32 s79, 0\ns_cbranch_scc1 L_fc_w1\ns_waitcnt vmcnt(0)')
                for ct, ar in enumerate((1, 6, 7, 254)):
                    for q in range(2): a('ds_read_b64_tr_b16 %s, v%d offset:%d' % (v(238+4*ct+2*q,2), ar, q*2048))
                a.label('L_fc_w1')
            if n == WS + 1:
                a('s_cmp_eq_u32 s79, 0\ns_cbranch_scc1 L_fc_w2')
                for ct in range(4): a('buffer_store_dwordx4 %s, v236, %s, s%d offen sc1' % (v(238+4*ct,4), s(S_WS,4), 72+ct))
                a.label('L_fc_w2')
            k = 0
            for tt in range(8):
                for mat in range(2):
                    for c2 in range(2):
                        A = acc(tt, mat, c2)
                        if 'nomfma' not in self.opt: a('v_mfma_f32_16x16x32_bf16 %s, %s, %s, %s' % (v(A,4), v(wf(st,mat,c2),4), v(xf(st,tt),4), v(A,4) if n else '0'))
                        if k < len(rd) and 'nords' not in self.opt: a(rd[k]); k += 1
        self.stamp(2)
        a('s_waitcnt lgkmcnt(0)')
        a.label('L_fc_epi')
        OUT = FR + 48
        for tt in range(8):
            m, q = ST+4*tt, ST+4*tt+2
            O = OUT + tt*4
            t = TM + (tt&1)*8
            pairs = [(c2, hh) for c2 in range(2) for hh in range(2)]
            for k, (c2, hh) in enumerate(pairs):
                ga = acc(tt,0,c2)+2*hh; ua = acc(tt,1,c2)+2*hh
                a('v_pk_fma_f32 %s, %s, %s, %s op_sel_hi:[0,1,1] neg_lo:[1,0,0] neg_hi:[1,0,0]' % (v(ga,2), v(m,2), v(CSR+c2*4+2*hh,2), v(ga,2)))
                a('v_pk_fma_f32 %s, %s, %s, %s op_sel_hi:[0,1,1] neg_lo:[1,0,0] neg_hi:[1,0,0]' % (v(ua,2), v(m,2), v(CSR+8+c2*4+2*hh,2), v(ua,2)))
            for k, (c2, hh) in enumerate(pairs):
                ga = acc(tt,0,c2)+2*hh
                a('v_pk_mul_f32 %s, %s, %s op_sel:[0,1] op_sel_hi:[1,1]' % (v(t+2*k,2), v(ga,2), v(m,2)))
            for k in range(8): a('v_exp_f32 v%d, v%d' % (t+k, t+k))
            for k, (c2, hh) in enumerate(pairs):
                ga = acc(tt,0,c2)+2*hh; ua = acc(tt,1,c2)+2*hh
                a('v_pk_mul_f32 %s, %s, %s' % (v(ga,2), v(ga,2), v(ua,2)))
                a('v_pk_fma_f32 %s, %s, %s, %s op_sel_hi:[1,0,0]' % (v(t+2*k,2), v(t+2*k,2), v(q,2), v(q,2)))
            for k in range(8): a('v_rcp_f32 v%d, v%d' % (t+k, t+k))
            a('s_nop 0')
            for k, (c2, hh) in enumerate(pairs):
                ga = acc(tt,0,c2)+2*hh
                a('v_pk_mul_f32 %s, %s, %s' % (v(ga,2), v(ga,2), v(t+2*k,2)))
            for k, (c2, hh) in enumerate(pairs):
                ga = acc(tt,0,c2)+2*hh
                a('v_cvt_pk_bf16_f32 v%d, v%d, v%d' % (O+k, ga, ga+1))
            a('buffer_store_dwordx4 %s, v236, %s, s57 offen sc1' % (v(O,4), s(S_WS,4)))
            a('s_add_u32 s57, s57, 49152')
        self.stamp(3)
        a('v_mov_b32 v2, %d\nv_mov_b32 v3, 1\ns_mov_b64 exec, 1\nds_add_u32 v2, v3\ns_mov_b64 exec, -1' % (self.MISC + 3072))
        a('s_waitcnt vmcnt(0)')
        self.stamp(4)
        self.setflag(237, 2)
        a('s_branch L_p2_mfma')

    MSLOT = 24576; MB = 32768; XFB = 0; XFS = 16384; DMISC = 155648

    def code_touch(self, lo, hi, n, dst, uniq):
        a = self.a
        a('s_getpc_b64 s[72:73]')
        a.label('L_ct%s' % uniq)
        a('s_add_u32 s72, s72, %s-L_ct%s\ns_addc_u32 s73, s73, 0' % (lo, uniq))
        out = []
        for k in range(n):
            a('v_lshlrev_b32 v%d, 7, v0\nv_add_u32 v%d, %d, v%d\nv_min_u32 v%d, %s-%s-4, v%d' % (dst-1-k, dst-1-k, 8192*k, dst-1-k, dst-1-k, hi, lo, dst-1-k))
            out.append('global_load_dword v%d, v%d, s[72:73]' % (dst, dst-1-k))
        return out

    def dft_loader(self):
        a = self.a; vm = VM(a)
        RAW, SA = 32, 192
        a.label('L_dft_ld')
        a('s_setprio %s' % self.val.get('dlp', '2'))
        a('s_cmp_lt_u32 s%d, 2' % WAVE)
        a('s_cselect_b32 s%d, s%d, s%d\ns_cselect_b32 s%d, s%d, s%d' % (S_A, P_HRE, P_HIM, S_A+1, P_HRE+1, P_HIM+1))
        a('s_mov_b32 s%d, 0x%x' % (S_A+2, 640*640*2))
        a('v_lshrrev_b32 v2, 3, v0\nv_lshrrev_b32 v3, 4, v0\nv_and_b32 v4, 7, v0')
        a('v_mul_u32_u24 v5, 81920, v2\nv_lshl_add_u32 v5, v4, 4, v5')
        a('s_lshl_b32 s66, s54, 2\ns_add_u32 s66, s66, s%d\ns_and_b32 s63, s%d, 3' % (WAVE, DID))
        for u in range(4): a('s_add_u32 s53, s63, %d\ns_and_b32 s%d, s53, 3\ns_lshl_b32 s53, s%d, 9\ns_add_u32 s53, s53, s66\ns_mul_i32 s%d, s53, 1280' % (u, 68+u, 68+u, 56+u))
        if 'dph0' in self.opt: a('s_mov_b32 s74, 0')
        else: a('s_and_b32 s74, s54, 3\ns_lshl_b32 s75, s%d, 1\ns_add_u32 s74, s74, s75\ns_cmp_ge_u32 s74, 5\ns_cselect_b32 s75, 5, 0\ns_sub_u32 s74, s74, s75\ns_lshl_b32 s74, s74, 7' % HH)
        a('s_mov_b32 s75, s74\nv_add_u32 v208, s74, v5')
        for c in range(1, 5): a('s_add_u32 s74, s74, 128\ns_cmp_eq_u32 s74, 640\ns_cselect_b32 s74, 0, s74\nv_add_u32 v%d, s74, v5' % (208+c))
        def xl(c, us):
            o = []
            for u in us:
                tag = 'x%d' % c if u else 'y%d' % c
                o.append(([], 'buffer_load_dwordx4 %s, v%d, %s, s%d offen' % (v(RAW+32*c+8*u,4), 208+c, s(S_X,4), 56+u), tag))
                o.append(([], 'buffer_load_dwordx4 %s, v%d, %s, s%d offen offset:640' % (v(RAW+32*c+8*u+4,4), 208+c, s(S_X,4), 56+u), tag))
            return o
        def ml(c):
            adv = ['s_add_u32 s75, s75, 128', 's_cmp_eq_u32 s75, 640', 's_cselect_b32 s75, 0, s75', 's_add_u32 s76, s60, s75']
            return [((adv if u == 0 and c > 0 else []) + ['s_add_u32 m0, s61, %d' % (self.MB + c*self.MSLOT + u*1024), 's_add_u32 s62, s76, %d' % (u*16*1280)],
                     'buffer_load_dwordx4 v%d, %s, s62 offen lds' % (8 if u == 0 else 6+(u&1), s(S_A,4)), 'm%d' % c) for u in range(6)]
        t = 16
        def unpack(lo):
            o = []
            for k in range(4):
                o += ['v_lshlrev_b32 v%d, 16, v%d' % (t+2*k, lo+k), 'v_and_b32 v%d, s77, v%d' % (t+2*k+1, lo+k),
                      'v_lshlrev_b32 v%d, 16, v%d' % (t+8+2*k, lo+4+k), 'v_and_b32 v%d, s77, v%d' % (t+8+2*k+1, lo+4+k)]
            return o
        def acc():
            o = []
            for k in range(16): o += ['v_add_f32 v%d, v%d, v%d' % (SA+(k&3), SA+(k&3), t+k), 'v_fmac_f32 v%d, v%d, v%d' % (SA+4+(k&3), t+k, t+k)]
            return o
        def st(c): return unpack(RAW+32*c) + acc()
        def fl(c, with_stats):
            o = []
            for u in range(4):
                lo = RAW+32*c+8*u
                o += unpack(lo)
                if u == 0 and with_stats: o += acc()
                for k in range(8): o.append('v_fmac_f32 v%d, v12, v%d' % (t+k, t+8+k))
                for k in range(4): o.append('v_cvt_pk_bf16_f32 v%d, v%d, v%d' % (lo+k, t+2*k, t+2*k+1))
                o.append('ds_write_b128 v%d, %s offset:%d' % (213+u, v(lo,4), (c&1)*self.XFS))
            return o
        def emit(loads, valu):
            per = -(-len(valu) // max(1, len(loads))); k = 0
            for pre, ld, tag in loads:
                for p in pre: a(p)
                vm.op(ld, tag)
                for l in valu[k:k+per]: a(l)
                k += per
            for l in valu[k:]: a(l)
        emit(xl(0, range(4)), [])
        a('v_xor_b32 v3, v3, v4\nv_lshlrev_b32 v3, 4, v3')
        a('v_mul_u32_u24 v6, 2560, v2\nv_add_u32 v6, v6, v3\nv_xor_b32 v7, 64, v6')
        a('s_or_b32 s60, s55, s%d\ns_or_b32 s60, s60, s%d\ns_cmp_eq_u32 s60, 0\ns_cselect_b32 s60, %d, 0' % (WAVE, HH, 320*1280))
        a('v_cmp_gt_u32 vcc, 8, v0\nv_mov_b32 v8, s60\ns_nop 0\nv_cndmask_b32 v8, 0, v8, vcc\nv_add_u32 v8, v8, v6')
        a('s_and_b32 s60, s%d, 1\ns_mul_i32 s60, s60, 96\ns_lshl_b32 s61, s%d, 7\ns_add_u32 s60, s60, s61\ns_add_u32 s60, s60, s55\ns_mul_i32 s60, s60, 1280' % (WAVE, HH))
        a('s_mul_i32 s61, s%d, 6144\ns_add_u32 s76, s60, s75' % WAVE)
        YL = 'ylate' in self.opt
        emit(ml(0) + ([] if YL else xl(2, [0]) + xl(3, [0]) + xl(4, [0])), [])
        a('s_lshl_b32 s53, s%d, 12\ns_add_u32 s53, s53, %d' % (WAVE, self.XFB))
        a('v_lshl_add_u32 v9, v2, 7, v3\nv_add_u32 v9, s53, v9')
        for u in range(4): a('s_and_b32 s53, s%d, 1\ns_lshl_b32 s53, s53, 6\nv_xor_b32 v%d, s53, v9\ns_lshl_b32 s53, s%d, 10\nv_add_u32 v%d, s53, v%d' % (68+u, 213+u, 68+u, 213+u, 213+u))
        a('s_cmp_eq_u32 s55, 0\ns_cselect_b32 s53, 1.0, -1.0\nv_mov_b32 v12, s53\ns_mov_b32 s77, 0xffff0000')
        for k in range(8): a('v_mov_b32 v%d, 0' % (SA+k))
        a('v_lshlrev_b32 v4, 10, v2\ns_lshl_b32 s65, s66, 4\ns_add_u32 s65, s65, 0x%x\ns_lshl_b32 s64, s63, 13\ns_add_u32 s64, s64, s65' % STATS)
        a('v_and_b32 v3, 31, v0\nv_lshlrev_b32 v10, 10, v3\ns_lshl_b32 s53, s%d, 7\ns_add_u32 s53, s53, %d\nv_lshl_add_u32 v3, v3, 2, s53' % (WAVE, self.DMISC))
        self.p2_prep()
        self.nonce()
        vm.wait('x0')
        emit([], fl(0, True))
        vm.wait('m0', 'lgkmcnt(0)'); a('s_barrier')
        self.stamp(1)
        if YL:
            emit(xl(1, range(4)) + ml(1) + xl(2, [0]) + xl(3, [0]) + xl(4, [0]), [])
            vm.wait('x1'); emit([], fl(1, True)); vm.wait('y4'); emit(xl(2, [1,2,3]) + ml(2), st(2) + st(3) + st(4))
        else:
            vm.wait('y4')
            emit(xl(1, range(4)) + ml(1), st(2) + st(3) + st(4))
            vm.wait('x1'); emit(xl(2, [1,2,3]) + ml(2), fl(1, True))
        fin = []
        fin += ['v_add_f32 v%d, v%d, v%d' % (SA+k, SA+k, SA+k+1) for k in (0, 4, 2, 6)] + ['v_add_f32 v%d, v%d, v%d' % (SA+k, SA+k, SA+k+2) for k in (0, 4)]
        for mod in ('quad_perm:[1,0,3,2]', 'quad_perm:[2,3,0,1]', 'row_half_mirror'):
            fin += ['s_nop 0'] + ['v_add_f32 v%d, v%d, v%d %s row_mask:0xf bank_mask:0xf' % (SA+k, SA+k, SA+k, mod) for k in (0, 4)]
        fin += ['v_mul_f32 v%d, 0x3acccccd, v%d' % (SA+8, SA), 'v_mul_f32 v%d, 0x3acccccd, v%d' % (SA+9, SA+4),
                'v_fma_f32 v%d, -v%d, v%d, v%d' % (SA+9, SA+8, SA+8, SA+9), 'v_max_f32 v%d, 0, v%d' % (SA+9, SA+9), 'v_add_f32 v%d, 0x3727c5ac, v%d' % (SA+9, SA+9),
                'v_mov_b32 v%d, s12' % (SA+10), 'v_mov_b32 v%d, s13' % (SA+11)]
        emit([], fin)
        a('s_mov_b32 exec_lo, 0x01010101\ns_mov_b32 exec_hi, 0x01010101')
        vm.op('buffer_store_dwordx4 %s, v4, %s, s64 offen sc1' % (v(SA+8,4), s(S_WS,4)), 'o')
        a('s_mov_b64 exec, -1')
        vm.wait('m1', 'lgkmcnt(0)'); a('s_barrier')
        vm.wait('x2'); emit(xl(3, [1,2,3]) + ml(3), fl(2, False)); vm.wait('m2', 'lgkmcnt(0)'); a('s_barrier')
        vm.wait('x3'); emit(ml(4) + xl(4, [1,2,3]), fl(3, False)); vm.wait('m3', 'lgkmcnt(0)'); a('s_barrier')
        vm.op('buffer_load_dwordx4 %s, v10, %s, s65 offen sc1' % (v(SA,4), s(S_WS,4)), 'r')
        vm.wait('x4')
        a('v_lshlrev_b32 v11, 7, v0\nv_add_u32 v11, 0x%x, v11\nv_add_u32 v13, 8192, v11\nv_add_u32 v14, 16384, v11' % SFLAG)
        a('s_cmp_eq_u32 s%d, 1\ns_cbranch_scc0 L_dl_np' % WAVE)
        for k in range(3): a('buffer_load_dwordx2 %s, v%d, %s, 0 offen sc1' % (v(SA+4+2*k,2), (11,13,14)[k], s(S_WS,4)))
        a.label('L_dl_np')
        emit([], fl(4, False))
        a('s_waitcnt lgkmcnt(0)\ns_barrier')
        a('s_waitcnt vmcnt(0)')
        a('s_cmp_eq_u32 s%d, 1\ns_cbranch_scc0 L_dl_nq' % WAVE)
        self.spin3('L_dl_sp', (11,13,14), SA+4, True)
        a.label('L_dl_nq')
        a('s_mov_b32 s53, 0')
        a.label('L_dl_rs')
        a('v_cmp_ne_u64 vcc, s[12:13], %s' % v(SA+2,2))
        a('s_cbranch_vccz L_dl_rx\ns_add_u32 s53, s53, 1\ns_cmp_gt_u32 s53, 0x%x\ns_cbranch_scc1 L_dl_rx\ns_sleep 2' % SPIN_MAX)
        a('buffer_load_dwordx4 %s, v10, %s, s65 offen sc1\ns_waitcnt vmcnt(0)\ns_branch L_dl_rs' % (v(SA,4), s(S_WS,4)))
        a.label('L_dl_rx')
        a('v_rsq_f32 v%d, v%d\ns_nop 0\nds_write_b32 v3, v%d' % (SA, SA+1, SA))
        a('s_lshl_b32 s58, s%d, 3\nv_lshrrev_b32 v7, 5, v0\nv_add_u32 v7, s58, v7\nv_and_b32 v6, 31, v0\nv_lshlrev_b32 v6, 4, v6' % WAVE)
        a('v_mul_u32_u24 v5, %d, v7\nv_add_u32 v5, v5, v6\nv_mul_u32_u24 v8, %d, v7\nv_add_u32 v8, v8, v6' % (LROW, GROW))
        a('s_lshr_b32 s59, s%d, 1\ns_mul_i32 s57, s59, %d\ns_lshl_b32 s59, s%d, 10\ns_add_u32 s57, s57, s59' % (DID, GBLK, HH))
        for k in range(4): a('s_add_u32 s%d, s57, 0x%x' % (60+k, G16 + 2*k*GROW))
        a('s_lshl_b32 s59, s%d, 3\ns_add_u32 s58, s59, 0x%x\nv_lshl_add_u32 v6, v0, 9, s58' % (DID, DFLAG))
        a('v_cmp_gt_u32 vcc, 32, v0\nv_mov_b32 v7, 0x%x\ns_add_u32 s59, s59, 0x%x\nv_cndmask_b32 v6, v7, v6, vcc\nv_mov_b32 v7, s59' % (OOB, SFLAG))
        vm = VM(a)
        self.p2_coords(); self.ov_setup()
        a('v_lshlrev_b32 v2, 4, v0')
        def dma_step(first, k, lim, tag):
            a('s_add_u32 s64, s%d, %d\ns_cmp_lt_u32 s64, %d\ns_cbranch_scc0 L_ds_%s%d' % (WAVE, first + 4*k, lim, tag, k))
            a('s_cmp_ge_u32 s64, 14\ns_cselect_b32 s65, 51200, 0\ns_cselect_b32 s66, 14, 0\ns_sub_u32 s66, s64, s66\ns_mul_i32 s64, s64, 5120\ns_add_u32 s65, s65, s64')
            a('s_cmp_le_u32 s76, s66\ns_cselect_b32 s66, s75, s77\ns_add_u32 s65, s65, s66')
            for n in range(5):
                if n in (0, 4): a('s_add_u32 m0, s64, %d\ns_add_u32 s78, s65, %d' % (n*1024, n*1024))
                a('buffer_load_dwordx4 v2, %s, s78 offen offset:%d %s lds' % (s(S_WS,4), (n&3)*1024, self.bf))
            a.label('L_ds_%s%d' % (tag, k))
        a('s_waitcnt lgkmcnt(0)\ns_barrier')
        self.stamp(9)
        DE = self.val.get('de', '3')
        plan = {'0': [[], [], []], '1': [['o0','o1','o2'], ['e0','e1'], ['e2','e3','e4','o3','o4']], '2': [['o0','o1'], ['e0'], ['e1','e2']], '3': [['o0','o1'], [], []], '4': [['o0'], ['o1'], []]}[DE]
        done = set()
        def run(items):
            for it in items:
                done.add(it)
                if it[0] == 'o': self.ov_load(vm, int(it[1]), 2)
                else: dma_step(10, int(it[1]), 28, 'e')
        run(plan[0])
        for et in range(3):
            a('s_barrier')
            if et == 0: a('s_cmp_eq_u32 s%d, 0\ns_cbranch_scc0 L_dl_sk' % HH)
            for k in range(4): a('ds_read_b128 %s, v5 offset:%d' % (v(16+16*et+4*k,4), 2*k*LROW + et*512))
            for k in range(4):
                a('s_waitcnt lgkmcnt(%d)' % (3-k))
                a('buffer_store_dwordx4 %s, v8, %s, s%d offen offset:%d sc1' % (v(16+16*et+4*k,4), s(S_WS,4), 60+k, et*512))
            if et == 0: a.label('L_dl_sk')
            if et < 2: run(plan[et+1])
        a('s_waitcnt vmcnt(0)\ns_setprio 0\ns_barrier')
        self.stamp(4)
        a('s_cmp_eq_u32 s%d, 0\ns_cbranch_scc0 L_dl_nf2' % WAVE)
        self.setflag(6, 12, '-1')
        a.label('L_dl_nf2')
        self.stamp(3)
        for k in range(3): dma_step(0, k, 10, 'l')
        run([it for it in ['e0','e1','e2','e3','e4','o0','o1','o2','o3','o4'] if it not in done])
        self.stamp(2)
        a('s_branch L_p2_help')

    def dft_consumer(self):
        a = self.a
        ACC = 8
        MP, XP = 104, 152
        NP = 12
        a.label('L_dft_cons')
        a('s_sub_u32 s56, s%d, 4' % WAVE)
        a('s_setprio 1')
        a('v_and_b32 v208, 31, v0\nv_lshrrev_b32 v209, 5, v0\nv_bfe_u32 v210, v0, 1, 3\nv_xor_b32 v210, v210, v209')
        a('v_lshlrev_b32 v210, 4, v210\nv_lshl_add_u32 v210, v208, 7, v210')
        AM = [[211+4*k+u for u in range(4)] for k in range(3)]; AX = [2, 3, 4, 5]
        a('s_lshl_b32 s57, s56, 12\ns_add_u32 s57, s57, %d' % self.XFB)
        for u in range(4):
            a('v_xor_b32 v6, %d, v210' % (32*u))
            a('v_add_u32 v%d, s57, v6' % AX[u])
            for k in range(3): a('v_add_u32 v%d, %d, v6' % (AM[k][u], self.MB + 2*k*self.MSLOT))
        a('v_lshlrev_b32 v7, 2, v209\ns_mov_b32 s62, 0x3d000000')
        for k in range(16):
            r = 224 + k
            a('v_add_u32 v%d, %d, v7\nv_mul_u32_u24 v%d, v%d, v208\nv_and_b32 v%d, 31, v%d\nv_cvt_f32_u32 v%d, v%d\nv_mul_f32 v%d, s62, v%d' % (r, 8*(k>>2)+(k&3), r, r, r, r, r, r, r, r))
        if 'pf' in self.opt: a('s_waitcnt vmcnt(0)')
        for k in range(16):
            a('v_sin_f32 v%d, v%d\nv_cos_f32 v%d, v%d' % (240+k, 224+k, 224+k, 224+k))
        if 'dxt' in self.opt:
            a('s_lshl_b32 s57, s55, 1\ns_add_u32 s57, s57, s%d\ns_lshl_b32 s57, s57, 9\ns_lshl_b32 s58, s54, 2\ns_add_u32 s57, s57, s58\ns_add_u32 s57, s57, s56\ns_mul_i32 s57, s57, 1280' % HH)
            a('v_and_b32 v6, 7, v0\nv_mul_u32_u24 v6, 81920, v6\nv_lshrrev_b32 v162, 3, v0\nv_lshrrev_b32 v163, 2, v162\nv_add_u32 v162, v162, v163\nv_lshl_add_u32 v6, v162, 7, v6')
            a('buffer_load_dword v223, v6, %s, s57 offen offset:128' % s(S_X,4))
        a('s_lshl_b32 s57, s56, 7\ns_add_u32 s57, s57, %d' % self.DMISC)
        a('v_lshl_add_u32 v160, v209, 4, s57')
        a('v_mul_u32_u24 v161, %d, v208\nv_lshl_add_u32 v161, v209, 6, v161' % LROW)
        a('v_lshrrev_b32 v6, 3, v208\nv_add_u32 v6, s56, v6\nv_and_b32 v6, 3, v6\nv_lshl_add_u32 v161, v6, 2, v161')
        self.nonce()
        def accr(m): return ACC + 32*(m%3) + 16*(m//3)
        rd = []; need = []
        for c in range(5):
            for u in range(4):
                rd.append('ds_read_b128 %s, v%d offset:%d' % (v(XP+4*(u&1),4), AX[u], (c&1)*self.XFS))
                for m in range(6):
                    rd.append('ds_read_b128 %s, v%d offset:%d' % (v(MP+4*((6*u+m)%NP),4), AM[c>>1][u], (c&1)*self.MSLOT + m*4096))
                    need.append(len(rd)-1)
        RR = 168
        rr_reads = ['ds_read_b128 %s, v160 offset:%d' % (v(RR+4*k,4), 32*k) for k in range(4)]
        LA = 5
        a('s_barrier')
        self.stamp(1)
        for r in rd[:7]: a(r)
        issued = 7; done = 0
        a.align(3)
        for g in range(120):
            c, mu = divmod(g, 24); u, m = divmod(mu, 6)
            if mu == 21:
                a('s_waitcnt lgkmcnt(0)\ns_barrier'); done = issued
                self.stamp(5+c)
                if c < 4:
                    for _ in range(7): a(rd[issued]); issued += 1
                else:
                    for r in rr_reads: a(r)
            elif need[g] >= done:
                a('s_waitcnt lgkmcnt(%d)' % (issued - need[g] - 1)); done = need[g] + 1
            a('v_mfma_f32_32x32x16_bf16 %s, %s, %s, %s' % (v(accr(m),16), v(XP+4*(u&1),4), v(MP+4*(mu%NP),4), v(accr(m),16) if g >= 6 else '0'))
            if mu < 21:
                tgt = min(28*(c+1), need[g+1] + LA + 1)
                while issued < tgt: a(rd[issued]); issued += 1
        self.stamp(2)
        a.label('L_dc_epi')
        CC, SS, NS = 184, 192, 200
        a('s_waitcnt lgkmcnt(0)')
        for k in range(8):
            a('v_pk_mul_f32 %s, %s, %s' % (v(224+2*k,2), v(224+2*k,2), v(RR+2*k,2)))
            a('v_pk_mul_f32 %s, %s, %s' % (v(240+2*k,2), v(240+2*k,2), v(RR+2*k,2)))
        for k in range(8):
            a('v_cvt_pk_bf16_f32 v%d, v%d, v%d' % (CC+k, 224+2*k, 225+2*k))
            a('v_cvt_pk_bf16_f32 v%d, v%d, v%d' % (SS+k, 240+2*k, 241+2*k))
            a('v_xor_b32 v%d, 0x80008000, v%d' % (NS+k, SS+k))
        def zc(et):
            A0 = ACC + 32*et; Z = 104 + 16*et; o = []
            for k in range(8):
                o.append('v_cvt_pk_bf16_f32 v%d, v%d, v%d' % (Z+k, A0+2*k, A0+2*k+1))
                o.append('v_cvt_pk_bf16_f32 v%d, v%d, v%d' % (Z+8+k, A0+16+2*k, A0+16+2*k+1))
            return o
        for l in zc(0): a(l)
        a('s_nop 1')
        for et in range(3):
            A0 = ACC + 32*et; Z = 104 + 16*et
            RE, IM = A0, A0+16
            ms = [(RE,Z,CC,0),(IM,Z+8,CC,0),(RE,Z+4,CC+4,1),(IM,Z+12,CC+4,1),(RE,Z+8,SS,1),(IM,Z,NS,1),(RE,Z+12,SS+4,1),(IM,Z+4,NS+4,1)]
            fill = (zc(et+1) if et < 2 else ['s_nop 3']) + (self._dft_out(ACC + 32*(et-1), et-1) if et > 0 else [])
            per = -(-len(fill)//8)
            for i, (D, A_, B_, ac) in enumerate(ms):
                a('v_mfma_f32_32x32x16_bf16 %s, %s, %s, %s' % (v(D,16), v(A_,4), v(B_,4), v(D,16) if ac else '0'))
                for f in fill[per*i:per*i+per]: a(f)
            if et > 0: a('s_waitcnt lgkmcnt(0)\ns_barrier')
        a.nop(12)
        for f in self._dft_out(ACC + 64, 2): a(f)
        a('s_waitcnt lgkmcnt(0)\ns_barrier')
        a('s_setprio 0')
        self.stamp(3)
        a('s_barrier')
        a('s_branch L_p2_mfma')
        a.label('L_dc_end')

    def _dft_out(self, A0, et):
        o = []
        for r in range(16):
            o.append('v_cvt_pk_bf16_f32 v%d, v%d, v%d' % (A0+r, A0+r, A0+16+r))
            o.append('ds_write_b32 v161, v%d offset:%d' % (A0+r, (32*et + 8*(r>>2) + (r&3))*16))
        return o

    TW, GV, XV = 232, 248, 228
    def p2_prep(self):
        a = self.a; TW, GV, XV = self.TW, self.GV, self.XV
        J, G_, A, B, C, D = 217, 218, 219, 220, 221, 222
        TM = 223
        a('s_and_b32 s41, s%d, 1\ns_lshr_b32 s42, s%d, 1' % (WAVE, WAVE))
        a('s_lshl_b32 s38, s%d, 9\ns_add_u32 s38, s38, 0x%x' % (T1, DFLAG))
        a('s_lshl_b32 s43, s41, 1\ns_add_u32 s44, s43, s42\ns_sub_u32 s43, s43, s42\ns_add_u32 s43, s43, 1')
        a('v_and_b32 v%d, 15, v0\nv_lshrrev_b32 v%d, 4, v0' % (J, G_))
        a('s_lshl_b32 s39, s44, 9\ns_add_u32 s39, s39, s%d\ns_mul_i32 s39, s39, 1280\ns_mul_i32 s53, s%d, 160\ns_add_u32 s39, s39, s53' % (T1, CS))
        a('s_mul_i32 s40, s%d, 3072\ns_add_u32 s40, s40, %d' % (WAVE, self.MISC + 4096))
        for m in range(3):
            a('v_add_u32 v%d, %d, v0\nv_min_u32 v%d, 159, v%d\nv_mul_u32_u24 v%d, 205, v%d\nv_lshrrev_b32 v%d, 11, v%d' % (A, 64*m, A, A, B, A, B, B))
            a('v_mul_u32_u24 v%d, %d, v%d\nv_lshl_add_u32 v%d, v%d, 4, v%d' % (B, 40960-160, B, XV+m, A, B))
        a('v_mul_u32_u24 v%d, 160, v%d\nv_lshl_add_u32 v%d, v%d, 3, v%d\nv_add_u32 v%d, s40, v%d' % (A, J, A, G_, A, XV+3, A))
        a('s_lshr_b32 s45, s%d, 2\ns_lshl_b32 s47, s45, 31\ns_or_b32 s47, s47, 0x3a000000' % CS)
        a('s_mul_i32 s46, s45, 640\ns_lshl_b32 s45, s45, 1\ns_sub_u32 s45, 1, s45')
        a('s_mul_i32 s53, s%d, 80' % CS)
        a('v_mul_u32_u24 v%d, %d, v%d' % (D, 2*GBLK, G_))
        for n in range(5):
            a('v_add_u32 v%d, s53, v%d\nv_add_u32 v%d, %d, v%d' % (A, J, A, 16*n, A))
            a('v_mul_lo_u32 v%d, v%d, s45\nv_add_u32 v%d, s46, v%d' % (A, A, A, A))
            a('v_and_b32 v%d, 1, v%d\nv_mul_u32_u24 v%d, %d, v%d\nv_add_u32 v%d, v%d, v%d' % (B, A, B, GBLK, B, B, B, D))
            a('v_lshrrev_b32 v%d, 1, v%d\nv_cmp_eq_u32 vcc, 160, v%d\ns_nop 1\nv_cndmask_b32 v%d, v%d, 0, vcc' % (C, A, C, C, C))
            a('v_lshl_add_u32 v%d, v%d, 4, v%d' % (GV+n, C, B))
            if n == 0:
                a('v_cmp_eq_u32 vcc, 0, v%d\nv_mov_b32 v%d, 0x%x\ns_nop 0\nv_cndmask_b32 v%d, v%d, v%d, vcc' % (A, C, OOB, GV, GV, C))
        a('s_mul_i32 s45, s45, s%d\ns_and_b32 s45, s45, 31' % T1)
        a('s_mul_i32 s36, s45, %d\ns_mul_i32 s37, s42, %d\ns_add_u32 s36, s36, s37\ns_add_u32 s36, s36, 0x%x\ns_add_u32 s37, s36, %d' % (GROW, 16*GBLK, G16, 8*GBLK))
        a('s_lshr_b32 s45, s45, 3')
        for t in range(2):
            a('s_lshl_b32 s53, s%d, 9\ns_add_u32 s53, s53, s%d\nv_lshl_add_u32 v%d, v%d, 5, s53' % (44 - t, T1, A+t, J))
        for i in range(4):
            a('s_sub_u32 s53, %d, s45\ns_and_b32 s53, s53, 3\ns_lshl_b32 s46, s42, 5\ns_add_u32 s53, s53, s46' % (i+4))
            a('v_lshl_add_u32 v%d, v%d, 2, s53\nv_add_u32 v%d, 16, v%d' % (C, G_, D, C))
            for t in range(2):
                for d in range(2):
                    r = TM + 2*d
                    a('v_mul_u32_u24 v%d, v%d, v%d' % (r, A+t, C+d))
                    a('v_and_b32 v%d, 2047, v%d\nv_cvt_f32_u32 v%d, v%d\nv_mul_f32 v%d, s47, v%d' % (r, r, r, r, r, r))
                    a('v_sin_f32 v%d, v%d\nv_cos_f32 v%d, v%d' % (r+1, r, r, r))
                a('s_nop 0')
                for d in range(2):
                    a('v_cvt_pk_bf16_f32 v%d, v%d, v%d' % (TW+(t*2+d)*4+i, TM+2*d, TM+2*d+1))

    def p2_help(self):
        a = self.a
        a.label('L_p2_help')
        if self.stage == 'p1':
            a('s_waitcnt vmcnt(0)'); self.dump_stamps(); a('s_endpgm'); return
        ACC, G, TW, OV, GV, XV = 16, 56, self.TW, self.OV, self.GV, self.XV
        def acc(t, n): return ACC + (t*5+n)*4
        a('s_and_b32 s56, s%d, 1\ns_lshr_b32 s57, s%d, 1\nv_lshlrev_b32 v1, 3, v0' % (WAVE, WAVE))
        for m in range(3):
            a('s_add_u32 m0, s40, %d\ns_nop 0\nbuffer_load_dwordx4 v%d, %s, s39 offen lds' % (1024*m, XV+m, s(S_X,4)))
        a('s_mul_i32 s61, s57, 71680\ns_mul_i32 s62, s56, 5120\ns_add_u32 s61, s61, s62\nv_add_u32 v6, s61, v2')
        a('s_mul_i32 s61, s56, 71680\ns_mul_i32 s62, s57, 15360\ns_add_u32 s62, s62, s61\ns_add_u32 s62, s62, 51200\nv_add_u32 v7, s62, v2')
        a('s_mul_i32 s62, s57, 5120\ns_sub_u32 s62, s61, s62\ns_add_u32 s62, s62, 61440\nv_add_u32 v8, s62, v2')
        a('s_waitcnt vmcnt(0)')
        self.stamp(5)
        for n in range(5): a('ds_read_b64 %s, v%d offset:%d' % (v(96+2*n,2), XV+3, 32*n))
        if 'nos' not in self.opt:
            a('s_cmp_ge_u32 s%d, 24\ns_cbranch_scc1 L_p2_sx\nv_mov_b32 v12, %d\ns_mov_b32 s53, 0' % (IDX, self.MISC + 3072))
            a.label('L_p2_sq')
            a('ds_read_b32 v13, v12\ns_add_u32 s53, s53, 1\ns_cmp_gt_u32 s53, 0x%x\ns_cbranch_scc1 L_p2_sx\ns_waitcnt lgkmcnt(0)' % SPIN_MAX)
            a('v_cmp_ne_u32 vcc, 4, v13\ns_cbranch_vccz L_p2_sx\ns_sleep 1\ns_branch L_p2_sq')
            a.label('L_p2_sx')
        self.spin('L_p2_pd', 1, 254, 's38', 8)
        self.stamp(6)
        for d in range(2):
            for n in range(5):
                a('buffer_load_dwordx4 %s, v%d, %s, s%d offen %s' % (v(G+(d*5+n)*4,4), GV+n, s(S_WS,4), 36+d, self.bf))
        a('s_waitcnt lgkmcnt(0)')
        for n in range(5):
            for k in range(2):
                a('v_lshlrev_b32 v%d, 16, v%d\nv_and_b32 v%d, 0xffff0000, v%d' % (acc(0,n)+2*k, 96+2*n+k, acc(0,n)+2*k+1, 96+2*n+k))
        self.stamp(7)
        a('s_barrier')
        self.stamp(8)
        a('s_waitcnt vmcnt(0)')
        for d in range(2):
            for n in range(5):
                for t in range(2):
                    a('v_mfma_f32_16x16x32_bf16 %s, %s, %s, %s' % (v(acc(t,n),4), v(G+(d*5+n)*4,4), v(TW+(t*2+d)*4,4), v(acc(t,n),4) if (t == 0 or d) else '0'))
        w = ['ds_write_b128 v6, %s offset:%d' % (v(OV+4*g,4), (g//5)*10240 + (g%5)*1024) for g in range(25)]
        w += ['ds_write_b128 v%d, %s offset:%d' % (7+t, v(acc(t,n),4), n*1024) for t in range(2) for n in range(5)]
        for lo, hi in ((0,8),(8,16),(16,24),(24,30),(30,35)):
            a('s_barrier')
            for l in w[lo:hi]: a(l)
            a('s_waitcnt lgkmcnt(0)')
        a('s_barrier')
        a('s_or_b32 s53, s2, s%d\ns_cmp_eq_u32 s53, 0\ns_cbranch_scc0 L_ph_x' % WAVE)
        a('v_mov_b32 v2, 0x%x' % EPOCH)
        self.setflag(2, 4)
        a.label('L_ph_x')
        self.dump_stamps()
        a('s_endpgm')

    def p2_mfma(self):
        a = self.a
        a.label('L_p2_mfma')
        if self.stage == 'p1':
            self.dump_stamps(); a('s_endpgm'); return
        ACC, WB, H = 16, 56, 136
        NH, NWB = 14, 4
        def acc(t, n): return ACC + (t*5+n)*4
        a('s_setprio %s' % self.val.get('mp', '1'))
        a('s_and_b32 s56, s%d, 1\ns_bfe_u32 s57, s%d, 0x10001\nv_lshlrev_b32 v2, 4, v0' % (WAVE, WAVE))
        self.p2_coords()
        a('s_lshl_b32 s58, s56, 1\ns_add_u32 s59, s58, s57\ns_sub_u32 s58, s58, s57\ns_add_u32 s58, s58, 1')
        a('s_lshl_b32 s61, s%d, 2\ns_add_u32 s62, s61, s59\ns_mul_i32 s62, s62, 49152\nv_add_u32 v6, s62, v2' % T1)
        a('s_add_u32 s62, s61, s58\ns_mul_i32 s62, s62, 49152\nv_add_u32 v7, s62, v2')
        a('s_mul_i32 s62, s57, 24\ns_sub_u32 s62, s62, s76\ns_lshl_b32 s62, s62, 10\ns_add_u32 s63, s62, 0x%x\ns_add_u32 s62, s62, 0x%x' % (HF, HF + 24576))
        a('s_mul_i32 s61, s57, 71680\nv_add_u32 v3, s61, v2\nv_add_u32 v4, 0xc800, v3')
        a('s_lshl_b32 s60, s59, 9\ns_add_u32 s60, s60, s%d\ns_mul_i32 s60, s60, 1280\ns_mul_i32 s61, s%d, 160\ns_add_u32 s60, s60, s61' % (T1, CS))
        a('s_and_b32 s74, s%d, 3\ns_xor_b32 s73, s74, 2\ns_mul_i32 s73, s73, 5120\ns_add_u32 s73, s73, 143360' % WAVE)
        a('s_mul_i32 s74, s74, 5120\ns_add_u32 s74, s74, 143360')
        for m in range(3):
            a('v_add_u32 v8, %d, v0\nv_mul_u32_u24 v9, 205, v8\nv_lshrrev_b32 v9, 11, v9' % (64*m))
            a('v_mul_u32_u24 v%d, 10, v9\nv_sub_u32 v8, v8, v%d\nv_lshlrev_b32 v8, 4, v8' % (10+m, 10+m))
            a('v_mul_u32_u24 v%d, 40960, v9\nv_add_u32 v%d, v%d, v8' % (10+m, 10+m, 10+m))
            a('v_mul_u32_u24 v9, 176, v9\nv_add3_u32 v%d, v9, v8, s74' % (13+m))
        a('v_cmp_gt_u32 vcc, 32, v0\nv_mov_b32 v8, 0x%x\ns_nop 0\nv_cndmask_b32 v12, v8, v12, vcc' % OOB)
        a('v_and_b32 v8, 15, v0\nv_mul_u32_u24 v8, 176, v8\nv_lshrrev_b32 v9, 4, v0\nv_lshl_add_u32 v8, v9, 3, v8\nv_add_u32 v8, s74, v8')
        a('v_add_u32 v9, s73, v2\nv_add_u32 v5, s74, v2')
        a('s_mul_i32 s61, s56, 71680\ns_mul_i32 s53, s57, 10240\ns_add_u32 s61, s61, s53\ns_add_u32 s61, s61, 51200\nv_add_u32 v1, s61, v2')
        a('s_lshr_b32 s64, s%d, 1\ns_lshl_b32 s64, s64, 9\ns_mul_i32 s65, s57, 192\ns_add_u32 s64, s64, s65' % T1)
        a('v_min_u32 v250, 23, v0\nv_lshlrev_b32 v250, 3, v250\ns_mov_b32 s66, -1')
        a('s_barrier')
        self.stamp(7)
        vm = VM(a)
        late = []
        NG = int(self.val.get('ng', 1))
        def ensure(g, first=False):
            mask = (0xF << 4*g) if not first else (1 << 4*NG) - 1
            L = 'L_en%d' % g
            a('s_and_b32 s67, s66, 0x%x\ns_cbranch_scc1 %s' % (mask, L))
            a.label(L + '_r')
            late.append((L, mask))
        def hload(j):
            if j % 4 == 0 and (j == 0 or j//4 >= NG): ensure(j//4, j == 0)
            if j == 0: self.stamp(8)
            a('s_cmp_le_u32 s76, %d\ns_cselect_b32 s61, s63, s62\ns_add_u32 s61, s61, %d' % (j, j*1024))
            for t in range(2):
                vm.op('buffer_load_dwordx4 %s, v%d, %s, s61 offen %s' % (v(H+(j%NH)*8+4*t,4), 6+t, s(S_WS,4), self.bf), j)
        def wread(j):
            sl = j if j < 14 else j - 14
            return ['ds_read_b128 %s, v%d offset:%d' % (v(WB+(j%NWB)*20+4*n,4), 3 if sl < 10 else 4, (sl if sl < 10 else sl-10)*5120 + n*1024) for n in range(5)]
        PRE = int(self.val.get('hpre', self.h_pre))
        for j in range(PRE): hload(j)
        for j in range(2):
            for r in wread(j): a(r)
        nxt = PRE
        for j in range(24):
            vm.wait(j, 'lgkmcnt(%d)' % (5 if j < 23 else 0))
            if j in (0, 4, 9, 17): self.stamp({0: 9, 4: 10, 9: 11, 17: 12}[j])
            if j in (3, 7, 11, 15, 19): a('s_barrier')
            rd = wread(j+2) if j < 22 else []
            k = 0
            for n in range(5):
                for t in range(2):
                    a('v_mfma_f32_16x16x32_bf16 %s, %s, %s, %s' % (v(acc(t,n),4), v(WB+(j%NWB)*20+4*n,4), v(H+(j%NH)*8+4*t,4), v(acc(t,n),4) if j else '0'))
                    if k < len(rd): a(rd[k]); k += 1
                    elif k in (5, 7) and nxt < 24 and nxt < j + NH and (k == 5 or nxt <= j + NH - 2):
                        hload(nxt); nxt += 1; k += 1
                    else: k += 1
        assert nxt == 24
        self.stamp(13)
        a.nop(7)
        for n in range(5): a('ds_write_b128 v9, %s offset:%d' % (v(acc(1,n),4), n*1024))
        a('s_waitcnt lgkmcnt(0)\ns_barrier')
        for n in range(5):
            a('ds_read_b128 %s, v1 offset:%d' % (v(WB+12*n,4), n*1024))
            a('ds_read_b128 %s, v1 offset:%d' % (v(WB+12*n+4,4), 5120 + n*1024))
            a('ds_read_b128 %s, v5 offset:%d' % (v(WB+12*n+8,4), n*1024))
        for n in range(5):
            a('s_waitcnt lgkmcnt(%d)' % (12-2*n))
            for k in range(2):
                a('v_pk_add_f32 %s, %s, %s' % (v(WB+12*n+2*k,2), v(WB+12*n+2*k,2), v(WB+12*n+4+2*k,2)))
                a('v_pk_add_f32 %s, %s, %s' % (v(acc(0,n)+2*k,2), v(acc(0,n)+2*k,2), v(WB+12*n+8+2*k,2)))
            for k in range(2): a('v_pk_add_f32 %s, %s, %s' % (v(acc(0,n)+2*k,2), v(acc(0,n)+2*k,2), v(WB+12*n+2*k,2)))
            for k in range(2): a('v_cvt_pk_bf16_f32 v%d, v%d, v%d' % (acc(1,n)+k, acc(0,n)+2*k, acc(0,n)+2*k+1))
            a('ds_write_b64 v8, %s offset:%d' % (v(acc(1,n),2), 32*n))
        a('s_waitcnt lgkmcnt(0)')
        for m in range(3): a('ds_read_b128 %s, v%d' % (v(WB+4*m,4), 13+m))
        for m in range(3):
            a('s_waitcnt lgkmcnt(%d)' % (2-m))
            a('buffer_store_dwordx4 %s, v%d, %s, s60 offen %s' % (v(WB+4*m,4), 10+m, s(S_OUT,4), self.val.get('of', '').replace('+', ' ')))
        if self.stamps: a('s_waitcnt vmcnt(0)')
        self.dump_stamps()
        a('s_endpgm')
        for L, mask in late:
            a.label(L)
            a('s_mov_b32 s53, 0')
            a.label(L + '_l')
            a('buffer_load_dwordx2 v[254:255], v250, %s, s64 offen sc1' % s(S_WS,4))
            a('s_add_u32 s53, s53, 1\ns_cmp_gt_u32 s53, 0x%x\ns_cbranch_scc1 %s_r\ns_waitcnt vmcnt(0)' % (SPIN_MAX, L))
            a('v_cmp_ne_u64 vcc, s[12:13], v[254:255]\ns_nop 1\ns_mov_b32 s66, vcc_lo\ns_and_b32 s67, s66, 0x%x\ns_cbranch_scc0 %s_r' % (mask, L))
            a('s_sleep %s\ns_branch %s_l' % (self.val.get('hs', '1'), L))

    h_pre = 10

    def build(self, header):
        a = self.a
        self.prologue()
        self.ffn_wloader(); self.ffn_xloader(); self.dft_loader()
        self.dft_consumer(); self.ffn_consumer()
        self.p2_help(); self.p2_mfma()
        a.label('L_end')
        a('s_endpgm')
        errs = check(a.lines)
        for e in errs: print(e, file=sys.stderr)
        txt = header + '; @launch grid=(256,1,1) block=(512,1,1) lds=163840\n'
        txt += '.amdgcn_target "amdgcn-amd-amdhsa--gfx950"\n.text\n.globl %s\n.p2align 8\n.type %s,@function\n%s:\n' % (KN, KN, KN)
        txt += a.text()
        txt += '''.section .rodata,"a"
.p2align 6
.amdhsa_kernel %s
  .amdhsa_next_free_vgpr 256
  .amdhsa_next_free_sgpr 102
  .amdhsa_accum_offset 256
  .amdhsa_group_segment_fixed_size 0
  .amdhsa_kernarg_size 96
  .amdhsa_user_sgpr_count 2
  .amdhsa_user_sgpr_kernarg_segment_ptr 1
  .amdhsa_system_sgpr_workgroup_id_x 1
.end_amdhsa_kernel
''' % KN
        return txt, errs

if __name__ == '__main__':
    import argparse
    ap = argparse.ArgumentParser()
    ap.add_argument('-o', default='k.s'); ap.add_argument('--stage', default='full'); ap.add_argument('--stamps', action='store_true'); ap.add_argument('--opt', default='')
    args = ap.parse_args()
    ref = open('parallel_sum__spectral_fnet__swiglu_ffn__prompt.s.ref').read()
    header = ''.join(l + '\n' for l in ref.split('\n') if l.startswith(';') and '@launch' not in l and 'Override launch' not in l and 'grid=ceil' not in l)
    txt, errs = Gen(args.stage, args.stamps, [o for o in args.opt.split(',') if o]).build(header)
    open(args.o, 'w').write(txt)
    print('written', args.o, 'hazard errors:', len(errs))
```

```python
import sys
from dsl import *

KN = 'parallel_sum__spectral_fnet__swiglu_ffn__prompt_kernel'
HFLAG   = 0x0
EPOCH   = 0x18000
SFLAG   = 0x8000
STATS   = 0x20000
COLSUM  = 0x28000
STAMPS  = 0x60000
DFLAG   = 0x80000
WDF     = 0x100000
G16     = 0x300000
HF      = 0x600000
WS_SIZE = 0xC00000
LROW = 97*16
GROW = 160*16
GBLK = 32*GROW
SPIN_MAX = 0x100000
OOB = 0x7ffffff0

S_X, S_WS, S_OUT, S_A = 4, 8, 16, 20
NONCE = 12
P_X, P_HRE, P_HIM, P_WG, P_WU, P_WD, P_OUT, P_DBG, P_WS = 28, 32, 34, 36, 38, 40, 42, 44, 46
WAVE, XCD, IDX = 48, 49, 50
T1, CS = 51, 52
HH, DID = 14, 15

class VM:
    def __init__(self, a): self.a = a; self.q = []
    def op(self, txt, tag): self.a(txt); self.q.append(tag)
    def wait(self, tag, extra=''):
        idx = max([i for i, t in enumerate(self.q) if t == tag], default=-1)
        if idx < 0:
            if extra: self.a('s_waitcnt ' + extra)
            return
        n = len(self.q) - idx - 1
        assert n <= 63
        self.a('s_waitcnt vmcnt(%d) %s' % (n, extra))
        self.q = self.q[idx+1:]
    def drained(self): self.q = []

class Gen:
    def __init__(self, stage='full', stamps=False, opt=()):
        self.a = Asm(); self.stage = stage; self.stamps = stamps; self.opt = set(o.split('=')[0] for o in opt); self.val = dict(o.split('=') for o in opt if '=' in o)
        self.bf = '' if 'plain' in self.opt else 'sc1'
        if 'ph8' not in self.opt:
            self.opt |= ({'ph2', 'pfw', 'nowd'} if 'pf' in self.opt else {'ph2', 'ft', 'nowd'})
            for k, d in (('fb','6'),('wds','1'),('pw','11'),('ove','5'),('pf0','2')): self.val.setdefault(k, d)

    def srd(self, dst, ptr, size):
        a = self.a
        a('s_mov_b32 %s, %s' % (s(dst), s(ptr)))
        a('s_mov_b32 %s, %s' % (s(dst+1), s(ptr+1)))
        a('s_mov_b32 %s, 0x%x' % (s(dst+2), size))
        a('s_mov_b32 %s, 0x20000' % s(dst+3))

    def stamp(self, k):
        if self.stamps:
            self.a('%s s[98:99]\ns_waitcnt lgkmcnt(0)\ns_mov_b32 s%d, s98' % ('s_memtime' if 'cyc' in self.opt else 's_memrealtime', 80+k))

    def dump_stamps(self):
        if not self.stamps: return
        a = self.a
        a('s_memtime s[96:97]\ns_waitcnt lgkmcnt(0)\ns_sub_u32 s95, s96, s95')
        a('s_lshl_b32 s96, s2, 3\ns_add_u32 s96, s96, s%d\ns_lshl_b32 s96, s96, 6\ns_add_u32 s96, s96, 0x%x' % (WAVE, STAMPS))
        self.stamp(14)
        if 'probe' in self.opt:
            self.nprobe = getattr(self, 'nprobe', 0) + 1
            k = int(self.val['probe']); L = 'L_pr%d' % self.nprobe
            a('s_cmp_eq_u32 s2, %s\ns_cbranch_scc0 %s_x\ns_cmp_eq_u32 s%d, %s\ns_cbranch_scc0 %s_x' % (self.val.get('pwg', '0'), L, WAVE, self.val.get('pwave', '4'), L))
            a('s_sub_u32 s60, s%d, s80\ns_mul_i32 s60, s60, 10\ns_add_u32 s60, s60, 6000' % (80+k))
            a.label(L)
            a('s_memrealtime s[98:99]\ns_waitcnt lgkmcnt(0)\ns_sub_u32 s61, s98, s80\ns_cmp_lt_u32 s61, s60\ns_cbranch_scc1 %s' % L)
            a.label(L + '_x')
        for k in range(16): a('v_mov_b32 v%d, s%d' % (100+k, 80+k))
        a('v_mov_b32 v99, s96')
        a('s_mov_b64 exec, 1')
        for k in range(4): a('buffer_store_dwordx4 v[%d:%d], v99, %s, 0 offen offset:%d' % (100+4*k, 103+4*k, s(S_WS,4), 16*k))
        a('s_waitcnt vmcnt(0)')

    def nonce(self):
        self.a('s_waitcnt lgkmcnt(0)\ns_add_u32 s12, s12, 1\ns_add_u32 s13, s13, 1')

    def spin(self, lbl, va, vd, soff, sleep, first_done=False):
        a = self.a
        a('s_mov_b32 s53, 0')
        if first_done: a('s_branch %s_c' % lbl)
        a.label(lbl)
        a('buffer_load_dwordx2 %s, v%d, %s, %s offen sc1' % (v(vd,2), va, s(S_WS,4), soff))
        a('s_add_u32 s53, s53, 1\ns_cmp_gt_u32 s53, 0x%x\ns_cbranch_scc1 %s_x' % (SPIN_MAX, lbl))
        a('s_waitcnt vmcnt(0)')
        a.label(lbl + '_c')
        a('v_cmp_ne_u64 vcc, s[12:13], %s' % v(vd,2))
        a('s_cbranch_vccz %s_x\ns_sleep %d\ns_branch %s' % (lbl, sleep, lbl))
        a.label(lbl + '_x')

    def spin3(self, lbl, va, vd, first_done=False):
        a = self.a
        a('s_mov_b32 s53, 0')
        if first_done: a('s_branch %s_c' % lbl)
        a.label(lbl)
        for k in range(3): a('buffer_load_dwordx2 %s, v%d, %s, 0 offen sc1' % (v(vd+2*k,2), va[k], s(S_WS,4)))
        a('s_add_u32 s53, s53, 1\ns_cmp_gt_u32 s53, 0x%x\ns_cbranch_scc1 %s_x' % (SPIN_MAX, lbl))
        a('s_waitcnt vmcnt(0)')
        a.label(lbl + '_c')
        a('v_cmp_ne_u64 vcc, s[12:13], %s\nv_cmp_ne_u64 s[68:69], s[12:13], %s\ns_nop 0\ns_or_b64 vcc, vcc, s[68:69]' % (v(vd,2), v(vd+2,2)))
        a('v_cmp_ne_u64 s[68:69], s[12:13], %s\ns_nop 0\ns_or_b64 vcc, vcc, s[68:69]' % v(vd+4,2))
        a('s_cbranch_vccz %s_x\ns_sleep 8\ns_branch %s' % (lbl, lbl))
        a.label(lbl + '_x')

    def setflag(self, va, vd, mask='1'):
        a = self.a
        a('v_mov_b32 v%d, s12\nv_mov_b32 v%d, s13' % (vd, vd+1))
        a('s_mov_b64 exec, %s' % mask)
        a('buffer_store_dwordx2 %s, v%d, %s, 0 offen sc1' % (v(vd,2), va, s(S_WS,4)))
        a('s_mov_b64 exec, -1')

    def prologue(self):
        a = self.a
        if 'early0' in self.opt: a('s_memrealtime s[100:101]')
        a('s_load_dwordx2 s[28:29], s[0:1], 0')
        a('s_load_dwordx4 s[36:39], s[0:1], 48')
        a('s_load_dwordx8 s[40:47], s[0:1], 64')
        a('s_load_dwordx4 s[32:35], s[0:1], 24')
        a('s_cmp_ge_u32 s2, 256\ns_cbranch_scc1 L_end')
        a('v_lshrrev_b32 v1, 6, v0\nv_and_b32 v0, 63, v0')
        a('v_readfirstlane_b32 s%d, v1' % WAVE)
        a('s_and_b32 s%d, s2, 7\ns_lshr_b32 s%d, s2, 3' % (XCD, IDX))
        if self.stamps:
            for k in range(16): a('s_mov_b32 s%d, 0' % (80+k))
            a('s_memtime s[96:97]\ns_waitcnt lgkmcnt(0)\ns_mov_b32 s95, s96')
        a('s_cmp_eq_u32 s%d, 7\ns_cbranch_scc0 L_nopf' % WAVE)
        a('s_getpc_b64 s[54:55]')
        a.label('L_pc')
        a('s_mul_i32 s53, s%d, %d' % (IDX, 14*128))
        a('v_min_u32 v2, 13, v0\nv_lshl_add_u32 v2, v2, 7, s53\nv_min_u32 v2, L_end-L_pc, v2')
        a('global_load_dword v1, v2, s[54:55]')
        a.label('L_nopf')
        a('s_mul_i32 s54, s%d, 43\ns_lshr_b32 s54, s54, 7' % IDX)
        a('s_mul_i32 s55, s54, 3\ns_sub_u32 s55, s%d, s55' % IDX)
        a('s_and_b32 s56, s%d, 1\ns_lshl_b32 s56, s56, 3\ns_add_u32 s54, s54, s56' % XCD)
        a('s_lshr_b32 s56, s%d, 1\ns_mul_i32 s56, s56, 3\ns_add_u32 s55, s55, s56' % XCD)
        if 'map48' in self.opt:
            a('s_lshr_b32 s%d, s%d, 3\ns_lshl_b32 s53, s%d, 2\ns_add_u32 s%d, s%d, s53\ns_and_b32 s%d, s%d, 7' % (T1, IDX, XCD, T1, T1, CS, IDX))
        else:
            a('s_lshr_b32 s%d, s%d, 2\ns_lshr_b32 s53, s%d, 1\ns_lshl_b32 s53, s53, 3\ns_add_u32 s%d, s%d, s53' % (T1, IDX, XCD, T1, T1))
            a('s_and_b32 s%d, s%d, 3\ns_and_b32 s53, s%d, 1\ns_lshl_b32 s53, s53, 2\ns_add_u32 s%d, s%d, s53' % (CS, IDX, XCD, CS, CS))
        a('s_mov_b32 s%d, 0x%x\ns_mov_b32 s%d, 0x20000' % (S_X+2, 2048*640*2, S_X+3))
        a('s_mov_b32 s%d, 0x%x\ns_mov_b32 s%d, 0x20000' % (S_WS+2, WS_SIZE, S_WS+3))
        a('s_mov_b32 s%d, 0x%x\ns_mov_b32 s%d, 0x20000' % (S_OUT+2, 2048*640*2, S_OUT+3))
        a('s_mov_b32 s%d, 0x20000' % (S_A+3))
        a('s_waitcnt lgkmcnt(0)')
        self.stamp(0)
        if 'early0' in self.opt: a('s_mov_b32 s93, s80\ns_mov_b32 s80, s100')
        a('s_load_dwordx2 s[12:13], s[46:47], 0x%x' % EPOCH)
        for d, p in ((S_X, P_X), (S_WS, P_WS), (S_OUT, P_OUT)):
            a('s_mov_b32 s%d, s%d\ns_mov_b32 s%d, s%d' % (d, p, d+1, p+1))
        a('s_cmp_ge_u32 s%d, 24\ns_cbranch_scc1 L_notffn' % IDX)
        a('s_cmp_lt_u32 s%d, 2\ns_cbranch_scc1 L_ffn_wl' % WAVE)
        a('s_cmp_lt_u32 s%d, 4\ns_cbranch_scc1 L_ffn_xl' % WAVE)
        a('s_branch L_ffn_cons')
        a.label('L_notffn')
        if 'ffnonly' in self.opt: a('s_endpgm')
        a('s_and_b32 s54, s%d, 3\ns_lshr_b32 s55, s%d, 2\ns_lshl_b32 s55, s55, 3\ns_add_u32 s54, s54, s55' % (IDX, XCD))
        a('s_and_b32 s55, s%d, 1\ns_lshl_b32 s55, s55, 2\ns_add_u32 s54, s54, s55\ns_bfe_u32 s55, s%d, 0x10001' % (XCD, XCD))
        a('s_bfe_u32 s%d, s%d, 0x10002\ns_lshl_b32 s%d, s54, 1\ns_add_u32 s%d, s%d, s55\ns_lshl_b32 s%d, s%d, 1\ns_add_u32 s%d, s%d, s%d' % (HH, IDX, DID, DID, DID, DID, DID, DID, DID, HH))
        if 'pf' in self.opt: self.prefetch()
        a('s_cmp_lt_u32 s%d, 4\ns_cbranch_scc1 L_dft_ld' % WAVE)
        a('s_branch L_dft_cons')

    WSLOT, NWS = 16384, 6
    XB, XSLOT, NXS = 98304, 16384, 3
    MISC = 147456

    def wvoff(self, dst0, rowbytes, tmp):
        a = self.a
        t = tmp
        a('v_lshrrev_b32 v%d, 3, v0' % t)
        a('v_bfe_u32 v%d, v0, 4, 1' % (t+1))
        a('v_bfe_u32 v%d, v0, 1, 2' % (t+2))
        a('v_xor_b32 v%d, v%d, v%d' % (t+2, t+2, t+1))
        a('v_and_b32 v%d, 1, v0' % (t+1))
        a('v_lshlrev_b32 v%d, 4, v%d' % (t+1, t+1))
        a('v_lshl_add_u32 v%d, v%d, 5, v%d' % (t+2, t+2, t+1))
        a('v_mul_u32_u24 v%d, %d, v%d' % (t, rowbytes, t))
        a('v_add_u32 v%d, v%d, v%d' % (dst0, t, t+2))
        a('v_xor_b32 v%d, 64, v%d' % (t+2, t+2))
        a('v_add_u32 v%d, v%d, v%d' % (dst0+1, t, t+2))
        a('v_add_u32 v%d, %d, v%d' % (dst0+1, 8*rowbytes, dst0+1))
        a('v_add_u32 v%d, %d, v%d' % (dst0+2, 16*rowbytes, dst0))
        a('v_add_u32 v%d, %d, v%d' % (dst0+3, 16*rowbytes, dst0+1))

    def phase(self, dst):
        a = self.a
        a('s_mul_i32 s64, s%d, 43\ns_lshr_b32 s64, s64, 7\ns_mul_i32 s65, s64, 3\ns_sub_u32 s65, s%d, s65' % (IDX, IDX))
        if 'ph0' in self.opt: a('s_mov_b32 s%d, 0' % dst)
        elif 'ph2' not in self.opt and 'ph4' not in self.opt:
            a('s_lshr_b32 s%d, s64, 2\ns_add_u32 s%d, s%d, s64' % (dst, dst, dst))
            a('s_mul_i32 s53, s65, 7\ns_lshr_b32 s53, s53, 1\ns_add_u32 s%d, s%d, s53' % (dst, dst))
            a('s_cmp_ge_u32 s%d, 10\ns_cselect_b32 s53, 10, 0\ns_sub_u32 s%d, s%d, s53' % (dst, dst, dst))
        elif 'ph4' in self.opt:
            a('s_and_b32 s%d, s64, 3\ns_mul_i32 s%d, s%d, 5\ns_lshr_b32 s%d, s%d, 1' % (dst, dst, dst, dst, dst))
        else: a('s_and_b32 s%d, s64, 1\ns_mul_i32 s%d, s%d, 5' % (dst, dst, dst))

    def prefetch(self):
        a = self.a
        a('s_sub_u32 s56, s%d, 24' % IDX)
        a('s_bitcmp0_b32 s%d, 0' % XCD)
        a('s_cselect_b32 s24, s%d, s%d\ns_cselect_b32 s25, s%d, s%d\ns_mov_b32 s26, 0x%x\ns_mov_b32 s27, 0x20000' % (P_WG, P_WU, P_WG+1, P_WU+1, 640*1536*2))
        a('v_min_u32 v1, 47, v0\nv_mul_u32_u24 v2, 43, v1\nv_lshrrev_b32 v2, 8, v2')
        a('v_mul_u32_u24 v3, 6, v2\nv_sub_u32 v1, v1, v3\nv_lshlrev_b32 v1, 7, v1')
        a('v_lshrrev_b32 v3, 2, v2\nv_mul_u32_u24 v3, 320, v3\nv_and_b32 v2, 3, v2\nv_add_u32 v2, v2, v3\nv_mul_u32_u24 v2, 3072, v2\nv_add_u32 v2, v2, v1')
        a('s_lshr_b32 s57, s%d, 1\ns_mul_i32 s58, s57, 768\ns_mul_i32 s59, s56, 12288\ns_add_u32 s58, s58, s59' % XCD)
        a('s_and_b32 s59, s%d, 1\ns_lshl_b32 s59, s59, 4\ns_lshl_b32 s57, s57, 9\ns_add_u32 s57, s57, s59\ns_lshl_b32 s59, s56, 5\ns_add_u32 s57, s57, s59\ns_mul_i32 s57, s57, 1280' % XCD)
        a('v_and_b32 v3, 15, v0\nv_mul_u32_u24 v3, 1280, v3\nv_bfe_u32 v4, v0, 1, 1\nv_mul_u32_u24 v4, 5, v4')
        S0 = int(self.val.get('pf0', 1))
        def slot(sreg):
            a('s_mul_i32 s60, s%d, %d\ns_add_u32 s60, s60, s58' % (sreg, 32*3072))
            a('buffer_load_dword v255, v2, s[24:27], s60 offen')
            if 'pfw' in self.opt: return
            a('s_lshr_b32 s60, s%d, 1\nv_add_u32 v5, s60, v4\nv_lshl_add_u32 v5, v5, 7, v3\ns_and_b32 s60, s%d, 1\ns_mul_i32 s60, s60, %d\ns_add_u32 s60, s60, s57' % (sreg, sreg, 256*1280))
            a('s_mov_b64 exec, 0xffff\nbuffer_load_dword v255, v5, %s, s60 offen\ns_mov_b64 exec, -1' % s(S_X,4))
        a('s_add_u32 s61, s%d, %d' % (WAVE, S0))
        slot(61)
        a('s_add_u32 s61, s61, 8\ns_cmp_lt_u32 s61, 10\ns_cbranch_scc0 L_pf_x')
        slot(61)
        a('s_branch L_pf_e')
        a.label('L_pf_x')
        a('s_cmp_lt_u32 s61, %d\ns_cbranch_scc0 L_pf_e' % (0 if 'pfw' in self.opt else 13))
        a('s_sub_u32 s61, s61, 10\ns_lshl_b32 s61, s61, 2\nv_lshrrev_b32 v5, 4, v0\nv_add_u32 v5, s61, v5\nv_min_u32 v5, 9, v5')
        a('v_and_b32 v6, 1, v5\nv_mul_u32_u24 v6, %d, v6\nv_add_u32 v3, v3, v6\nv_lshrrev_b32 v5, 1, v5\nv_sub_u32 v5, v5, v4\nv_add_u32 v5, 5, v5\nv_lshl_add_u32 v5, v5, 7, v3' % (256*1280))
        a('buffer_load_dword v255, v5, %s, s57 offen' % s(S_X,4))
        a.label('L_pf_e')

    def p2_coords(self):
        a = self.a
        if 'rho' not in self.opt: a('s_mov_b32 s76, 0')
        elif 'rho2' in self.opt:
            a('s_and_b32 s76, s%d, 7\ns_and_b32 s53, s%d, 3\ns_lshl_b32 s53, s53, 1\ns_add_u32 s76, s76, s53\ns_and_b32 s76, s76, 7\ns_mul_i32 s76, s76, 3' % ((CS, T1) if 'map48' in self.opt else (T1, CS)))
        elif 'map48' in self.opt: a('s_and_b32 s76, s%d, 3\ns_mul_i32 s76, s76, 6' % T1)
        else: a('s_and_b32 s76, s%d, 7\ns_mul_i32 s76, s76, 3' % T1)
        a('s_mul_i32 s77, s%d, 245760\ns_mul_i32 s53, s76, 5120\ns_add_u32 s77, s77, s53\ns_add_u32 s77, s77, 0x%x\ns_sub_u32 s75, s77, 122880\ns_sub_u32 s76, 24, s76' % (CS, WDF))

    def wd_dma(self, vm, frags, voff):
        a = self.a; last = None
        for f in frags:
            half, r = divmod(f, 70); j, n = divmod(r, 5)
            if j != last: a('s_cmp_le_u32 s76, %d\ns_cselect_b32 s74, s75, s77' % j); last = j
            a('s_add_u32 m0, %d, 0\ns_add_u32 s78, s74, %d' % (f*1024, half*122880 + j*5120 + n*1024))
            vm.op('buffer_load_dwordx4 v%d, %s, s78 offen %s lds' % (voff, s(S_WS,4), self.bf), 'wd')

    OV = 128
    def ov_setup(self):
        a = self.a
        a('s_lshr_b32 s53, s%d, 1\ns_mul_i32 s72, s53, 122880\ns_and_b32 s53, s%d, 1\ns_sub_i32 s71, s76, s53\ns_mul_i32 s53, s53, 5120\ns_add_u32 s72, s72, s53' % (WAVE, WAVE))
        a('s_add_u32 s73, s72, s75\ns_add_u32 s72, s72, s77')
    def ov_load(self, vm, i, voff):
        a = self.a
        a('s_cmp_le_i32 s71, %d\ns_cselect_b32 s74, s73, s72\ns_add_u32 s74, s74, %d\ns_add_u32 s78, s74, 4096' % (14+2*i, (14+2*i)*5120))
        for n in range(5):
            vm.op('buffer_load_dwordx4 %s, v%d, %s, %s offen offset:%d %s' % (v(self.OV+20*i+4*n,4), voff, s(S_WS,4), 's74' if n < 4 else 's78', (n&3)*1024, self.bf), 'ov')

    def ffn_wloader(self):
        a = self.a; vm = VM(a)
        a.label('L_ffn_wl')
        a('s_cmp_eq_u32 s%d, 0' % WAVE)
        a('s_cselect_b32 s%d, s%d, s%d\ns_cselect_b32 s%d, s%d, s%d' % (S_A, P_WG, P_WU, S_A+1, P_WG+1, P_WU+1))
        a('s_mov_b32 s%d, 0x%x' % (S_A+2, 640*1536*2))
        self.wvoff(4, 3072, 8)
        self.phase(58)
        a('s_lshl_b32 s59, s55, 8\ns_mul_i32 s56, s58, %d\ns_add_u32 s56, s56, s59\ns_add_u32 s59, s59, %d' % (64*3072, 640*3072))
        a('s_lshl_b32 s57, s%d, 13' % WAVE)
        def issue(n):
            for b in range(2):
                for j in range(4):
                    a('s_add_u32 m0, s57, %d' % ((n % self.NWS)*self.WSLOT + b*4096 + j*1024 - b*128))
                    a('s_nop 0')
                    if 'now' not in self.opt: vm.op('buffer_load_dwordx4 v%d, %s, s56 offen offset:%d %s lds' % (4+j, s(S_A,4), b*128, 'nt' if 'ntw' in self.opt else ''), n)
            a('s_add_u32 s56, s56, %d' % (32*3072))
            if n & 1: a('s_cmp_eq_u32 s56, s59\ns_cselect_b32 s60, %d, 0\ns_sub_u32 s56, s56, s60' % (640*3072))
        L0 = int(self.val.get('wl', 2)); L1 = int(self.val.get('wl1', 4)); R0 = int(self.val.get('wr', 6))
        LP = int(self.val.get('wpre', L0))
        sched = {-1: list(range(LP))}; front = LP
        for m in range(20):
            lead = L0 if m < R0 else min(L1, L0 + (m - R0)//2 + 1)
            sched[m] = []
            while front < 20 and front <= m + lead and front <= m + 5: sched[m].append(front); front += 1
        self.stamp(12)
        IB = int(self.val.get('ib', 1))
        for k_, n in enumerate(sched[-1]):
            issue(n)
            if k_ + 1 == IB: a('s_barrier')
        self.stamp(13)
        self.nonce()
        self.p2_coords(); self.ov_setup()
        a('v_lshlrev_b32 v2, 4, v0')
        self.p2_prep()
        WI = int(self.val.get('wi', 0)); WP = int(self.val.get('wp', 3)); FB = int(self.val.get('fb', 7))
        for m in range(15):
            vm.wait(m)
            if m == 0: self.stamp(1)
            a('s_barrier')
            for n in sched.get(m, []): issue(n)
            if m == WI and 'nowd' not in self.opt:
                for i in range(2):
                    for j in range(4):
                        a('s_add_u32 m0, s67, %d\ns_nop 0' % (i*8192 + j*1024))
                        vm.op('buffer_load_dwordx4 v%d, s[24:27], s%d offen nt lds' % (12+j, 68+i), 'wu')
            if m == WP and 'nowd' not in self.opt:
                vm.wait('wu')
                for i in range(2):
                    for ct in range(4):
                        for q in range(2): a('ds_read_b64_tr_b16 %s, v%d offset:%d' % (v(24+16*i+4*ct+2*q,2), 16+ct, i*8192 + q*2048))
                a('s_waitcnt lgkmcnt(0)')
                for k in range(8): vm.op('buffer_store_dwordx4 %s, v2, %s, s%d offen sc1' % (v(24+4*k,4), s(S_WS,4), 28+k), 'wo')
            for i in self.ov_sched(m): self.ov_load(vm, i, 2)
        a('s_cmp_eq_u32 s%d, 0\ns_cbranch_scc0 L_wl_t1' % WAVE)
        q0 = list(vm.q)
        for w in range(2):
            vm.q = list(q0)
            if w: a.label('L_wl_t1')
            for m in range(15, 21):
                if m < 20: vm.wait(m)
                a('s_barrier')
                for n in sched.get(m, []): issue(n)
                sl = (m-1) % 6
                self.wd_dma(vm, range(16*sl + 8*w, 16*sl + 8*w + 8), 2)
                for i in self.ov_sched(m): self.ov_load(vm, i, 2)
            self.stamp(2)
            a('s_branch L_p2_help')

    def ov_sched(self, m):
        assert int(self.val.get('pw', 12)) + 3 <= (15 if self.val.get('ove', '1') in '012' else 14 if self.val.get('ove') == '5' else 13)
        return {'0': {20: [0,1,2,3,4]}, '1': {19: [0], 20: [1,2,3,4]}, '2': {17: [0], 19: [1], 20: [2,3,4]}, '3': {13: [0], 14: [1], 17: [2], 19: [3], 20: [4]}, '4': {13: [0], 14: [1], 17: [2], 18: [3], 19: [4]}, '5': {14: [0], 17: [1], 19: [2], 20: [3,4]}}[self.val.get('ove', '1')].get(m, [])

    def tw_addr(self, dst):
        a = self.a
        a('v_lshrrev_b32 v%d, 4, v0\nv_lshlrev_b32 v%d, 5, v%d\nv_bfe_u32 v1, v0, 1, 3\nv_add_u32 v%d, v%d, v1' % (dst, dst, dst, dst, dst))
        a('s_lshr_b32 s53, s64, 1\ns_lshl_b32 s53, s53, 3\nv_add_u32 v%d, s53, v%d\nv_mul_u32_u24 v%d, 3072, v%d' % (dst, dst, dst, dst))
        a('v_and_b32 v1, 1, v0\nv_lshl_add_u32 v%d, v1, 7, v%d' % (dst, dst))
    def tx_addr(self, dst, half):
        a = self.a
        a('v_and_b32 v%d, 15, v0\nv_lshlrev_b32 v%d, 5, v%d\nv_lshrrev_b32 v1, 4, v0\nv_lshl_add_u32 v%d, v1, 9, v%d' % (dst, dst, dst, dst, dst))
        a('s_lshl_b32 s53, s54, 1\ns_add_u32 s53, s53, s%d\nv_add_u32 v%d, s53, v%d\nv_mul_u32_u24 v%d, 1280, v%d' % (half, dst, dst, dst, dst))
    def tx_off(self, dst, ph, r):
        a = self.a
        a('s_add_u32 s%d, s%d, s65\ns_add_u32 s%d, s%d, %d\ns_cmp_ge_u32 s%d, 10\ns_cselect_b32 s53, 10, 0\ns_sub_u32 s%d, s%d, s53\ns_lshl_b32 s%d, s%d, 7' % (dst, ph, dst, dst, 3*r, dst, dst, dst, dst, dst))
        if r == 3: a('s_cmp_eq_u32 s65, 0\ns_cselect_b32 s%d, s%d, 0x%x' % (dst, dst, OOB))

    def wtouch(self, unit_sgpr, nlanes, step0, dst):
        a = self.a
        a('s_bitcmp0_b32 s%d, 0' % XCD)
        a('s_cselect_b32 s24, s%d, s%d\ns_cselect_b32 s25, s%d, s%d\ns_mov_b32 s26, 0x%x\ns_mov_b32 s27, 0x20000' % (P_WG, P_WU, P_WG+1, P_WU+1, 640*1536*2))
        a('s_mul_i32 s53, s%d, %d' % (unit_sgpr, nlanes))
        a('v_min_u32 v1, %d, v0\nv_add_u32 v1, s53, v1\nv_mul_u32_u24 v%d, 10923, v1\nv_lshrrev_b32 v%d, 16, v%d' % (nlanes-1, dst-1, dst-1, dst-1))
        a('v_mul_u32_u24 v%d, 2304, v%d\nv_lshl_add_u32 v1, v1, 7, v%d' % (dst-1, dst-1, dst-1))
        a('s_lshr_b32 s53, s%d, 1\ns_mul_i32 s53, s53, 768\ns_add_u32 s53, s53, %d' % (XCD, step0*32*3072))
        r = 'buffer_load_dword v%d, v1, s[24:27], s53 offen %s' % (dst, 'nt' if 'tnt' in self.opt else '')
        if 'tboth' in self.opt:
            a(r)
            a('s_bitcmp0_b32 s%d, 0' % XCD)
            a('s_cselect_b32 s68, s%d, s%d\ns_cselect_b32 s69, s%d, s%d\ns_mov_b32 s70, 0x%x\ns_mov_b32 s71, 0x20000' % (P_WU, P_WG, P_WU+1, P_WG+1, 640*1536*2))
            r = r.replace('s[24:27]', 's[68:71]')
        return r

    def xtouch(self, unit_sgpr, rows, c0, c1, dst):
        a = self.a
        n = rows*(c1-c0); assert n <= 64
        mag = (2048 + rows - 1)//rows
        assert all((l*mag) >> 11 == l//rows for l in range(64))
        a('v_min_u32 v1, %d, v0\nv_mul_u32_u24 v%d, %d, v1\nv_lshrrev_b32 v%d, 11, v%d' % (n-1, dst, mag, dst, dst))
        a('v_mul_u32_u24 v%d, %d, v%d\nv_sub_u32 v1, v1, v%d\nv_mul_u32_u24 v1, 1280, v1\nv_lshl_add_u32 v1, v%d, 7, v1' % (dst-1, rows, dst, dst-1, dst))
        a('s_mul_i32 s53, s%d, %d' % (unit_sgpr, rows*1280))
        return 'buffer_load_dword v%d, v1, %s, s53 offen offset:%d' % (dst, s(S_X,4), 128*c0)

    def touch_spec(self, spec, unit_sgpr, nunits, dst):
        kind, rng = spec[0], spec[1:].split('-'); lo, hi = int(rng[0]), int(rng[1])
        if kind == 'W':
            nl = (hi-lo)*8; assert nl <= 64, spec
            return self.wtouch(IDX, nl, lo, dst)
        return self.xtouch(unit_sgpr, -(-2048//nunits), lo, hi, dst)

    def ffn_xloader(self):
        a = self.a; vm = VM(a)
        a.label('L_ffn_xl')
        a('s_sub_u32 s56, s%d, 2' % WAVE)
        a('v_lshrrev_b32 v2, 3, v0\nv_lshrrev_b32 v3, 4, v0')
        a('s_lshl_b32 s57, s56, 2')
        a('v_add_u32 v3, s57, v3\nv_and_b32 v12, 7, v0\nv_xor_b32 v3, v3, v12\nv_lshlrev_b32 v3, 4, v3')
        a('v_mul_u32_u24 v2, 40960, v2\nv_add_u32 v2, v2, v3')
        a('s_lshl_b32 s57, s56, 8\ns_lshl_b32 s58, s54, 1\ns_add_u32 s57, s57, s58\ns_mul_i32 s57, s57, 1280')
        a('v_add_u32 v4, s57, v2')
        for tt in range(1, 8):
            a('v_add_u32 v%d, %d, v4' % (4+tt, ((tt>>2) + 512*(tt&3))*1280))
        a('s_lshl_b32 s57, s56, 10')
        self.phase(58)
        a('s_lshl_b32 s58, s58, 7')
        def issue(c):
            for tt in range(8):
                a('s_add_u32 m0, s57, %d' % (self.XB + (c % self.NXS)*self.XSLOT + tt*2048))
                a('s_nop 0')
                if 'nox' not in self.opt: vm.op('buffer_load_dwordx4 v%d, %s, s58 offen %s lds' % (4+tt, s(S_X,4), 'nt' if 'ntx' in self.opt else ''), c)
            a('s_add_u32 s58, s58, 128\ns_cmp_eq_u32 s58, 1280\ns_cselect_b32 s58, 0, s58')
        a('s_lshr_b32 s59, s58, 7')
        self.stamp(12)
        issue(0)
        if int(self.val.get('ib', 1)): a('s_barrier')
        self.stamp(13)
        XP = int(self.val.get('xp', 1))
        if XP == 2: issue(1)
        self.p2_coords(); self.ov_setup()
        a('v_lshlrev_b32 v2, 4, v0')
        self.tw_addr(80); self.tx_addr(81, 56)
        a('s_cmp_eq_u32 s56, 0')
        a('s_cselect_b32 s%d, s%d, s%d\ns_cselect_b32 s%d, s%d, s%d\ns_mov_b32 s%d, 0x%x' % (S_A, P_WG, P_WU, S_A+1, P_WG+1, P_WU+1, S_A+2, 640*1536*2))
        a('s_mul_i32 s66, s59, %d\ns_lshl_b32 s67, s55, 8\ns_add_u32 s66, s66, s67' % (64*3072))
        TB = {}
        for spec in self.val.get('tp', '0').split('+'):
            if spec == '0': continue
            k, m = spec.split('@'); TB.setdefault(int(m), []).append(k)
        def touch(k):
            if k[0] == 'w':
                n0 = int(k[1:])
                a('s_add_u32 s67, s66, %d' % (n0*32*3072))
                if n0 == 8: a('v_and_b32 v1, 31, v0\nv_lshlrev_b32 v1, 2, v1\nds_bpermute_b32 v80, v1, v80\ns_waitcnt lgkmcnt(0)')
                vm.op('buffer_load_dword v255, v80, %s, s67 offen' % s(S_A,4), 't')
            else:
                self.tx_off(67, 59, int(k[1:]))
                vm.op('buffer_load_dword v255, v81, %s, s67 offen' % s(S_X,4), 't')
        self.p2_prep()
        self.nonce()
        a('s_cmp_eq_u32 s56, 0\ns_cbranch_scc0 L_ffn_xl3')
        q0 = list(vm.q)
        PW = int(self.val.get('pw', 12)); PS = int(self.val.get('ps', 15)); PH2 = 'ph2' in self.opt; NP = 2 if PH2 else 8; PC = int(self.val.get('pc', 15 if PH2 else 10)); FB = int(self.val.get('fb', 7))
        for role in (2, 3):
            vm.q = list(q0)
            if role == 2:
                if PH2:
                    a('v_lshrrev_b32 v12, 4, v0\nv_bfe_u32 v13, v0, 2, 2')
                    a('v_lshl_add_u32 v14, v12, 3, v13\nv_lshlrev_b32 v14, 7, v14')
                    a('v_and_b32 v13, 3, v0\nv_lshl_add_u32 v14, v13, 3, v14')
                    a('v_bfe_u32 v13, v0, 3, 1\nv_bfe_u32 v15, v0, 4, 1\nv_lshl_add_u32 v13, v15, 1, v13')
                    a('s_and_b32 s60, s54, 2\nv_xor_b32 v13, s60, v13\nv_lshl_add_u32 v14, v13, 5, v14')
                    a('s_lshr_b32 s60, s54, 2\ns_lshl_b32 s60, s60, 12\nv_add_u32 v16, s60, v14\nv_xor_b32 v17, 32, v16')
                    a('v_add_u32 v18, %d, v16\nv_add_u32 v19, %d, v17' % (3*self.WSLOT, 3*self.WSLOT))
                    for k in range(4): a('v_mov_b32 v%d, 0x3f803f80' % (20+k))
                    for k in range(8): a('v_mov_b32 v%d, 0' % (24+k))
                    a('s_and_b32 s61, s54, 1\ns_mul_i32 s61, s61, 24576\ns_lshr_b32 s62, s54, 3\ns_mul_i32 s62, s62, 12288\ns_add_u32 s61, s61, s62')
                    a('s_lshl_b32 s62, s55, 10\ns_add_u32 s61, s61, s62\ns_bfe_u32 s62, s54, 0x20001\ns_lshl_b32 s62, s62, 8\ns_add_u32 s61, s61, s62\ns_add_u32 s61, s61, 0x%x' % COLSUM)
                else:
                    a('v_lshrrev_b32 v12, 4, v0\nv_bfe_u32 v13, v0, 2, 2')
                    a('v_lshl_add_u32 v14, v12, 3, v13\nv_lshlrev_b32 v14, 7, v14')
                    a('v_and_b32 v13, 3, v0\nv_lshl_add_u32 v14, v13, 3, v14')
                    a('v_bfe_u32 v13, v0, 3, 1\nv_bfe_u32 v15, v0, 4, 1\nv_lshl_add_u32 v13, v15, 1, v13')
                    a('v_lshl_add_u32 v14, v13, 5, v14')
                    a('s_lshr_b32 s60, s54, 3\ns_lshl_b32 s60, s60, 13\nv_add_u32 v16, s60, v14')
                    for ct in range(1, 4): a('v_xor_b32 v%d, %d, v16' % (16+ct, 32*ct))
                    for k in range(4): a('v_mov_b32 v%d, 0x3f803f80' % (20+k))
                    for k in range(32): a('v_mov_b32 v%d, 0' % (88+k))
                    a('s_mul_i32 s61, s64, 24576\ns_lshr_b32 s62, s54, 3\ns_mul_i32 s62, s62, 12288\ns_add_u32 s61, s61, s62')
                    a('s_lshl_b32 s62, s55, 10\ns_add_u32 s61, s61, s62\ns_add_u32 s61, s61, 0x%x' % COLSUM)
                a('v_lshlrev_b32 v56, 5, v12\nv_and_b32 v13, 1, v0\nv_lshl_add_u32 v56, v13, 4, v56')
                a('s_lshl_b32 s62, s55, 4\ns_add_u32 s62, s62, s54\ns_lshl_b32 s62, s62, 7\ns_add_u32 s62, s62, 0x%x\nv_mov_b32 v57, s62' % (SFLAG))
                a('v_and_b32 v12, 15, v0\nv_lshlrev_b32 v12, 5, v12')
                a('v_lshrrev_b32 v13, 4, v0\nv_lshl_add_u32 v12, v13, 9, v12')
                a('s_lshl_b32 s60, s54, 1\nv_add_u32 v12, s60, v12')
                a('v_lshlrev_b32 v12, 4, v12\nv_add_u32 v12, 0x%x, v12' % STATS)
                a('v_lshlrev_b32 v13, 4, v0\nv_add_u32 v13, %d, v13' % self.MISC)
                a('v_lshlrev_b32 v14, 7, v0\nv_add_u32 v14, 0x%x, v14\nv_add_u32 v15, 8192, v14\nv_add_u32 v58, 16384, v14' % SFLAG)
                rl = ['buffer_load_dwordx4 v[64:67], v12, %s, 0 offen sc1' % s(S_WS,4), 'buffer_load_dwordx4 v[68:71], v12, %s, 0 offen offset:16 sc1' % s(S_WS,4)]
                tags = [66, 70]
            else:
                a.label('L_ffn_xl3')
                a('v_mov_b32 v12, %d\nv_mov_b32 v13, 0\nds_write_b32 v12, v13' % (self.MISC + 3072))
                a('v_lshrrev_b32 v13, 5, v0\nv_mul_u32_u24 v13, 12288, v13')
                a('v_and_b32 v12, 31, v0\nv_lshl_add_u32 v12, v12, 5, v13')
                a('s_lshl_b32 s60, s55, 10\ns_add_u32 s60, s60, 0x%x\nv_add_u32 v12, s60, v12' % COLSUM)
                a('v_lshlrev_b32 v13, 4, v0\nv_add_u32 v13, %d, v13' % (self.MISC+2048))
                for k in range(1, 8): a('s_mov_b32 s%d, %d' % (27+k, 24576*k))
                rl = ['buffer_load_dwordx4 %s, v12, %s, %s offen offset:%d sc1' % (v(16+8*p+4*h,4), s(S_WS,4), 's%d' % (27+p) if p else '0', 16*h) for p in range(NP) for h in range(2)]
                tags = [18+4*k for k in range(2*NP)]
            for m in range(21):
                if m % 2 == 0 and m < 20: vm.wait(m//2)
                if m == 20: a('s_waitcnt lgkmcnt(0)')
                a('s_barrier')
                if role == 2:
                    if m == PW + 2:
                        vm.wait('pw')
                        if 'nospin' not in self.opt: self.spin3('L_xl_sw', (14,15,58), 72, True)
                    if m == PW:
                        for k in range(3): vm.op('buffer_load_dwordx2 %s, v%d, %s, 0 offen sc1' % (v(72+2*k,2), (14,15,58)[k], s(S_WS,4)), 'pw')
                    if m == FB:
                        self.setflag(57, 60); vm.q.append('fl')
                    if m == 4 and not PH2:
                        a('v_and_b32 v1, 1, v0\nv_cmp_eq_u32 vcc, 1, v1\ns_nop 1')
                        for ct in range(8):
                            b = 88+4*ct
                            a('v_cndmask_b32 v%d, v%d, v%d, vcc\nv_cndmask_b32 v%d, v%d, v%d, vcc\nv_mov_b32 v%d, s12\nv_mov_b32 v%d, s13' % (b, b, b+2, b+1, b+1, b+3, b+2, b+3))
                        a('s_mov_b32 exec_lo, 0x00030003\ns_mov_b32 exec_hi, 0x00030003')
                        for ct in range(8): vm.op('buffer_store_dwordx4 %s, v56, %s, s61 offen offset:%d sc1' % (v(88+4*ct,4), s(S_WS,4), 128*ct), 'cs')
                        a('s_mov_b64 exec, -1')
                    if m == 10 and PH2:
                        a('v_and_b32 v1, 1, v0\nv_cmp_eq_u32 vcc, 1, v1\nv_mov_b32 v34, s12\nv_mov_b32 v35, s13\nv_mov_b32 v38, s12\nv_mov_b32 v39, s13')
                        for ct in range(2): a('v_cndmask_b32 v%d, v%d, v%d, vcc\nv_cndmask_b32 v%d, v%d, v%d, vcc' % (32+4*ct, 24+4*ct, 26+4*ct, 33+4*ct, 25+4*ct, 27+4*ct))
                        a('s_mov_b32 exec_lo, 0x00030003\ns_mov_b32 exec_hi, 0x00030003')
                        for ct in range(2): vm.op('buffer_store_dwordx4 %s, v56, %s, s61 offen offset:%d sc1' % (v(32+4*ct,4), s(S_WS,4), 128*ct), 'cs')
                        a('s_mov_b64 exec, -1')
                if m == (PS if role == 2 else PC):
                    for l in rl: vm.op(l, 'st')
                if m == (PS if role == 2 else PC) + 2:
                    vm.wait('st')
                    a('s_mov_b32 s53, 0')
                    a.label('L_xl_rs%d' % role)
                    a('v_cmp_ne_u64 vcc, s[12:13], %s' % v(tags[0],2))
                    for t in tags[1:]: a('v_cmp_ne_u64 s[68:69], s[12:13], %s\ns_nop 0\ns_or_b64 vcc, vcc, s[68:69]' % v(t,2))
                    a('s_cbranch_vccz L_xl_rx%d\ns_add_u32 s53, s53, 1\ns_cmp_gt_u32 s53, 0x%x\ns_cbranch_scc1 L_xl_rx%d\ns_sleep 2' % (role, 0 if 'nospin' in self.opt else SPIN_MAX, role))
                    for l in rl: a(l)
                    a('s_waitcnt vmcnt(0)\ns_branch L_xl_rs%d' % role)
                    a.label('L_xl_rx%d' % role)
                    if role == 2:
                        for b in (64, 68):
                            a('v_rsq_f32 v%d, v%d\nv_mov_b32 v%d, v%d\nv_mul_f32 v%d, 0xbfb8aa3b, v%d' % (b+3, b+1, b+2, b+1, b+1, b+3))
                        a('ds_write_b128 v13, v[64:67]\nds_write_b128 v13, v[68:71] offset:1024')
                    else:
                        for w_ in ((8,) if PH2 else (32, 16, 8)):
                            for k in range(0, w_, 4): a('v_add_f32 v%d, v%d, v%d\nv_add_f32 v%d, v%d, v%d' % (16+k, 16+k, 16+w_+k, 17+k, 17+k, 17+w_+k))
                        a('v_mov_b32 v18, v20\nv_mov_b32 v19, v21')
                        a('ds_write_b128 v13, v[16:19]')
                for c in range(XP, 10):
                    when = max(0, 2*c - 2 - int(self.val.get('xl%d' % role, 1 if role == 2 else 0)))
                    if c >= int(self.val.get('xr', 4)): when = max(0, 2*c - (4 if role == 2 else 3))
                    if when == m: issue(c)
                for k in TB.get(m, []): touch(k)
                if role == 2 and m < 4 and not PH2:
                    if m >= 2: a('s_and_b32 s60, s64, 3\ns_cmp_eq_u32 s60, 3\ns_cbranch_scc0 L_cs_sk%d' % m)
                    for b in range(2):
                        for ct in range(4):
                            for q in range(2):
                                a('ds_read_b64_tr_b16 %s, v%d offset:%d' % (v(24+16*b+4*ct+2*q,2), 16+ct, m*self.WSLOT + b*4096 + q*512))
                        a('s_waitcnt lgkmcnt(0)')
                        for ct in range(4): a('v_mfma_f32_16x16x32_bf16 %s, %s, v[20:23], %s' % (v(88+16*b+4*ct,4), v(24+16*b+4*ct,4), v(88+16*b+4*ct,4)))
                    if m >= 2: a.label('L_cs_sk%d' % m)
                    if m == 3: a.nop(6)
                if role == 2 and m < 10 and PH2:
                    sl = m % self.NWS
                    for ct in range(2):
                        for q in range(2):
                            a('ds_read_b64_tr_b16 %s, v%d offset:%d' % (v(40+4*ct+2*q,2), 16+ct+2*(sl//3), (sl%3)*self.WSLOT + q*512))
                    a('s_waitcnt lgkmcnt(0)')
                    for ct in range(2): a('v_mfma_f32_16x16x32_bf16 %s, %s, v[20:23], %s' % (v(24+4*ct,4), v(40+4*ct,4), v(24+4*ct,4)))
                    if m == 9: a.nop(6)
                if m in (16, 18, 20):
                    f0 = {16: 112, 18: 128, 20: 96}[m]; n = {16: 8, 18: 6, 20: 8}[m]
                    self.wd_dma(vm, range(f0 + (role-2)*n, f0 + (role-1)*n), 2)
                for i in self.ov_sched(m): self.ov_load(vm, i, 2)
            self.stamp(2)
            a('s_branch L_p2_help')

    def ffn_consumer(self):
        a = self.a
        ACC, FR = 8, 136
        AW = [2, 3, 232, 233]
        AX = [4, 5]
        def acc(tt, mat, c2): return ACC + ((tt*2 + mat)*2 + c2)*4
        def xf(st, tt): return FR + st*48 + tt*4
        def wf(st, mat, c2): return FR + st*48 + 32 + (mat*2 + c2)*4
        a.label('L_ffn_cons')
        a('s_sub_u32 s56, s%d, 4' % WAVE)
        a('s_mul_i32 s57, s%d, 24\ns_add_u32 s57, s57, s%d\ns_and_b32 s58, s57, 1\ns_add_u32 s58, s58, 2\n%ss_cmp_lt_u32 s56, s58\ns_cselect_b32 s79, 1, 0\ns_cbranch_scc0 L_fc_nu' % (XCD, IDX, 's_mov_b32 s58, 0\n' if 'skipwd' in self.opt else ''))
        a('s_mul_i32 s57, s57, 5\ns_lshr_b32 s57, s57, 1\ns_add_u32 s57, s57, s56')
        a('s_mul_i32 s70, s57, 52429\ns_lshr_b32 s70, s70, 19\ns_mul_i32 s53, s70, 10\ns_sub_u32 s71, s57, s53')
        a('s_mul_i32 s68, s70, %d\ns_lshl_b32 s53, s71, 7\ns_add_u32 s68, s68, s53' % (32*1280))
        a('s_mov_b32 s72, s%d\ns_mov_b32 s73, s%d\ns_mov_b32 s74, 0x%x\ns_mov_b32 s75, 0x20000' % (P_WD, P_WD+1, 1536*640*2))
        self.wvoff(8, 1280, 12)
        a('s_lshl_b32 s67, s56, 12\ns_add_u32 s67, s67, %d' % (self.MISC + 4096))
        a.label('L_fc_nu')
        if int(self.val.get('ib', 1)): a('s_barrier')
        a('s_cmp_eq_u32 s79, 0\ns_cbranch_scc1 L_fc_nu2')
        for j in range(4):
            a('s_add_u32 m0, s67, %d\ns_nop 0' % (j*1024))
            a('buffer_load_dwordx4 v%d, s[72:75], s68 offen nt lds' % (8+j))
        a.label('L_fc_nu2')
        def ctouch():
            a('s_cmp_lt_u32 s58, 320\ns_cbranch_scc0 L_ct_w%d\ns_lshl_b32 s58, s58, 13\nv_lshlrev_b32 v1, 7, v0' % self.nct)
            a('buffer_load_dword v255, v1, %s, s58 offen\ns_branch L_ct_e%d' % (s(S_X,4), self.nct))
            a.label('L_ct_w%d' % self.nct)
            a('s_sub_u32 s58, s58, 320\ns_cmp_lt_u32 s58, 240')
            a('s_cselect_b32 s24, s%d, s%d\ns_cselect_b32 s25, s%d, s%d\ns_cselect_b32 s53, 0, 240\ns_mov_b32 s26, 0x%x\ns_mov_b32 s27, 0x20000' % (P_WG, P_WU, P_WG+1, P_WU+1, 640*1536*2))
            a('s_sub_u32 s58, s58, s53\ns_lshl_b32 s58, s58, 13\nv_lshlrev_b32 v1, 7, v0\nbuffer_load_dword v255, v1, s[24:27], s58 offen')
            a.label('L_ct_e%d' % self.nct); self.nct += 1
        self.nct = 0
        def touches():
            if 'ct' in self.opt:
                a('s_mul_i32 s58, s%d, 24\ns_add_u32 s58, s58, s%d\ns_lshl_b32 s58, s58, 2\ns_add_u32 s58, s58, s56' % (XCD, IDX))
                if 'ctm' in self.opt: a('s_mul_i32 s58, s58, 25\ns_lshr_b32 s58, s58, 0\ns_mul_hi_u32 s53, s58, 0x55555556\ns_nop 0')
                ctouch(); return
            if 'ft' in self.opt:
                for k, spec in enumerate(self.val.get('ft', 'W2-6+W12-16+W6-10+W16-20').split('+')):
                    lo, hi = [int(z) for z in spec[1:].split('-')]
                    a('s_cmp_eq_u32 s56, %d\ns_cbranch_scc0 L_fc_n%d' % (k, k))
                    a(self.wtouch(IDX, (hi-lo)*8, lo, 255))
                    a.label('L_fc_n%d' % k)
        if 'tlate' not in self.opt: touches()
        if 'ta' in self.opt:
            self.phase(59)
            a('s_cmp_lt_u32 s56, 2\ns_cbranch_scc0 L_fc_tx')
            self.tw_addr(2)
            a('s_cmp_eq_u32 s56, 0')
            a('s_cselect_b32 s%d, s%d, s%d\ns_cselect_b32 s%d, s%d, s%d\ns_mov_b32 s%d, 0x%x' % (S_A, P_WG, P_WU, S_A+1, P_WG+1, P_WU+1, S_A+2, 640*1536*2))
            a('s_mul_i32 s66, s59, %d\ns_lshl_b32 s67, s55, 8\ns_add_u32 s66, s66, s67' % (64*3072))
            a('buffer_load_dword v255, v2, %s, s66 offen' % s(S_A,4))
            a('s_branch L_fc_t3')
            a.label('L_fc_tx')
            a('s_sub_u32 s60, s56, 2')
            self.tx_addr(2, 60); self.tx_off(67, 59, 0)
            a('buffer_load_dword v255, v2, %s, s67 offen' % s(S_X,4))
            a.label('L_fc_t3')
        a('s_setprio 1')
        a('v_lshrrev_b32 v6, 4, v0\nv_bfe_u32 v7, v0, 2, 2')
        a('v_lshl_add_u32 v8, v6, 3, v7\nv_lshlrev_b32 v8, 7, v8')
        a('v_and_b32 v9, 3, v0\nv_lshl_add_u32 v8, v9, 3, v8')
        a('v_bfe_u32 v9, v0, 3, 1\nv_bfe_u32 v10, v0, 4, 1\nv_lshl_add_u32 v9, v10, 1, v9')
        a('s_and_b32 s57, s56, 1\ns_lshl_b32 s57, s57, 1')
        a('v_xor_b32 v9, s57, v9\nv_lshl_add_u32 v8, v9, 5, v8')
        a('s_lshr_b32 s57, s56, 1\ns_lshl_b32 s57, s57, 12')
        a('v_add_u32 v%d, s57, v8' % AW[0])
        a('v_xor_b32 v%d, 32, v%d' % (AW[1], AW[0]))
        a('v_add_u32 v%d, %d, v%d\nv_add_u32 v%d, %d, v%d' % (AW[2], 3*self.WSLOT, AW[0], AW[3], 3*self.WSLOT, AW[1]))
        a('v_and_b32 v8, 15, v0\nv_lshrrev_b32 v9, 1, v8\nv_xor_b32 v9, v9, v6')
        a('v_lshlrev_b32 v9, 4, v9\nv_lshl_add_u32 v9, v8, 7, v9')
        a('v_add_u32 v%d, %d, v9' % (AX[0], self.XB))
        a('v_xor_b32 v%d, 64, v%d' % (AX[1], AX[0]))
        a('v_lshlrev_b32 v234, 4, v8\nv_add_u32 v234, %d, v234' % self.MISC)
        a('v_lshlrev_b32 v235, 4, v6\ns_lshl_b32 s57, s56, 7\nv_add_u32 v235, s57, v235\nv_add_u32 v235, %d, v235' % (self.MISC+2048))
        a('v_lshlrev_b32 v236, 4, v0')
        hf = self.val.get('hf', 'p')
        if hf == 'p': a('s_lshl_b32 s58, s54, 4\ns_add_u32 s58, s58, s55\ns_lshl_b32 s58, s58, 2\ns_add_u32 s58, s58, s56\ns_lshl_b32 s58, s58, 3\nv_mov_b32 v237, s58')
        elif hf == 'w': a('s_lshl_b32 s58, s54, 4\ns_add_u32 s58, s58, s55\ns_lshl_b32 s58, s58, 4\ns_add_u32 s58, s58, s56\ns_lshl_b32 s58, s58, 3\ns_add_u32 s58, s58, 0xa0000\nv_mov_b32 v237, s58')
        else: a('s_lshl_b32 s58, s54, 4\ns_add_u32 s58, s58, s55\ns_lshl_b32 s58, s58, 2\ns_add_u32 s58, s58, s56\ns_lshl_b32 s58, s58, 7\ns_add_u32 s58, s58, 0xa0000\nv_mov_b32 v237, s58')
        a('s_mul_i32 s57, s54, %d\ns_lshl_b32 s58, s55, 2\ns_add_u32 s58, s58, s56\ns_lshl_b32 s58, s58, 10\ns_add_u32 s57, s57, s58\ns_add_u32 s57, s57, 0x%x' % (8*49152, HF))
        self.nonce()
        a('s_cmp_eq_u32 s79, 0\ns_cbranch_scc1 L_fc_nv')
        a('v_lshrrev_b32 v16, 2, v0\nv_lshlrev_b32 v16, 7, v16\nv_and_b32 v1, 3, v0\nv_lshl_add_u32 v16, v1, 3, v16')
        a('v_bfe_u32 v1, v0, 3, 1\nv_bfe_u32 v17, v0, 5, 1\nv_lshl_add_u32 v1, v17, 1, v1\nv_lshl_add_u32 v16, v1, 5, v16')
        a('v_add_u32 v1, s67, v16\nv_xor_b32 v6, 32, v1\nv_xor_b32 v7, 64, v1\nv_xor_b32 v254, 96, v1')
        for ct in range(4):
            a('s_lshl_b32 s63, s71, 2\ns_add_u32 s63, s63, %d\ns_mul_i32 s64, s63, 52\ns_lshr_b32 s64, s64, 8' % ct)
            a('s_mul_i32 s65, s64, 5\ns_sub_u32 s65, s63, s65\ns_lshl_b32 s65, s65, 10')
            a('s_mul_i32 s64, s64, 245760\ns_add_u32 s65, s65, s64\ns_mul_i32 s64, s70, 5120\ns_add_u32 s65, s65, s64\ns_add_u32 s%d, s65, 0x%x' % (72+ct, WDF))
        a.label('L_fc_nv')
        def reads(n):
            st = n & 1; sl = n % self.NWS
            r = []
            for mat in range(2):
                for c2 in range(2):
                    for q in range(2):
                        r.append('ds_read_b64_tr_b16 v[%d:%d], v%d offset:%d' % (wf(st,mat,c2)+2*q, wf(st,mat,c2)+2*q+1, AW[c2 + 2*(sl//3)], (sl%3)*self.WSLOT + mat*8192 + q*512))
            for tt in range(8):
                r.append('ds_read_b128 %s, v%d offset:%d' % (v(xf(st,tt),4), AX[n&1], ((n//2) % self.NXS)*self.XSLOT + tt*2048))
            return r
        ST, CSR, TM = FR, FR+32, 238
        ep_reads = ['ds_read_b128 %s, v234 offset:%d' % (v(ST+4*tt,4), tt*256) for tt in range(8)]
        ep_reads += ['ds_read_b128 %s, v235 offset:%d' % (v(CSR+(mat*2+c2)*4,4), mat*512 + c2*64) for mat in range(2) for c2 in range(2)]
        FB = int(self.val.get('fb', 5))
        a('s_barrier')
        self.stamp(1)
        for r in reads(0): a(r)
        if 'tlate' in self.opt: touches()
        a.align(3)
        for n in range(20):
            st = n & 1
            a('s_waitcnt %slgkmcnt(0)\ns_barrier' % ('vmcnt(0) ' if n == int(self.val['fb']) - 1 else ''))
            if n == 10: self.stamp(5)
            if n == 5: self.stamp(6)
            if n == 15: self.stamp(7)
            rd = reads(n+1) if n < 19 else ep_reads
            WS = int(self.val.get('wds', 2))
            if n == WS:
                a('s_cmp_eq_u32 s79, 0\ns_cbranch_scc1 L_fc_w1\ns_waitcnt vmcnt(0)')
                for ct, ar in enumerate((1, 6, 7, 254)):
                    for q in range(2): a('ds_read_b64_tr_b16 %s, v%d offset:%d' % (v(238+4*ct+2*q,2), ar, q*2048))
                a('v_bfe_u32 v255, v0, 1, 3\nv_and_b32 v6, 1, v0\nv_lshl_add_u32 v255, v6, 3, v255\nv_and_b32 v6, 48, v0\nv_add_lshl_u32 v255, v255, v6, 4')
                a.label('L_fc_w1')
            if n == WS + 1:
                a('s_cmp_eq_u32 s79, 0\ns_cbranch_scc1 L_fc_w2')
                for ct in range(4): a('buffer_store_dwordx4 %s, v255, %s, s%d offen sc1' % (v(238+4*ct,4), s(S_WS,4), 72+ct))
                a.label('L_fc_w2')
            k = 0
            for tt in range(8):
                for mat in range(2):
                    for c2 in range(2):
                        A = acc(tt, mat, c2)
                        if 'nomfma' not in self.opt: a('v_mfma_f32_16x16x32_bf16 %s, %s, %s, %s' % (v(A,4), v(wf(st,mat,c2),4), v(xf(st,tt),4), v(A,4) if n else '0'))
                        if k < len(rd) and 'nords' not in self.opt: a(rd[k]); k += 1
        self.stamp(2)
        a('s_waitcnt lgkmcnt(0)')
        a.label('L_fc_epi')
        OUT = FR + 48
        for tt in range(8):
            m, q = ST+4*tt, ST+4*tt+2
            O = OUT + tt*4
            t = TM + (tt&1)*8
            pairs = [(c2, hh) for c2 in range(2) for hh in range(2)]
            for k, (c2, hh) in enumerate(pairs):
                ga = acc(tt,0,c2)+2*hh; ua = acc(tt,1,c2)+2*hh
                a('v_pk_fma_f32 %s, %s, %s, %s op_sel_hi:[0,1,1] neg_lo:[1,0,0] neg_hi:[1,0,0]' % (v(ga,2), v(m,2), v(CSR+c2*4+2*hh,2), v(ga,2)))
                a('v_pk_fma_f32 %s, %s, %s, %s op_sel_hi:[0,1,1] neg_lo:[1,0,0] neg_hi:[1,0,0]' % (v(ua,2), v(m,2), v(CSR+8+c2*4+2*hh,2), v(ua,2)))
            for k, (c2, hh) in enumerate(pairs):
                ga = acc(tt,0,c2)+2*hh
                a('v_pk_mul_f32 %s, %s, %s op_sel:[0,1] op_sel_hi:[1,1]' % (v(t+2*k,2), v(ga,2), v(m,2)))
            for k in range(8): a('v_exp_f32 v%d, v%d' % (t+k, t+k))
            for k, (c2, hh) in enumerate(pairs):
                ga = acc(tt,0,c2)+2*hh; ua = acc(tt,1,c2)+2*hh
                a('v_pk_mul_f32 %s, %s, %s' % (v(ga,2), v(ga,2), v(ua,2)))
                a('v_pk_fma_f32 %s, %s, %s, %s op_sel_hi:[1,0,0]' % (v(t+2*k,2), v(t+2*k,2), v(q,2), v(q,2)))
            for k in range(8): a('v_rcp_f32 v%d, v%d' % (t+k, t+k))
            a('s_nop 0')
            for k, (c2, hh) in enumerate(pairs):
                ga = acc(tt,0,c2)+2*hh
                a('v_pk_mul_f32 %s, %s, %s' % (v(ga,2), v(ga,2), v(t+2*k,2)))
            for k, (c2, hh) in enumerate(pairs):
                ga = acc(tt,0,c2)+2*hh
                a('v_cvt_pk_bf16_f32 v%d, v%d, v%d' % (O+k, ga, ga+1))
            a('buffer_store_dwordx4 %s, v236, %s, s57 offen sc1' % (v(O,4), s(S_WS,4)))
            a('s_add_u32 s57, s57, 49152')
        self.stamp(3)
        a('v_mov_b32 v2, %d\nv_mov_b32 v3, 1\ns_mov_b64 exec, 1\nds_add_u32 v2, v3\ns_mov_b64 exec, -1' % (self.MISC + 3072))
        a('s_waitcnt vmcnt(0)')
        self.stamp(4)
        self.setflag(237, 2)
        a('s_branch L_p2_mfma')

    MSLOT = 24576; MB = 32768; XFB = 0; XFS = 16384; DMISC = 155648

    def code_touch(self, lo, hi, n, dst, uniq):
        a = self.a
        a('s_getpc_b64 s[72:73]')
        a.label('L_ct%s' % uniq)
        a('s_add_u32 s72, s72, %s-L_ct%s\ns_addc_u32 s73, s73, 0' % (lo, uniq))
        out = []
        for k in range(n):
            a('v_lshlrev_b32 v%d, 7, v0\nv_add_u32 v%d, %d, v%d\nv_min_u32 v%d, %s-%s-4, v%d' % (dst-1-k, dst-1-k, 8192*k, dst-1-k, dst-1-k, hi, lo, dst-1-k))
            out.append('global_load_dword v%d, v%d, s[72:73]' % (dst, dst-1-k))
        return out

    def dft_loader(self):
        a = self.a; vm = VM(a)
        RAW, SA = 32, 192
        a.label('L_dft_ld')
        a('s_setprio %s' % self.val.get('dlp', '2'))
        a('s_cmp_lt_u32 s%d, 2' % WAVE)
        a('s_cselect_b32 s%d, s%d, s%d\ns_cselect_b32 s%d, s%d, s%d' % (S_A, P_HRE, P_HIM, S_A+1, P_HRE+1, P_HIM+1))
        a('s_mov_b32 s%d, 0x%x' % (S_A+2, 640*640*2))
        a('v_lshrrev_b32 v2, 3, v0\nv_lshrrev_b32 v3, 4, v0\nv_and_b32 v4, 7, v0')
        a('v_mul_u32_u24 v5, 81920, v2\nv_lshl_add_u32 v5, v4, 4, v5')
        a('s_lshl_b32 s66, s54, 2\ns_add_u32 s66, s66, s%d\ns_and_b32 s63, s%d, 3' % (WAVE, DID))
        for u in range(4): a('s_add_u32 s53, s63, %d\ns_and_b32 s%d, s53, 3\ns_lshl_b32 s53, s%d, 9\ns_add_u32 s53, s53, s66\ns_mul_i32 s%d, s53, 1280' % (u, 68+u, 68+u, 56+u))
        if 'dph0' in self.opt: a('s_mov_b32 s74, 0')
        else: a('s_and_b32 s74, s54, 3\ns_lshl_b32 s75, s%d, 1\ns_add_u32 s74, s74, s75\ns_cmp_ge_u32 s74, 5\ns_cselect_b32 s75, 5, 0\ns_sub_u32 s74, s74, s75\ns_lshl_b32 s74, s74, 7' % HH)
        a('s_mov_b32 s75, s74\nv_add_u32 v208, s74, v5')
        for c in range(1, 5): a('s_add_u32 s74, s74, 128\ns_cmp_eq_u32 s74, 640\ns_cselect_b32 s74, 0, s74\nv_add_u32 v%d, s74, v5' % (208+c))
        def xl(c, us):
            o = []
            for u in us:
                tag = 'x%d' % c if u else 'y%d' % c
                o.append(([], 'buffer_load_dwordx4 %s, v%d, %s, s%d offen' % (v(RAW+32*c+8*u,4), 208+c, s(S_X,4), 56+u), tag))
                o.append(([], 'buffer_load_dwordx4 %s, v%d, %s, s%d offen offset:640' % (v(RAW+32*c+8*u+4,4), 208+c, s(S_X,4), 56+u), tag))
            return o
        def ml(c):
            adv = ['s_add_u32 s75, s75, 128', 's_cmp_eq_u32 s75, 640', 's_cselect_b32 s75, 0, s75', 's_add_u32 s76, s60, s75']
            return [((adv if u == 0 and c > 0 else []) + ['s_add_u32 m0, s61, %d' % (self.MB + c*self.MSLOT + u*1024), 's_add_u32 s62, s76, %d' % (u*16*1280)],
                     'buffer_load_dwordx4 v%d, %s, s62 offen lds' % (8 if u == 0 else 6+(u&1), s(S_A,4)), 'm%d' % c) for u in range(6)]
        t = 16
        def unpack(lo):
            o = []
            for k in range(4):
                o += ['v_lshlrev_b32 v%d, 16, v%d' % (t+2*k, lo+k), 'v_and_b32 v%d, s77, v%d' % (t+2*k+1, lo+k),
                      'v_lshlrev_b32 v%d, 16, v%d' % (t+8+2*k, lo+4+k), 'v_and_b32 v%d, s77, v%d' % (t+8+2*k+1, lo+4+k)]
            return o
        def acc():
            o = []
            for k in range(16): o += ['v_add_f32 v%d, v%d, v%d' % (SA+(k&3), SA+(k&3), t+k), 'v_fmac_f32 v%d, v%d, v%d' % (SA+4+(k&3), t+k, t+k)]
            return o
        def st(c): return unpack(RAW+32*c) + acc()
        def fl(c, with_stats):
            o = []
            for u in range(4):
                lo = RAW+32*c+8*u
                o += unpack(lo)
                if u == 0 and with_stats: o += acc()
                for k in range(8): o.append('v_fmac_f32 v%d, v12, v%d' % (t+k, t+8+k))
                for k in range(4): o.append('v_cvt_pk_bf16_f32 v%d, v%d, v%d' % (lo+k, t+2*k, t+2*k+1))
                o.append('ds_write_b128 v%d, %s offset:%d' % (213+u, v(lo,4), (c&1)*self.XFS))
            return o
        def emit(loads, valu):
            per = -(-len(valu) // max(1, len(loads))); k = 0
            for pre, ld, tag in loads:
                for p in pre: a(p)
                vm.op(ld, tag)
                for l in valu[k:k+per]: a(l)
                k += per
            for l in valu[k:]: a(l)
        emit(xl(0, range(4)), [])
        a('v_xor_b32 v3, v3, v4\nv_lshlrev_b32 v3, 4, v3')
        a('v_mul_u32_u24 v6, 2560, v2\nv_add_u32 v6, v6, v3\nv_xor_b32 v7, 64, v6')
        a('s_or_b32 s60, s55, s%d\ns_or_b32 s60, s60, s%d\ns_cmp_eq_u32 s60, 0\ns_cselect_b32 s60, %d, 0' % (WAVE, HH, 320*1280))
        a('v_cmp_gt_u32 vcc, 8, v0\nv_mov_b32 v8, s60\ns_nop 0\nv_cndmask_b32 v8, 0, v8, vcc\nv_add_u32 v8, v8, v6')
        a('s_and_b32 s60, s%d, 1\ns_mul_i32 s60, s60, 96\ns_lshl_b32 s61, s%d, 7\ns_add_u32 s60, s60, s61\ns_add_u32 s60, s60, s55\ns_mul_i32 s60, s60, 1280' % (WAVE, HH))
        a('s_mul_i32 s61, s%d, 6144\ns_add_u32 s76, s60, s75' % WAVE)
        YL = 'ylate' in self.opt
        emit(ml(0) + ([] if YL else xl(2, [0]) + xl(3, [0]) + xl(4, [0])), [])
        a('s_lshl_b32 s53, s%d, 12\ns_add_u32 s53, s53, %d' % (WAVE, self.XFB))
        a('v_lshl_add_u32 v9, v2, 7, v3\nv_add_u32 v9, s53, v9')
        for u in range(4): a('s_and_b32 s53, s%d, 1\ns_lshl_b32 s53, s53, 6\nv_xor_b32 v%d, s53, v9\ns_lshl_b32 s53, s%d, 10\nv_add_u32 v%d, s53, v%d' % (68+u, 213+u, 68+u, 213+u, 213+u))
        a('s_cmp_eq_u32 s55, 0\ns_cselect_b32 s53, 1.0, -1.0\nv_mov_b32 v12, s53\ns_mov_b32 s77, 0xffff0000')
        for k in range(8): a('v_mov_b32 v%d, 0' % (SA+k))
        a('v_lshlrev_b32 v4, 10, v2\ns_lshl_b32 s65, s66, 4\ns_add_u32 s65, s65, 0x%x\ns_lshl_b32 s64, s63, 13\ns_add_u32 s64, s64, s65' % STATS)
        a('v_and_b32 v3, 31, v0\nv_lshlrev_b32 v10, 10, v3\ns_lshl_b32 s53, s%d, 7\ns_add_u32 s53, s53, %d\nv_lshl_add_u32 v3, v3, 2, s53' % (WAVE, self.DMISC))
        self.p2_prep()
        self.nonce()
        vm.wait('x0')
        emit([], fl(0, True))
        vm.wait('m0', 'lgkmcnt(0)'); a('s_barrier')
        self.stamp(1)
        if YL:
            emit(xl(1, range(4)) + ml(1) + xl(2, [0]) + xl(3, [0]) + xl(4, [0]), [])
            vm.wait('x1'); emit([], fl(1, True)); vm.wait('y4'); emit(xl(2, [1,2,3]) + ml(2), st(2) + st(3) + st(4))
        else:
            vm.wait('y4')
            emit(xl(1, range(4)) + ml(1), st(2) + st(3) + st(4))
            vm.wait('x1'); emit(xl(2, [1,2,3]) + ml(2), fl(1, True))
        fin = []
        fin += ['v_add_f32 v%d, v%d, v%d' % (SA+k, SA+k, SA+k+1) for k in (0, 4, 2, 6)] + ['v_add_f32 v%d, v%d, v%d' % (SA+k, SA+k, SA+k+2) for k in (0, 4)]
        for mod in ('quad_perm:[1,0,3,2]', 'quad_perm:[2,3,0,1]', 'row_half_mirror'):
            fin += ['s_nop 0'] + ['v_add_f32 v%d, v%d, v%d %s row_mask:0xf bank_mask:0xf' % (SA+k, SA+k, SA+k, mod) for k in (0, 4)]
        fin += ['v_mul_f32 v%d, 0x3acccccd, v%d' % (SA+8, SA), 'v_mul_f32 v%d, 0x3acccccd, v%d' % (SA+9, SA+4),
                'v_fma_f32 v%d, -v%d, v%d, v%d' % (SA+9, SA+8, SA+8, SA+9), 'v_max_f32 v%d, 0, v%d' % (SA+9, SA+9), 'v_add_f32 v%d, 0x3727c5ac, v%d' % (SA+9, SA+9),
                'v_mov_b32 v%d, s12' % (SA+10), 'v_mov_b32 v%d, s13' % (SA+11)]
        emit([], fin)
        a('s_mov_b32 exec_lo, 0x01010101\ns_mov_b32 exec_hi, 0x01010101')
        vm.op('buffer_store_dwordx4 %s, v4, %s, s64 offen sc1' % (v(SA+8,4), s(S_WS,4)), 'o')
        a('s_mov_b64 exec, -1')
        vm.wait('m1', 'lgkmcnt(0)'); a('s_barrier')
        vm.wait('x2'); emit(xl(3, [1,2,3]) + ml(3), fl(2, False)); vm.wait('m2', 'lgkmcnt(0)'); a('s_barrier')
        vm.wait('x3'); emit(ml(4) + xl(4, [1,2,3]), fl(3, False)); vm.wait('m3', 'lgkmcnt(0)'); a('s_barrier')
        vm.op('buffer_load_dwordx4 %s, v10, %s, s65 offen sc1' % (v(SA,4), s(S_WS,4)), 'r')
        vm.wait('x4')
        a('v_lshlrev_b32 v11, 7, v0\nv_add_u32 v11, 0x%x, v11\nv_add_u32 v13, 8192, v11\nv_add_u32 v14, 16384, v11' % SFLAG)
        a('s_cmp_eq_u32 s%d, 1\ns_cbranch_scc0 L_dl_np' % WAVE)
        for k in range(3): a('buffer_load_dwordx2 %s, v%d, %s, 0 offen sc1' % (v(SA+4+2*k,2), (11,13,14)[k], s(S_WS,4)))
        a.label('L_dl_np')
        emit([], fl(4, False))
        a('s_waitcnt lgkmcnt(0)\ns_barrier')
        a('s_waitcnt vmcnt(0)')
        a('s_cmp_eq_u32 s%d, 1\ns_cbranch_scc0 L_dl_nq' % WAVE)
        self.spin3('L_dl_sp', (11,13,14), SA+4, True)
        a.label('L_dl_nq')
        a('s_mov_b32 s53, 0')
        a.label('L_dl_rs')
        a('v_cmp_ne_u64 vcc, s[12:13], %s' % v(SA+2,2))
        a('s_cbranch_vccz L_dl_rx\ns_add_u32 s53, s53, 1\ns_cmp_gt_u32 s53, 0x%x\ns_cbranch_scc1 L_dl_rx\ns_sleep 2' % SPIN_MAX)
        a('buffer_load_dwordx4 %s, v10, %s, s65 offen sc1\ns_waitcnt vmcnt(0)\ns_branch L_dl_rs' % (v(SA,4), s(S_WS,4)))
        a.label('L_dl_rx')
        a('v_rsq_f32 v%d, v%d\ns_nop 0\nds_write_b32 v3, v%d' % (SA, SA+1, SA))
        a('s_lshl_b32 s58, s%d, 3\nv_lshrrev_b32 v7, 5, v0\nv_add_u32 v7, s58, v7\nv_and_b32 v6, 31, v0\nv_lshlrev_b32 v6, 4, v6' % WAVE)
        a('v_mul_u32_u24 v5, %d, v7\nv_add_u32 v5, v5, v6\nv_mul_u32_u24 v8, %d, v7\nv_add_u32 v8, v8, v6' % (LROW, GROW))
        a('s_lshr_b32 s59, s%d, 1\ns_mul_i32 s57, s59, %d\ns_lshl_b32 s59, s%d, 10\ns_add_u32 s57, s57, s59' % (DID, GBLK, HH))
        for k in range(4): a('s_add_u32 s%d, s57, 0x%x' % (60+k, G16 + 2*k*GROW))
        a('s_lshl_b32 s59, s%d, 3\ns_add_u32 s58, s59, 0x%x\nv_lshl_add_u32 v6, v0, 9, s58' % (DID, DFLAG))
        a('v_cmp_gt_u32 vcc, 32, v0\nv_mov_b32 v7, 0x%x\ns_add_u32 s59, s59, 0x%x\nv_cndmask_b32 v6, v7, v6, vcc\nv_mov_b32 v7, s59' % (OOB, SFLAG))
        vm = VM(a)
        self.p2_coords(); self.ov_setup()
        a('v_lshlrev_b32 v2, 4, v0')
        def dma_step(first, k, lim, tag):
            a('s_add_u32 s64, s%d, %d\ns_cmp_lt_u32 s64, %d\ns_cbranch_scc0 L_ds_%s%d' % (WAVE, first + 4*k, lim, tag, k))
            a('s_cmp_ge_u32 s64, 14\ns_cselect_b32 s65, 51200, 0\ns_cselect_b32 s66, 14, 0\ns_sub_u32 s66, s64, s66\ns_mul_i32 s64, s64, 5120\ns_add_u32 s65, s65, s64')
            a('s_cmp_le_u32 s76, s66\ns_cselect_b32 s66, s75, s77\ns_add_u32 s65, s65, s66')
            for n in range(5):
                if n in (0, 4): a('s_add_u32 m0, s64, %d\ns_add_u32 s78, s65, %d' % (n*1024, n*1024))
                a('buffer_load_dwordx4 v2, %s, s78 offen offset:%d %s lds' % (s(S_WS,4), (n&3)*1024, self.bf))
            a.label('L_ds_%s%d' % (tag, k))
        a('s_waitcnt lgkmcnt(0)\ns_barrier')
        self.stamp(9)
        DE = self.val.get('de', '3')
        plan = {'0': [[], [], []], '1': [['o0','o1','o2'], ['e0','e1'], ['e2','e3','e4','o3','o4']], '2': [['o0','o1'], ['e0'], ['e1','e2']], '3': [['o0','o1'], [], []], '4': [['o0'], ['o1'], []]}[DE]
        done = set()
        def run(items):
            for it in items:
                done.add(it)
                if it[0] == 'o': self.ov_load(vm, int(it[1]), 2)
                else: dma_step(10, int(it[1]), 28, 'e')
        run(plan[0])
        for et in range(3):
            a('s_barrier')
            if et == 0: a('s_cmp_eq_u32 s%d, 0\ns_cbranch_scc0 L_dl_sk' % HH)
            for k in range(4): a('ds_read_b128 %s, v5 offset:%d' % (v(16+16*et+4*k,4), 2*k*LROW + et*512))
            for k in range(4):
                a('s_waitcnt lgkmcnt(%d)' % (3-k))
                a('buffer_store_dwordx4 %s, v8, %s, s%d offen offset:%d sc1' % (v(16+16*et+4*k,4), s(S_WS,4), 60+k, et*512))
            if et == 0: a.label('L_dl_sk')
            if et < 2: run(plan[et+1])
        a('s_waitcnt vmcnt(0)\ns_setprio 0\ns_barrier')
        self.stamp(4)
        a('s_cmp_eq_u32 s%d, 0\ns_cbranch_scc0 L_dl_nf2' % WAVE)
        self.setflag(6, 12, '-1')
        a.label('L_dl_nf2')
        self.stamp(3)
        for k in range(3): dma_step(0, k, 10, 'l')
        run([it for it in ['e0','e1','e2','e3','e4','o0','o1','o2','o3','o4'] if it not in done])
        self.stamp(2)
        a('s_branch L_p2_help')

    def dft_consumer(self):
        a = self.a
        ACC = 8
        MP, XP = 104, 152
        NP = 12
        a.label('L_dft_cons')
        a('s_sub_u32 s56, s%d, 4' % WAVE)
        a('s_setprio 1')
        a('v_and_b32 v208, 31, v0\nv_lshrrev_b32 v209, 5, v0\nv_bfe_u32 v210, v0, 1, 3\nv_xor_b32 v210, v210, v209')
        a('v_lshlrev_b32 v210, 4, v210\nv_lshl_add_u32 v210, v208, 7, v210')
        AM = [[211+4*k+u for u in range(4)] for k in range(3)]; AX = [2, 3, 4, 5]
        a('s_lshl_b32 s57, s56, 12\ns_add_u32 s57, s57, %d' % self.XFB)
        for u in range(4):
            a('v_xor_b32 v6, %d, v210' % (32*u))
            a('v_add_u32 v%d, s57, v6' % AX[u])
            for k in range(3): a('v_add_u32 v%d, %d, v6' % (AM[k][u], self.MB + 2*k*self.MSLOT))
        a('v_lshlrev_b32 v7, 2, v209\ns_mov_b32 s62, 0x3d000000')
        for k in range(16):
            r = 224 + k
            a('v_add_u32 v%d, %d, v7\nv_mul_u32_u24 v%d, v%d, v208\nv_and_b32 v%d, 31, v%d\nv_cvt_f32_u32 v%d, v%d\nv_mul_f32 v%d, s62, v%d' % (r, 8*(k>>2)+(k&3), r, r, r, r, r, r, r, r))
        if 'pf' in self.opt: a('s_waitcnt vmcnt(0)')
        for k in range(16):
            a('v_sin_f32 v%d, v%d\nv_cos_f32 v%d, v%d' % (240+k, 224+k, 224+k, 224+k))
        if 'dxt' in self.opt:
            a('s_lshl_b32 s57, s55, 1\ns_add_u32 s57, s57, s%d\ns_lshl_b32 s57, s57, 9\ns_lshl_b32 s58, s54, 2\ns_add_u32 s57, s57, s58\ns_add_u32 s57, s57, s56\ns_mul_i32 s57, s57, 1280' % HH)
            a('v_and_b32 v6, 7, v0\nv_mul_u32_u24 v6, 81920, v6\nv_lshrrev_b32 v162, 3, v0\nv_lshrrev_b32 v163, 2, v162\nv_add_u32 v162, v162, v163\nv_lshl_add_u32 v6, v162, 7, v6')
            a('buffer_load_dword v223, v6, %s, s57 offen offset:128' % s(S_X,4))
        a('s_lshl_b32 s57, s56, 7\ns_add_u32 s57, s57, %d' % self.DMISC)
        a('v_lshl_add_u32 v160, v209, 4, s57')
        a('v_mul_u32_u24 v161, %d, v208\nv_lshl_add_u32 v161, v209, 6, v161' % LROW)
        a('v_lshrrev_b32 v6, 3, v208\nv_add_u32 v6, s56, v6\nv_and_b32 v6, 3, v6\nv_lshl_add_u32 v161, v6, 2, v161')
        self.nonce()
        def accr(m): return ACC + 32*(m%3) + 16*(m//3)
        rd = []; need = []
        for c in range(5):
            for u in range(4):
                rd.append('ds_read_b128 %s, v%d offset:%d' % (v(XP+4*(u&1),4), AX[u], (c&1)*self.XFS))
                for m in range(6):
                    rd.append('ds_read_b128 %s, v%d offset:%d' % (v(MP+4*((6*u+m)%NP),4), AM[c>>1][u], (c&1)*self.MSLOT + m*4096))
                    need.append(len(rd)-1)
        RR = 168
        rr_reads = ['ds_read_b128 %s, v160 offset:%d' % (v(RR+4*k,4), 32*k) for k in range(4)]
        LA = 5
        a('s_barrier')
        self.stamp(1)
        for r in rd[:7]: a(r)
        issued = 7; done = 0
        a.align(3)
        for g in range(120):
            c, mu = divmod(g, 24); u, m = divmod(mu, 6)
            if mu == 21:
                a('s_waitcnt lgkmcnt(0)\ns_barrier'); done = issued
                self.stamp(5+c)
                if c < 4:
                    for _ in range(7): a(rd[issued]); issued += 1
                else:
                    for r in rr_reads: a(r)
            elif need[g] >= done:
                a('s_waitcnt lgkmcnt(%d)' % (issued - need[g] - 1)); done = need[g] + 1
            a('v_mfma_f32_32x32x16_bf16 %s, %s, %s, %s' % (v(accr(m),16), v(XP+4*(u&1),4), v(MP+4*(mu%NP),4), v(accr(m),16) if g >= 6 else '0'))
            if mu < 21:
                tgt = min(28*(c+1), need[g+1] + LA + 1)
                while issued < tgt: a(rd[issued]); issued += 1
        self.stamp(2)
        a.label('L_dc_epi')
        CC, SS, NS = 184, 192, 200
        a('s_waitcnt lgkmcnt(0)')
        for k in range(8):
            a('v_pk_mul_f32 %s, %s, %s' % (v(224+2*k,2), v(224+2*k,2), v(RR+2*k,2)))
            a('v_pk_mul_f32 %s, %s, %s' % (v(240+2*k,2), v(240+2*k,2), v(RR+2*k,2)))
        for k in range(8):
            a('v_cvt_pk_bf16_f32 v%d, v%d, v%d' % (CC+k, 224+2*k, 225+2*k))
            a('v_cvt_pk_bf16_f32 v%d, v%d, v%d' % (SS+k, 240+2*k, 241+2*k))
            a('v_xor_b32 v%d, 0x80008000, v%d' % (NS+k, SS+k))
        def zc(et):
            A0 = ACC + 32*et; Z = 104 + 16*et; o = []
            for k in range(8):
                o.append('v_cvt_pk_bf16_f32 v%d, v%d, v%d' % (Z+k, A0+2*k, A0+2*k+1))
                o.append('v_cvt_pk_bf16_f32 v%d, v%d, v%d' % (Z+8+k, A0+16+2*k, A0+16+2*k+1))
            return o
        for l in zc(0): a(l)
        a('s_nop 1')
        for et in range(3):
            A0 = ACC + 32*et; Z = 104 + 16*et
            RE, IM = A0, A0+16
            ms = [(RE,Z,CC,0),(IM,Z+8,CC,0),(RE,Z+4,CC+4,1),(IM,Z+12,CC+4,1),(RE,Z+8,SS,1),(IM,Z,NS,1),(RE,Z+12,SS+4,1),(IM,Z+4,NS+4,1)]
            fill = (zc(et+1) if et < 2 else ['s_nop 3']) + (self._dft_out(ACC + 32*(et-1), et-1) if et > 0 else [])
            per = -(-len(fill)//8)
            for i, (D, A_, B_, ac) in enumerate(ms):
                a('v_mfma_f32_32x32x16_bf16 %s, %s, %s, %s' % (v(D,16), v(A_,4), v(B_,4), v(D,16) if ac else '0'))
                for f in fill[per*i:per*i+per]: a(f)
            if et > 0: a('s_waitcnt lgkmcnt(0)\ns_barrier')
        a.nop(12)
        for f in self._dft_out(ACC + 64, 2): a(f)
        a('s_waitcnt lgkmcnt(0)\ns_barrier')
        a('s_setprio 0')
        self.stamp(3)
        a('s_barrier')
        a('s_branch L_p2_mfma')
        a.label('L_dc_end')

    def _dft_out(self, A0, et):
        o = []
        for r in range(16):
            o.append('v_cvt_pk_bf16_f32 v%d, v%d, v%d' % (A0+r, A0+r, A0+16+r))
            o.append('ds_write_b32 v161, v%d offset:%d' % (A0+r, (32*et + 8*(r>>2) + (r&3))*16))
        return o

    TW, GV, XV = 232, 248, 228
    def p2_prep(self):
        a = self.a; TW, GV, XV = self.TW, self.GV, self.XV
        J, G_, A, B, C, D = 217, 218, 219, 220, 221, 222
        TM = 223
        a('s_and_b32 s41, s%d, 1\ns_lshr_b32 s42, s%d, 1' % (WAVE, WAVE))
        a('s_lshl_b32 s38, s%d, 9\ns_add_u32 s38, s38, 0x%x' % (T1, DFLAG))
        a('s_lshl_b32 s43, s41, 1\ns_add_u32 s44, s43, s42\ns_sub_u32 s43, s43, s42\ns_add_u32 s43, s43, 1')
        a('v_and_b32 v%d, 15, v0\nv_lshrrev_b32 v%d, 4, v0' % (J, G_))
        a('s_lshl_b32 s39, s44, 9\ns_add_u32 s39, s39, s%d\ns_mul_i32 s39, s39, 1280\ns_mul_i32 s53, s%d, 160\ns_add_u32 s39, s39, s53' % (T1, CS))
        a('s_mul_i32 s40, s%d, 3072\ns_add_u32 s40, s40, %d' % (WAVE, self.MISC + 4096))
        for m in range(3):
            a('v_add_u32 v%d, %d, v0\nv_min_u32 v%d, 159, v%d\nv_mul_u32_u24 v%d, 205, v%d\nv_lshrrev_b32 v%d, 11, v%d' % (A, 64*m, A, A, B, A, B, B))
            a('v_mul_u32_u24 v%d, %d, v%d\nv_lshl_add_u32 v%d, v%d, 4, v%d' % (B, 40960-160, B, XV+m, A, B))
        a('v_mul_u32_u24 v%d, 160, v%d\nv_and_b32 v%d, 1, v%d\nv_lshl_add_u32 v%d, v%d, 4, v%d\nv_add_u32 v%d, s40, v%d' % (A, J, B, G_, A, B, A, XV+3, A))
        a('s_lshr_b32 s45, s%d, 2\ns_lshl_b32 s47, s45, 31\ns_or_b32 s47, s47, 0x3a000000' % CS)
        a('s_mul_i32 s46, s45, 640\ns_lshl_b32 s45, s45, 1\ns_sub_u32 s45, 1, s45')
        a('s_mul_i32 s53, s%d, 80' % CS)
        a('v_mul_u32_u24 v%d, %d, v%d' % (D, 2*GBLK, G_))
        a('v_and_b32 v227, 7, v0\nv_bfe_u32 v%d, v0, 3, 1\nv_lshl_add_u32 v227, v227, 1, v%d' % (A, A))
        for n in range(5):
            a('v_add_u32 v%d, s53, v227\nv_add_u32 v%d, %d, v%d' % (A, A, 16*n, A))
            a('v_mul_lo_u32 v%d, v%d, s45\nv_add_u32 v%d, s46, v%d' % (A, A, A, A))
            a('v_and_b32 v%d, 1, v%d\nv_mul_u32_u24 v%d, %d, v%d\nv_add_u32 v%d, v%d, v%d' % (B, A, B, GBLK, B, B, B, D))
            a('v_lshrrev_b32 v%d, 1, v%d\nv_cmp_eq_u32 vcc, 160, v%d\ns_nop 1\nv_cndmask_b32 v%d, v%d, 0, vcc' % (C, A, C, C, C))
            a('v_lshl_add_u32 v%d, v%d, 4, v%d' % (GV+n, C, B))
            if n == 0:
                a('v_cmp_eq_u32 vcc, 0, v%d\nv_mov_b32 v%d, 0x%x\ns_nop 0\nv_cndmask_b32 v%d, v%d, v%d, vcc' % (A, C, OOB, GV, GV, C))
        a('s_mul_i32 s45, s45, s%d\ns_and_b32 s45, s45, 31' % T1)
        a('s_mul_i32 s36, s45, %d\ns_mul_i32 s37, s42, %d\ns_add_u32 s36, s36, s37\ns_add_u32 s36, s36, 0x%x\ns_add_u32 s37, s36, %d' % (GROW, 16*GBLK, G16, 8*GBLK))
        a('s_lshr_b32 s45, s45, 3')
        for t in range(2):
            a('s_lshl_b32 s53, s%d, 9\ns_add_u32 s53, s53, s%d\nv_lshl_add_u32 v%d, v%d, 5, s53' % (44 - t, T1, A+t, J))
        for i in range(4):
            a('s_sub_u32 s53, %d, s45\ns_and_b32 s53, s53, 3\ns_lshl_b32 s46, s42, 5\ns_add_u32 s53, s53, s46' % (i+4))
            a('v_lshl_add_u32 v%d, v%d, 2, s53\nv_add_u32 v%d, 16, v%d' % (C, G_, D, C))
            for t in range(2):
                for d in range(2):
                    r = TM + 2*d
                    a('v_mul_u32_u24 v%d, v%d, v%d' % (r, A+t, C+d))
                    a('v_and_b32 v%d, 2047, v%d\nv_cvt_f32_u32 v%d, v%d\nv_mul_f32 v%d, s47, v%d' % (r, r, r, r, r, r))
                    a('v_sin_f32 v%d, v%d\nv_cos_f32 v%d, v%d' % (r+1, r, r, r))
                a('s_nop 0')
                for d in range(2):
                    a('v_cvt_pk_bf16_f32 v%d, v%d, v%d' % (TW+(t*2+d)*4+i, TM+2*d, TM+2*d+1))

    def p2_help(self):
        a = self.a
        a.label('L_p2_help')
        if self.stage == 'p1':
            a('s_waitcnt vmcnt(0)'); self.dump_stamps(); a('s_endpgm'); return
        ACC, G, TW, OV, GV, XV = 16, 56, self.TW, self.OV, self.GV, self.XV
        def acc(t, n): return ACC + (t*5+n)*4
        a('s_and_b32 s56, s%d, 1\ns_lshr_b32 s57, s%d, 1\nv_lshlrev_b32 v1, 3, v0' % (WAVE, WAVE))
        for m in range(3):
            a('s_add_u32 m0, s40, %d\ns_nop 0\nbuffer_load_dwordx4 v%d, %s, s39 offen lds' % (1024*m, XV+m, s(S_X,4)))
        a('s_mul_i32 s61, s57, 71680\ns_mul_i32 s62, s56, 5120\ns_add_u32 s61, s61, s62\nv_add_u32 v6, s61, v2')
        a('s_mul_i32 s61, s56, 71680\ns_mul_i32 s62, s57, 15360\ns_add_u32 s62, s62, s61\ns_add_u32 s62, s62, 51200\nv_add_u32 v7, s62, v2')
        a('s_mul_i32 s62, s57, 5120\ns_sub_u32 s62, s61, s62\ns_add_u32 s62, s62, 61440\nv_add_u32 v8, s62, v2')
        a('s_waitcnt vmcnt(0)')
        self.stamp(5)
        for n in range(5): a('ds_read_b128 %s, v%d offset:%d' % (v(96+4*n,4), XV+3, 32*n))
        if 'nos' not in self.opt:
            a('s_cmp_ge_u32 s%d, 24\ns_cbranch_scc1 L_p2_sx\nv_mov_b32 v12, %d\ns_mov_b32 s53, 0' % (IDX, self.MISC + 3072))
            a.label('L_p2_sq')
            a('ds_read_b32 v13, v12\ns_add_u32 s53, s53, 1\ns_cmp_gt_u32 s53, 0x%x\ns_cbranch_scc1 L_p2_sx\ns_waitcnt lgkmcnt(0)' % SPIN_MAX)
            a('v_cmp_ne_u32 vcc, 4, v13\ns_cbranch_vccz L_p2_sx\ns_sleep 1\ns_branch L_p2_sq')
            a.label('L_p2_sx')
        self.spin('L_p2_pd', 1, 254, 's38', 8)
        self.stamp(6)
        for d in range(2):
            for n in range(5):
                a('buffer_load_dwordx4 %s, v%d, %s, s%d offen %s' % (v(G+(d*5+n)*4,4), GV+n, s(S_WS,4), 36+d, self.bf))
        a('s_waitcnt lgkmcnt(0)')
        a('v_lshrrev_b32 v9, 5, v0\nv_lshlrev_b32 v9, 4, v9\nv_sub_u32 v9, 16, v9')
        for k in range(20):
            a('v_lshlrev_b32 v%d, v9, v%d\nv_and_b32 v%d, 0xffff0000, v%d' % (96+k, 96+k, acc(0,0)+k, 96+k))
        self.stamp(7)
        a('s_barrier')
        self.stamp(8)
        a('s_waitcnt vmcnt(0)')
        for d in range(2):
            for n in range(5):
                for t in range(2):
                    a('v_mfma_f32_16x16x32_bf16 %s, %s, %s, %s' % (v(acc(t,n),4), v(G+(d*5+n)*4,4), v(TW+(t*2+d)*4,4), v(acc(t,n),4) if (t == 0 or d) else '0'))
        w = ['ds_write_b128 v6, %s offset:%d' % (v(OV+4*g,4), (g//5)*10240 + (g%5)*1024) for g in range(25)]
        w += ['ds_write_b128 v%d, %s offset:%d' % (7+t, v(acc(t,n),4), n*1024) for t in range(2) for n in range(5)]
        for lo, hi in ((0,8),(8,16),(16,24),(24,30),(30,35)):
            a('s_barrier')
            for l in w[lo:hi]: a(l)
            a('s_waitcnt lgkmcnt(0)')
        a('s_barrier')
        a('s_or_b32 s53, s2, s%d\ns_cmp_eq_u32 s53, 0\ns_cbranch_scc0 L_ph_x' % WAVE)
        a('v_mov_b32 v2, 0x%x' % EPOCH)
        self.setflag(2, 4)
        a.label('L_ph_x')
        self.dump_stamps()
        a('s_endpgm')

    def p2_mfma(self):
        a = self.a
        a.label('L_p2_mfma')
        if self.stage == 'p1':
            self.dump_stamps(); a('s_endpgm'); return
        ACC, WB, H = 16, 56, 136
        NH, NWB = 14, 4
        def acc(t, n): return ACC + (t*5+n)*4
        a('s_setprio %s' % self.val.get('mp', '1'))
        a('s_and_b32 s56, s%d, 1\ns_bfe_u32 s57, s%d, 0x10001\nv_lshlrev_b32 v2, 4, v0' % (WAVE, WAVE))
        self.p2_coords()
        a('s_lshl_b32 s58, s56, 1\ns_add_u32 s59, s58, s57\ns_sub_u32 s58, s58, s57\ns_add_u32 s58, s58, 1')
        a('s_lshl_b32 s61, s%d, 2\ns_add_u32 s62, s61, s59\ns_mul_i32 s62, s62, 49152\nv_add_u32 v6, s62, v2' % T1)
        a('s_add_u32 s62, s61, s58\ns_mul_i32 s62, s62, 49152\nv_add_u32 v7, s62, v2')
        a('s_mul_i32 s62, s57, 24\ns_sub_u32 s62, s62, s76\ns_lshl_b32 s62, s62, 10\ns_add_u32 s63, s62, 0x%x\ns_add_u32 s62, s62, 0x%x' % (HF, HF + 24576))
        a('s_mul_i32 s61, s57, 71680\nv_add_u32 v3, s61, v2\nv_add_u32 v4, 0xc800, v3')
        a('s_lshl_b32 s60, s59, 9\ns_add_u32 s60, s60, s%d\ns_mul_i32 s60, s60, 1280\ns_mul_i32 s61, s%d, 160\ns_add_u32 s60, s60, s61' % (T1, CS))
        a('s_and_b32 s74, s%d, 3\ns_xor_b32 s73, s74, 2\ns_mul_i32 s73, s73, 5120\ns_add_u32 s73, s73, 143360' % WAVE)
        a('s_mul_i32 s74, s74, 5120\ns_add_u32 s74, s74, 143360')
        for m in range(3):
            a('v_add_u32 v8, %d, v0\nv_mul_u32_u24 v9, 205, v8\nv_lshrrev_b32 v9, 11, v9' % (64*m))
            a('v_mul_u32_u24 v%d, 10, v9\nv_sub_u32 v8, v8, v%d\nv_lshlrev_b32 v8, 4, v8' % (10+m, 10+m))
            a('v_mul_u32_u24 v%d, 40960, v9\nv_add_u32 v%d, v%d, v8' % (10+m, 10+m, 10+m))
            a('v_mul_u32_u24 v9, 176, v9\nv_add3_u32 v%d, v9, v8, s74' % (13+m))
        a('v_cmp_gt_u32 vcc, 32, v0\nv_mov_b32 v8, 0x%x\ns_nop 0\nv_cndmask_b32 v12, v8, v12, vcc' % OOB)
        a('v_and_b32 v8, 15, v0\nv_mul_u32_u24 v8, 176, v8\nv_bfe_u32 v9, v0, 4, 1\nv_lshl_add_u32 v8, v9, 4, v8\nv_lshrrev_b32 v9, 5, v0\nv_lshl_add_u32 v8, v9, 3, v8\nv_add_u32 v8, s74, v8')
        a('v_add_u32 v9, s73, v2\nv_add_u32 v5, s74, v2')
        a('s_mul_i32 s61, s56, 71680\ns_mul_i32 s53, s57, 10240\ns_add_u32 s61, s61, s53\ns_add_u32 s61, s61, 51200\nv_add_u32 v1, s61, v2')
        hf = self.val.get('hf', 'p')
        k_ = {'p': 1, 'w': 4, 'l': 16}[hf]
        a('s_lshr_b32 s64, s%d, 1\ns_mul_i32 s64, s64, %d\ns_mul_i32 s65, s57, %d\ns_add_u32 s64, s64, s65\ns_add_u32 s64, s64, 0x%x' % (T1, 512*k_, 192*k_, 0 if hf == 'p' else 0xa0000))
        a('v_min_u32 v250, 23, v0\ns_mov_b32 s66, -1')
        if hf == 'w': a('v_and_b32 v251, 3, v250\nv_lshrrev_b32 v250, 2, v250\nv_lshlrev_b32 v250, 7, v250\nv_lshl_add_u32 v250, v251, 3, v250')
        else: a('v_lshlrev_b32 v250, %d, v250' % (3 if hf == 'p' else 7))
        if 'p0late' not in self.opt: a('s_barrier')
        self.stamp(7)
        vm = VM(a)
        late = []
        NG = int(self.val.get('ng', 1))
        def ensure(g, first=False):
            mask = (0xF << 4*g) if not first else (1 << 4*NG) - 1
            L = 'L_en%d' % g
            a('s_and_b32 s67, s66, 0x%x\ns_cbranch_scc1 %s' % (mask, L))
            a.label(L + '_r')
            late.append((L, mask))
        def hload(j):
            if j % 4 == 0 and (j == 0 or j//4 >= NG): ensure(j//4, j == 0)
            if j == 0: self.stamp(8)
            a('s_cmp_le_u32 s76, %d\ns_cselect_b32 s61, s63, s62\ns_add_u32 s61, s61, %d' % (j, j*1024))
            for t in range(2):
                vm.op('buffer_load_dwordx4 %s, v%d, %s, s61 offen %s' % (v(H+(j%NH)*8+4*t,4), 6+t, s(S_WS,4), self.bf), j)
        def wread(j):
            sl = j if j < 14 else j - 14
            return ['ds_read_b128 %s, v%d offset:%d' % (v(WB+(j%NWB)*20+4*n,4), 3 if sl < 10 else 4, (sl if sl < 10 else sl-10)*5120 + n*1024) for n in range(5)]
        PRE = int(self.val.get('hpre', self.h_pre))
        for j in range(PRE): hload(j)
        if 'p0late' in self.opt: a('s_barrier')
        for j in range(2):
            for r in wread(j): a(r)
        nxt = PRE
        for j in range(24):
            vm.wait(j, 'lgkmcnt(%d)' % (5 if j < 23 else 0))
            if j in (0, 4, 9, 17): self.stamp({0: 9, 4: 10, 9: 11, 17: 12}[j])
            if j in (3, 7, 11, 15, 19): a('s_barrier')
            rd = wread(j+2) if j < 22 else []
            k = 0
            for n in range(5):
                for t in range(2):
                    a('v_mfma_f32_16x16x32_bf16 %s, %s, %s, %s' % (v(acc(t,n),4), v(WB+(j%NWB)*20+4*n,4), v(H+(j%NH)*8+4*t,4), v(acc(t,n),4) if j else '0'))
                    if k < len(rd): a(rd[k]); k += 1
                    elif k in (5, 7) and nxt < 24 and nxt < j + NH and (k == 5 or nxt <= j + NH - 2):
                        hload(nxt); nxt += 1; k += 1
                    else: k += 1
        assert nxt == 24
        self.stamp(13)
        a.nop(7)
        for n in range(5): a('ds_write_b128 v9, %s offset:%d' % (v(acc(1,n),4), n*1024))
        a('s_waitcnt lgkmcnt(0)\ns_barrier')
        for n in range(5):
            a('ds_read_b128 %s, v1 offset:%d' % (v(WB+12*n,4), n*1024))
            a('ds_read_b128 %s, v1 offset:%d' % (v(WB+12*n+4,4), 5120 + n*1024))
            a('ds_read_b128 %s, v5 offset:%d' % (v(WB+12*n+8,4), n*1024))
        for n in range(5):
            a('s_waitcnt lgkmcnt(%d)' % (12-2*n))
            for k in range(2):
                a('v_pk_add_f32 %s, %s, %s' % (v(WB+12*n+2*k,2), v(WB+12*n+2*k,2), v(WB+12*n+4+2*k,2)))
                a('v_pk_add_f32 %s, %s, %s' % (v(acc(0,n)+2*k,2), v(acc(0,n)+2*k,2), v(WB+12*n+8+2*k,2)))
            for k in range(2): a('v_pk_add_f32 %s, %s, %s' % (v(acc(0,n)+2*k,2), v(acc(0,n)+2*k,2), v(WB+12*n+2*k,2)))
            a('s_nop 1')
            for k in range(2): a('v_permlane32_swap_b32 v%d, v%d' % (acc(0,n)+k, acc(0,n)+2+k))
            for k in range(2): a('v_cvt_pk_bf16_f32 v%d, v%d, v%d' % (acc(1,n)+k, acc(0,n)+k, acc(0,n)+2+k))
            a('ds_write_b64 v8, %s offset:%d' % (v(acc(1,n),2), 32*n))
        a('s_waitcnt lgkmcnt(0)')
        for m in range(3): a('ds_read_b128 %s, v%d' % (v(WB+4*m,4), 13+m))
        for m in range(3):
            a('s_waitcnt lgkmcnt(%d)' % (2-m))
            a('buffer_store_dwordx4 %s, v%d, %s, s60 offen %s' % (v(WB+4*m,4), 10+m, s(S_OUT,4), self.val.get('of', '').replace('+', ' ')))
        if self.stamps: a('s_waitcnt vmcnt(0)')
        self.dump_stamps()
        a('s_endpgm')
        for L, mask in late:
            a.label(L)
            a('s_mov_b32 s53, 0')
            a.label(L + '_l')
            a('buffer_load_dwordx2 v[254:255], v250, %s, s64 offen sc1' % s(S_WS,4))
            a('s_add_u32 s53, s53, 1\ns_cmp_gt_u32 s53, 0x%x\ns_cbranch_scc1 %s_r\ns_waitcnt vmcnt(0)' % (SPIN_MAX, L))
            a('v_cmp_ne_u64 vcc, s[12:13], v[254:255]\ns_nop 1\ns_mov_b32 s66, vcc_lo\ns_and_b32 s67, s66, 0x%x\ns_cbranch_scc0 %s_r' % (mask, L))
            a('s_sleep %s\ns_branch %s_l' % (self.val.get('hs', '1'), L))

    h_pre = 10

    def build(self, header):
        a = self.a
        self.prologue()
        self.ffn_wloader(); self.ffn_xloader(); self.dft_loader()
        self.dft_consumer(); self.ffn_consumer()
        self.p2_help(); self.p2_mfma()
        a.label('L_end')
        a('s_endpgm')
        errs = check(a.lines)
        for e in errs: print(e, file=sys.stderr)
        txt = header + '; @launch grid=(256,1,1) block=(512,1,1) lds=163840\n'
        txt += '.amdgcn_target "amdgcn-amd-amdhsa--gfx950"\n.text\n.globl %s\n.p2align 8\n.type %s,@function\n%s:\n' % (KN, KN, KN)
        txt += a.text()
        txt += '''.section .rodata,"a"
.p2align 6
.amdhsa_kernel %s
  .amdhsa_next_free_vgpr 256
  .amdhsa_next_free_sgpr 102
  .amdhsa_accum_offset 256
  .amdhsa_group_segment_fixed_size 0
  .amdhsa_kernarg_size 96
  .amdhsa_user_sgpr_count 2
  .amdhsa_user_sgpr_kernarg_segment_ptr 1
  .amdhsa_system_sgpr_workgroup_id_x 1
.end_amdhsa_kernel
''' % KN
        return txt, errs

if __name__ == '__main__':
    import argparse
    ap = argparse.ArgumentParser()
    ap.add_argument('-o', default='k.s'); ap.add_argument('--stage', default='full'); ap.add_argument('--stamps', action='store_true'); ap.add_argument('--opt', default='')
    args = ap.parse_args()
    ref = open('parallel_sum__spectral_fnet__swiglu_ffn__prompt.s.ref').read()
    header = ''.join(l + '\n' for l in ref.split('\n') if l.startswith(';') and '@launch' not in l and 'Override launch' not in l and 'grid=ceil' not in l)
    txt, errs = Gen(args.stage, args.stamps, [o for o in args.opt.split(',') if o]).build(header)
    open(args.o, 'w').write(txt)
    print('written', args.o, 'hazard errors:', len(errs))
```

```python
import sys
from dsl import *

KN = 'parallel_sum__spectral_fnet__swiglu_ffn__prompt_kernel'
HFLAG   = 0x0
EPOCH   = 0x18000
SFLAG   = 0x8000
STATS   = 0x20000
COLSUM  = 0x28000
STAMPS  = 0x60000
DFLAG   = 0x80000
WDF     = 0x100000
G16     = 0x300000
HF      = 0x600000
WS_SIZE = 0xC00000
LROW = 97*16
GROW = 160*16
GBLK = 32*GROW
SPIN_MAX = 0x100000
OOB = 0x7ffffff0

S_X, S_WS, S_OUT, S_A = 4, 8, 16, 20
NONCE = 12
P_X, P_HRE, P_HIM, P_WG, P_WU, P_WD, P_OUT, P_DBG, P_WS = 28, 32, 34, 36, 38, 40, 42, 44, 46
WAVE, XCD, IDX = 48, 49, 50
T1, CS = 51, 52
HH, DID = 14, 15

DOC = """; out = x + Re(DFT_seq(DFT_hid(LN(x)))) + SwiGLU(LN(x)), one persistent launch, one 8-wave group per CU.
;           the other 64 groups: radix-2 folded hidden DFT + 32-point DFT over rows 64 apart, row statistics.
;  phase 2, every group: 64 rows (t = t1 mod 32) x 80 columns of h*W_down + the closing 64-point stage (twiddles from v_sin/v_cos) + x.
;  Hand-offs inside the launch use write-through stores and flags/records tagged with (word found in d_ws at entry) + 1.
"""

class VM:
    def __init__(self, a): self.a = a; self.q = []
    def op(self, txt, tag): self.a(txt); self.q.append(tag)
    def wait(self, tag, extra=''):
        idx = max([i for i, t in enumerate(self.q) if t == tag], default=-1)
        if idx < 0:
            if extra: self.a('s_waitcnt ' + extra)
            return
        n = len(self.q) - idx - 1
        assert n <= 63
        self.a('s_waitcnt vmcnt(%d) %s' % (n, extra))
        self.q = self.q[idx+1:]
    def drained(self): self.q = []

class Gen:
    def __init__(self, stage='full', stamps=False, opt=()):
        self.a = Asm(); self.stage = stage; self.stamps = stamps; self.opt = set(o.split('=')[0] for o in opt); self.val = dict(o.split('=') for o in opt if '=' in o)
        self.bf = '' if 'plain' in self.opt else 'sc1'
        if 'ph8' not in self.opt:
            self.opt |= ({'ph2', 'pfw', 'nowd'} if 'pf' in self.opt else {'ph2', 'ft', 'nowd'})
            for k, d in (('fb','6'),('wds','1'),('pw','11'),('ove','5'),('pf0','2')): self.val.setdefault(k, d)

    def srd(self, dst, ptr, size):
        a = self.a
        a('s_mov_b32 %s, %s' % (s(dst), s(ptr)))
        a('s_mov_b32 %s, %s' % (s(dst+1), s(ptr+1)))
        a('s_mov_b32 %s, 0x%x' % (s(dst+2), size))
        a('s_mov_b32 %s, 0x20000' % s(dst+3))

    def stamp(self, k):
        if self.stamps:
            self.a('%s s[98:99]\ns_waitcnt lgkmcnt(0)\ns_mov_b32 s%d, s98' % ('s_memtime' if 'cyc' in self.opt else 's_memrealtime', 80+k))

    def dump_stamps(self):
        if not self.stamps: return
        a = self.a
        a('s_memtime s[96:97]\ns_waitcnt lgkmcnt(0)\ns_sub_u32 s95, s96, s95')
        a('s_lshl_b32 s96, s2, 3\ns_add_u32 s96, s96, s%d\ns_lshl_b32 s96, s96, 6\ns_add_u32 s96, s96, 0x%x' % (WAVE, STAMPS))
        self.stamp(14)
        if 'probe' in self.opt:
            self.nprobe = getattr(self, 'nprobe', 0) + 1
            k = int(self.val['probe']); L = 'L_pr%d' % self.nprobe
            a('s_cmp_eq_u32 s2, %s\ns_cbranch_scc0 %s_x\ns_cmp_eq_u32 s%d, %s\ns_cbranch_scc0 %s_x' % (self.val.get('pwg', '0'), L, WAVE, self.val.get('pwave', '4'), L))
            a('s_sub_u32 s60, s%d, s80\ns_mul_i32 s60, s60, 10\ns_add_u32 s60, s60, 6000' % (80+k))
            a.label(L)
            a('s_memrealtime s[98:99]\ns_waitcnt lgkmcnt(0)\ns_sub_u32 s61, s98, s80\ns_cmp_lt_u32 s61, s60\ns_cbranch_scc1 %s' % L)
            a.label(L + '_x')
        for k in range(16): a('v_mov_b32 v%d, s%d' % (100+k, 80+k))
        a('v_mov_b32 v99, s96')
        a('s_mov_b64 exec, 1')
        for k in range(4): a('buffer_store_dwordx4 v[%d:%d], v99, %s, 0 offen offset:%d' % (100+4*k, 103+4*k, s(S_WS,4), 16*k))
        a('s_waitcnt vmcnt(0)')

    def nonce(self):
        self.a('s_waitcnt lgkmcnt(0)\ns_add_u32 s12, s12, 1\ns_add_u32 s13, s13, 1')

    def spin(self, lbl, va, vd, soff, sleep, first_done=False):
        a = self.a
        a('s_mov_b32 s53, 0')
        if first_done: a('s_branch %s_c' % lbl)
        a.label(lbl)
        a('buffer_load_dwordx2 %s, v%d, %s, %s offen sc1' % (v(vd,2), va, s(S_WS,4), soff))
        a('s_add_u32 s53, s53, 1\ns_cmp_gt_u32 s53, 0x%x\ns_cbranch_scc1 %s_x' % (SPIN_MAX, lbl))
        a('s_waitcnt vmcnt(0)')
        a.label(lbl + '_c')
        a('v_cmp_ne_u64 vcc, s[12:13], %s' % v(vd,2))
        a('s_cbranch_vccz %s_x\ns_sleep %d\ns_branch %s' % (lbl, sleep, lbl))
        a.label(lbl + '_x')

    def spin3(self, lbl, va, vd, first_done=False):
        a = self.a
        a('s_mov_b32 s53, 0')
        if first_done: a('s_branch %s_c' % lbl)
        a.label(lbl)
        for k in range(3): a('buffer_load_dwordx2 %s, v%d, %s, 0 offen sc1' % (v(vd+2*k,2), va[k], s(S_WS,4)))
        a('s_add_u32 s53, s53, 1\ns_cmp_gt_u32 s53, 0x%x\ns_cbranch_scc1 %s_x' % (SPIN_MAX, lbl))
        a('s_waitcnt vmcnt(0)')
        a.label(lbl + '_c')
        a('v_cmp_ne_u64 vcc, s[12:13], %s\nv_cmp_ne_u64 s[68:69], s[12:13], %s\ns_nop 0\ns_or_b64 vcc, vcc, s[68:69]' % (v(vd,2), v(vd+2,2)))
        a('v_cmp_ne_u64 s[68:69], s[12:13], %s\ns_nop 0\ns_or_b64 vcc, vcc, s[68:69]' % v(vd+4,2))
        a('s_cbranch_vccz %s_x\ns_sleep 8\ns_branch %s' % (lbl, lbl))
        a.label(lbl + '_x')

    def setflag(self, va, vd, mask='1'):
        a = self.a
        a('v_mov_b32 v%d, s12\nv_mov_b32 v%d, s13' % (vd, vd+1))
        a('s_mov_b64 exec, %s' % mask)
        a('buffer_store_dwordx2 %s, v%d, %s, 0 offen sc1' % (v(vd,2), va, s(S_WS,4)))
        a('s_mov_b64 exec, -1')

    def prologue(self):
        a = self.a
        if 'early0' in self.opt: a('s_memrealtime s[100:101]')
        a('s_load_dwordx2 s[28:29], s[0:1], 0')
        a('s_load_dwordx4 s[36:39], s[0:1], 48')
        a('s_load_dwordx8 s[40:47], s[0:1], 64')
        a('s_load_dwordx4 s[32:35], s[0:1], 24')
        a('s_cmp_ge_u32 s2, 256\ns_cbranch_scc1 L_end')
        a('v_lshrrev_b32 v1, 6, v0\nv_and_b32 v0, 63, v0')
        a('v_readfirstlane_b32 s%d, v1' % WAVE)
        a('s_and_b32 s%d, s2, 7\ns_lshr_b32 s%d, s2, 3' % (XCD, IDX))
        if self.stamps:
            for k in range(16): a('s_mov_b32 s%d, 0' % (80+k))
            a('s_memtime s[96:97]\ns_waitcnt lgkmcnt(0)\ns_mov_b32 s95, s96')
        a('s_cmp_eq_u32 s%d, 7\ns_cbranch_scc0 L_nopf' % WAVE)
        a('s_getpc_b64 s[54:55]')
        a.label('L_pc')
        a('s_mul_i32 s53, s%d, %d' % (IDX, 14*128))
        a('v_min_u32 v2, 13, v0\nv_lshl_add_u32 v2, v2, 7, s53\nv_min_u32 v2, L_end-L_pc, v2')
        a('global_load_dword v1, v2, s[54:55]')
        a.label('L_nopf')
        a('s_mul_i32 s54, s%d, 43\ns_lshr_b32 s54, s54, 7' % IDX)
        a('s_mul_i32 s55, s54, 3\ns_sub_u32 s55, s%d, s55' % IDX)
        a('s_and_b32 s56, s%d, 1\ns_lshl_b32 s56, s56, 3\ns_add_u32 s54, s54, s56' % XCD)
        a('s_lshr_b32 s56, s%d, 1\ns_mul_i32 s56, s56, 3\ns_add_u32 s55, s55, s56' % XCD)
        if 'map48' in self.opt:
            a('s_lshr_b32 s%d, s%d, 3\ns_lshl_b32 s53, s%d, 2\ns_add_u32 s%d, s%d, s53\ns_and_b32 s%d, s%d, 7' % (T1, IDX, XCD, T1, T1, CS, IDX))
        else:
            a('s_lshr_b32 s%d, s%d, 2\ns_lshr_b32 s53, s%d, 1\ns_lshl_b32 s53, s53, 3\ns_add_u32 s%d, s%d, s53' % (T1, IDX, XCD, T1, T1))
            a('s_and_b32 s%d, s%d, 3\ns_and_b32 s53, s%d, 1\ns_lshl_b32 s53, s53, 2\ns_add_u32 s%d, s%d, s53' % (CS, IDX, XCD, CS, CS))
        a('s_mov_b32 s%d, 0x%x\ns_mov_b32 s%d, 0x20000' % (S_X+2, 2048*640*2, S_X+3))
        a('s_mov_b32 s%d, 0x%x\ns_mov_b32 s%d, 0x20000' % (S_WS+2, WS_SIZE, S_WS+3))
        a('s_mov_b32 s%d, 0x%x\ns_mov_b32 s%d, 0x20000' % (S_OUT+2, 2048*640*2, S_OUT+3))
        a('s_mov_b32 s%d, 0x20000' % (S_A+3))
        a('s_waitcnt lgkmcnt(0)')
        self.stamp(0)
        if 'early0' in self.opt: a('s_mov_b32 s93, s80\ns_mov_b32 s80, s100')
        a('s_load_dwordx2 s[12:13], s[46:47], 0x%x' % EPOCH)
        for d, p in ((S_X, P_X), (S_WS, P_WS), (S_OUT, P_OUT)):
            a('s_mov_b32 s%d, s%d\ns_mov_b32 s%d, s%d' % (d, p, d+1, p+1))
        a('s_cmp_ge_u32 s%d, 24\ns_cbranch_scc1 L_notffn' % IDX)
        a('s_cmp_lt_u32 s%d, 2\ns_cbranch_scc1 L_ffn_wl' % WAVE)
        a('s_cmp_lt_u32 s%d, 4\ns_cbranch_scc1 L_ffn_xl' % WAVE)
        a('s_branch L_ffn_cons')
        a.label('L_notffn')
        if 'ffnonly' in self.opt: a('s_endpgm')
        a('s_and_b32 s54, s%d, 3\ns_lshr_b32 s55, s%d, 2\ns_lshl_b32 s55, s55, 3\ns_add_u32 s54, s54, s55' % (IDX, XCD))
        a('s_and_b32 s55, s%d, 1\ns_lshl_b32 s55, s55, 2\ns_add_u32 s54, s54, s55\ns_bfe_u32 s55, s%d, 0x10001' % (XCD, XCD))
        a('s_bfe_u32 s%d, s%d, 0x10002\ns_lshl_b32 s%d, s54, 1\ns_add_u32 s%d, s%d, s55\ns_lshl_b32 s%d, s%d, 1\ns_add_u32 s%d, s%d, s%d' % (HH, IDX, DID, DID, DID, DID, DID, DID, DID, HH))
        if 'pf' in self.opt: self.prefetch()
        a('s_cmp_lt_u32 s%d, 4\ns_cbranch_scc1 L_dft_ld' % WAVE)
        a('s_branch L_dft_cons')

    WSLOT, NWS = 16384, 6
    XB, XSLOT, NXS = 98304, 16384, 3
    MISC = 147456

    def wvoff(self, dst0, rowbytes, tmp):
        a = self.a
        t = tmp
        a('v_lshrrev_b32 v%d, 3, v0' % t)
        a('v_bfe_u32 v%d, v0, 4, 1' % (t+1))
        a('v_bfe_u32 v%d, v0, 1, 2' % (t+2))
        a('v_xor_b32 v%d, v%d, v%d' % (t+2, t+2, t+1))
        a('v_and_b32 v%d, 1, v0' % (t+1))
        a('v_lshlrev_b32 v%d, 4, v%d' % (t+1, t+1))
        a('v_lshl_add_u32 v%d, v%d, 5, v%d' % (t+2, t+2, t+1))
        a('v_mul_u32_u24 v%d, %d, v%d' % (t, rowbytes, t))
        a('v_add_u32 v%d, v%d, v%d' % (dst0, t, t+2))
        a('v_xor_b32 v%d, 64, v%d' % (t+2, t+2))
        a('v_add_u32 v%d, v%d, v%d' % (dst0+1, t, t+2))
        a('v_add_u32 v%d, %d, v%d' % (dst0+1, 8*rowbytes, dst0+1))
        a('v_add_u32 v%d, %d, v%d' % (dst0+2, 16*rowbytes, dst0))
        a('v_add_u32 v%d, %d, v%d' % (dst0+3, 16*rowbytes, dst0+1))

    def phase(self, dst):
        a = self.a
        a('s_mul_i32 s64, s%d, 43\ns_lshr_b32 s64, s64, 7\ns_mul_i32 s65, s64, 3\ns_sub_u32 s65, s%d, s65' % (IDX, IDX))
        if 'ph0' in self.opt: a('s_mov_b32 s%d, 0' % dst)
        elif 'ph2' not in self.opt and 'ph4' not in self.opt:
            a('s_lshr_b32 s%d, s64, 2\ns_add_u32 s%d, s%d, s64' % (dst, dst, dst))
            a('s_mul_i32 s53, s65, 7\ns_lshr_b32 s53, s53, 1\ns_add_u32 s%d, s%d, s53' % (dst, dst))
            a('s_cmp_ge_u32 s%d, 10\ns_cselect_b32 s53, 10, 0\ns_sub_u32 s%d, s%d, s53' % (dst, dst, dst))
        elif 'ph4' in self.opt:
            a('s_and_b32 s%d, s64, 3\ns_mul_i32 s%d, s%d, 5\ns_lshr_b32 s%d, s%d, 1' % (dst, dst, dst, dst, dst))
        else: a('s_and_b32 s%d, s64, 1\ns_mul_i32 s%d, s%d, 5' % (dst, dst, dst))

    def prefetch(self):
        a = self.a
        a('s_sub_u32 s56, s%d, 24' % IDX)
        a('s_bitcmp0_b32 s%d, 0' % XCD)
        a('s_cselect_b32 s24, s%d, s%d\ns_cselect_b32 s25, s%d, s%d\ns_mov_b32 s26, 0x%x\ns_mov_b32 s27, 0x20000' % (P_WG, P_WU, P_WG+1, P_WU+1, 640*1536*2))
        a('v_min_u32 v1, 47, v0\nv_mul_u32_u24 v2, 43, v1\nv_lshrrev_b32 v2, 8, v2')
        a('v_mul_u32_u24 v3, 6, v2\nv_sub_u32 v1, v1, v3\nv_lshlrev_b32 v1, 7, v1')
        a('v_lshrrev_b32 v3, 2, v2\nv_mul_u32_u24 v3, 320, v3\nv_and_b32 v2, 3, v2\nv_add_u32 v2, v2, v3\nv_mul_u32_u24 v2, 3072, v2\nv_add_u32 v2, v2, v1')
        a('s_lshr_b32 s57, s%d, 1\ns_mul_i32 s58, s57, 768\ns_mul_i32 s59, s56, 12288\ns_add_u32 s58, s58, s59' % XCD)
        a('s_and_b32 s59, s%d, 1\ns_lshl_b32 s59, s59, 4\ns_lshl_b32 s57, s57, 9\ns_add_u32 s57, s57, s59\ns_lshl_b32 s59, s56, 5\ns_add_u32 s57, s57, s59\ns_mul_i32 s57, s57, 1280' % XCD)
        a('v_and_b32 v3, 15, v0\nv_mul_u32_u24 v3, 1280, v3\nv_bfe_u32 v4, v0, 1, 1\nv_mul_u32_u24 v4, 5, v4')
        S0 = int(self.val.get('pf0', 1))
        def slot(sreg):
            a('s_mul_i32 s60, s%d, %d\ns_add_u32 s60, s60, s58' % (sreg, 32*3072))
            a('buffer_load_dword v255, v2, s[24:27], s60 offen')
            if 'pfw' in self.opt: return
            a('s_lshr_b32 s60, s%d, 1\nv_add_u32 v5, s60, v4\nv_lshl_add_u32 v5, v5, 7, v3\ns_and_b32 s60, s%d, 1\ns_mul_i32 s60, s60, %d\ns_add_u32 s60, s60, s57' % (sreg, sreg, 256*1280))
            a('s_mov_b64 exec, 0xffff\nbuffer_load_dword v255, v5, %s, s60 offen\ns_mov_b64 exec, -1' % s(S_X,4))
        a('s_add_u32 s61, s%d, %d' % (WAVE, S0))
        slot(61)
        a('s_add_u32 s61, s61, 8\ns_cmp_lt_u32 s61, 10\ns_cbranch_scc0 L_pf_x')
        slot(61)
        a('s_branch L_pf_e')
        a.label('L_pf_x')
        a('s_cmp_lt_u32 s61, %d\ns_cbranch_scc0 L_pf_e' % (0 if 'pfw' in self.opt else 13))
        a('s_sub_u32 s61, s61, 10\ns_lshl_b32 s61, s61, 2\nv_lshrrev_b32 v5, 4, v0\nv_add_u32 v5, s61, v5\nv_min_u32 v5, 9, v5')
        a('v_and_b32 v6, 1, v5\nv_mul_u32_u24 v6, %d, v6\nv_add_u32 v3, v3, v6\nv_lshrrev_b32 v5, 1, v5\nv_sub_u32 v5, v5, v4\nv_add_u32 v5, 5, v5\nv_lshl_add_u32 v5, v5, 7, v3' % (256*1280))
        a('buffer_load_dword v255, v5, %s, s57 offen' % s(S_X,4))
        a.label('L_pf_e')

    def p2_coords(self):
        a = self.a
        if 'rho' not in self.opt: a('s_mov_b32 s76, 0')
        elif 'rho2' in self.opt:
            a('s_and_b32 s76, s%d, 7\ns_and_b32 s53, s%d, 3\ns_lshl_b32 s53, s53, 1\ns_add_u32 s76, s76, s53\ns_and_b32 s76, s76, 7\ns_mul_i32 s76, s76, 3' % ((CS, T1) if 'map48' in self.opt else (T1, CS)))
        elif 'map48' in self.opt: a('s_and_b32 s76, s%d, 3\ns_mul_i32 s76, s76, 6' % T1)
        else: a('s_and_b32 s76, s%d, 7\ns_mul_i32 s76, s76, 3' % T1)
        a('s_mul_i32 s77, s%d, 245760\ns_mul_i32 s53, s76, 5120\ns_add_u32 s77, s77, s53\ns_add_u32 s77, s77, 0x%x\ns_sub_u32 s75, s77, 122880\ns_sub_u32 s76, 24, s76' % (CS, WDF))

    def wd_dma(self, vm, frags, voff):
        a = self.a; last = None
        for f in frags:
            half, r = divmod(f, 70); j, n = divmod(r, 5)
            if j != last: a('s_cmp_le_u32 s76, %d\ns_cselect_b32 s74, s75, s77' % j); last = j
            a('s_add_u32 m0, %d, 0\ns_add_u32 s78, s74, %d' % (f*1024, half*122880 + j*5120 + n*1024))
            vm.op('buffer_load_dwordx4 v%d, %s, s78 offen %s lds' % (voff, s(S_WS,4), self.bf), 'wd')

    OV = 128
    def ov_setup(self):
        a = self.a
        a('s_lshr_b32 s53, s%d, 1\ns_mul_i32 s72, s53, 122880\ns_and_b32 s53, s%d, 1\ns_sub_i32 s71, s76, s53\ns_mul_i32 s53, s53, 5120\ns_add_u32 s72, s72, s53' % (WAVE, WAVE))
        a('s_add_u32 s73, s72, s75\ns_add_u32 s72, s72, s77')
    def ov_load(self, vm, i, voff):
        a = self.a
        a('s_cmp_le_i32 s71, %d\ns_cselect_b32 s74, s73, s72\ns_add_u32 s74, s74, %d\ns_add_u32 s78, s74, 4096' % (14+2*i, (14+2*i)*5120))
        for n in range(5):
            vm.op('buffer_load_dwordx4 %s, v%d, %s, %s offen offset:%d %s' % (v(self.OV+20*i+4*n,4), voff, s(S_WS,4), 's74' if n < 4 else 's78', (n&3)*1024, self.bf), 'ov')

    def ffn_wloader(self):
        a = self.a; vm = VM(a)
        a.label('L_ffn_wl')
        a('s_cmp_eq_u32 s%d, 0' % WAVE)
        a('s_cselect_b32 s%d, s%d, s%d\ns_cselect_b32 s%d, s%d, s%d' % (S_A, P_WG, P_WU, S_A+1, P_WG+1, P_WU+1))
        a('s_mov_b32 s%d, 0x%x' % (S_A+2, 640*1536*2))
        self.wvoff(4, 3072, 8)
        self.phase(58)
        a('s_lshl_b32 s59, s55, 8\ns_mul_i32 s56, s58, %d\ns_add_u32 s56, s56, s59\ns_add_u32 s59, s59, %d' % (64*3072, 640*3072))
        a('s_lshl_b32 s57, s%d, 13' % WAVE)
        def issue(n):
            for b in range(2):
                for j in range(4):
                    a('s_add_u32 m0, s57, %d' % ((n % self.NWS)*self.WSLOT + b*4096 + j*1024 - b*128))
                    a('s_nop 0')
                    if 'now' not in self.opt: vm.op('buffer_load_dwordx4 v%d, %s, s56 offen offset:%d %s lds' % (4+j, s(S_A,4), b*128, 'nt' if 'ntw' in self.opt else ''), n)
            a('s_add_u32 s56, s56, %d' % (32*3072))
            if n & 1: a('s_cmp_eq_u32 s56, s59\ns_cselect_b32 s60, %d, 0\ns_sub_u32 s56, s56, s60' % (640*3072))
        L0 = int(self.val.get('wl', 2)); L1 = int(self.val.get('wl1', 4)); R0 = int(self.val.get('wr', 6))
        LP = int(self.val.get('wpre', L0))
        sched = {-1: list(range(LP))}; front = LP
        for m in range(20):
            lead = L0 if m < R0 else min(L1, L0 + (m - R0)//2 + 1)
            sched[m] = []
            while front < 20 and front <= m + lead and front <= m + 5: sched[m].append(front); front += 1
        self.stamp(12)
        IB = int(self.val.get('ib', 1))
        for k_, n in enumerate(sched[-1]):
            issue(n)
            if k_ + 1 == IB: a('s_barrier')
        self.stamp(13)
        self.nonce()
        self.p2_coords(); self.ov_setup()
        a('v_lshlrev_b32 v2, 4, v0')
        self.p2_prep()
        WI = int(self.val.get('wi', 0)); WP = int(self.val.get('wp', 3)); FB = int(self.val.get('fb', 7))
        for m in range(15):
            vm.wait(m)
            if m == 0: self.stamp(1)
            a('s_barrier')
            for n in sched.get(m, []): issue(n)
            if m == WI and 'nowd' not in self.opt:
                for i in range(2):
                    for j in range(4):
                        a('s_add_u32 m0, s67, %d\ns_nop 0' % (i*8192 + j*1024))
                        vm.op('buffer_load_dwordx4 v%d, s[24:27], s%d offen nt lds' % (12+j, 68+i), 'wu')
            if m == WP and 'nowd' not in self.opt:
                vm.wait('wu')
                for i in range(2):
                    for ct in range(4):
                        for q in range(2): a('ds_read_b64_tr_b16 %s, v%d offset:%d' % (v(24+16*i+4*ct+2*q,2), 16+ct, i*8192 + q*2048))
                a('s_waitcnt lgkmcnt(0)')
                for k in range(8): vm.op('buffer_store_dwordx4 %s, v2, %s, s%d offen sc1' % (v(24+4*k,4), s(S_WS,4), 28+k), 'wo')
            for i in self.ov_sched(m): self.ov_load(vm, i, 2)
        a('s_cmp_eq_u32 s%d, 0\ns_cbranch_scc0 L_wl_t1' % WAVE)
        q0 = list(vm.q)
        for w in range(2):
            vm.q = list(q0)
            if w: a.label('L_wl_t1')
            for m in range(15, 21):
                if m < 20: vm.wait(m)
                a('s_barrier')
                for n in sched.get(m, []): issue(n)
                sl = (m-1) % 6
                self.wd_dma(vm, range(16*sl + 8*w, 16*sl + 8*w + 8), 2)
                for i in self.ov_sched(m): self.ov_load(vm, i, 2)
            self.stamp(2)
            a('s_branch L_p2_help')

    def ov_sched(self, m):
        assert int(self.val.get('pw', 12)) + 3 <= {'0':15,'1':15,'2':15,'5':14,'3':13,'4':13,'6':10,'7':10,'8':9}[self.val.get('ove', '1')]
        return {'0': {20: [0,1,2,3,4]}, '1': {19: [0], 20: [1,2,3,4]}, '2': {17: [0], 19: [1], 20: [2,3,4]}, '3': {13: [0], 14: [1], 17: [2], 19: [3], 20: [4]}, '4': {13: [0], 14: [1], 17: [2], 18: [3], 19: [4]}, '5': {14: [0], 17: [1], 19: [2], 20: [3,4]}, '6': {10: [0], 11: [1], 12: [2], 13: [3], 14: [4]}, '7': {10: [0], 12: [1], 14: [2], 17: [3], 19: [4]}, '8': {9: [0], 11: [1], 13: [2], 17: [3], 19: [4]}}[self.val.get('ove', '1')].get(m, [])

    def tw_addr(self, dst):
        a = self.a
        a('v_lshrrev_b32 v%d, 4, v0\nv_lshlrev_b32 v%d, 5, v%d\nv_bfe_u32 v1, v0, 1, 3\nv_add_u32 v%d, v%d, v1' % (dst, dst, dst, dst, dst))
        a('s_lshr_b32 s53, s64, 1\ns_lshl_b32 s53, s53, 3\nv_add_u32 v%d, s53, v%d\nv_mul_u32_u24 v%d, 3072, v%d' % (dst, dst, dst, dst))
        a('v_and_b32 v1, 1, v0\nv_lshl_add_u32 v%d, v1, 7, v%d' % (dst, dst))
    def tx_addr(self, dst, half):
        a = self.a
        a('v_and_b32 v%d, 15, v0\nv_lshlrev_b32 v%d, 5, v%d\nv_lshrrev_b32 v1, 4, v0\nv_lshl_add_u32 v%d, v1, 9, v%d' % (dst, dst, dst, dst, dst))
        a('s_lshl_b32 s53, s54, 1\ns_add_u32 s53, s53, s%d\nv_add_u32 v%d, s53, v%d\nv_mul_u32_u24 v%d, 1280, v%d' % (half, dst, dst, dst, dst))
    def tx_off(self, dst, ph, r):
        a = self.a
        a('s_add_u32 s%d, s%d, s65\ns_add_u32 s%d, s%d, %d\ns_cmp_ge_u32 s%d, 10\ns_cselect_b32 s53, 10, 0\ns_sub_u32 s%d, s%d, s53\ns_lshl_b32 s%d, s%d, 7' % (dst, ph, dst, dst, 3*r, dst, dst, dst, dst, dst))
        if r == 3: a('s_cmp_eq_u32 s65, 0\ns_cselect_b32 s%d, s%d, 0x%x' % (dst, dst, OOB))

    def wtouch(self, unit_sgpr, nlanes, step0, dst):
        a = self.a
        a('s_bitcmp0_b32 s%d, 0' % XCD)
        a('s_cselect_b32 s24, s%d, s%d\ns_cselect_b32 s25, s%d, s%d\ns_mov_b32 s26, 0x%x\ns_mov_b32 s27, 0x20000' % (P_WG, P_WU, P_WG+1, P_WU+1, 640*1536*2))
        a('s_mul_i32 s53, s%d, %d' % (unit_sgpr, nlanes))
        a('v_min_u32 v1, %d, v0\nv_add_u32 v1, s53, v1\nv_mul_u32_u24 v%d, 10923, v1\nv_lshrrev_b32 v%d, 16, v%d' % (nlanes-1, dst-1, dst-1, dst-1))
        a('v_mul_u32_u24 v%d, 2304, v%d\nv_lshl_add_u32 v1, v1, 7, v%d' % (dst-1, dst-1, dst-1))
        a('s_lshr_b32 s53, s%d, 1\ns_mul_i32 s53, s53, 768\ns_add_u32 s53, s53, %d' % (XCD, step0*32*3072))
        r = 'buffer_load_dword v%d, v1, s[24:27], s53 offen %s' % (dst, 'nt' if 'tnt' in self.opt else '')
        if 'tboth' in self.opt:
            a(r)
            a('s_bitcmp0_b32 s%d, 0' % XCD)
            a('s_cselect_b32 s68, s%d, s%d\ns_cselect_b32 s69, s%d, s%d\ns_mov_b32 s70, 0x%x\ns_mov_b32 s71, 0x20000' % (P_WU, P_WG, P_WU+1, P_WG+1, 640*1536*2))
            r = r.replace('s[24:27]', 's[68:71]')
        return r

    def xtouch(self, unit_sgpr, rows, c0, c1, dst):
        a = self.a
        n = rows*(c1-c0); assert n <= 64
        mag = (2048 + rows - 1)//rows
        assert all((l*mag) >> 11 == l//rows for l in range(64))
        a('v_min_u32 v1, %d, v0\nv_mul_u32_u24 v%d, %d, v1\nv_lshrrev_b32 v%d, 11, v%d' % (n-1, dst, mag, dst, dst))
        a('v_mul_u32_u24 v%d, %d, v%d\nv_sub_u32 v1, v1, v%d\nv_mul_u32_u24 v1, 1280, v1\nv_lshl_add_u32 v1, v%d, 7, v1' % (dst-1, rows, dst, dst-1, dst))
        a('s_mul_i32 s53, s%d, %d' % (unit_sgpr, rows*1280))
        return 'buffer_load_dword v%d, v1, %s, s53 offen offset:%d' % (dst, s(S_X,4), 128*c0)

    def touch_spec(self, spec, unit_sgpr, nunits, dst):
        kind, rng = spec[0], spec[1:].split('-'); lo, hi = int(rng[0]), int(rng[1])
        if kind == 'W':
            nl = (hi-lo)*8; assert nl <= 64, spec
            return self.wtouch(IDX, nl, lo, dst)
        return self.xtouch(unit_sgpr, -(-2048//nunits), lo, hi, dst)

    def ffn_xloader(self):
        a = self.a; vm = VM(a)
        a.label('L_ffn_xl')
        a('s_sub_u32 s56, s%d, 2' % WAVE)
        a('v_lshrrev_b32 v2, 3, v0\nv_lshrrev_b32 v3, 4, v0')
        a('s_lshl_b32 s57, s56, 2')
        a('v_add_u32 v3, s57, v3\nv_and_b32 v12, 7, v0\nv_xor_b32 v3, v3, v12\nv_lshlrev_b32 v3, 4, v3')
        a('v_mul_u32_u24 v2, 40960, v2\nv_add_u32 v2, v2, v3')
        a('s_lshl_b32 s57, s56, 8\ns_lshl_b32 s58, s54, 1\ns_add_u32 s57, s57, s58\ns_mul_i32 s57, s57, 1280')
        a('v_add_u32 v4, s57, v2')
        for tt in range(1, 8):
            a('v_add_u32 v%d, %d, v4' % (4+tt, ((tt>>2) + 512*(tt&3))*1280))
        a('s_lshl_b32 s57, s56, 10')
        self.phase(58)
        a('s_lshl_b32 s58, s58, 7')
        def issue(c):
            for tt in range(8):
                a('s_add_u32 m0, s57, %d' % (self.XB + (c % self.NXS)*self.XSLOT + tt*2048))
                a('s_nop 0')
                if 'nox' not in self.opt: vm.op('buffer_load_dwordx4 v%d, %s, s58 offen %s lds' % (4+tt, s(S_X,4), 'nt' if 'ntx' in self.opt else ''), c)
            a('s_add_u32 s58, s58, 128\ns_cmp_eq_u32 s58, 1280\ns_cselect_b32 s58, 0, s58')
        a('s_lshr_b32 s59, s58, 7')
        self.stamp(12)
        issue(0)
        if int(self.val.get('ib', 1)): a('s_barrier')
        self.stamp(13)
        XP = int(self.val.get('xp', 1))
        if XP == 2: issue(1)
        self.p2_coords(); self.ov_setup()
        a('v_lshlrev_b32 v2, 4, v0')
        self.tw_addr(80); self.tx_addr(81, 56)
        a('s_cmp_eq_u32 s56, 0')
        a('s_cselect_b32 s%d, s%d, s%d\ns_cselect_b32 s%d, s%d, s%d\ns_mov_b32 s%d, 0x%x' % (S_A, P_WG, P_WU, S_A+1, P_WG+1, P_WU+1, S_A+2, 640*1536*2))
        a('s_mul_i32 s66, s59, %d\ns_lshl_b32 s67, s55, 8\ns_add_u32 s66, s66, s67' % (64*3072))
        TB = {}
        for spec in self.val.get('tp', '0').split('+'):
            if spec == '0': continue
            k, m = spec.split('@'); TB.setdefault(int(m), []).append(k)
        def touch(k):
            if k[0] == 'w':
                n0 = int(k[1:])
                a('s_add_u32 s67, s66, %d' % (n0*32*3072))
                if n0 == 8: a('v_and_b32 v1, 31, v0\nv_lshlrev_b32 v1, 2, v1\nds_bpermute_b32 v80, v1, v80\ns_waitcnt lgkmcnt(0)')
                vm.op('buffer_load_dword v255, v80, %s, s67 offen' % s(S_A,4), 't')
            else:
                self.tx_off(67, 59, int(k[1:]))
                vm.op('buffer_load_dword v255, v81, %s, s67 offen' % s(S_X,4), 't')
        self.p2_prep()
        self.nonce()
        a('s_cmp_eq_u32 s56, 0\ns_cbranch_scc0 L_ffn_xl3')
        q0 = list(vm.q)
        PW = int(self.val.get('pw', 12)); PS = int(self.val.get('ps', 15)); PH2 = 'ph2' in self.opt; NP = 2 if PH2 else 8; PC = int(self.val.get('pc', 15 if PH2 else 10)); FB = int(self.val.get('fb', 7))
        for role in (2, 3):
            vm.q = list(q0)
            if role == 2:
                if PH2:
                    a('v_lshrrev_b32 v12, 4, v0\nv_bfe_u32 v13, v0, 2, 2')
                    a('v_lshl_add_u32 v14, v12, 3, v13\nv_lshlrev_b32 v14, 7, v14')
                    a('v_and_b32 v13, 3, v0\nv_lshl_add_u32 v14, v13, 3, v14')
                    a('v_bfe_u32 v13, v0, 3, 1\nv_bfe_u32 v15, v0, 4, 1\nv_lshl_add_u32 v13, v15, 1, v13')
                    a('s_and_b32 s60, s54, 2\nv_xor_b32 v13, s60, v13\nv_lshl_add_u32 v14, v13, 5, v14')
                    a('s_lshr_b32 s60, s54, 2\ns_lshl_b32 s60, s60, 12\nv_add_u32 v16, s60, v14\nv_xor_b32 v17, 32, v16')
                    a('v_add_u32 v18, %d, v16\nv_add_u32 v19, %d, v17' % (3*self.WSLOT, 3*self.WSLOT))
                    for k in range(4): a('v_mov_b32 v%d, 0x3f803f80' % (20+k))
                    for k in range(8): a('v_mov_b32 v%d, 0' % (24+k))
                    a('s_and_b32 s61, s54, 1\ns_mul_i32 s61, s61, 24576\ns_lshr_b32 s62, s54, 3\ns_mul_i32 s62, s62, 12288\ns_add_u32 s61, s61, s62')
                    a('s_lshl_b32 s62, s55, 10\ns_add_u32 s61, s61, s62\ns_bfe_u32 s62, s54, 0x20001\ns_lshl_b32 s62, s62, 8\ns_add_u32 s61, s61, s62\ns_add_u32 s61, s61, 0x%x' % COLSUM)
                else:
                    a('v_lshrrev_b32 v12, 4, v0\nv_bfe_u32 v13, v0, 2, 2')
                    a('v_lshl_add_u32 v14, v12, 3, v13\nv_lshlrev_b32 v14, 7, v14')
                    a('v_and_b32 v13, 3, v0\nv_lshl_add_u32 v14, v13, 3, v14')
                    a('v_bfe_u32 v13, v0, 3, 1\nv_bfe_u32 v15, v0, 4, 1\nv_lshl_add_u32 v13, v15, 1, v13')
                    a('v_lshl_add_u32 v14, v13, 5, v14')
                    a('s_lshr_b32 s60, s54, 3\ns_lshl_b32 s60, s60, 13\nv_add_u32 v16, s60, v14')
                    for ct in range(1, 4): a('v_xor_b32 v%d, %d, v16' % (16+ct, 32*ct))
                    for k in range(4): a('v_mov_b32 v%d, 0x3f803f80' % (20+k))
                    for k in range(32): a('v_mov_b32 v%d, 0' % (88+k))
                    a('s_mul_i32 s61, s64, 24576\ns_lshr_b32 s62, s54, 3\ns_mul_i32 s62, s62, 12288\ns_add_u32 s61, s61, s62')
                    a('s_lshl_b32 s62, s55, 10\ns_add_u32 s61, s61, s62\ns_add_u32 s61, s61, 0x%x' % COLSUM)
                a('v_lshlrev_b32 v56, 5, v12\nv_and_b32 v13, 1, v0\nv_lshl_add_u32 v56, v13, 4, v56')
                a('s_lshl_b32 s62, s55, 4\ns_add_u32 s62, s62, s54\ns_lshl_b32 s62, s62, 7\ns_add_u32 s62, s62, 0x%x\nv_mov_b32 v57, s62' % (SFLAG))
                a('v_and_b32 v12, 15, v0\nv_lshlrev_b32 v12, 5, v12')
                a('v_lshrrev_b32 v13, 4, v0\nv_lshl_add_u32 v12, v13, 9, v12')
                a('s_lshl_b32 s60, s54, 1\nv_add_u32 v12, s60, v12')
                a('v_lshlrev_b32 v12, 4, v12\nv_add_u32 v12, 0x%x, v12' % STATS)
                a('v_lshlrev_b32 v13, 4, v0\nv_add_u32 v13, %d, v13' % self.MISC)
                a('v_lshlrev_b32 v14, 7, v0\nv_add_u32 v14, 0x%x, v14\nv_add_u32 v15, 8192, v14\nv_add_u32 v58, 16384, v14' % SFLAG)
                rl = ['buffer_load_dwordx4 v[64:67], v12, %s, 0 offen sc1' % s(S_WS,4), 'buffer_load_dwordx4 v[68:71], v12, %s, 0 offen offset:16 sc1' % s(S_WS,4)]
                tags = [66, 70]
            else:
                a.label('L_ffn_xl3')
                a('v_mov_b32 v12, %d\nv_mov_b32 v13, 0\nds_write_b32 v12, v13' % (self.MISC + 3072))
                a('v_lshrrev_b32 v13, 5, v0\nv_mul_u32_u24 v13, 12288, v13')
                a('v_and_b32 v12, 31, v0\nv_lshl_add_u32 v12, v12, 5, v13')
                a('s_lshl_b32 s60, s55, 10\ns_add_u32 s60, s60, 0x%x\nv_add_u32 v12, s60, v12' % COLSUM)
                a('v_lshlrev_b32 v13, 4, v0\nv_add_u32 v13, %d, v13' % (self.MISC+2048))
                for k in range(1, 8): a('s_mov_b32 s%d, %d' % (27+k, 24576*k))
                rl = ['buffer_load_dwordx4 %s, v12, %s, %s offen offset:%d sc1' % (v(16+8*p+4*h,4), s(S_WS,4), 's%d' % (27+p) if p else '0', 16*h) for p in range(NP) for h in range(2)]
                tags = [18+4*k for k in range(2*NP)]
            for m in range(21):
                if m % 2 == 0 and m < 20: vm.wait(m//2)
                if m == 20: a('s_waitcnt lgkmcnt(0)')
                a('s_barrier')
                if role == 2:
                    if m == PW + 2:
                        vm.wait('pw')
                        if 'nospin' not in self.opt: self.spin3('L_xl_sw', (14,15,58), 72, True)
                    if m == PW:
                        for k in range(3): vm.op('buffer_load_dwordx2 %s, v%d, %s, 0 offen sc1' % (v(72+2*k,2), (14,15,58)[k], s(S_WS,4)), 'pw')
                    if m == FB:
                        self.setflag(57, 60); vm.q.append('fl')
                    if m == 4 and not PH2:
                        a('v_and_b32 v1, 1, v0\nv_cmp_eq_u32 vcc, 1, v1\ns_nop 1')
                        for ct in range(8):
                            b = 88+4*ct
                            a('v_cndmask_b32 v%d, v%d, v%d, vcc\nv_cndmask_b32 v%d, v%d, v%d, vcc\nv_mov_b32 v%d, s12\nv_mov_b32 v%d, s13' % (b, b, b+2, b+1, b+1, b+3, b+2, b+3))
                        a('s_mov_b32 exec_lo, 0x00030003\ns_mov_b32 exec_hi, 0x00030003')
                        for ct in range(8): vm.op('buffer_store_dwordx4 %s, v56, %s, s61 offen offset:%d sc1' % (v(88+4*ct,4), s(S_WS,4), 128*ct), 'cs')
                        a('s_mov_b64 exec, -1')
                    if m == 10 and PH2:
                        a('v_and_b32 v1, 1, v0\nv_cmp_eq_u32 vcc, 1, v1\nv_mov_b32 v34, s12\nv_mov_b32 v35, s13\nv_mov_b32 v38, s12\nv_mov_b32 v39, s13')
                        for ct in range(2): a('v_cndmask_b32 v%d, v%d, v%d, vcc\nv_cndmask_b32 v%d, v%d, v%d, vcc' % (32+4*ct, 24+4*ct, 26+4*ct, 33+4*ct, 25+4*ct, 27+4*ct))
                        a('s_mov_b32 exec_lo, 0x00030003\ns_mov_b32 exec_hi, 0x00030003')
                        for ct in range(2): vm.op('buffer_store_dwordx4 %s, v56, %s, s61 offen offset:%d sc1' % (v(32+4*ct,4), s(S_WS,4), 128*ct), 'cs')
                        a('s_mov_b64 exec, -1')
                if m == (PS if role == 2 else PC):
                    for l in rl: vm.op(l, 'st')
                if m == (PS if role == 2 else PC) + 2:
                    vm.wait('st')
                    a('s_mov_b32 s53, 0')
                    a.label('L_xl_rs%d' % role)
                    a('v_cmp_ne_u64 vcc, s[12:13], %s' % v(tags[0],2))
                    for t in tags[1:]: a('v_cmp_ne_u64 s[68:69], s[12:13], %s\ns_nop 0\ns_or_b64 vcc, vcc, s[68:69]' % v(t,2))
                    a('s_cbranch_vccz L_xl_rx%d\ns_add_u32 s53, s53, 1\ns_cmp_gt_u32 s53, 0x%x\ns_cbranch_scc1 L_xl_rx%d\ns_sleep 2' % (role, 0 if 'nospin' in self.opt else SPIN_MAX, role))
                    for l in rl: a(l)
                    a('s_waitcnt vmcnt(0)\ns_branch L_xl_rs%d' % role)
                    a.label('L_xl_rx%d' % role)
                    if role == 2:
                        for b in (64, 68):
                            a('v_rsq_f32 v%d, v%d\nv_mov_b32 v%d, v%d\nv_mul_f32 v%d, 0xbfb8aa3b, v%d' % (b+3, b+1, b+2, b+1, b+1, b+3))
                        a('ds_write_b128 v13, v[64:67]\nds_write_b128 v13, v[68:71] offset:1024')
                    else:
                        for w_ in ((8,) if PH2 else (32, 16, 8)):
                            for k in range(0, w_, 4): a('v_add_f32 v%d, v%d, v%d\nv_add_f32 v%d, v%d, v%d' % (16+k, 16+k, 16+w_+k, 17+k, 17+k, 17+w_+k))
                        a('v_mov_b32 v18, v20\nv_mov_b32 v19, v21')
                        a('ds_write_b128 v13, v[16:19]')
                for c in range(XP, 10):
                    when = max(0, 2*c - 2 - int(self.val.get('xl%d' % role, 1 if role == 2 else 0)))
                    if c >= int(self.val.get('xr', 4)): when = max(0, 2*c - (4 if role == 2 else 3))
                    if when == m: issue(c)
                for k in TB.get(m, []): touch(k)
                if role == 2 and m < 4 and not PH2:
                    if m >= 2: a('s_and_b32 s60, s64, 3\ns_cmp_eq_u32 s60, 3\ns_cbranch_scc0 L_cs_sk%d' % m)
                    for b in range(2):
                        for ct in range(4):
                            for q in range(2):
                                a('ds_read_b64_tr_b16 %s, v%d offset:%d' % (v(24+16*b+4*ct+2*q,2), 16+ct, m*self.WSLOT + b*4096 + q*512))
                        a('s_waitcnt lgkmcnt(0)')
                        for ct in range(4): a('v_mfma_f32_16x16x32_bf16 %s, %s, v[20:23], %s' % (v(88+16*b+4*ct,4), v(24+16*b+4*ct,4), v(88+16*b+4*ct,4)))
                    if m >= 2: a.label('L_cs_sk%d' % m)
                    if m == 3: a.nop(6)
                if role == 2 and m < 10 and PH2:
                    sl = m % self.NWS
                    for ct in range(2):
                        for q in range(2):
                            a('ds_read_b64_tr_b16 %s, v%d offset:%d' % (v(40+4*ct+2*q,2), 16+ct+2*(sl//3), (sl%3)*self.WSLOT + q*512))
                    a('s_waitcnt lgkmcnt(0)')
                    for ct in range(2): a('v_mfma_f32_16x16x32_bf16 %s, %s, v[20:23], %s' % (v(24+4*ct,4), v(40+4*ct,4), v(24+4*ct,4)))
                    if m == 9: a.nop(6)
                if m in (16, 18, 20):
                    f0 = {16: 112, 18: 128, 20: 96}[m]; n = {16: 8, 18: 6, 20: 8}[m]
                    self.wd_dma(vm, range(f0 + (role-2)*n, f0 + (role-1)*n), 2)
                for i in self.ov_sched(m): self.ov_load(vm, i, 2)
            self.stamp(2)
            a('s_branch L_p2_help')

    def ffn_consumer(self):
        a = self.a
        ACC, FR = 8, 136
        AW = [2, 3, 232, 233]
        AX = [4, 5]
        def acc(tt, mat, c2): return ACC + ((tt*2 + mat)*2 + c2)*4
        def xf(st, tt): return FR + st*48 + tt*4
        def wf(st, mat, c2): return FR + st*48 + 32 + (mat*2 + c2)*4
        a.label('L_ffn_cons')
        a('s_sub_u32 s56, s%d, 4' % WAVE)
        a('s_mul_i32 s57, s%d, 24\ns_add_u32 s57, s57, s%d\ns_and_b32 s58, s57, 1\ns_add_u32 s58, s58, 2\n%ss_cmp_lt_u32 s56, s58\ns_cselect_b32 s79, 1, 0\ns_cbranch_scc0 L_fc_nu' % (XCD, IDX, 's_mov_b32 s58, 0\n' if 'skipwd' in self.opt else ''))
        a('s_mul_i32 s57, s57, 5\ns_lshr_b32 s57, s57, 1\ns_add_u32 s57, s57, s56')
        a('s_mul_i32 s70, s57, 52429\ns_lshr_b32 s70, s70, 19\ns_mul_i32 s53, s70, 10\ns_sub_u32 s71, s57, s53')
        a('s_mul_i32 s68, s70, %d\ns_lshl_b32 s53, s71, 7\ns_add_u32 s68, s68, s53' % (32*1280))
        a('s_mov_b32 s72, s%d\ns_mov_b32 s73, s%d\ns_mov_b32 s74, 0x%x\ns_mov_b32 s75, 0x20000' % (P_WD, P_WD+1, 1536*640*2))
        self.wvoff(8, 1280, 12)
        a('s_lshl_b32 s67, s56, 12\ns_add_u32 s67, s67, %d' % (self.MISC + 4096))
        a.label('L_fc_nu')
        if int(self.val.get('ib', 1)): a('s_barrier')
        a('s_cmp_eq_u32 s79, 0\ns_cbranch_scc1 L_fc_nu2')
        for j in range(4):
            a('s_add_u32 m0, s67, %d\ns_nop 0' % (j*1024))
            a('buffer_load_dwordx4 v%d, s[72:75], s68 offen nt lds' % (8+j))
        a.label('L_fc_nu2')
        def ctouch():
            a('s_cmp_lt_u32 s58, 320\ns_cbranch_scc0 L_ct_w%d\ns_lshl_b32 s58, s58, 13\nv_lshlrev_b32 v1, 7, v0' % self.nct)
            a('buffer_load_dword v255, v1, %s, s58 offen\ns_branch L_ct_e%d' % (s(S_X,4), self.nct))
            a.label('L_ct_w%d' % self.nct)
            a('s_sub_u32 s58, s58, 320\ns_cmp_lt_u32 s58, 240')
            a('s_cselect_b32 s24, s%d, s%d\ns_cselect_b32 s25, s%d, s%d\ns_cselect_b32 s53, 0, 240\ns_mov_b32 s26, 0x%x\ns_mov_b32 s27, 0x20000' % (P_WG, P_WU, P_WG+1, P_WU+1, 640*1536*2))
            a('s_sub_u32 s58, s58, s53\ns_lshl_b32 s58, s58, 13\nv_lshlrev_b32 v1, 7, v0\nbuffer_load_dword v255, v1, s[24:27], s58 offen')
            a.label('L_ct_e%d' % self.nct); self.nct += 1
        self.nct = 0
        def touches():
            if 'ct' in self.opt:
                a('s_mul_i32 s58, s%d, 24\ns_add_u32 s58, s58, s%d\ns_lshl_b32 s58, s58, 2\ns_add_u32 s58, s58, s56' % (XCD, IDX))
                if 'ctm' in self.opt: a('s_mul_i32 s58, s58, 25\ns_lshr_b32 s58, s58, 0\ns_mul_hi_u32 s53, s58, 0x55555556\ns_nop 0')
                ctouch(); return
            if 'ft' in self.opt:
                for k, spec in enumerate(self.val.get('ft', 'W2-6+W12-16+W6-10+W16-20').split('+')):
                    lo, hi = [int(z) for z in spec[1:].split('-')]
                    a('s_cmp_eq_u32 s56, %d\ns_cbranch_scc0 L_fc_n%d' % (k, k))
                    a(self.wtouch(IDX, (hi-lo)*8, lo, 255))
                    a.label('L_fc_n%d' % k)
        if 'tlate' not in self.opt: touches()
        if 'ta' in self.opt:
            self.phase(59)
            a('s_cmp_lt_u32 s56, 2\ns_cbranch_scc0 L_fc_tx')
            self.tw_addr(2)
            a('s_cmp_eq_u32 s56, 0')
            a('s_cselect_b32 s%d, s%d, s%d\ns_cselect_b32 s%d, s%d, s%d\ns_mov_b32 s%d, 0x%x' % (S_A, P_WG, P_WU, S_A+1, P_WG+1, P_WU+1, S_A+2, 640*1536*2))
            a('s_mul_i32 s66, s59, %d\ns_lshl_b32 s67, s55, 8\ns_add_u32 s66, s66, s67' % (64*3072))
            a('buffer_load_dword v255, v2, %s, s66 offen' % s(S_A,4))
            a('s_branch L_fc_t3')
            a.label('L_fc_tx')
            a('s_sub_u32 s60, s56, 2')
            self.tx_addr(2, 60); self.tx_off(67, 59, 0)
            a('buffer_load_dword v255, v2, %s, s67 offen' % s(S_X,4))
            a.label('L_fc_t3')
        a('s_setprio 1')
        a('v_lshrrev_b32 v6, 4, v0\nv_bfe_u32 v7, v0, 2, 2')
        a('v_lshl_add_u32 v8, v6, 3, v7\nv_lshlrev_b32 v8, 7, v8')
        a('v_and_b32 v9, 3, v0\nv_lshl_add_u32 v8, v9, 3, v8')
        a('v_bfe_u32 v9, v0, 3, 1\nv_bfe_u32 v10, v0, 4, 1\nv_lshl_add_u32 v9, v10, 1, v9')
        a('s_and_b32 s57, s56, 1\ns_lshl_b32 s57, s57, 1')
        a('v_xor_b32 v9, s57, v9\nv_lshl_add_u32 v8, v9, 5, v8')
        a('s_lshr_b32 s57, s56, 1\ns_lshl_b32 s57, s57, 12')
        a('v_add_u32 v%d, s57, v8' % AW[0])
        a('v_xor_b32 v%d, 32, v%d' % (AW[1], AW[0]))
        a('v_add_u32 v%d, %d, v%d\nv_add_u32 v%d, %d, v%d' % (AW[2], 3*self.WSLOT, AW[0], AW[3], 3*self.WSLOT, AW[1]))
        a('v_and_b32 v8, 15, v0\nv_lshrrev_b32 v9, 1, v8\nv_xor_b32 v9, v9, v6')
        a('v_lshlrev_b32 v9, 4, v9\nv_lshl_add_u32 v9, v8, 7, v9')
        a('v_add_u32 v%d, %d, v9' % (AX[0], self.XB))
        a('v_xor_b32 v%d, 64, v%d' % (AX[1], AX[0]))
        a('v_lshlrev_b32 v234, 4, v8\nv_add_u32 v234, %d, v234' % self.MISC)
        a('v_lshlrev_b32 v235, 4, v6\ns_lshl_b32 s57, s56, 7\nv_add_u32 v235, s57, v235\nv_add_u32 v235, %d, v235' % (self.MISC+2048))
        a('v_lshlrev_b32 v236, 4, v0')
        hf = self.val.get('hf', 'p')
        if hf == 'p': a('s_lshl_b32 s58, s54, 4\ns_add_u32 s58, s58, s55\ns_lshl_b32 s58, s58, 2\ns_add_u32 s58, s58, s56\ns_lshl_b32 s58, s58, 3\nv_mov_b32 v237, s58')
        elif hf == 'w': a('s_lshl_b32 s58, s54, 4\ns_add_u32 s58, s58, s55\ns_lshl_b32 s58, s58, 4\ns_add_u32 s58, s58, s56\ns_lshl_b32 s58, s58, 3\ns_add_u32 s58, s58, 0xa0000\nv_mov_b32 v237, s58')
        else: a('s_lshl_b32 s58, s54, 4\ns_add_u32 s58, s58, s55\ns_lshl_b32 s58, s58, 2\ns_add_u32 s58, s58, s56\ns_lshl_b32 s58, s58, 7\ns_add_u32 s58, s58, 0xa0000\nv_mov_b32 v237, s58')
        a('s_mul_i32 s57, s54, %d\ns_lshl_b32 s58, s55, 2\ns_add_u32 s58, s58, s56\ns_lshl_b32 s58, s58, 10\ns_add_u32 s57, s57, s58\ns_add_u32 s57, s57, 0x%x' % (8*49152, HF))
        self.nonce()
        a('s_cmp_eq_u32 s79, 0\ns_cbranch_scc1 L_fc_nv')
        a('v_lshrrev_b32 v16, 2, v0\nv_lshlrev_b32 v16, 7, v16\nv_and_b32 v1, 3, v0\nv_lshl_add_u32 v16, v1, 3, v16')
        a('v_bfe_u32 v1, v0, 3, 1\nv_bfe_u32 v17, v0, 5, 1\nv_lshl_add_u32 v1, v17, 1, v1\nv_lshl_add_u32 v16, v1, 5, v16')
        a('v_add_u32 v1, s67, v16\nv_xor_b32 v6, 32, v1\nv_xor_b32 v7, 64, v1\nv_xor_b32 v254, 96, v1')
        for ct in range(4):
            a('s_lshl_b32 s63, s71, 2\ns_add_u32 s63, s63, %d\ns_mul_i32 s64, s63, 52\ns_lshr_b32 s64, s64, 8' % ct)
            a('s_mul_i32 s65, s64, 5\ns_sub_u32 s65, s63, s65\ns_lshl_b32 s65, s65, 10')
            a('s_mul_i32 s64, s64, 245760\ns_add_u32 s65, s65, s64\ns_mul_i32 s64, s70, 5120\ns_add_u32 s65, s65, s64\ns_add_u32 s%d, s65, 0x%x' % (72+ct, WDF))
        a.label('L_fc_nv')
        def reads(n):
            st = n & 1; sl = n % self.NWS
            r = []
            for mat in range(2):
                for c2 in range(2):
                    for q in range(2):
                        r.append('ds_read_b64_tr_b16 v[%d:%d], v%d offset:%d' % (wf(st,mat,c2)+2*q, wf(st,mat,c2)+2*q+1, AW[c2 + 2*(sl//3)], (sl%3)*self.WSLOT + mat*8192 + q*512))
            for tt in range(8):
                r.append('ds_read_b128 %s, v%d offset:%d' % (v(xf(st,tt),4), AX[n&1], ((n//2) % self.NXS)*self.XSLOT + tt*2048))
            return r
        ST, CSR, TM = FR, FR+32, 238
        ep_reads = ['ds_read_b128 %s, v234 offset:%d' % (v(ST+4*tt,4), tt*256) for tt in range(8)]
        ep_reads += ['ds_read_b128 %s, v235 offset:%d' % (v(CSR+(mat*2+c2)*4,4), mat*512 + c2*64) for mat in range(2) for c2 in range(2)]
        FB = int(self.val.get('fb', 5))
        a('s_barrier')
        self.stamp(1)
        for r in reads(0): a(r)
        if 'tlate' in self.opt: touches()
        a.align(3)
        for n in range(20):
            st = n & 1
            a('s_waitcnt %slgkmcnt(0)\ns_barrier' % ('vmcnt(0) ' if n == int(self.val['fb']) - 1 else ''))
            if n == 10: self.stamp(5)
            if n == 5: self.stamp(6)
            if n == 15: self.stamp(7)
            rd = reads(n+1) if n < 19 else ep_reads
            WS = int(self.val.get('wds', 2))
            if n == WS:
                a('s_cmp_eq_u32 s79, 0\ns_cbranch_scc1 L_fc_w1\ns_waitcnt vmcnt(0)')
                for ct, ar in enumerate((1, 6, 7, 254)):
                    for q in range(2): a('ds_read_b64_tr_b16 %s, v%d offset:%d' % (v(238+4*ct+2*q,2), ar, q*2048))
                a('v_bfe_u32 v255, v0, 1, 3\nv_and_b32 v6, 1, v0\nv_lshl_add_u32 v255, v6, 3, v255\nv_and_b32 v6, 48, v0\nv_add_lshl_u32 v255, v255, v6, 4')
                a.label('L_fc_w1')
            if n == WS + 1:
                a('s_cmp_eq_u32 s79, 0\ns_cbranch_scc1 L_fc_w2')
                for ct in range(4): a('buffer_store_dwordx4 %s, v255, %s, s%d offen sc1' % (v(238+4*ct,4), s(S_WS,4), 72+ct))
                a.label('L_fc_w2')
            k = 0
            for tt in range(8):
                for mat in range(2):
                    for c2 in range(2):
                        A = acc(tt, mat, c2)
                        if 'nomfma' not in self.opt: a('v_mfma_f32_16x16x32_bf16 %s, %s, %s, %s' % (v(A,4), v(wf(st,mat,c2),4), v(xf(st,tt),4), v(A,4) if n else '0'))
                        if k < len(rd) and 'nords' not in self.opt: a(rd[k]); k += 1
        self.stamp(2)
        a('s_waitcnt lgkmcnt(0)')
        a.label('L_fc_epi')
        OUT = FR + 48
        for tt in range(8):
            m, q = ST+4*tt, ST+4*tt+2
            O = OUT + tt*4
            t = TM + (tt&1)*8
            pairs = [(c2, hh) for c2 in range(2) for hh in range(2)]
            for k, (c2, hh) in enumerate(pairs):
                ga = acc(tt,0,c2)+2*hh; ua = acc(tt,1,c2)+2*hh
                a('v_pk_fma_f32 %s, %s, %s, %s op_sel_hi:[0,1,1] neg_lo:[1,0,0] neg_hi:[1,0,0]' % (v(ga,2), v(m,2), v(CSR+c2*4+2*hh,2), v(ga,2)))
                a('v_pk_fma_f32 %s, %s, %s, %s op_sel_hi:[0,1,1] neg_lo:[1,0,0] neg_hi:[1,0,0]' % (v(ua,2), v(m,2), v(CSR+8+c2*4+2*hh,2), v(ua,2)))
            for k, (c2, hh) in enumerate(pairs):
                ga = acc(tt,0,c2)+2*hh
                a('v_pk_mul_f32 %s, %s, %s op_sel:[0,1] op_sel_hi:[1,1]' % (v(t+2*k,2), v(ga,2), v(m,2)))
            for k in range(8): a('v_exp_f32 v%d, v%d' % (t+k, t+k))
            for k, (c2, hh) in enumerate(pairs):
                ga = acc(tt,0,c2)+2*hh; ua = acc(tt,1,c2)+2*hh
                a('v_pk_mul_f32 %s, %s, %s' % (v(ga,2), v(ga,2), v(ua,2)))
                a('v_pk_fma_f32 %s, %s, %s, %s op_sel_hi:[1,0,0]' % (v(t+2*k,2), v(t+2*k,2), v(q,2), v(q,2)))
            for k in range(8): a('v_rcp_f32 v%d, v%d' % (t+k, t+k))
            a('s_nop 0')
            for k, (c2, hh) in enumerate(pairs):
                ga = acc(tt,0,c2)+2*hh
                a('v_pk_mul_f32 %s, %s, %s' % (v(ga,2), v(ga,2), v(t+2*k,2)))
            for k, (c2, hh) in enumerate(pairs):
                ga = acc(tt,0,c2)+2*hh
                a('v_cvt_pk_bf16_f32 v%d, v%d, v%d' % (O+k, ga, ga+1))
            a('buffer_store_dwordx4 %s, v236, %s, s57 offen sc1' % (v(O,4), s(S_WS,4)))
            a('s_add_u32 s57, s57, 49152')
        self.stamp(3)
        a('v_mov_b32 v2, %d\nv_mov_b32 v3, 1\ns_mov_b64 exec, 1\nds_add_u32 v2, v3\ns_mov_b64 exec, -1' % (self.MISC + 3072))
        a('s_waitcnt vmcnt(0)')
        self.stamp(4)
        self.setflag(237, 2)
        a('s_branch L_p2_mfma')

    MSLOT = 24576; MB = 32768; XFB = 0; XFS = 16384; DMISC = 155648

    def code_touch(self, lo, hi, n, dst, uniq):
        a = self.a
        a('s_getpc_b64 s[72:73]')
        a.label('L_ct%s' % uniq)
        a('s_add_u32 s72, s72, %s-L_ct%s\ns_addc_u32 s73, s73, 0' % (lo, uniq))
        out = []
        for k in range(n):
            a('v_lshlrev_b32 v%d, 7, v0\nv_add_u32 v%d, %d, v%d\nv_min_u32 v%d, %s-%s-4, v%d' % (dst-1-k, dst-1-k, 8192*k, dst-1-k, dst-1-k, hi, lo, dst-1-k))
            out.append('global_load_dword v%d, v%d, s[72:73]' % (dst, dst-1-k))
        return out

    def dft_loader(self):
        a = self.a; vm = VM(a)
        RAW, SA = 32, 192
        a.label('L_dft_ld')
        a('s_setprio %s' % self.val.get('dlp', '2'))
        a('s_cmp_lt_u32 s%d, 2' % WAVE)
        a('s_cselect_b32 s%d, s%d, s%d\ns_cselect_b32 s%d, s%d, s%d' % (S_A, P_HRE, P_HIM, S_A+1, P_HRE+1, P_HIM+1))
        a('s_mov_b32 s%d, 0x%x' % (S_A+2, 640*640*2))
        a('v_lshrrev_b32 v2, 3, v0\nv_lshrrev_b32 v3, 4, v0\nv_and_b32 v4, 7, v0')
        a('v_mul_u32_u24 v5, 81920, v2\nv_lshl_add_u32 v5, v4, 4, v5')
        a('s_lshl_b32 s66, s54, 2\ns_add_u32 s66, s66, s%d\ns_and_b32 s63, s%d, 3' % (WAVE, DID))
        for u in range(4): a('s_add_u32 s53, s63, %d\ns_and_b32 s%d, s53, 3\ns_lshl_b32 s53, s%d, 9\ns_add_u32 s53, s53, s66\ns_mul_i32 s%d, s53, 1280' % (u, 68+u, 68+u, 56+u))
        if 'dph0' in self.opt: a('s_mov_b32 s74, 0')
        else: a('s_and_b32 s74, s54, 3\ns_lshl_b32 s75, s%d, 1\ns_add_u32 s74, s74, s75\ns_cmp_ge_u32 s74, 5\ns_cselect_b32 s75, 5, 0\ns_sub_u32 s74, s74, s75\ns_lshl_b32 s74, s74, 7' % HH)
        a('s_mov_b32 s75, s74\nv_add_u32 v208, s74, v5')
        for c in range(1, 5): a('s_add_u32 s74, s74, 128\ns_cmp_eq_u32 s74, 640\ns_cselect_b32 s74, 0, s74\nv_add_u32 v%d, s74, v5' % (208+c))
        def xl(c, us):
            o = []
            for u in us:
                tag = 'x%d' % c if u else 'y%d' % c
                o.append(([], 'buffer_load_dwordx4 %s, v%d, %s, s%d offen' % (v(RAW+32*c+8*u,4), 208+c, s(S_X,4), 56+u), tag))
                o.append(([], 'buffer_load_dwordx4 %s, v%d, %s, s%d offen offset:640' % (v(RAW+32*c+8*u+4,4), 208+c, s(S_X,4), 56+u), tag))
            return o
        def ml(c):
            adv = ['s_add_u32 s75, s75, 128', 's_cmp_eq_u32 s75, 640', 's_cselect_b32 s75, 0, s75', 's_add_u32 s76, s60, s75']
            return [((adv if u == 0 and c > 0 else []) + ['s_add_u32 m0, s61, %d' % (self.MB + c*self.MSLOT + u*1024), 's_add_u32 s62, s76, %d' % (u*16*1280)],
                     'buffer_load_dwordx4 v%d, %s, s62 offen lds' % (8 if u == 0 else 6+(u&1), s(S_A,4)), 'm%d' % c) for u in range(6)]
        t = 16
        def unpack(lo):
            o = []
            for k in range(4):
                o += ['v_lshlrev_b32 v%d, 16, v%d' % (t+2*k, lo+k), 'v_and_b32 v%d, s77, v%d' % (t+2*k+1, lo+k),
                      'v_lshlrev_b32 v%d, 16, v%d' % (t+8+2*k, lo+4+k), 'v_and_b32 v%d, s77, v%d' % (t+8+2*k+1, lo+4+k)]
            return o
        def acc():
            o = []
            for k in range(16): o += ['v_add_f32 v%d, v%d, v%d' % (SA+(k&3), SA+(k&3), t+k), 'v_fmac_f32 v%d, v%d, v%d' % (SA+4+(k&3), t+k, t+k)]
            return o
        def st(c): return unpack(RAW+32*c) + acc()
        def fl(c, with_stats):
            o = []
            for u in range(4):
                lo = RAW+32*c+8*u
                o += unpack(lo)
                if u == 0 and with_stats: o += acc()
                for k in range(8): o.append('v_fmac_f32 v%d, v12, v%d' % (t+k, t+8+k))
                for k in range(4): o.append('v_cvt_pk_bf16_f32 v%d, v%d, v%d' % (lo+k, t+2*k, t+2*k+1))
                o.append('ds_write_b128 v%d, %s offset:%d' % (213+u, v(lo,4), (c&1)*self.XFS))
            return o
        def emit(loads, valu):
            per = -(-len(valu) // max(1, len(loads))); k = 0
            for pre, ld, tag in loads:
                for p in pre: a(p)
                vm.op(ld, tag)
                for l in valu[k:k+per]: a(l)
                k += per
            for l in valu[k:]: a(l)
        emit(xl(0, range(4)), [])
        a('v_xor_b32 v3, v3, v4\nv_lshlrev_b32 v3, 4, v3')
        a('v_mul_u32_u24 v6, 2560, v2\nv_add_u32 v6, v6, v3\nv_xor_b32 v7, 64, v6')
        a('s_or_b32 s60, s55, s%d\ns_or_b32 s60, s60, s%d\ns_cmp_eq_u32 s60, 0\ns_cselect_b32 s60, %d, 0' % (WAVE, HH, 320*1280))
        a('v_cmp_gt_u32 vcc, 8, v0\nv_mov_b32 v8, s60\ns_nop 0\nv_cndmask_b32 v8, 0, v8, vcc\nv_add_u32 v8, v8, v6')
        a('s_and_b32 s60, s%d, 1\ns_mul_i32 s60, s60, 96\ns_lshl_b32 s61, s%d, 7\ns_add_u32 s60, s60, s61\ns_add_u32 s60, s60, s55\ns_mul_i32 s60, s60, 1280' % (WAVE, HH))
        a('s_mul_i32 s61, s%d, 6144\ns_add_u32 s76, s60, s75' % WAVE)
        YL = 'ylate' in self.opt
        emit(ml(0) + ([] if YL else xl(2, [0]) + xl(3, [0]) + xl(4, [0])), [])
        a('s_lshl_b32 s53, s%d, 12\ns_add_u32 s53, s53, %d' % (WAVE, self.XFB))
        a('v_lshl_add_u32 v9, v2, 7, v3\nv_add_u32 v9, s53, v9')
        for u in range(4): a('s_and_b32 s53, s%d, 1\ns_lshl_b32 s53, s53, 6\nv_xor_b32 v%d, s53, v9\ns_lshl_b32 s53, s%d, 10\nv_add_u32 v%d, s53, v%d' % (68+u, 213+u, 68+u, 213+u, 213+u))
        a('s_cmp_eq_u32 s55, 0\ns_cselect_b32 s53, 1.0, -1.0\nv_mov_b32 v12, s53\ns_mov_b32 s77, 0xffff0000')
        for k in range(8): a('v_mov_b32 v%d, 0' % (SA+k))
        a('v_lshlrev_b32 v4, 10, v2\ns_lshl_b32 s65, s66, 4\ns_add_u32 s65, s65, 0x%x\ns_lshl_b32 s64, s63, 13\ns_add_u32 s64, s64, s65' % STATS)
        a('v_and_b32 v3, 31, v0\nv_lshlrev_b32 v10, 10, v3\ns_lshl_b32 s53, s%d, 7\ns_add_u32 s53, s53, %d\nv_lshl_add_u32 v3, v3, 2, s53' % (WAVE, self.DMISC))
        self.p2_prep()
        self.nonce()
        vm.wait('x0')
        emit([], fl(0, True))
        vm.wait('m0', 'lgkmcnt(0)'); a('s_barrier')
        self.stamp(1)
        if YL:
            emit(xl(1, range(4)) + ml(1) + xl(2, [0]) + xl(3, [0]) + xl(4, [0]), [])
            vm.wait('x1'); emit([], fl(1, True)); vm.wait('y4'); emit(xl(2, [1,2,3]) + ml(2), st(2) + st(3) + st(4))
        else:
            vm.wait('y4')
            emit(xl(1, range(4)) + ml(1), st(2) + st(3) + st(4))
            vm.wait('x1'); emit(xl(2, [1,2,3]) + ml(2), fl(1, True))
        fin = []
        fin += ['v_add_f32 v%d, v%d, v%d' % (SA+k, SA+k, SA+k+1) for k in (0, 4, 2, 6)] + ['v_add_f32 v%d, v%d, v%d' % (SA+k, SA+k, SA+k+2) for k in (0, 4)]
        for mod in ('quad_perm:[1,0,3,2]', 'quad_perm:[2,3,0,1]', 'row_half_mirror'):
            fin += ['s_nop 0'] + ['v_add_f32 v%d, v%d, v%d %s row_mask:0xf bank_mask:0xf' % (SA+k, SA+k, SA+k, mod) for k in (0, 4)]
        fin += ['v_mul_f32 v%d, 0x3acccccd, v%d' % (SA+8, SA), 'v_mul_f32 v%d, 0x3acccccd, v%d' % (SA+9, SA+4),
                'v_fma_f32 v%d, -v%d, v%d, v%d' % (SA+9, SA+8, SA+8, SA+9), 'v_max_f32 v%d, 0, v%d' % (SA+9, SA+9), 'v_add_f32 v%d, 0x3727c5ac, v%d' % (SA+9, SA+9),
                'v_mov_b32 v%d, s12' % (SA+10), 'v_mov_b32 v%d, s13' % (SA+11)]
        emit([], fin)
        a('s_mov_b32 exec_lo, 0x01010101\ns_mov_b32 exec_hi, 0x01010101')
        vm.op('buffer_store_dwordx4 %s, v4, %s, s64 offen sc1' % (v(SA+8,4), s(S_WS,4)), 'o')
        a('s_mov_b64 exec, -1')
        vm.wait('m1', 'lgkmcnt(0)'); a('s_barrier')
        vm.wait('x2'); emit(xl(3, [1,2,3]) + ml(3), fl(2, False)); vm.wait('m2', 'lgkmcnt(0)'); a('s_barrier')
        vm.wait('x3'); emit(ml(4) + xl(4, [1,2,3]), fl(3, False)); vm.wait('m3', 'lgkmcnt(0)'); a('s_barrier')
        vm.op('buffer_load_dwordx4 %s, v10, %s, s65 offen sc1' % (v(SA,4), s(S_WS,4)), 'r')
        vm.wait('x4')
        a('v_lshlrev_b32 v11, 7, v0\nv_add_u32 v11, 0x%x, v11\nv_add_u32 v13, 8192, v11\nv_add_u32 v14, 16384, v11' % SFLAG)
        a('s_cmp_eq_u32 s%d, 1\ns_cbranch_scc0 L_dl_np' % WAVE)
        for k in range(3): a('buffer_load_dwordx2 %s, v%d, %s, 0 offen sc1' % (v(SA+4+2*k,2), (11,13,14)[k], s(S_WS,4)))
        a.label('L_dl_np')
        emit([], fl(4, False))
        a('s_waitcnt lgkmcnt(0)\ns_barrier')
        a('s_waitcnt vmcnt(0)')
        a('s_cmp_eq_u32 s%d, 1\ns_cbranch_scc0 L_dl_nq' % WAVE)
        self.spin3('L_dl_sp', (11,13,14), SA+4, True)
        a.label('L_dl_nq')
        a('s_mov_b32 s53, 0')
        a.label('L_dl_rs')
        a('v_cmp_ne_u64 vcc, s[12:13], %s' % v(SA+2,2))
        a('s_cbranch_vccz L_dl_rx\ns_add_u32 s53, s53, 1\ns_cmp_gt_u32 s53, 0x%x\ns_cbranch_scc1 L_dl_rx\ns_sleep 2' % SPIN_MAX)
        a('buffer_load_dwordx4 %s, v10, %s, s65 offen sc1\ns_waitcnt vmcnt(0)\ns_branch L_dl_rs' % (v(SA,4), s(S_WS,4)))
        a.label('L_dl_rx')
        a('v_rsq_f32 v%d, v%d\ns_nop 0\nds_write_b32 v3, v%d' % (SA, SA+1, SA))
        a('s_lshl_b32 s58, s%d, 3\nv_lshrrev_b32 v7, 5, v0\nv_add_u32 v7, s58, v7\nv_and_b32 v6, 31, v0\nv_lshlrev_b32 v6, 4, v6' % WAVE)
        a('v_mul_u32_u24 v5, %d, v7\nv_add_u32 v5, v5, v6\nv_mul_u32_u24 v8, %d, v7\nv_add_u32 v8, v8, v6' % (LROW, GROW))
        a('s_lshr_b32 s59, s%d, 1\ns_mul_i32 s57, s59, %d\ns_lshl_b32 s59, s%d, 10\ns_add_u32 s57, s57, s59' % (DID, GBLK, HH))
        for k in range(4): a('s_add_u32 s%d, s57, 0x%x' % (60+k, G16 + 2*k*GROW))
        a('s_lshl_b32 s59, s%d, 3\ns_add_u32 s58, s59, 0x%x\nv_lshl_add_u32 v6, v0, 9, s58' % (DID, DFLAG))
        a('v_cmp_gt_u32 vcc, 32, v0\nv_mov_b32 v7, 0x%x\ns_add_u32 s59, s59, 0x%x\nv_cndmask_b32 v6, v7, v6, vcc\nv_mov_b32 v7, s59' % (OOB, SFLAG))
        vm = VM(a)
        self.p2_coords(); self.ov_setup()
        a('v_lshlrev_b32 v2, 4, v0')
        def dma_step(first, k, lim, tag):
            a('s_add_u32 s64, s%d, %d\ns_cmp_lt_u32 s64, %d\ns_cbranch_scc0 L_ds_%s%d' % (WAVE, first + 4*k, lim, tag, k))
            a('s_cmp_ge_u32 s64, 14\ns_cselect_b32 s65, 51200, 0\ns_cselect_b32 s66, 14, 0\ns_sub_u32 s66, s64, s66\ns_mul_i32 s64, s64, 5120\ns_add_u32 s65, s65, s64')
            a('s_cmp_le_u32 s76, s66\ns_cselect_b32 s66, s75, s77\ns_add_u32 s65, s65, s66')
            for n in range(5):
                if n in (0, 4): a('s_add_u32 m0, s64, %d\ns_add_u32 s78, s65, %d' % (n*1024, n*1024))
                a('buffer_load_dwordx4 v2, %s, s78 offen offset:%d %s lds' % (s(S_WS,4), (n&3)*1024, self.bf))
            a.label('L_ds_%s%d' % (tag, k))
        a('s_waitcnt lgkmcnt(0)\ns_barrier')
        self.stamp(9)
        DE = self.val.get('de', '3')
        plan = {'0': [[], [], []], '1': [['o0','o1','o2'], ['e0','e1'], ['e2','e3','e4','o3','o4']], '2': [['o0','o1'], ['e0'], ['e1','e2']], '3': [['o0','o1'], [], []], '4': [['o0'], ['o1'], []]}[DE]
        done = set()
        def run(items):
            for it in items:
                done.add(it)
                if it[0] == 'o': self.ov_load(vm, int(it[1]), 2)
                else: dma_step(10, int(it[1]), 28, 'e')
        run(plan[0])
        for et in range(3):
            a('s_barrier')
            if et == 0: a('s_cmp_eq_u32 s%d, 0\ns_cbranch_scc0 L_dl_sk' % HH)
            for k in range(4): a('ds_read_b128 %s, v5 offset:%d' % (v(16+16*et+4*k,4), 2*k*LROW + et*512))
            for k in range(4):
                a('s_waitcnt lgkmcnt(%d)' % (3-k))
                a('buffer_store_dwordx4 %s, v8, %s, s%d offen offset:%d sc1' % (v(16+16*et+4*k,4), s(S_WS,4), 60+k, et*512))
            if et == 0: a.label('L_dl_sk')
            if et < 2: run(plan[et+1])
        a('s_waitcnt vmcnt(0)\ns_setprio 0\ns_barrier')
        self.stamp(4)
        a('s_cmp_eq_u32 s%d, 0\ns_cbranch_scc0 L_dl_nf2' % WAVE)
        self.setflag(6, 12, '-1')
        a.label('L_dl_nf2')
        self.stamp(3)
        for k in range(3): dma_step(0, k, 10, 'l')
        run([it for it in ['e0','e1','e2','e3','e4','o0','o1','o2','o3','o4'] if it not in done])
        self.stamp(2)
        a('s_branch L_p2_help')

    def dft_consumer(self):
        a = self.a
        ACC = 8
        MP, XP = 104, 152
        NP = 12
        a.label('L_dft_cons')
        a('s_sub_u32 s56, s%d, 4' % WAVE)
        a('s_setprio 1')
        a('v_and_b32 v208, 31, v0\nv_lshrrev_b32 v209, 5, v0\nv_bfe_u32 v210, v0, 1, 3\nv_xor_b32 v210, v210, v209')
        a('v_lshlrev_b32 v210, 4, v210\nv_lshl_add_u32 v210, v208, 7, v210')
        AM = [[211+4*k+u for u in range(4)] for k in range(3)]; AX = [2, 3, 4, 5]
        a('s_lshl_b32 s57, s56, 12\ns_add_u32 s57, s57, %d' % self.XFB)
        for u in range(4):
            a('v_xor_b32 v6, %d, v210' % (32*u))
            a('v_add_u32 v%d, s57, v6' % AX[u])
            for k in range(3): a('v_add_u32 v%d, %d, v6' % (AM[k][u], self.MB + 2*k*self.MSLOT))
        a('v_lshlrev_b32 v7, 2, v209\ns_mov_b32 s62, 0x3d000000')
        for k in range(16):
            r = 224 + k
            a('v_add_u32 v%d, %d, v7\nv_mul_u32_u24 v%d, v%d, v208\nv_and_b32 v%d, 31, v%d\nv_cvt_f32_u32 v%d, v%d\nv_mul_f32 v%d, s62, v%d' % (r, 8*(k>>2)+(k&3), r, r, r, r, r, r, r, r))
        if 'pf' in self.opt: a('s_waitcnt vmcnt(0)')
        for k in range(16):
            a('v_sin_f32 v%d, v%d\nv_cos_f32 v%d, v%d' % (240+k, 224+k, 224+k, 224+k))
        if 'dxt' in self.opt:
            a('s_lshl_b32 s57, s55, 1\ns_add_u32 s57, s57, s%d\ns_lshl_b32 s57, s57, 9\ns_lshl_b32 s58, s54, 2\ns_add_u32 s57, s57, s58\ns_add_u32 s57, s57, s56\ns_mul_i32 s57, s57, 1280' % HH)
            a('v_and_b32 v6, 7, v0\nv_mul_u32_u24 v6, 81920, v6\nv_lshrrev_b32 v162, 3, v0\nv_lshrrev_b32 v163, 2, v162\nv_add_u32 v162, v162, v163\nv_lshl_add_u32 v6, v162, 7, v6')
            a('buffer_load_dword v223, v6, %s, s57 offen offset:128' % s(S_X,4))
        a('s_lshl_b32 s57, s56, 7\ns_add_u32 s57, s57, %d' % self.DMISC)
        a('v_lshl_add_u32 v160, v209, 4, s57')
        a('v_mul_u32_u24 v161, %d, v208\nv_lshl_add_u32 v161, v209, 6, v161' % LROW)
        a('v_lshrrev_b32 v6, 3, v208\nv_add_u32 v6, s56, v6\nv_and_b32 v6, 3, v6\nv_lshl_add_u32 v161, v6, 2, v161')
        self.nonce()
        def accr(m): return ACC + 32*(m%3) + 16*(m//3)
        rd = []; need = []
        for c in range(5):
            for u in range(4):
                rd.append('ds_read_b128 %s, v%d offset:%d' % (v(XP+4*(u&1),4), AX[u], (c&1)*self.XFS))
                for m in range(6):
                    rd.append('ds_read_b128 %s, v%d offset:%d' % (v(MP+4*((6*u+m)%NP),4), AM[c>>1][u], (c&1)*self.MSLOT + m*4096))
                    need.append(len(rd)-1)
        RR = 168
        rr_reads = ['ds_read_b128 %s, v160 offset:%d' % (v(RR+4*k,4), 32*k) for k in range(4)]
        LA = 5
        a('s_barrier')
        self.stamp(1)
        for r in rd[:7]: a(r)
        issued = 7; done = 0
        a.align(3)
        for g in range(120):
            c, mu = divmod(g, 24); u, m = divmod(mu, 6)
            if mu == 21:
                a('s_waitcnt lgkmcnt(0)\ns_barrier'); done = issued
                self.stamp(5+c)
                if c < 4:
                    for _ in range(7): a(rd[issued]); issued += 1
                else:
                    for r in rr_reads: a(r)
            elif need[g] >= done:
                a('s_waitcnt lgkmcnt(%d)' % (issued - need[g] - 1)); done = need[g] + 1
            a('v_mfma_f32_32x32x16_bf16 %s, %s, %s, %s' % (v(accr(m),16), v(XP+4*(u&1),4), v(MP+4*(mu%NP),4), v(accr(m),16) if g >= 6 else '0'))
            if mu < 21:
                tgt = min(28*(c+1), need[g+1] + LA + 1)
                while issued < tgt: a(rd[issued]); issued += 1
        self.stamp(2)
        a.label('L_dc_epi')
        CC, SS, NS = 184, 192, 200
        a('s_waitcnt lgkmcnt(0)')
        for k in range(8):
            a('v_pk_mul_f32 %s, %s, %s' % (v(224+2*k,2), v(224+2*k,2), v(RR+2*k,2)))
            a('v_pk_mul_f32 %s, %s, %s' % (v(240+2*k,2), v(240+2*k,2), v(RR+2*k,2)))
        for k in range(8):
            a('v_cvt_pk_bf16_f32 v%d, v%d, v%d' % (CC+k, 224+2*k, 225+2*k))
            a('v_cvt_pk_bf16_f32 v%d, v%d, v%d' % (SS+k, 240+2*k, 241+2*k))
            a('v_xor_b32 v%d, 0x80008000, v%d' % (NS+k, SS+k))
        def zc(et):
            A0 = ACC + 32*et; Z = 104 + 16*et; o = []
            for k in range(8):
                o.append('v_cvt_pk_bf16_f32 v%d, v%d, v%d' % (Z+k, A0+2*k, A0+2*k+1))
                o.append('v_cvt_pk_bf16_f32 v%d, v%d, v%d' % (Z+8+k, A0+16+2*k, A0+16+2*k+1))
            return o
        for l in zc(0): a(l)
        a('s_nop 1')
        for et in range(3):
            A0 = ACC + 32*et; Z = 104 + 16*et
            RE, IM = A0, A0+16
            ms = [(RE,Z,CC,0),(IM,Z+8,CC,0),(RE,Z+4,CC+4,1),(IM,Z+12,CC+4,1),(RE,Z+8,SS,1),(IM,Z,NS,1),(RE,Z+12,SS+4,1),(IM,Z+4,NS+4,1)]
            fill = (zc(et+1) if et < 2 else ['s_nop 3']) + (self._dft_out(ACC + 32*(et-1), et-1) if et > 0 else [])
            per = -(-len(fill)//8)
            for i, (D, A_, B_, ac) in enumerate(ms):
                a('v_mfma_f32_32x32x16_bf16 %s, %s, %s, %s' % (v(D,16), v(A_,4), v(B_,4), v(D,16) if ac else '0'))
                for f in fill[per*i:per*i+per]: a(f)
            if et > 0: a('s_waitcnt lgkmcnt(0)\ns_barrier')
        a.nop(12)
        for f in self._dft_out(ACC + 64, 2): a(f)
        a('s_waitcnt lgkmcnt(0)\ns_barrier')
        a('s_setprio 0')
        self.stamp(3)
        a('s_waitcnt vmcnt(0)\ns_barrier')
        a('s_branch L_p2_mfma')
        a.label('L_dc_end')

    def _dft_out(self, A0, et):
        o = []
        for r in range(16):
            o.append('v_cvt_pk_bf16_f32 v%d, v%d, v%d' % (A0+r, A0+r, A0+16+r))
            o.append('ds_write_b32 v161, v%d offset:%d' % (A0+r, (32*et + 8*(r>>2) + (r&3))*16))
        return o

    TW, GV, XV = 232, 248, 228
    def p2_prep(self):
        a = self.a; TW, GV, XV = self.TW, self.GV, self.XV
        J, G_, A, B, C, D = 217, 218, 219, 220, 221, 222
        TM = 223
        a('s_and_b32 s41, s%d, 1\ns_lshr_b32 s42, s%d, 1' % (WAVE, WAVE))
        a('s_lshl_b32 s38, s%d, 9\ns_add_u32 s38, s38, 0x%x' % (T1, DFLAG))
        a('s_lshl_b32 s43, s41, 1\ns_add_u32 s44, s43, s42\ns_sub_u32 s43, s43, s42\ns_add_u32 s43, s43, 1')
        a('v_and_b32 v%d, 15, v0\nv_lshrrev_b32 v%d, 4, v0' % (J, G_))
        a('s_lshl_b32 s39, s44, 9\ns_add_u32 s39, s39, s%d\ns_mul_i32 s39, s39, 1280\ns_mul_i32 s53, s%d, 160\ns_add_u32 s39, s39, s53' % (T1, CS))
        a('s_mul_i32 s40, s%d, 3072\ns_add_u32 s40, s40, %d' % (WAVE, self.MISC + 4096))
        for m in range(3):
            a('v_add_u32 v%d, %d, v0\nv_min_u32 v%d, 159, v%d\nv_mul_u32_u24 v%d, 205, v%d\nv_lshrrev_b32 v%d, 11, v%d' % (A, 64*m, A, A, B, A, B, B))
            a('v_mul_u32_u24 v%d, %d, v%d\nv_lshl_add_u32 v%d, v%d, 4, v%d' % (B, 40960-160, B, XV+m, A, B))
        a('v_mul_u32_u24 v%d, 160, v%d\nv_and_b32 v%d, 1, v%d\nv_lshl_add_u32 v%d, v%d, 4, v%d\nv_add_u32 v%d, s40, v%d' % (A, J, B, G_, A, B, A, XV+3, A))
        a('s_lshr_b32 s45, s%d, 2\ns_lshl_b32 s47, s45, 31\ns_or_b32 s47, s47, 0x3a000000' % CS)
        a('s_mul_i32 s46, s45, 640\ns_lshl_b32 s45, s45, 1\ns_sub_u32 s45, 1, s45')
        a('s_mul_i32 s53, s%d, 80' % CS)
        a('v_mul_u32_u24 v%d, %d, v%d' % (D, 2*GBLK, G_))
        a('v_and_b32 v227, 7, v0\nv_bfe_u32 v%d, v0, 3, 1\nv_lshl_add_u32 v227, v227, 1, v%d' % (A, A))
        for n in range(5):
            a('v_add_u32 v%d, s53, v227\nv_add_u32 v%d, %d, v%d' % (A, A, 16*n, A))
            a('v_mul_lo_u32 v%d, v%d, s45\nv_add_u32 v%d, s46, v%d' % (A, A, A, A))
            a('v_and_b32 v%d, 1, v%d\nv_mul_u32_u24 v%d, %d, v%d\nv_add_u32 v%d, v%d, v%d' % (B, A, B, GBLK, B, B, B, D))
            a('v_lshrrev_b32 v%d, 1, v%d\nv_cmp_eq_u32 vcc, 160, v%d\ns_nop 1\nv_cndmask_b32 v%d, v%d, 0, vcc' % (C, A, C, C, C))
            a('v_lshl_add_u32 v%d, v%d, 4, v%d' % (GV+n, C, B))
            if n == 0:
                a('v_cmp_eq_u32 vcc, 0, v%d\nv_mov_b32 v%d, 0x%x\ns_nop 0\nv_cndmask_b32 v%d, v%d, v%d, vcc' % (A, C, OOB, GV, GV, C))
        a('s_mul_i32 s45, s45, s%d\ns_and_b32 s45, s45, 31' % T1)
        a('s_mul_i32 s36, s45, %d\ns_mul_i32 s37, s42, %d\ns_add_u32 s36, s36, s37\ns_add_u32 s36, s36, 0x%x\ns_add_u32 s37, s36, %d' % (GROW, 16*GBLK, G16, 8*GBLK))
        a('s_lshr_b32 s45, s45, 3')
        for t in range(2):
            a('s_lshl_b32 s53, s%d, 9\ns_add_u32 s53, s53, s%d\nv_lshl_add_u32 v%d, v%d, 5, s53' % (44 - t, T1, A+t, J))
        for i in range(4):
            a('s_sub_u32 s53, %d, s45\ns_and_b32 s53, s53, 3\ns_lshl_b32 s46, s42, 5\ns_add_u32 s53, s53, s46' % (i+4))
            a('v_lshl_add_u32 v%d, v%d, 2, s53\nv_add_u32 v%d, 16, v%d' % (C, G_, D, C))
            for t in range(2):
                for d in range(2):
                    r = TM + 2*d
                    a('v_mul_u32_u24 v%d, v%d, v%d' % (r, A+t, C+d))
                    a('v_and_b32 v%d, 2047, v%d\nv_cvt_f32_u32 v%d, v%d\nv_mul_f32 v%d, s47, v%d' % (r, r, r, r, r, r))
                    a('v_sin_f32 v%d, v%d\nv_cos_f32 v%d, v%d' % (r+1, r, r, r))
                a('s_nop 0')
                for d in range(2):
                    a('v_cvt_pk_bf16_f32 v%d, v%d, v%d' % (TW+(t*2+d)*4+i, TM+2*d, TM+2*d+1))

    def p2_help(self):
        a = self.a
        a.label('L_p2_help')
        if self.stage == 'p1':
            a('s_waitcnt vmcnt(0)'); self.dump_stamps(); a('s_endpgm'); return
        ACC, G, TW, OV, GV, XV = 16, 56, self.TW, self.OV, self.GV, self.XV
        def acc(t, n): return ACC + (t*5+n)*4
        a('s_and_b32 s56, s%d, 1\ns_lshr_b32 s57, s%d, 1\nv_lshlrev_b32 v1, 3, v0' % (WAVE, WAVE))
        for m in range(3):
            a('s_add_u32 m0, s40, %d\ns_nop 0\nbuffer_load_dwordx4 v%d, %s, s39 offen lds' % (1024*m, XV+m, s(S_X,4)))
        a('s_mul_i32 s61, s57, 71680\ns_mul_i32 s62, s56, 5120\ns_add_u32 s61, s61, s62\nv_add_u32 v6, s61, v2')
        a('s_mul_i32 s61, s56, 71680\ns_mul_i32 s62, s57, 15360\ns_add_u32 s62, s62, s61\ns_add_u32 s62, s62, 51200\nv_add_u32 v7, s62, v2')
        a('s_mul_i32 s62, s57, 5120\ns_sub_u32 s62, s61, s62\ns_add_u32 s62, s62, 61440\nv_add_u32 v8, s62, v2')
        a('s_waitcnt vmcnt(0)')
        self.stamp(5)
        for n in range(5): a('ds_read_b128 %s, v%d offset:%d' % (v(96+4*n,4), XV+3, 32*n))
        if 'nos' not in self.opt:
            a('s_cmp_ge_u32 s%d, 24\ns_cbranch_scc1 L_p2_sx\nv_mov_b32 v12, %d\ns_mov_b32 s53, 0' % (IDX, self.MISC + 3072))
            a.label('L_p2_sq')
            a('ds_read_b32 v13, v12\ns_add_u32 s53, s53, 1\ns_cmp_gt_u32 s53, 0x%x\ns_cbranch_scc1 L_p2_sx\ns_waitcnt lgkmcnt(0)' % SPIN_MAX)
            a('v_cmp_ne_u32 vcc, 4, v13\ns_cbranch_vccz L_p2_sx\ns_sleep 1\ns_branch L_p2_sq')
            a.label('L_p2_sx')
        self.spin('L_p2_pd', 1, 254, 's38', 8)
        self.stamp(6)
        for d in range(2):
            for n in range(5):
                a('buffer_load_dwordx4 %s, v%d, %s, s%d offen %s' % (v(G+(d*5+n)*4,4), GV+n, s(S_WS,4), 36+d, self.bf))
        a('s_waitcnt lgkmcnt(0)')
        a('v_lshrrev_b32 v9, 5, v0\nv_lshlrev_b32 v9, 4, v9\nv_sub_u32 v9, 16, v9')
        for k in range(20):
            a('v_lshlrev_b32 v%d, v9, v%d\nv_and_b32 v%d, 0xffff0000, v%d' % (96+k, 96+k, acc(0,0)+k, 96+k))
        self.stamp(7)
        a('s_barrier')
        self.stamp(8)
        a('s_waitcnt vmcnt(0)')
        for d in range(2):
            for n in range(5):
                for t in range(2):
                    a('v_mfma_f32_16x16x32_bf16 %s, %s, %s, %s' % (v(acc(t,n),4), v(G+(d*5+n)*4,4), v(TW+(t*2+d)*4,4), v(acc(t,n),4) if (t == 0 or d) else '0'))
        w = ['ds_write_b128 v6, %s offset:%d' % (v(OV+4*g,4), (g//5)*10240 + (g%5)*1024) for g in range(25)]
        w += ['ds_write_b128 v%d, %s offset:%d' % (7+t, v(acc(t,n),4), n*1024) for t in range(2) for n in range(5)]
        for lo, hi in ((0,8),(8,16),(16,24),(24,30),(30,35)):
            a('s_barrier')
            for l in w[lo:hi]: a(l)
            a('s_waitcnt lgkmcnt(0)')
        a('s_barrier')
        a('s_or_b32 s53, s2, s%d\ns_cmp_eq_u32 s53, 0\ns_cbranch_scc0 L_ph_x' % WAVE)
        a('v_mov_b32 v2, 0x%x' % EPOCH)
        self.setflag(2, 4)
        a.label('L_ph_x')
        self.dump_stamps()
        a('s_endpgm')

    def p2_mfma(self):
        a = self.a
        a.label('L_p2_mfma')
        if self.stage == 'p1':
            self.dump_stamps(); a('s_endpgm'); return
        ACC, WB, H = 16, 56, 136
        NH, NWB = 14, 4
        def acc(t, n): return ACC + (t*5+n)*4
        a('s_setprio %s' % self.val.get('mp', '1'))
        a('s_and_b32 s56, s%d, 1\ns_bfe_u32 s57, s%d, 0x10001\nv_lshlrev_b32 v2, 4, v0' % (WAVE, WAVE))
        self.p2_coords()
        a('s_lshl_b32 s58, s56, 1\ns_add_u32 s59, s58, s57\ns_sub_u32 s58, s58, s57\ns_add_u32 s58, s58, 1')
        a('s_lshl_b32 s61, s%d, 2\ns_add_u32 s62, s61, s59\ns_mul_i32 s62, s62, 49152\nv_add_u32 v6, s62, v2' % T1)
        a('s_add_u32 s62, s61, s58\ns_mul_i32 s62, s62, 49152\nv_add_u32 v7, s62, v2')
        a('s_mul_i32 s62, s57, 24\ns_sub_u32 s62, s62, s76\ns_lshl_b32 s62, s62, 10\ns_add_u32 s63, s62, 0x%x\ns_add_u32 s62, s62, 0x%x' % (HF, HF + 24576))
        a('s_mul_i32 s61, s57, 71680\nv_add_u32 v3, s61, v2\nv_add_u32 v4, 0xc800, v3')
        a('s_lshl_b32 s60, s59, 9\ns_add_u32 s60, s60, s%d\ns_mul_i32 s60, s60, 1280\ns_mul_i32 s61, s%d, 160\ns_add_u32 s60, s60, s61' % (T1, CS))
        a('s_and_b32 s74, s%d, 3\ns_xor_b32 s73, s74, 2\ns_mul_i32 s73, s73, 5120\ns_add_u32 s73, s73, 143360' % WAVE)
        a('s_mul_i32 s74, s74, 5120\ns_add_u32 s74, s74, 143360')
        for m in range(3):
            a('v_add_u32 v8, %d, v0\nv_mul_u32_u24 v9, 205, v8\nv_lshrrev_b32 v9, 11, v9' % (64*m))
            a('v_mul_u32_u24 v%d, 10, v9\nv_sub_u32 v8, v8, v%d\nv_lshlrev_b32 v8, 4, v8' % (10+m, 10+m))
            a('v_mul_u32_u24 v%d, 40960, v9\nv_add_u32 v%d, v%d, v8' % (10+m, 10+m, 10+m))
            a('v_mul_u32_u24 v9, 176, v9\nv_add3_u32 v%d, v9, v8, s74' % (13+m))
        a('v_cmp_gt_u32 vcc, 32, v0\nv_mov_b32 v8, 0x%x\ns_nop 0\nv_cndmask_b32 v12, v8, v12, vcc' % OOB)
        a('v_and_b32 v8, 15, v0\nv_mul_u32_u24 v8, 176, v8\nv_bfe_u32 v9, v0, 4, 1\nv_lshl_add_u32 v8, v9, 4, v8\nv_lshrrev_b32 v9, 5, v0\nv_lshl_add_u32 v8, v9, 3, v8\nv_add_u32 v8, s74, v8')
        a('v_add_u32 v9, s73, v2\nv_add_u32 v5, s74, v2')
        a('s_mul_i32 s61, s56, 71680\ns_mul_i32 s53, s57, 10240\ns_add_u32 s61, s61, s53\ns_add_u32 s61, s61, 51200\nv_add_u32 v1, s61, v2')
        hf = self.val.get('hf', 'p')
        k_ = {'p': 1, 'w': 4, 'l': 16}[hf]
        a('s_lshr_b32 s64, s%d, 1\ns_mul_i32 s64, s64, %d\ns_mul_i32 s65, s57, %d\ns_add_u32 s64, s64, s65\ns_add_u32 s64, s64, 0x%x' % (T1, 512*k_, 192*k_, 0 if hf == 'p' else 0xa0000))
        a('v_min_u32 v250, 23, v0\ns_mov_b32 s66, -1')
        if hf == 'w': a('v_and_b32 v251, 3, v250\nv_lshrrev_b32 v250, 2, v250\nv_lshlrev_b32 v250, 7, v250\nv_lshl_add_u32 v250, v251, 3, v250')
        else: a('v_lshlrev_b32 v250, %d, v250' % (3 if hf == 'p' else 7))
        if 'p0late' not in self.opt: a('s_barrier')
        self.stamp(7)
        vm = VM(a)
        late = []
        NG = int(self.val.get('ng', 1))
        def ensure(g, first=False):
            mask = (0xF << 4*g) if not first else (1 << 4*NG) - 1
            L = 'L_en%d' % g
            a('s_and_b32 s67, s66, 0x%x\ns_cbranch_scc1 %s' % (mask, L))
            a.label(L + '_r')
            late.append((L, mask))
        def hload(j):
            if j % 4 == 0 and (j == 0 or j//4 >= NG): ensure(j//4, j == 0)
            if j == 0: self.stamp(8)
            a('s_cmp_le_u32 s76, %d\ns_cselect_b32 s61, s63, s62\ns_add_u32 s61, s61, %d' % (j, j*1024))
            for t in range(2):
                vm.op('buffer_load_dwordx4 %s, v%d, %s, s61 offen %s' % (v(H+(j%NH)*8+4*t,4), 6+t, s(S_WS,4), self.bf), j)
        def wread(j):
            sl = j if j < 14 else j - 14
            return ['ds_read_b128 %s, v%d offset:%d' % (v(WB+(j%NWB)*20+4*n,4), 3 if sl < 10 else 4, (sl if sl < 10 else sl-10)*5120 + n*1024) for n in range(5)]
        PRE = int(self.val.get('hpre', self.h_pre))
        for j in range(PRE): hload(j)
        if 'p0late' in self.opt: a('s_barrier')
        for j in range(2):
            for r in wread(j): a(r)
        nxt = PRE
        for j in range(24):
            vm.wait(j, 'lgkmcnt(%d)' % (5 if j < 23 else 0))
            if j in (0, 4, 9, 17): self.stamp({0: 9, 4: 10, 9: 11, 17: 12}[j])
            if j in (3, 7, 11, 15, 19): a('s_barrier')
            rd = wread(j+2) if j < 22 else []
            k = 0
            for n in range(5):
                for t in range(2):
                    a('v_mfma_f32_16x16x32_bf16 %s, %s, %s, %s' % (v(acc(t,n),4), v(WB+(j%NWB)*20+4*n,4), v(H+(j%NH)*8+4*t,4), v(acc(t,n),4) if j else '0'))
                    if k < len(rd): a(rd[k]); k += 1
                    elif k in (5, 7) and nxt < 24 and nxt < j + NH and (k == 5 or nxt <= j + NH - 2):
                        hload(nxt); nxt += 1; k += 1
                    else: k += 1
        assert nxt == 24
        self.stamp(13)
        a.nop(7)
        for n in range(5): a('ds_write_b128 v9, %s offset:%d' % (v(acc(1,n),4), n*1024))
        a('s_waitcnt lgkmcnt(0)\ns_barrier')
        for n in range(5):
            a('ds_read_b128 %s, v1 offset:%d' % (v(WB+12*n,4), n*1024))
            a('ds_read_b128 %s, v1 offset:%d' % (v(WB+12*n+4,4), 5120 + n*1024))
            a('ds_read_b128 %s, v5 offset:%d' % (v(WB+12*n+8,4), n*1024))
        for n in range(5):
            a('s_waitcnt lgkmcnt(%d)' % (12-2*n))
            for k in range(2):
                a('v_pk_add_f32 %s, %s, %s' % (v(WB+12*n+2*k,2), v(WB+12*n+2*k,2), v(WB+12*n+4+2*k,2)))
                a('v_pk_add_f32 %s, %s, %s' % (v(acc(0,n)+2*k,2), v(acc(0,n)+2*k,2), v(WB+12*n+8+2*k,2)))
            for k in range(2): a('v_pk_add_f32 %s, %s, %s' % (v(acc(0,n)+2*k,2), v(acc(0,n)+2*k,2), v(WB+12*n+2*k,2)))
            a('s_nop 1')
            for k in range(2): a('v_permlane32_swap_b32 v%d, v%d' % (acc(0,n)+k, acc(0,n)+2+k))
            for k in range(2): a('v_cvt_pk_bf16_f32 v%d, v%d, v%d' % (acc(1,n)+k, acc(0,n)+k, acc(0,n)+2+k))
            a('ds_write_b64 v8, %s offset:%d' % (v(acc(1,n),2), 32*n))
        a('s_waitcnt lgkmcnt(0)')
        for m in range(3): a('ds_read_b128 %s, v%d' % (v(WB+4*m,4), 13+m))
        for m in range(3):
            a('s_waitcnt lgkmcnt(%d)' % (2-m))
            a('buffer_store_dwordx4 %s, v%d, %s, s60 offen %s' % (v(WB+4*m,4), 10+m, s(S_OUT,4), self.val.get('of', '').replace('+', ' ')))
        if self.stamps: a('s_waitcnt vmcnt(0)')
        self.dump_stamps()
        a('s_endpgm')
        for L, mask in late:
            a.label(L)
            a('s_mov_b32 s53, 0')
            a.label(L + '_l')
            a('buffer_load_dwordx2 v[254:255], v250, %s, s64 offen sc1' % s(S_WS,4))
            a('s_add_u32 s53, s53, 1\ns_cmp_gt_u32 s53, 0x%x\ns_cbranch_scc1 %s_r\ns_waitcnt vmcnt(0)' % (SPIN_MAX, L))
            a('v_cmp_ne_u64 vcc, s[12:13], v[254:255]\ns_nop 1\ns_mov_b32 s66, vcc_lo\ns_and_b32 s67, s66, 0x%x\ns_cbranch_scc0 %s_r' % (mask, L))
            a('s_sleep %s\ns_branch %s_l' % (self.val.get('hs', '1'), L))

    h_pre = 10

    def build(self, header):
        a = self.a
        self.prologue()
        self.ffn_wloader(); self.ffn_xloader(); self.dft_loader()
        self.dft_consumer(); self.ffn_consumer()
        self.p2_help(); self.p2_mfma()
        a.label('L_end')
        a('s_endpgm')
        errs = check(a.lines)
        for e in errs: print(e, file=sys.stderr)
        txt = header + '; @launch grid=(256,1,1) block=(512,1,1) lds=163840\n' + DOC
        txt += '.amdgcn_target "amdgcn-amd-amdhsa--gfx950"\n.text\n.globl %s\n.p2align 8\n.type %s,@function\n%s:\n' % (KN, KN, KN)
        txt += a.text()
        txt += '''.section .rodata,"a"
.p2align 6
.amdhsa_kernel %s
  .amdhsa_next_free_vgpr 256
  .amdhsa_next_free_sgpr 102
  .amdhsa_accum_offset 256
  .amdhsa_group_segment_fixed_size 0
  .amdhsa_kernarg_size 96
  .amdhsa_user_sgpr_count 2
  .amdhsa_user_sgpr_kernarg_segment_ptr 1
  .amdhsa_system_sgpr_workgroup_id_x 1
.end_amdhsa_kernel
''' % KN
        return txt, errs

if __name__ == '__main__':
    import argparse
    ap = argparse.ArgumentParser()
    ap.add_argument('-o', default='k.s'); ap.add_argument('--stage', default='full'); ap.add_argument('--stamps', action='store_true'); ap.add_argument('--opt', default='')
    args = ap.parse_args()
    ref = open('parallel_sum__spectral_fnet__swiglu_ffn__prompt.s.ref').read()
    header = ''.join(l + '\n' for l in ref.split('\n') if l.startswith(';') and '@launch' not in l and 'Override launch' not in l and 'grid=ceil' not in l)
    txt, errs = Gen(args.stage, args.stamps, [o for o in args.opt.split(',') if o]).build(header)
    open(args.o, 'w').write(txt)
    print('written', args.o, 'hazard errors:', len(errs))
```

```python
import sys
from dsl import *

KN = 'parallel_sum__spectral_fnet__swiglu_ffn__prompt_kernel'
HFLAG   = 0x0
EPOCH   = 0x18000
SFLAG   = 0x8000
STATS   = 0x20000
COLSUM  = 0x28000
STAMPS  = 0x60000
DFLAG   = 0x80000
WDF     = 0x100000
G16     = 0x300000
HF      = 0x600000
WS_SIZE = 0xC00000
LROW = 97*16
GROW = 160*16
GBLK = 32*GROW
SPIN_MAX = 0x100000
OOB = 0x7ffffff0

S_X, S_WS, S_OUT, S_A = 4, 8, 16, 20
NONCE = 12
P_X, P_HRE, P_HIM, P_WG, P_WU, P_WD, P_OUT, P_DBG, P_WS = 28, 32, 34, 36, 38, 40, 42, 44, 46
WAVE, XCD, IDX = 48, 49, 50
T1, CS = 51, 52
HH, DID = 14, 15

DOC = """; out = x + Re(DFT_seq(DFT_hid(LN(x)))) + SwiGLU(LN(x)), one persistent launch, one 8-wave group per CU.
;           the other 64 groups: radix-2 folded hidden DFT + 32-point DFT over rows 64 apart, row statistics.
;  phase 2, every group: 64 rows (t = t1 mod 32) x 80 columns of h*W_down + the closing 64-point stage (twiddles from v_sin/v_cos) + x.
;  Hand-offs inside the launch use write-through stores and flags/records tagged with (word found in d_ws at entry) + 1.
"""

class VM:
    def __init__(self, a): self.a = a; self.q = []
    def op(self, txt, tag): self.a(txt); self.q.append(tag)
    def wait(self, tag, extra=''):
        idx = max([i for i, t in enumerate(self.q) if t == tag], default=-1)
        if idx < 0:
            if extra: self.a('s_waitcnt ' + extra)
            return
        n = len(self.q) - idx - 1
        assert n <= 63
        self.a('s_waitcnt vmcnt(%d) %s' % (n, extra))
        self.q = self.q[idx+1:]
    def drained(self): self.q = []

class Gen:
    def __init__(self, stage='full', stamps=False, opt=()):
        self.a = Asm(); self.stage = stage; self.stamps = stamps; self.opt = set(o.split('=')[0] for o in opt); self.val = dict(o.split('=') for o in opt if '=' in o)
        self.bf = '' if 'plain' in self.opt else 'sc1'
        if 'ph8' not in self.opt:
            self.opt |= ({'ph2', 'pfw', 'nowd', 'pf', 'ft'} if 'hy' in self.opt else {'ph2', 'pfw', 'nowd'} if 'pf' in self.opt else {'ph2', 'ft', 'nowd'})
            for k, d in (('fb','6'),('wds','1'),('pw','11'),('ove','5'),('pf0','2')): self.val.setdefault(k, d)

    def srd(self, dst, ptr, size):
        a = self.a
        a('s_mov_b32 %s, %s' % (s(dst), s(ptr)))
        a('s_mov_b32 %s, %s' % (s(dst+1), s(ptr+1)))
        a('s_mov_b32 %s, 0x%x' % (s(dst+2), size))
        a('s_mov_b32 %s, 0x20000' % s(dst+3))

    def stamp(self, k):
        if self.stamps:
            self.a('%s s[98:99]\ns_waitcnt lgkmcnt(0)\ns_mov_b32 s%d, s98' % ('s_memtime' if 'cyc' in self.opt else 's_memrealtime', 80+k))

    def dump_stamps(self):
        if not self.stamps: return
        a = self.a
        a('s_memtime s[96:97]\ns_waitcnt lgkmcnt(0)\ns_sub_u32 s95, s96, s95')
        a('s_lshl_b32 s96, s2, 3\ns_add_u32 s96, s96, s%d\ns_lshl_b32 s96, s96, 6\ns_add_u32 s96, s96, 0x%x' % (WAVE, STAMPS))
        self.stamp(14)
        if 'probe' in self.opt:
            self.nprobe = getattr(self, 'nprobe', 0) + 1
            k = int(self.val['probe']); L = 'L_pr%d' % self.nprobe
            a('s_cmp_eq_u32 s2, %s\ns_cbranch_scc0 %s_x\ns_cmp_eq_u32 s%d, %s\ns_cbranch_scc0 %s_x' % (self.val.get('pwg', '0'), L, WAVE, self.val.get('pwave', '4'), L))
            a('s_sub_u32 s60, s%d, s80\ns_mul_i32 s60, s60, 10\ns_add_u32 s60, s60, 6000' % (80+k))
            a.label(L)
            a('s_memrealtime s[98:99]\ns_waitcnt lgkmcnt(0)\ns_sub_u32 s61, s98, s80\ns_cmp_lt_u32 s61, s60\ns_cbranch_scc1 %s' % L)
            a.label(L + '_x')
        for k in range(16): a('v_mov_b32 v%d, s%d' % (100+k, 80+k))
        a('v_mov_b32 v99, s96')
        a('s_mov_b64 exec, 1')
        for k in range(4): a('buffer_store_dwordx4 v[%d:%d], v99, %s, 0 offen offset:%d' % (100+4*k, 103+4*k, s(S_WS,4), 16*k))
        a('s_waitcnt vmcnt(0)')

    def nonce(self):
        self.a('s_waitcnt lgkmcnt(0)\ns_add_u32 s12, s12, 1\ns_add_u32 s13, s13, 1')

    def spin(self, lbl, va, vd, soff, sleep, first_done=False):
        a = self.a
        a('s_mov_b32 s53, 0')
        if first_done: a('s_branch %s_c' % lbl)
        a.label(lbl)
        a('buffer_load_dwordx2 %s, v%d, %s, %s offen sc1' % (v(vd,2), va, s(S_WS,4), soff))
        a('s_add_u32 s53, s53, 1\ns_cmp_gt_u32 s53, 0x%x\ns_cbranch_scc1 %s_x' % (SPIN_MAX, lbl))
        a('s_waitcnt vmcnt(0)')
        a.label(lbl + '_c')
        a('v_cmp_ne_u64 vcc, s[12:13], %s' % v(vd,2))
        a('s_cbranch_vccz %s_x\ns_sleep %d\ns_branch %s' % (lbl, sleep, lbl))
        a.label(lbl + '_x')

    def spin3(self, lbl, va, vd, first_done=False):
        a = self.a
        a('s_mov_b32 s53, 0')
        if first_done: a('s_branch %s_c' % lbl)
        a.label(lbl)
        for k in range(3): a('buffer_load_dwordx2 %s, v%d, %s, 0 offen sc1' % (v(vd+2*k,2), va[k], s(S_WS,4)))
        a('s_add_u32 s53, s53, 1\ns_cmp_gt_u32 s53, 0x%x\ns_cbranch_scc1 %s_x' % (SPIN_MAX, lbl))
        a('s_waitcnt vmcnt(0)')
        a.label(lbl + '_c')
        a('v_cmp_ne_u64 vcc, s[12:13], %s\nv_cmp_ne_u64 s[68:69], s[12:13], %s\ns_nop 0\ns_or_b64 vcc, vcc, s[68:69]' % (v(vd,2), v(vd+2,2)))
        a('v_cmp_ne_u64 s[68:69], s[12:13], %s\ns_nop 0\ns_or_b64 vcc, vcc, s[68:69]' % v(vd+4,2))
        a('s_cbranch_vccz %s_x\ns_sleep 8\ns_branch %s' % (lbl, lbl))
        a.label(lbl + '_x')

    def setflag(self, va, vd, mask='1'):
        a = self.a
        a('v_mov_b32 v%d, s12\nv_mov_b32 v%d, s13' % (vd, vd+1))
        a('s_mov_b64 exec, %s' % mask)
        a('buffer_store_dwordx2 %s, v%d, %s, 0 offen sc1' % (v(vd,2), va, s(S_WS,4)))
        a('s_mov_b64 exec, -1')

    def ptrs(self):
        a = self.a
        a('s_mov_b32 s%d, 0x%x\ns_mov_b32 s%d, 0x20000\ns_mov_b32 s%d, 0x20000' % (S_X+2, 2048*640*2, S_X+3, S_A+3))
        a('s_waitcnt lgkmcnt(0)')
        if self.stamps: a('s_mov_b32 s80, s100')
        a('s_mov_b32 s%d, s%d\ns_mov_b32 s%d, s%d' % (S_X, P_X, S_X+1, P_X+1))

    def late(self):
        a = self.a
        a('s_load_dwordx2 s[12:13], s[46:47], 0x%x' % EPOCH)
        if 'map48' in self.opt:
            a('s_lshr_b32 s%d, s%d, 3\ns_lshl_b32 s53, s%d, 2\ns_add_u32 s%d, s%d, s53\ns_and_b32 s%d, s%d, 7' % (T1, IDX, XCD, T1, T1, CS, IDX))
        else:
            a('s_lshr_b32 s%d, s%d, 2\ns_lshr_b32 s53, s%d, 1\ns_lshl_b32 s53, s53, 3\ns_add_u32 s%d, s%d, s53' % (T1, IDX, XCD, T1, T1))
            a('s_and_b32 s%d, s%d, 3\ns_and_b32 s53, s%d, 1\ns_lshl_b32 s53, s53, 2\ns_add_u32 s%d, s%d, s53' % (CS, IDX, XCD, CS, CS))
        a('s_mov_b32 s%d, 0x%x\ns_mov_b32 s%d, 0x20000' % (S_WS+2, WS_SIZE, S_WS+3))
        a('s_mov_b32 s%d, 0x%x\ns_mov_b32 s%d, 0x20000' % (S_OUT+2, 2048*640*2, S_OUT+3))
        for d, p in ((S_WS, P_WS), (S_OUT, P_OUT)):
            a('s_mov_b32 s%d, s%d\ns_mov_b32 s%d, s%d' % (d, p, d+1, p+1))

    def prologue(self):
        a = self.a
        if 'early0' in self.opt: a('s_memrealtime s[100:101]')
        a('s_load_dwordx2 s[28:29], s[0:1], 0')
        a('s_load_dwordx4 s[36:39], s[0:1], 48')
        a('s_load_dwordx8 s[40:47], s[0:1], 64')
        a('s_load_dwordx4 s[32:35], s[0:1], 24')
        a('s_cmp_ge_u32 s2, 256\ns_cbranch_scc1 L_end')
        a('v_lshrrev_b32 v1, 6, v0\nv_and_b32 v0, 63, v0')
        a('v_readfirstlane_b32 s%d, v1' % WAVE)
        a('s_and_b32 s%d, s2, 7\ns_lshr_b32 s%d, s2, 3' % (XCD, IDX))
        if self.stamps:
            for k in range(16): a('s_mov_b32 s%d, 0' % (80+k))
            a('s_mov_b32 s95, 0\ns_memrealtime s[100:101]')
        a('s_cmp_eq_u32 s%d, 7\ns_cbranch_scc0 L_nopf' % WAVE)
        a('s_getpc_b64 s[54:55]')
        a.label('L_pc')
        a('s_mul_i32 s53, s%d, %d' % (IDX, 14*128))
        a('v_min_u32 v2, 13, v0\nv_lshl_add_u32 v2, v2, 7, s53\nv_min_u32 v2, L_end-L_pc, v2')
        a('global_load_dword v1, v2, s[54:55]')
        a.label('L_nopf')
        a('s_mul_i32 s54, s%d, 43\ns_lshr_b32 s54, s54, 7' % IDX)
        a('s_mul_i32 s55, s54, 3\ns_sub_u32 s55, s%d, s55' % IDX)
        a('s_and_b32 s56, s%d, 1\ns_lshl_b32 s56, s56, 3\ns_add_u32 s54, s54, s56' % XCD)
        a('s_lshr_b32 s56, s%d, 1\ns_mul_i32 s56, s56, 3\ns_add_u32 s55, s55, s56' % XCD)
        a('s_cmp_ge_u32 s%d, 24\ns_cbranch_scc1 L_notffn' % IDX)
        a('s_cmp_lt_u32 s%d, 2\ns_cbranch_scc1 L_ffn_wl' % WAVE)
        a('s_cmp_lt_u32 s%d, 4\ns_cbranch_scc1 L_ffn_xl' % WAVE)
        a('s_branch L_ffn_cons')
        a.label('L_notffn')
        if 'ffnonly' in self.opt: a('s_endpgm')
        a('s_and_b32 s54, s%d, 3\ns_lshr_b32 s55, s%d, 2\ns_lshl_b32 s55, s55, 3\ns_add_u32 s54, s54, s55' % (IDX, XCD))
        a('s_and_b32 s55, s%d, 1\ns_lshl_b32 s55, s55, 2\ns_add_u32 s54, s54, s55\ns_bfe_u32 s55, s%d, 0x10001' % (XCD, XCD))
        a('s_bfe_u32 s%d, s%d, 0x10002\ns_lshl_b32 s%d, s54, 1\ns_add_u32 s%d, s%d, s55\ns_lshl_b32 s%d, s%d, 1\ns_add_u32 s%d, s%d, s%d' % (HH, IDX, DID, DID, DID, DID, DID, DID, DID, HH))
        if 'pf' in self.opt:
            a('s_waitcnt lgkmcnt(0)'); self.prefetch()
        a('s_cmp_lt_u32 s%d, 4\ns_cbranch_scc1 L_dft_ld' % WAVE)
        a('s_branch L_dft_cons')

    WSLOT, NWS = 16384, 6
    XB, XSLOT, NXS = 98304, 16384, 3
    MISC = 147456

    def wvoff(self, dst0, rowbytes, tmp):
        a = self.a
        t = tmp
        a('v_lshrrev_b32 v%d, 3, v0' % t)
        a('v_bfe_u32 v%d, v0, 4, 1' % (t+1))
        a('v_bfe_u32 v%d, v0, 1, 2' % (t+2))
        a('v_xor_b32 v%d, v%d, v%d' % (t+2, t+2, t+1))
        a('v_and_b32 v%d, 1, v0' % (t+1))
        a('v_lshlrev_b32 v%d, 4, v%d' % (t+1, t+1))
        a('v_lshl_add_u32 v%d, v%d, 5, v%d' % (t+2, t+2, t+1))
        a('v_mul_u32_u24 v%d, %d, v%d' % (t, rowbytes, t))
        a('v_add_u32 v%d, v%d, v%d' % (dst0, t, t+2))
        a('v_xor_b32 v%d, 64, v%d' % (t+2, t+2))
        a('v_add_u32 v%d, v%d, v%d' % (dst0+1, t, t+2))
        a('v_add_u32 v%d, %d, v%d' % (dst0+1, 8*rowbytes, dst0+1))
        a('v_add_u32 v%d, %d, v%d' % (dst0+2, 16*rowbytes, dst0))
        a('v_add_u32 v%d, %d, v%d' % (dst0+3, 16*rowbytes, dst0+1))

    def phase(self, dst):
        a = self.a
        a('s_mul_i32 s64, s%d, 43\ns_lshr_b32 s64, s64, 7\ns_mul_i32 s65, s64, 3\ns_sub_u32 s65, s%d, s65' % (IDX, IDX))
        if 'ph0' in self.opt: a('s_mov_b32 s%d, 0' % dst)
        elif 'ph2' not in self.opt and 'ph4' not in self.opt:
            a('s_lshr_b32 s%d, s64, 2\ns_add_u32 s%d, s%d, s64' % (dst, dst, dst))
            a('s_mul_i32 s53, s65, 7\ns_lshr_b32 s53, s53, 1\ns_add_u32 s%d, s%d, s53' % (dst, dst))
            a('s_cmp_ge_u32 s%d, 10\ns_cselect_b32 s53, 10, 0\ns_sub_u32 s%d, s%d, s53' % (dst, dst, dst))
        elif 'ph4' in self.opt:
            a('s_and_b32 s%d, s64, 3\ns_mul_i32 s%d, s%d, 5\ns_lshr_b32 s%d, s%d, 1' % (dst, dst, dst, dst, dst))
        else: a('s_and_b32 s%d, s64, 1\ns_mul_i32 s%d, s%d, 5' % (dst, dst, dst))

    def prefetch(self):
        a = self.a
        a('s_sub_u32 s56, s%d, 24' % IDX)
        a('s_bitcmp0_b32 s%d, 0' % XCD)
        a('s_cselect_b32 s24, s%d, s%d\ns_cselect_b32 s25, s%d, s%d\ns_mov_b32 s26, 0x%x\ns_mov_b32 s27, 0x20000' % (P_WG, P_WU, P_WG+1, P_WU+1, 640*1536*2))
        a('v_min_u32 v1, 47, v0\nv_mul_u32_u24 v2, 43, v1\nv_lshrrev_b32 v2, 8, v2')
        a('v_mul_u32_u24 v3, 6, v2\nv_sub_u32 v1, v1, v3\nv_lshlrev_b32 v1, 7, v1')
        a('v_lshrrev_b32 v3, 2, v2\nv_mul_u32_u24 v3, 320, v3\nv_and_b32 v2, 3, v2\nv_add_u32 v2, v2, v3\nv_mul_u32_u24 v2, 3072, v2\nv_add_u32 v2, v2, v1')
        a('s_lshr_b32 s57, s%d, 1\ns_mul_i32 s58, s57, 768\ns_mul_i32 s59, s56, 12288\ns_add_u32 s58, s58, s59' % XCD)
        a('s_and_b32 s59, s%d, 1\ns_lshl_b32 s59, s59, 4\ns_lshl_b32 s57, s57, 9\ns_add_u32 s57, s57, s59\ns_lshl_b32 s59, s56, 5\ns_add_u32 s57, s57, s59\ns_mul_i32 s57, s57, 1280' % XCD)
        a('v_and_b32 v3, 15, v0\nv_mul_u32_u24 v3, 1280, v3\nv_bfe_u32 v4, v0, 1, 1\nv_mul_u32_u24 v4, 5, v4')
        S0 = int(self.val.get('pf0', 1))
        def slot(sreg):
            a('s_mul_i32 s60, s%d, %d\ns_add_u32 s60, s60, s58' % (sreg, 32*3072))
            a('buffer_load_dword v255, v2, s[24:27], s60 offen')
            if 'pfw' in self.opt: return
            a('s_lshr_b32 s60, s%d, 1\nv_add_u32 v5, s60, v4\nv_lshl_add_u32 v5, v5, 7, v3\ns_and_b32 s60, s%d, 1\ns_mul_i32 s60, s60, %d\ns_add_u32 s60, s60, s57' % (sreg, sreg, 256*1280))
            a('s_mov_b64 exec, 0xffff\nbuffer_load_dword v255, v5, %s, s60 offen\ns_mov_b64 exec, -1' % s(S_X,4))
        a('s_add_u32 s61, s%d, %d\ns_cmp_lt_u32 s61, 10\ns_cbranch_scc0 L_pf_e' % (WAVE, S0))
        slot(61)
        a('s_add_u32 s61, s61, 8\ns_cmp_lt_u32 s61, 10\ns_cbranch_scc0 L_pf_x')
        slot(61)
        a('s_branch L_pf_e')
        a.label('L_pf_x')
        a('s_cmp_lt_u32 s61, %d\ns_cbranch_scc0 L_pf_e' % (0 if 'pfw' in self.opt else 13))
        a('s_sub_u32 s61, s61, 10\ns_lshl_b32 s61, s61, 2\nv_lshrrev_b32 v5, 4, v0\nv_add_u32 v5, s61, v5\nv_min_u32 v5, 9, v5')
        a('v_and_b32 v6, 1, v5\nv_mul_u32_u24 v6, %d, v6\nv_add_u32 v3, v3, v6\nv_lshrrev_b32 v5, 1, v5\nv_sub_u32 v5, v5, v4\nv_add_u32 v5, 5, v5\nv_lshl_add_u32 v5, v5, 7, v3' % (256*1280))
        a('buffer_load_dword v255, v5, %s, s57 offen' % s(S_X,4))
        a.label('L_pf_e')

    def p2_coords(self):
        a = self.a
        if 'rho' not in self.opt: a('s_mov_b32 s76, 0')
        elif 'rho2' in self.opt:
            a('s_and_b32 s76, s%d, 7\ns_and_b32 s53, s%d, 3\ns_lshl_b32 s53, s53, 1\ns_add_u32 s76, s76, s53\ns_and_b32 s76, s76, 7\ns_mul_i32 s76, s76, 3' % ((CS, T1) if 'map48' in self.opt else (T1, CS)))
        elif 'map48' in self.opt: a('s_and_b32 s76, s%d, 3\ns_mul_i32 s76, s76, 6' % T1)
        else: a('s_and_b32 s76, s%d, 7\ns_mul_i32 s76, s76, 3' % T1)
        a('s_mul_i32 s77, s%d, 245760\ns_mul_i32 s53, s76, 5120\ns_add_u32 s77, s77, s53\ns_add_u32 s77, s77, 0x%x\ns_sub_u32 s75, s77, 122880\ns_sub_u32 s76, 24, s76' % (CS, WDF))

    def wd_dma(self, vm, frags, voff):
        a = self.a; last = None
        for f in frags:
            half, r = divmod(f, 70); j, n = divmod(r, 5)
            if j != last: a('s_cmp_le_u32 s76, %d\ns_cselect_b32 s74, s75, s77' % j); last = j
            a('s_add_u32 m0, %d, 0\ns_add_u32 s78, s74, %d' % (f*1024, half*122880 + j*5120 + n*1024))
            vm.op('buffer_load_dwordx4 v%d, %s, s78 offen %s lds' % (voff, s(S_WS,4), self.bf), 'wd')

    OV = 128
    def ov_setup(self):
        a = self.a
        a('s_lshr_b32 s53, s%d, 1\ns_mul_i32 s72, s53, 122880\ns_and_b32 s53, s%d, 1\ns_sub_i32 s71, s76, s53\ns_mul_i32 s53, s53, 5120\ns_add_u32 s72, s72, s53' % (WAVE, WAVE))
        a('s_add_u32 s73, s72, s75\ns_add_u32 s72, s72, s77')
    def ov_load(self, vm, i, voff):
        a = self.a
        a('s_cmp_le_i32 s71, %d\ns_cselect_b32 s74, s73, s72\ns_add_u32 s74, s74, %d\ns_add_u32 s78, s74, 4096' % (14+2*i, (14+2*i)*5120))
        for n in range(5):
            vm.op('buffer_load_dwordx4 %s, v%d, %s, %s offen offset:%d %s' % (v(self.OV+20*i+4*n,4), voff, s(S_WS,4), 's74' if n < 4 else 's78', (n&3)*1024, self.bf), 'ov')

    def ffn_wloader(self):
        a = self.a; vm = VM(a)
        a.label('L_ffn_wl')
        self.wvoff(4, 3072, 8)
        self.phase(58)
        a('s_lshl_b32 s59, s55, 8\ns_mul_i32 s56, s58, %d\ns_add_u32 s56, s56, s59\ns_add_u32 s59, s59, %d' % (64*3072, 640*3072))
        a('s_lshl_b32 s57, s%d, 13' % WAVE)
        self.ptrs()
        a('s_cmp_eq_u32 s%d, 0' % WAVE)
        a('s_cselect_b32 s%d, s%d, s%d\ns_cselect_b32 s%d, s%d, s%d' % (S_A, P_WG, P_WU, S_A+1, P_WG+1, P_WU+1))
        a('s_mov_b32 s%d, 0x%x' % (S_A+2, 640*1536*2))
        def issue(n):
            for b in range(2):
                for j in range(4):
                    a('s_add_u32 m0, s57, %d' % ((n % self.NWS)*self.WSLOT + b*4096 + j*1024 - b*128))
                    a('s_nop 0')
                    if 'now' not in self.opt: vm.op('buffer_load_dwordx4 v%d, %s, s56 offen offset:%d %s lds' % (4+j, s(S_A,4), b*128, 'nt' if 'ntw' in self.opt else ''), n)
            a('s_add_u32 s56, s56, %d' % (32*3072))
            if n & 1: a('s_cmp_eq_u32 s56, s59\ns_cselect_b32 s60, %d, 0\ns_sub_u32 s56, s56, s60' % (640*3072))
        L0 = int(self.val.get('wl', 2)); L1 = int(self.val.get('wl1', 4)); R0 = int(self.val.get('wr', 6))
        LP = int(self.val.get('wpre', L0))
        sched = {-1: list(range(LP))}; front = LP
        for m in range(20):
            lead = L0 if m < R0 else min(L1, L0 + (m - R0)//2 + 1)
            sched[m] = []
            while front < 20 and front <= m + lead and front <= m + 5: sched[m].append(front); front += 1
        self.stamp(12)
        IB = int(self.val.get('ib', 1))
        for k_, n in enumerate(sched[-1]):
            issue(n)
            if k_ + 1 == IB: a('s_barrier')
        self.stamp(13)
        self.late()
        self.nonce()
        self.p2_coords(); self.ov_setup()
        a('v_lshlrev_b32 v2, 4, v0')
        self.p2_prep()
        WI = int(self.val.get('wi', 0)); WP = int(self.val.get('wp', 3)); FB = int(self.val.get('fb', 7))
        for m in range(15):
            vm.wait(m)
            if m == 0: self.stamp(1)
            a('s_barrier')
            for n in sched.get(m, []): issue(n)
            if m == WI and 'nowd' not in self.opt:
                for i in range(2):
                    for j in range(4):
                        a('s_add_u32 m0, s67, %d\ns_nop 0' % (i*8192 + j*1024))
                        vm.op('buffer_load_dwordx4 v%d, s[24:27], s%d offen nt lds' % (12+j, 68+i), 'wu')
            if m == WP and 'nowd' not in self.opt:
                vm.wait('wu')
                for i in range(2):
                    for ct in range(4):
                        for q in range(2): a('ds_read_b64_tr_b16 %s, v%d offset:%d' % (v(24+16*i+4*ct+2*q,2), 16+ct, i*8192 + q*2048))
                a('s_waitcnt lgkmcnt(0)')
                for k in range(8): vm.op('buffer_store_dwordx4 %s, v2, %s, s%d offen sc1' % (v(24+4*k,4), s(S_WS,4), 28+k), 'wo')
            for i in self.ov_sched(m): self.ov_load(vm, i, 2)
        a('s_cmp_eq_u32 s%d, 0\ns_cbranch_scc0 L_wl_t1' % WAVE)
        q0 = list(vm.q)
        for w in range(2):
            vm.q = list(q0)
            if w: a.label('L_wl_t1')
            for m in range(15, 21):
                if m < 20: vm.wait(m)
                a('s_barrier')
                for n in sched.get(m, []): issue(n)
                sl = (m-1) % 6
                self.wd_dma(vm, range(16*sl + 8*w, 16*sl + 8*w + 8), 2)
                for i in self.ov_sched(m): self.ov_load(vm, i, 2)
            self.stamp(2)
            a('s_branch L_p2_help')

    def ov_sched(self, m):
        assert int(self.val.get('pw', 12)) + 3 <= {'0':15,'1':15,'2':15,'5':14,'3':13,'4':13,'6':10,'7':10,'8':9}[self.val.get('ove', '1')]
        return {'0': {20: [0,1,2,3,4]}, '1': {19: [0], 20: [1,2,3,4]}, '2': {17: [0], 19: [1], 20: [2,3,4]}, '3': {13: [0], 14: [1], 17: [2], 19: [3], 20: [4]}, '4': {13: [0], 14: [1], 17: [2], 18: [3], 19: [4]}, '5': {14: [0], 17: [1], 19: [2], 20: [3,4]}, '6': {10: [0], 11: [1], 12: [2], 13: [3], 14: [4]}, '7': {10: [0], 12: [1], 14: [2], 17: [3], 19: [4]}, '8': {9: [0], 11: [1], 13: [2], 17: [3], 19: [4]}}[self.val.get('ove', '1')].get(m, [])

    def tw_addr(self, dst):
        a = self.a
        a('v_lshrrev_b32 v%d, 4, v0\nv_lshlrev_b32 v%d, 5, v%d\nv_bfe_u32 v1, v0, 1, 3\nv_add_u32 v%d, v%d, v1' % (dst, dst, dst, dst, dst))
        a('s_lshr_b32 s53, s64, 1\ns_lshl_b32 s53, s53, 3\nv_add_u32 v%d, s53, v%d\nv_mul_u32_u24 v%d, 3072, v%d' % (dst, dst, dst, dst))
        a('v_and_b32 v1, 1, v0\nv_lshl_add_u32 v%d, v1, 7, v%d' % (dst, dst))
    def tx_addr(self, dst, half):
        a = self.a
        a('v_and_b32 v%d, 15, v0\nv_lshlrev_b32 v%d, 5, v%d\nv_lshrrev_b32 v1, 4, v0\nv_lshl_add_u32 v%d, v1, 9, v%d' % (dst, dst, dst, dst, dst))
        a('s_lshl_b32 s53, s54, 1\ns_add_u32 s53, s53, s%d\nv_add_u32 v%d, s53, v%d\nv_mul_u32_u24 v%d, 1280, v%d' % (half, dst, dst, dst, dst))
    def tx_off(self, dst, ph, r):
        a = self.a
        a('s_add_u32 s%d, s%d, s65\ns_add_u32 s%d, s%d, %d\ns_cmp_ge_u32 s%d, 10\ns_cselect_b32 s53, 10, 0\ns_sub_u32 s%d, s%d, s53\ns_lshl_b32 s%d, s%d, 7' % (dst, ph, dst, dst, 3*r, dst, dst, dst, dst, dst))
        if r == 3: a('s_cmp_eq_u32 s65, 0\ns_cselect_b32 s%d, s%d, 0x%x' % (dst, dst, OOB))

    def wtouch(self, unit_sgpr, nlanes, step0, dst):
        a = self.a
        a('s_bitcmp0_b32 s%d, 0' % XCD)
        a('s_cselect_b32 s24, s%d, s%d\ns_cselect_b32 s25, s%d, s%d\ns_mov_b32 s26, 0x%x\ns_mov_b32 s27, 0x20000' % (P_WG, P_WU, P_WG+1, P_WU+1, 640*1536*2))
        a('s_mul_i32 s53, s%d, %d' % (unit_sgpr, nlanes))
        a('v_min_u32 v1, %d, v0\nv_add_u32 v1, s53, v1\nv_mul_u32_u24 v%d, 10923, v1\nv_lshrrev_b32 v%d, 16, v%d' % (nlanes-1, dst-1, dst-1, dst-1))
        a('v_mul_u32_u24 v%d, 2304, v%d\nv_lshl_add_u32 v1, v1, 7, v%d' % (dst-1, dst-1, dst-1))
        a('s_lshr_b32 s53, s%d, 1\ns_mul_i32 s53, s53, 768\ns_add_u32 s53, s53, %d' % (XCD, step0*32*3072))
        r = 'buffer_load_dword v%d, v1, s[24:27], s53 offen %s' % (dst, 'nt' if 'tnt' in self.opt else '')
        if 'tboth' in self.opt:
            a(r)
            a('s_bitcmp0_b32 s%d, 0' % XCD)
            a('s_cselect_b32 s68, s%d, s%d\ns_cselect_b32 s69, s%d, s%d\ns_mov_b32 s70, 0x%x\ns_mov_b32 s71, 0x20000' % (P_WU, P_WG, P_WU+1, P_WG+1, 640*1536*2))
            r = r.replace('s[24:27]', 's[68:71]')
        return r

    def xtouch(self, unit_sgpr, rows, c0, c1, dst):
        a = self.a
        n = rows*(c1-c0); assert n <= 64
        mag = (2048 + rows - 1)//rows
        assert all((l*mag) >> 11 == l//rows for l in range(64))
        a('v_min_u32 v1, %d, v0\nv_mul_u32_u24 v%d, %d, v1\nv_lshrrev_b32 v%d, 11, v%d' % (n-1, dst, mag, dst, dst))
        a('v_mul_u32_u24 v%d, %d, v%d\nv_sub_u32 v1, v1, v%d\nv_mul_u32_u24 v1, 1280, v1\nv_lshl_add_u32 v1, v%d, 7, v1' % (dst-1, rows, dst, dst-1, dst))
        a('s_mul_i32 s53, s%d, %d' % (unit_sgpr, rows*1280))
        return 'buffer_load_dword v%d, v1, %s, s53 offen offset:%d' % (dst, s(S_X,4), 128*c0)

    def touch_spec(self, spec, unit_sgpr, nunits, dst):
        kind, rng = spec[0], spec[1:].split('-'); lo, hi = int(rng[0]), int(rng[1])
        if kind == 'W':
            nl = (hi-lo)*8; assert nl <= 64, spec
            return self.wtouch(IDX, nl, lo, dst)
        return self.xtouch(unit_sgpr, -(-2048//nunits), lo, hi, dst)

    def ffn_xloader(self):
        a = self.a; vm = VM(a)
        a.label('L_ffn_xl')
        a('s_sub_u32 s56, s%d, 2' % WAVE)
        a('v_lshrrev_b32 v2, 3, v0\nv_lshrrev_b32 v3, 4, v0')
        a('s_lshl_b32 s57, s56, 2')
        a('v_add_u32 v3, s57, v3\nv_and_b32 v12, 7, v0\nv_xor_b32 v3, v3, v12\nv_lshlrev_b32 v3, 4, v3')
        a('v_mul_u32_u24 v2, 40960, v2\nv_add_u32 v2, v2, v3')
        a('s_lshl_b32 s57, s56, 8\ns_lshl_b32 s58, s54, 1\ns_add_u32 s57, s57, s58\ns_mul_i32 s57, s57, 1280')
        a('v_add_u32 v4, s57, v2')
        for tt in range(1, 8):
            a('v_add_u32 v%d, %d, v4' % (4+tt, ((tt>>2) + 512*(tt&3))*1280))
        a('s_lshl_b32 s57, s56, 10')
        self.phase(58)
        a('s_lshl_b32 s58, s58, 7')
        def issue(c):
            for tt in range(8):
                a('s_add_u32 m0, s57, %d' % (self.XB + (c % self.NXS)*self.XSLOT + tt*2048))
                a('s_nop 0')
                if 'nox' not in self.opt: vm.op('buffer_load_dwordx4 v%d, %s, s58 offen %s lds' % (4+tt, s(S_X,4), 'nt' if 'ntx' in self.opt else ''), c)
            a('s_add_u32 s58, s58, 128\ns_cmp_eq_u32 s58, 1280\ns_cselect_b32 s58, 0, s58')
        a('s_lshr_b32 s59, s58, 7')
        self.ptrs()
        self.stamp(12)
        issue(0)
        if int(self.val.get('ib', 1)): a('s_barrier')
        self.stamp(13)
        self.late()
        XP = int(self.val.get('xp', 1))
        if XP == 2: issue(1)
        self.p2_coords(); self.ov_setup()
        a('v_lshlrev_b32 v2, 4, v0')
        self.tw_addr(80); self.tx_addr(81, 56)
        a('s_cmp_eq_u32 s56, 0')
        a('s_cselect_b32 s%d, s%d, s%d\ns_cselect_b32 s%d, s%d, s%d\ns_mov_b32 s%d, 0x%x' % (S_A, P_WG, P_WU, S_A+1, P_WG+1, P_WU+1, S_A+2, 640*1536*2))
        a('s_mul_i32 s66, s59, %d\ns_lshl_b32 s67, s55, 8\ns_add_u32 s66, s66, s67' % (64*3072))
        TB = {}
        for spec in self.val.get('tp', '0').split('+'):
            if spec == '0': continue
            k, m = spec.split('@'); TB.setdefault(int(m), []).append(k)
        def touch(k):
            if k[0] == 'w':
                n0 = int(k[1:])
                a('s_add_u32 s67, s66, %d' % (n0*32*3072))
                if n0 == 8: a('v_and_b32 v1, 31, v0\nv_lshlrev_b32 v1, 2, v1\nds_bpermute_b32 v80, v1, v80\ns_waitcnt lgkmcnt(0)')
                vm.op('buffer_load_dword v255, v80, %s, s67 offen' % s(S_A,4), 't')
            else:
                self.tx_off(67, 59, int(k[1:]))
                vm.op('buffer_load_dword v255, v81, %s, s67 offen' % s(S_X,4), 't')
        self.p2_prep()
        self.nonce()
        a('s_cmp_eq_u32 s56, 0\ns_cbranch_scc0 L_ffn_xl3')
        q0 = list(vm.q)
        PW = int(self.val.get('pw', 12)); PS = int(self.val.get('ps', 15)); PH2 = 'ph2' in self.opt; NP = 2 if PH2 else 8; PC = int(self.val.get('pc', 15 if PH2 else 10)); FB = int(self.val.get('fb', 7))
        for role in (2, 3):
            vm.q = list(q0)
            if role == 2:
                if PH2:
                    a('v_lshrrev_b32 v12, 4, v0\nv_bfe_u32 v13, v0, 2, 2')
                    a('v_lshl_add_u32 v14, v12, 3, v13\nv_lshlrev_b32 v14, 7, v14')
                    a('v_and_b32 v13, 3, v0\nv_lshl_add_u32 v14, v13, 3, v14')
                    a('v_bfe_u32 v13, v0, 3, 1\nv_bfe_u32 v15, v0, 4, 1\nv_lshl_add_u32 v13, v15, 1, v13')
                    a('s_and_b32 s60, s54, 2\nv_xor_b32 v13, s60, v13\nv_lshl_add_u32 v14, v13, 5, v14')
                    a('s_lshr_b32 s60, s54, 2\ns_lshl_b32 s60, s60, 12\nv_add_u32 v16, s60, v14\nv_xor_b32 v17, 32, v16')
                    a('v_add_u32 v18, %d, v16\nv_add_u32 v19, %d, v17' % (3*self.WSLOT, 3*self.WSLOT))
                    for k in range(4): a('v_mov_b32 v%d, 0x3f803f80' % (20+k))
                    for k in range(8): a('v_mov_b32 v%d, 0' % (24+k))
                    a('s_and_b32 s61, s54, 1\ns_mul_i32 s61, s61, 24576\ns_lshr_b32 s62, s54, 3\ns_mul_i32 s62, s62, 12288\ns_add_u32 s61, s61, s62')
                    a('s_lshl_b32 s62, s55, 10\ns_add_u32 s61, s61, s62\ns_bfe_u32 s62, s54, 0x20001\ns_lshl_b32 s62, s62, 8\ns_add_u32 s61, s61, s62\ns_add_u32 s61, s61, 0x%x' % COLSUM)
                else:
                    a('v_lshrrev_b32 v12, 4, v0\nv_bfe_u32 v13, v0, 2, 2')
                    a('v_lshl_add_u32 v14, v12, 3, v13\nv_lshlrev_b32 v14, 7, v14')
                    a('v_and_b32 v13, 3, v0\nv_lshl_add_u32 v14, v13, 3, v14')
                    a('v_bfe_u32 v13, v0, 3, 1\nv_bfe_u32 v15, v0, 4, 1\nv_lshl_add_u32 v13, v15, 1, v13')
                    a('v_lshl_add_u32 v14, v13, 5, v14')
                    a('s_lshr_b32 s60, s54, 3\ns_lshl_b32 s60, s60, 13\nv_add_u32 v16, s60, v14')
                    for ct in range(1, 4): a('v_xor_b32 v%d, %d, v16' % (16+ct, 32*ct))
                    for k in range(4): a('v_mov_b32 v%d, 0x3f803f80' % (20+k))
                    for k in range(32): a('v_mov_b32 v%d, 0' % (88+k))
                    a('s_mul_i32 s61, s64, 24576\ns_lshr_b32 s62, s54, 3\ns_mul_i32 s62, s62, 12288\ns_add_u32 s61, s61, s62')
                    a('s_lshl_b32 s62, s55, 10\ns_add_u32 s61, s61, s62\ns_add_u32 s61, s61, 0x%x' % COLSUM)
                a('v_lshlrev_b32 v56, 5, v12\nv_and_b32 v13, 1, v0\nv_lshl_add_u32 v56, v13, 4, v56')
                a('s_lshl_b32 s62, s55, 4\ns_add_u32 s62, s62, s54\ns_lshl_b32 s62, s62, 7\ns_add_u32 s62, s62, 0x%x\nv_mov_b32 v57, s62' % (SFLAG))
                a('v_and_b32 v12, 15, v0\nv_lshlrev_b32 v12, 5, v12')
                a('v_lshrrev_b32 v13, 4, v0\nv_lshl_add_u32 v12, v13, 9, v12')
                a('s_lshl_b32 s60, s54, 1\nv_add_u32 v12, s60, v12')
                a('v_lshlrev_b32 v12, 4, v12\nv_add_u32 v12, 0x%x, v12' % STATS)
                a('v_lshlrev_b32 v13, 4, v0\nv_add_u32 v13, %d, v13' % self.MISC)
                a('v_lshlrev_b32 v14, 7, v0\nv_add_u32 v14, 0x%x, v14\nv_add_u32 v15, 8192, v14\nv_add_u32 v58, 16384, v14' % SFLAG)
                rl = ['buffer_load_dwordx4 v[64:67], v12, %s, 0 offen sc1' % s(S_WS,4), 'buffer_load_dwordx4 v[68:71], v12, %s, 0 offen offset:16 sc1' % s(S_WS,4)]
                tags = [66, 70]
            else:
                a.label('L_ffn_xl3')
                a('v_mov_b32 v12, %d\nv_mov_b32 v13, 0\nds_write_b32 v12, v13' % (self.MISC + 3072))
                a('v_lshrrev_b32 v13, 5, v0\nv_mul_u32_u24 v13, 12288, v13')
                a('v_and_b32 v12, 31, v0\nv_lshl_add_u32 v12, v12, 5, v13')
                a('s_lshl_b32 s60, s55, 10\ns_add_u32 s60, s60, 0x%x\nv_add_u32 v12, s60, v12' % COLSUM)
                a('v_lshlrev_b32 v13, 4, v0\nv_add_u32 v13, %d, v13' % (self.MISC+2048))
                for k in range(1, 8): a('s_mov_b32 s%d, %d' % (27+k, 24576*k))
                rl = ['buffer_load_dwordx4 %s, v12, %s, %s offen offset:%d sc1' % (v(16+8*p+4*h,4), s(S_WS,4), 's%d' % (27+p) if p else '0', 16*h) for p in range(NP) for h in range(2)]
                tags = [18+4*k for k in range(2*NP)]
            for m in range(21):
                if m % 2 == 0 and m < 20: vm.wait(m//2)
                if m == 20: a('s_waitcnt lgkmcnt(0)')
                a('s_barrier')
                if role == 2:
                    if m == PW + 2:
                        vm.wait('pw')
                        if 'nospin' not in self.opt: self.spin3('L_xl_sw', (14,15,58), 72, True)
                    if m == PW:
                        for k in range(3): vm.op('buffer_load_dwordx2 %s, v%d, %s, 0 offen sc1' % (v(72+2*k,2), (14,15,58)[k], s(S_WS,4)), 'pw')
                    if m == FB:
                        self.setflag(57, 60); vm.q.append('fl')
                    if m == 4 and not PH2:
                        a('v_and_b32 v1, 1, v0\nv_cmp_eq_u32 vcc, 1, v1\ns_nop 1')
                        for ct in range(8):
                            b = 88+4*ct
                            a('v_cndmask_b32 v%d, v%d, v%d, vcc\nv_cndmask_b32 v%d, v%d, v%d, vcc\nv_mov_b32 v%d, s12\nv_mov_b32 v%d, s13' % (b, b, b+2, b+1, b+1, b+3, b+2, b+3))
                        a('s_mov_b32 exec_lo, 0x00030003\ns_mov_b32 exec_hi, 0x00030003')
                        for ct in range(8): vm.op('buffer_store_dwordx4 %s, v56, %s, s61 offen offset:%d sc1' % (v(88+4*ct,4), s(S_WS,4), 128*ct), 'cs')
                        a('s_mov_b64 exec, -1')
                    if m == 10 and PH2:
                        a('v_and_b32 v1, 1, v0\nv_cmp_eq_u32 vcc, 1, v1\nv_mov_b32 v34, s12\nv_mov_b32 v35, s13\nv_mov_b32 v38, s12\nv_mov_b32 v39, s13')
                        for ct in range(2): a('v_cndmask_b32 v%d, v%d, v%d, vcc\nv_cndmask_b32 v%d, v%d, v%d, vcc' % (32+4*ct, 24+4*ct, 26+4*ct, 33+4*ct, 25+4*ct, 27+4*ct))
                        a('s_mov_b32 exec_lo, 0x00030003\ns_mov_b32 exec_hi, 0x00030003')
                        for ct in range(2): vm.op('buffer_store_dwordx4 %s, v56, %s, s61 offen offset:%d sc1' % (v(32+4*ct,4), s(S_WS,4), 128*ct), 'cs')
                        a('s_mov_b64 exec, -1')
                if m == (PS if role == 2 else PC):
                    for l in rl: vm.op(l, 'st')
                if m == (PS if role == 2 else PC) + 2:
                    vm.wait('st')
                    a('s_mov_b32 s53, 0')
                    a.label('L_xl_rs%d' % role)
                    a('v_cmp_ne_u64 vcc, s[12:13], %s' % v(tags[0],2))
                    for t in tags[1:]: a('v_cmp_ne_u64 s[68:69], s[12:13], %s\ns_nop 0\ns_or_b64 vcc, vcc, s[68:69]' % v(t,2))
                    a('s_cbranch_vccz L_xl_rx%d\ns_add_u32 s53, s53, 1\ns_cmp_gt_u32 s53, 0x%x\ns_cbranch_scc1 L_xl_rx%d\ns_sleep 2' % (role, 0 if 'nospin' in self.opt else SPIN_MAX, role))
                    for l in rl: a(l)
                    a('s_waitcnt vmcnt(0)\ns_branch L_xl_rs%d' % role)
                    a.label('L_xl_rx%d' % role)
                    if role == 2:
                        for b in (64, 68):
                            a('v_rsq_f32 v%d, v%d\nv_mov_b32 v%d, v%d\nv_mul_f32 v%d, 0xbfb8aa3b, v%d' % (b+3, b+1, b+2, b+1, b+1, b+3))
                        a('ds_write_b128 v13, v[64:67]\nds_write_b128 v13, v[68:71] offset:1024')
                    else:
                        for w_ in ((8,) if PH2 else (32, 16, 8)):
                            for k in range(0, w_, 4): a('v_add_f32 v%d, v%d, v%d\nv_add_f32 v%d, v%d, v%d' % (16+k, 16+k, 16+w_+k, 17+k, 17+k, 17+w_+k))
                        a('v_mov_b32 v18, v20\nv_mov_b32 v19, v21')
                        a('ds_write_b128 v13, v[16:19]')
                for c in range(XP, 10):
                    when = max(0, 2*c - 2 - int(self.val.get('xl%d' % role, 1 if role == 2 else 0)))
                    if c >= int(self.val.get('xr', 4)): when = max(0, 2*c - (4 if role == 2 else 3))
                    if when == m: issue(c)
                for k in TB.get(m, []): touch(k)
                if role == 2 and m < 4 and not PH2:
                    if m >= 2: a('s_and_b32 s60, s64, 3\ns_cmp_eq_u32 s60, 3\ns_cbranch_scc0 L_cs_sk%d' % m)
                    for b in range(2):
                        for ct in range(4):
                            for q in range(2):
                                a('ds_read_b64_tr_b16 %s, v%d offset:%d' % (v(24+16*b+4*ct+2*q,2), 16+ct, m*self.WSLOT + b*4096 + q*512))
                        a('s_waitcnt lgkmcnt(0)')
                        for ct in range(4): a('v_mfma_f32_16x16x32_bf16 %s, %s, v[20:23], %s' % (v(88+16*b+4*ct,4), v(24+16*b+4*ct,4), v(88+16*b+4*ct,4)))
                    if m >= 2: a.label('L_cs_sk%d' % m)
                    if m == 3: a.nop(6)
                if role == 2 and m < 10 and PH2:
                    sl = m % self.NWS
                    for ct in range(2):
                        for q in range(2):
                            a('ds_read_b64_tr_b16 %s, v%d offset:%d' % (v(40+4*ct+2*q,2), 16+ct+2*(sl//3), (sl%3)*self.WSLOT + q*512))
                    a('s_waitcnt lgkmcnt(0)')
                    for ct in range(2): a('v_mfma_f32_16x16x32_bf16 %s, %s, v[20:23], %s' % (v(24+4*ct,4), v(40+4*ct,4), v(24+4*ct,4)))
                    if m == 9: a.nop(6)
                if m in (16, 18, 20):
                    f0 = {16: 112, 18: 128, 20: 96}[m]; n = {16: 8, 18: 6, 20: 8}[m]
                    self.wd_dma(vm, range(f0 + (role-2)*n, f0 + (role-1)*n), 2)
                for i in self.ov_sched(m): self.ov_load(vm, i, 2)
            self.stamp(2)
            a('s_branch L_p2_help')

    def ffn_consumer(self):
        a = self.a
        ACC, FR = 8, 136
        AW = [2, 3, 232, 233]
        AX = [4, 5]
        def acc(tt, mat, c2): return ACC + ((tt*2 + mat)*2 + c2)*4
        def xf(st, tt): return FR + st*48 + tt*4
        def wf(st, mat, c2): return FR + st*48 + 32 + (mat*2 + c2)*4
        a.label('L_ffn_cons')
        self.ptrs(); self.late()
        a('s_sub_u32 s56, s%d, 4' % WAVE)
        a('s_mul_i32 s57, s%d, 24\ns_add_u32 s57, s57, s%d\ns_and_b32 s58, s57, 1\ns_add_u32 s58, s58, 2\n%ss_cmp_lt_u32 s56, s58\ns_cselect_b32 s79, 1, 0\ns_cbranch_scc0 L_fc_nu' % (XCD, IDX, 's_mov_b32 s58, 0\n' if 'skipwd' in self.opt else ''))
        a('s_mul_i32 s57, s57, 5\ns_lshr_b32 s57, s57, 1\ns_add_u32 s57, s57, s56')
        a('s_mul_i32 s70, s57, 52429\ns_lshr_b32 s70, s70, 19\ns_mul_i32 s53, s70, 10\ns_sub_u32 s71, s57, s53')
        a('s_mul_i32 s68, s70, %d\ns_lshl_b32 s53, s71, 7\ns_add_u32 s68, s68, s53' % (32*1280))
        a('s_mov_b32 s72, s%d\ns_mov_b32 s73, s%d\ns_mov_b32 s74, 0x%x\ns_mov_b32 s75, 0x20000' % (P_WD, P_WD+1, 1536*640*2))
        self.wvoff(8, 1280, 12)
        a('s_lshl_b32 s67, s56, 12\ns_add_u32 s67, s67, %d' % (self.MISC + 4096))
        a.label('L_fc_nu')
        if int(self.val.get('ib', 1)): a('s_barrier')
        a('s_cmp_eq_u32 s79, 0\ns_cbranch_scc1 L_fc_nu2')
        for j in range(4):
            a('s_add_u32 m0, s67, %d\ns_nop 0' % (j*1024))
            a('buffer_load_dwordx4 v%d, s[72:75], s68 offen nt lds' % (8+j))
        a.label('L_fc_nu2')
        def ctouch():
            a('s_cmp_lt_u32 s58, 320\ns_cbranch_scc0 L_ct_w%d\ns_lshl_b32 s58, s58, 13\nv_lshlrev_b32 v1, 7, v0' % self.nct)
            a('buffer_load_dword v255, v1, %s, s58 offen\ns_branch L_ct_e%d' % (s(S_X,4), self.nct))
            a.label('L_ct_w%d' % self.nct)
            a('s_sub_u32 s58, s58, 320\ns_cmp_lt_u32 s58, 240')
            a('s_cselect_b32 s24, s%d, s%d\ns_cselect_b32 s25, s%d, s%d\ns_cselect_b32 s53, 0, 240\ns_mov_b32 s26, 0x%x\ns_mov_b32 s27, 0x20000' % (P_WG, P_WU, P_WG+1, P_WU+1, 640*1536*2))
            a('s_sub_u32 s58, s58, s53\ns_lshl_b32 s58, s58, 13\nv_lshlrev_b32 v1, 7, v0\nbuffer_load_dword v255, v1, s[24:27], s58 offen')
            a.label('L_ct_e%d' % self.nct); self.nct += 1
        self.nct = 0
        def touches():
            if 'ct' in self.opt:
                a('s_mul_i32 s58, s%d, 24\ns_add_u32 s58, s58, s%d\ns_lshl_b32 s58, s58, 2\ns_add_u32 s58, s58, s56' % (XCD, IDX))
                if 'ctm' in self.opt: a('s_mul_i32 s58, s58, 25\ns_lshr_b32 s58, s58, 0\ns_mul_hi_u32 s53, s58, 0x55555556\ns_nop 0')
                ctouch(); return
            if 'ft' in self.opt:
                for k, spec in enumerate(self.val.get('ft', 'W2-6+W12-16+W6-10+W16-20').split('+')):
                    lo, hi = [int(z) for z in spec[1:].split('-')]
                    a('s_cmp_eq_u32 s56, %d\ns_cbranch_scc0 L_fc_n%d' % (k, k))
                    a(self.wtouch(IDX, (hi-lo)*8, lo, 255))
                    a.label('L_fc_n%d' % k)
        if 'tlate' not in self.opt: touches()
        if 'ta' in self.opt:
            self.phase(59)
            a('s_cmp_lt_u32 s56, 2\ns_cbranch_scc0 L_fc_tx')
            self.tw_addr(2)
            a('s_cmp_eq_u32 s56, 0')
            a('s_cselect_b32 s%d, s%d, s%d\ns_cselect_b32 s%d, s%d, s%d\ns_mov_b32 s%d, 0x%x' % (S_A, P_WG, P_WU, S_A+1, P_WG+1, P_WU+1, S_A+2, 640*1536*2))
            a('s_mul_i32 s66, s59, %d\ns_lshl_b32 s67, s55, 8\ns_add_u32 s66, s66, s67' % (64*3072))
            a('buffer_load_dword v255, v2, %s, s66 offen' % s(S_A,4))
            a('s_branch L_fc_t3')
            a.label('L_fc_tx')
            a('s_sub_u32 s60, s56, 2')
            self.tx_addr(2, 60); self.tx_off(67, 59, 0)
            a('buffer_load_dword v255, v2, %s, s67 offen' % s(S_X,4))
            a.label('L_fc_t3')
        a('s_setprio 1')
        a('v_lshrrev_b32 v6, 4, v0\nv_bfe_u32 v7, v0, 2, 2')
        a('v_lshl_add_u32 v8, v6, 3, v7\nv_lshlrev_b32 v8, 7, v8')
        a('v_and_b32 v9, 3, v0\nv_lshl_add_u32 v8, v9, 3, v8')
        a('v_bfe_u32 v9, v0, 3, 1\nv_bfe_u32 v10, v0, 4, 1\nv_lshl_add_u32 v9, v10, 1, v9')
        a('s_and_b32 s57, s56, 1\ns_lshl_b32 s57, s57, 1')
        a('v_xor_b32 v9, s57, v9\nv_lshl_add_u32 v8, v9, 5, v8')
        a('s_lshr_b32 s57, s56, 1\ns_lshl_b32 s57, s57, 12')
        a('v_add_u32 v%d, s57, v8' % AW[0])
        a('v_xor_b32 v%d, 32, v%d' % (AW[1], AW[0]))
        a('v_add_u32 v%d, %d, v%d\nv_add_u32 v%d, %d, v%d' % (AW[2], 3*self.WSLOT, AW[0], AW[3], 3*self.WSLOT, AW[1]))
        a('v_and_b32 v8, 15, v0\nv_lshrrev_b32 v9, 1, v8\nv_xor_b32 v9, v9, v6')
        a('v_lshlrev_b32 v9, 4, v9\nv_lshl_add_u32 v9, v8, 7, v9')
        a('v_add_u32 v%d, %d, v9' % (AX[0], self.XB))
        a('v_xor_b32 v%d, 64, v%d' % (AX[1], AX[0]))
        a('v_lshlrev_b32 v234, 4, v8\nv_add_u32 v234, %d, v234' % self.MISC)
        a('v_lshlrev_b32 v235, 4, v6\ns_lshl_b32 s57, s56, 7\nv_add_u32 v235, s57, v235\nv_add_u32 v235, %d, v235' % (self.MISC+2048))
        a('v_lshlrev_b32 v236, 4, v0')
        hf = self.val.get('hf', 'p')
        if hf == 'p': a('s_lshl_b32 s58, s54, 4\ns_add_u32 s58, s58, s55\ns_lshl_b32 s58, s58, 2\ns_add_u32 s58, s58, s56\ns_lshl_b32 s58, s58, 3\nv_mov_b32 v237, s58')
        elif hf == 'w': a('s_lshl_b32 s58, s54, 4\ns_add_u32 s58, s58, s55\ns_lshl_b32 s58, s58, 4\ns_add_u32 s58, s58, s56\ns_lshl_b32 s58, s58, 3\ns_add_u32 s58, s58, 0xa0000\nv_mov_b32 v237, s58')
        else: a('s_lshl_b32 s58, s54, 4\ns_add_u32 s58, s58, s55\ns_lshl_b32 s58, s58, 2\ns_add_u32 s58, s58, s56\ns_lshl_b32 s58, s58, 7\ns_add_u32 s58, s58, 0xa0000\nv_mov_b32 v237, s58')
        a('s_mul_i32 s57, s54, %d\ns_lshl_b32 s58, s55, 2\ns_add_u32 s58, s58, s56\ns_lshl_b32 s58, s58, 10\ns_add_u32 s57, s57, s58\ns_add_u32 s57, s57, 0x%x' % (8*49152, HF))
        self.nonce()
        a('s_cmp_eq_u32 s79, 0\ns_cbranch_scc1 L_fc_nv')
        a('v_lshrrev_b32 v16, 2, v0\nv_lshlrev_b32 v16, 7, v16\nv_and_b32 v1, 3, v0\nv_lshl_add_u32 v16, v1, 3, v16')
        a('v_bfe_u32 v1, v0, 3, 1\nv_bfe_u32 v17, v0, 5, 1\nv_lshl_add_u32 v1, v17, 1, v1\nv_lshl_add_u32 v16, v1, 5, v16')
        a('v_add_u32 v1, s67, v16\nv_xor_b32 v6, 32, v1\nv_xor_b32 v7, 64, v1\nv_xor_b32 v254, 96, v1')
        for ct in range(4):
            a('s_lshl_b32 s63, s71, 2\ns_add_u32 s63, s63, %d\ns_mul_i32 s64, s63, 52\ns_lshr_b32 s64, s64, 8' % ct)
            a('s_mul_i32 s65, s64, 5\ns_sub_u32 s65, s63, s65\ns_lshl_b32 s65, s65, 10')
            a('s_mul_i32 s64, s64, 245760\ns_add_u32 s65, s65, s64\ns_mul_i32 s64, s70, 5120\ns_add_u32 s65, s65, s64\ns_add_u32 s%d, s65, 0x%x' % (72+ct, WDF))
        a.label('L_fc_nv')
        def reads(n):
            st = n & 1; sl = n % self.NWS
            r = []
            for mat in range(2):
                for c2 in range(2):
                    for q in range(2):
                        r.append('ds_read_b64_tr_b16 v[%d:%d], v%d offset:%d' % (wf(st,mat,c2)+2*q, wf(st,mat,c2)+2*q+1, AW[c2 + 2*(sl//3)], (sl%3)*self.WSLOT + mat*8192 + q*512))
            for tt in range(8):
                r.append('ds_read_b128 %s, v%d offset:%d' % (v(xf(st,tt),4), AX[n&1], ((n//2) % self.NXS)*self.XSLOT + tt*2048))
            return r
        ST, CSR, TM = FR, FR+32, 238
        ep_reads = ['ds_read_b128 %s, v234 offset:%d' % (v(ST+4*tt,4), tt*256) for tt in range(8)]
        ep_reads += ['ds_read_b128 %s, v235 offset:%d' % (v(CSR+(mat*2+c2)*4,4), mat*512 + c2*64) for mat in range(2) for c2 in range(2)]
        FB = int(self.val.get('fb', 5))
        a('s_barrier')
        self.stamp(1)
        for r in reads(0): a(r)
        if 'tlate' in self.opt: touches()
        a.align(3)
        for n in range(20):
            st = n & 1
            a('s_waitcnt %slgkmcnt(0)\ns_barrier' % ('vmcnt(0) ' if n == int(self.val['fb']) - 1 else ''))
            if n == 10: self.stamp(5)
            if n == 5: self.stamp(6)
            if n == 15: self.stamp(7)
            rd = reads(n+1) if n < 19 else ep_reads
            WS = int(self.val.get('wds', 2))
            if n == WS:
                a('s_cmp_eq_u32 s79, 0\ns_cbranch_scc1 L_fc_w1\ns_waitcnt vmcnt(0)')
                for ct, ar in enumerate((1, 6, 7, 254)):
                    for q in range(2): a('ds_read_b64_tr_b16 %s, v%d offset:%d' % (v(238+4*ct+2*q,2), ar, q*2048))
                a('v_bfe_u32 v255, v0, 1, 3\nv_and_b32 v6, 1, v0\nv_lshl_add_u32 v255, v6, 3, v255\nv_and_b32 v6, 48, v0\nv_add_lshl_u32 v255, v255, v6, 4')
                a.label('L_fc_w1')
            if n == WS + 1:
                a('s_cmp_eq_u32 s79, 0\ns_cbranch_scc1 L_fc_w2')
                for ct in range(4): a('buffer_store_dwordx4 %s, v255, %s, s%d offen sc1' % (v(238+4*ct,4), s(S_WS,4), 72+ct))
                a.label('L_fc_w2')
            k = 0
            order = [(tt, mat, c2) for tt in range(8) for mat in range(2) for c2 in range(2)]
            if 'aord' in self.opt: order = [(tt, mat, c2) for mat in range(2) for c2 in range(2) for tt in range(8)]
            if 'snake' in self.opt: order = [(tt, w >> 1, w & 1) for tt in range(8) for w in (range(4) if tt % 2 == 0 else range(3, -1, -1))]
            for tt, mat, c2 in order:
                    if True:
                        A = acc(tt, mat, c2)
                        if 'nomfma' not in self.opt: a('v_mfma_f32_16x16x32_bf16 %s, %s, %s, %s' % (v(A,4), v(wf(st,mat,c2),4), v(xf(st,tt),4), v(A,4) if n else '0'))
                        if k < len(rd) and 'nords' not in self.opt: a(rd[k]); k += 1
        self.stamp(2)
        a('s_waitcnt lgkmcnt(0)')
        a.label('L_fc_epi')
        OUT = FR + 48
        for tt in range(8):
            m, q = ST+4*tt, ST+4*tt+2
            O = OUT + tt*4
            t = TM + (tt&1)*8
            pairs = [(c2, hh) for c2 in range(2) for hh in range(2)]
            for k, (c2, hh) in enumerate(pairs):
                ga = acc(tt,0,c2)+2*hh; ua = acc(tt,1,c2)+2*hh
                a('v_pk_fma_f32 %s, %s, %s, %s op_sel_hi:[0,1,1] neg_lo:[1,0,0] neg_hi:[1,0,0]' % (v(ga,2), v(m,2), v(CSR+c2*4+2*hh,2), v(ga,2)))
                a('v_pk_fma_f32 %s, %s, %s, %s op_sel_hi:[0,1,1] neg_lo:[1,0,0] neg_hi:[1,0,0]' % (v(ua,2), v(m,2), v(CSR+8+c2*4+2*hh,2), v(ua,2)))
            for k, (c2, hh) in enumerate(pairs):
                ga = acc(tt,0,c2)+2*hh
                a('v_pk_mul_f32 %s, %s, %s op_sel:[0,1] op_sel_hi:[1,1]' % (v(t+2*k,2), v(ga,2), v(m,2)))
            for k in range(8): a('v_exp_f32 v%d, v%d' % (t+k, t+k))
            for k, (c2, hh) in enumerate(pairs):
                ga = acc(tt,0,c2)+2*hh; ua = acc(tt,1,c2)+2*hh
                a('v_pk_mul_f32 %s, %s, %s' % (v(ga,2), v(ga,2), v(ua,2)))
                a('v_pk_fma_f32 %s, %s, %s, %s op_sel_hi:[1,0,0]' % (v(t+2*k,2), v(t+2*k,2), v(q,2), v(q,2)))
            for k in range(8): a('v_rcp_f32 v%d, v%d' % (t+k, t+k))
            a('s_nop 0')
            for k, (c2, hh) in enumerate(pairs):
                ga = acc(tt,0,c2)+2*hh
                a('v_pk_mul_f32 %s, %s, %s' % (v(ga,2), v(ga,2), v(t+2*k,2)))
            for k, (c2, hh) in enumerate(pairs):
                ga = acc(tt,0,c2)+2*hh
                a('v_cvt_pk_bf16_f32 v%d, v%d, v%d' % (O+k, ga, ga+1))
            a('buffer_store_dwordx4 %s, v236, %s, s57 offen sc1' % (v(O,4), s(S_WS,4)))
            a('s_add_u32 s57, s57, 49152')
        self.stamp(3)
        a('v_mov_b32 v2, %d\nv_mov_b32 v3, 1\ns_mov_b64 exec, 1\nds_add_u32 v2, v3\ns_mov_b64 exec, -1' % (self.MISC + 3072))
        a('s_waitcnt vmcnt(0)')
        self.stamp(4)
        self.setflag(237, 2)
        a('s_branch L_p2_mfma')

    MSLOT = 24576; MB = 32768; XFB = 0; XFS = 16384; DMISC = 155648

    def code_touch(self, lo, hi, n, dst, uniq):
        a = self.a
        a('s_getpc_b64 s[72:73]')
        a.label('L_ct%s' % uniq)
        a('s_add_u32 s72, s72, %s-L_ct%s\ns_addc_u32 s73, s73, 0' % (lo, uniq))
        out = []
        for k in range(n):
            a('v_lshlrev_b32 v%d, 7, v0\nv_add_u32 v%d, %d, v%d\nv_min_u32 v%d, %s-%s-4, v%d' % (dst-1-k, dst-1-k, 8192*k, dst-1-k, dst-1-k, hi, lo, dst-1-k))
            out.append('global_load_dword v%d, v%d, s[72:73]' % (dst, dst-1-k))
        return out

    def dft_loader(self):
        a = self.a; vm = VM(a)
        RAW, SA = 32, 192
        a.label('L_dft_ld')
        a('s_setprio %s' % self.val.get('dlp', '2'))
        a('v_lshrrev_b32 v2, 3, v0\nv_lshrrev_b32 v3, 4, v0\nv_and_b32 v4, 7, v0')
        a('v_mul_u32_u24 v5, 81920, v2\nv_lshl_add_u32 v5, v4, 4, v5')
        a('s_lshl_b32 s66, s54, 2\ns_add_u32 s66, s66, s%d\ns_and_b32 s63, s%d, 3' % (WAVE, DID))
        for u in range(4): a('s_add_u32 s53, s63, %d\ns_and_b32 s%d, s53, 3\ns_lshl_b32 s53, s%d, 9\ns_add_u32 s53, s53, s66\ns_mul_i32 s%d, s53, 1280' % (u, 68+u, 68+u, 56+u))
        if 'dph0' in self.opt: a('s_mov_b32 s74, 0')
        else: a('s_and_b32 s74, s54, 3\ns_lshl_b32 s75, s%d, 1\ns_add_u32 s74, s74, s75\ns_cmp_ge_u32 s74, 5\ns_cselect_b32 s75, 5, 0\ns_sub_u32 s74, s74, s75\ns_lshl_b32 s74, s74, 7' % HH)
        a('s_mov_b32 s75, s74\nv_add_u32 v208, s74, v5')
        for c in range(1, 5): a('s_add_u32 s74, s74, 128\ns_cmp_eq_u32 s74, 640\ns_cselect_b32 s74, 0, s74\nv_add_u32 v%d, s74, v5' % (208+c))
        def xl(c, us):
            o = []
            for u in us:
                tag = 'x%d' % c if u else 'y%d' % c
                o.append(([], 'buffer_load_dwordx4 %s, v%d, %s, s%d offen' % (v(RAW+32*c+8*u,4), 208+c, s(S_X,4), 56+u), tag))
                o.append(([], 'buffer_load_dwordx4 %s, v%d, %s, s%d offen offset:640' % (v(RAW+32*c+8*u+4,4), 208+c, s(S_X,4), 56+u), tag))
            return o
        def ml(c):
            adv = ['s_add_u32 s75, s75, 128', 's_cmp_eq_u32 s75, 640', 's_cselect_b32 s75, 0, s75', 's_add_u32 s76, s60, s75']
            return [((adv if u == 0 and c > 0 else []) + ['s_add_u32 m0, s61, %d' % (self.MB + c*self.MSLOT + u*1024), 's_add_u32 s62, s76, %d' % (u*16*1280)],
                     'buffer_load_dwordx4 v%d, %s, s62 offen lds' % (8 if u == 0 else 6+(u&1), s(S_A,4)), 'm%d' % c) for u in range(6)]
        t = 16
        def unpack(lo):
            o = []
            for k in range(4):
                o += ['v_lshlrev_b32 v%d, 16, v%d' % (t+2*k, lo+k), 'v_and_b32 v%d, s77, v%d' % (t+2*k+1, lo+k),
                      'v_lshlrev_b32 v%d, 16, v%d' % (t+8+2*k, lo+4+k), 'v_and_b32 v%d, s77, v%d' % (t+8+2*k+1, lo+4+k)]
            return o
        def acc():
            o = []
            for k in range(16): o += ['v_add_f32 v%d, v%d, v%d' % (SA+(k&3), SA+(k&3), t+k), 'v_fmac_f32 v%d, v%d, v%d' % (SA+4+(k&3), t+k, t+k)]
            return o
        def st(c): return unpack(RAW+32*c) + acc()
        def fl(c, with_stats):
            o = []
            for u in range(4):
                lo = RAW+32*c+8*u
                o += unpack(lo)
                if u == 0 and with_stats: o += acc()
                if c == 0:
                    o += ['s_nop 1', 'v_mov_b32 v%d, v%d quad_perm:[0,0,0,0] row_mask:0xf bank_mask:0xf' % (204+u, t), 's_nop 1',
                          'v_add_f32 v%d, v%d, v%d row_half_mirror row_mask:0xf bank_mask:0xf' % (204+u, 204+u, 204+u), 'v_mul_f32 v%d, s78, v%d' % (204+u, 204+u)]
                for k in range(8): o.append('v_sub_f32 v%d, v%d, v%d' % (t+k, t+k, 204+u))
                for k in range(8): o.append('v_fmac_f32 v%d, v12, v%d' % (t+k, t+8+k))
                for k in range(4): o.append('v_cvt_pk_bf16_f32 v%d, v%d, v%d' % (lo+k, t+2*k, t+2*k+1))
                o.append('ds_write_b128 v%d, %s offset:%d' % (213+u, v(lo,4), (c&1)*self.XFS))
            return o
        def emit(loads, valu):
            per = -(-len(valu) // max(1, len(loads))); k = 0
            for pre, ld, tag in loads:
                for p in pre: a(p)
                vm.op(ld, tag)
                for l in valu[k:k+per]: a(l)
                k += per
            for l in valu[k:]: a(l)
        self.ptrs()
        emit(xl(0, range(4)), [])
        self.late()
        a('s_cmp_lt_u32 s%d, 2' % WAVE)
        a('s_cselect_b32 s%d, s%d, s%d\ns_cselect_b32 s%d, s%d, s%d' % (S_A, P_HRE, P_HIM, S_A+1, P_HRE+1, P_HIM+1))
        a('s_mov_b32 s%d, 0x%x' % (S_A+2, 640*640*2))
        a('v_xor_b32 v3, v3, v4\nv_lshlrev_b32 v3, 4, v3')
        a('v_mul_u32_u24 v6, 2560, v2\nv_add_u32 v6, v6, v3\nv_xor_b32 v7, 64, v6')
        a('s_or_b32 s60, s55, s%d\ns_or_b32 s60, s60, s%d\ns_cmp_eq_u32 s60, 0\ns_cselect_b32 s60, %d, 0' % (WAVE, HH, 320*1280))
        a('v_cmp_gt_u32 vcc, 8, v0\nv_mov_b32 v8, s60\ns_nop 0\nv_cndmask_b32 v8, 0, v8, vcc\nv_add_u32 v8, v8, v6')
        a('s_and_b32 s60, s%d, 1\ns_mul_i32 s60, s60, 96\ns_lshl_b32 s61, s%d, 7\ns_add_u32 s60, s60, s61\ns_add_u32 s60, s60, s55\ns_mul_i32 s60, s60, 1280' % (WAVE, HH))
        a('s_mul_i32 s61, s%d, 6144\ns_add_u32 s76, s60, s75' % WAVE)
        YL = 'ylate' in self.opt
        emit(ml(0) + ([] if YL else xl(2, [0]) + xl(3, [0]) + xl(4, [0])), [])
        a('s_lshl_b32 s53, s%d, 12\ns_add_u32 s53, s53, %d' % (WAVE, self.XFB))
        a('v_lshl_add_u32 v9, v2, 7, v3\nv_add_u32 v9, s53, v9')
        for u in range(4): a('s_and_b32 s53, s%d, 1\ns_lshl_b32 s53, s53, 6\nv_xor_b32 v%d, s53, v9\ns_lshl_b32 s53, s%d, 10\nv_add_u32 v%d, s53, v%d' % (68+u, 213+u, 68+u, 213+u, 213+u))
        a('s_cmp_eq_u32 s55, 0\ns_cselect_b32 s53, 1.0, -1.0\nv_mov_b32 v12, s53\ns_cselect_b32 s78, 1.0, 0\ns_mov_b32 s77, 0xffff0000')
        for k in range(8): a('v_mov_b32 v%d, 0' % (SA+k))
        a('v_lshlrev_b32 v4, 10, v2\ns_lshl_b32 s65, s66, 4\ns_add_u32 s65, s65, 0x%x\ns_lshl_b32 s64, s63, 13\ns_add_u32 s64, s64, s65' % STATS)
        a('v_and_b32 v3, 31, v0\nv_lshlrev_b32 v10, 10, v3\ns_lshl_b32 s53, s%d, 7\ns_add_u32 s53, s53, %d\nv_lshl_add_u32 v3, v3, 2, s53' % (WAVE, self.DMISC))
        self.p2_prep()
        self.nonce()
        vm.wait('x0')
        emit([], fl(0, True))
        vm.wait('m0', 'lgkmcnt(0)'); a('s_barrier')
        self.stamp(1)
        if YL:
            emit(xl(1, range(4)) + ml(1) + xl(2, [0]) + xl(3, [0]) + xl(4, [0]), [])
            vm.wait('x1'); emit([], fl(1, True)); vm.wait('y4'); emit(xl(2, [1,2,3]) + ml(2), st(2) + st(3) + st(4))
        else:
            vm.wait('y4')
            emit(xl(1, range(4)) + ml(1), st(2) + st(3) + st(4))
            vm.wait('x1'); emit(xl(2, [1,2,3]) + ml(2), fl(1, True))
        fin = []
        fin += ['v_add_f32 v%d, v%d, v%d' % (SA+k, SA+k, SA+k+1) for k in (0, 4, 2, 6)] + ['v_add_f32 v%d, v%d, v%d' % (SA+k, SA+k, SA+k+2) for k in (0, 4)]
        for mod in ('quad_perm:[1,0,3,2]', 'quad_perm:[2,3,0,1]', 'row_half_mirror'):
            fin += ['s_nop 0'] + ['v_add_f32 v%d, v%d, v%d %s row_mask:0xf bank_mask:0xf' % (SA+k, SA+k, SA+k, mod) for k in (0, 4)]
        fin += ['v_mul_f32 v%d, 0x3acccccd, v%d' % (SA+8, SA), 'v_mul_f32 v%d, 0x3acccccd, v%d' % (SA+9, SA+4),
                'v_fma_f32 v%d, -v%d, v%d, v%d' % (SA+9, SA+8, SA+8, SA+9), 'v_max_f32 v%d, 0, v%d' % (SA+9, SA+9), 'v_add_f32 v%d, 0x3727c5ac, v%d' % (SA+9, SA+9),
                'v_mov_b32 v%d, s12' % (SA+10), 'v_mov_b32 v%d, s13' % (SA+11)]
        emit([], fin)
        a('s_mov_b32 exec_lo, 0x01010101\ns_mov_b32 exec_hi, 0x01010101')
        vm.op('buffer_store_dwordx4 %s, v4, %s, s64 offen sc1' % (v(SA+8,4), s(S_WS,4)), 'o')
        a('s_mov_b64 exec, -1')
        vm.wait('m1', 'lgkmcnt(0)'); a('s_barrier')
        vm.wait('x2'); emit(xl(3, [1,2,3]) + ml(3), fl(2, False)); vm.wait('m2', 'lgkmcnt(0)'); a('s_barrier')
        vm.wait('x3'); emit(ml(4) + xl(4, [1,2,3]), fl(3, False)); vm.wait('m3', 'lgkmcnt(0)'); a('s_barrier')
        vm.op('buffer_load_dwordx4 %s, v10, %s, s65 offen sc1' % (v(SA,4), s(S_WS,4)), 'r')
        vm.wait('x4')
        a('v_lshlrev_b32 v11, 7, v0\nv_add_u32 v11, 0x%x, v11\nv_add_u32 v13, 8192, v11\nv_add_u32 v14, 16384, v11' % SFLAG)
        a('s_cmp_eq_u32 s%d, 1\ns_cbranch_scc0 L_dl_np' % WAVE)
        for k in range(3): a('buffer_load_dwordx2 %s, v%d, %s, 0 offen sc1' % (v(SA+4+2*k,2), (11,13,14)[k], s(S_WS,4)))
        a.label('L_dl_np')
        emit([], fl(4, False))
        a('s_waitcnt lgkmcnt(0)\ns_barrier')
        a('s_waitcnt vmcnt(0)')
        a('s_cmp_eq_u32 s%d, 1\ns_cbranch_scc0 L_dl_nq' % WAVE)
        self.spin3('L_dl_sp', (11,13,14), SA+4, True)
        a.label('L_dl_nq')
        a('s_mov_b32 s53, 0')
        a.label('L_dl_rs')
        a('v_cmp_ne_u64 vcc, s[12:13], %s' % v(SA+2,2))
        a('s_cbranch_vccz L_dl_rx\ns_add_u32 s53, s53, 1\ns_cmp_gt_u32 s53, 0x%x\ns_cbranch_scc1 L_dl_rx\ns_sleep 2' % SPIN_MAX)
        a('buffer_load_dwordx4 %s, v10, %s, s65 offen sc1\ns_waitcnt vmcnt(0)\ns_branch L_dl_rs' % (v(SA,4), s(S_WS,4)))
        a.label('L_dl_rx')
        a('v_rsq_f32 v%d, v%d\ns_nop 0\nds_write_b32 v3, v%d' % (SA, SA+1, SA))
        a('s_lshl_b32 s58, s%d, 3\nv_lshrrev_b32 v7, 5, v0\nv_add_u32 v7, s58, v7\nv_and_b32 v6, 31, v0\nv_lshlrev_b32 v6, 4, v6' % WAVE)
        a('v_mul_u32_u24 v5, %d, v7\nv_add_u32 v5, v5, v6\nv_mul_u32_u24 v8, %d, v7\nv_add_u32 v8, v8, v6' % (LROW, GROW))
        a('s_lshr_b32 s59, s%d, 1\ns_mul_i32 s57, s59, %d\ns_lshl_b32 s59, s%d, 10\ns_add_u32 s57, s57, s59' % (DID, GBLK, HH))
        for k in range(4): a('s_add_u32 s%d, s57, 0x%x' % (60+k, G16 + 2*k*GROW))
        a('s_lshl_b32 s59, s%d, 3\ns_add_u32 s58, s59, 0x%x\nv_lshl_add_u32 v6, v0, 9, s58' % (DID, DFLAG))
        a('v_cmp_gt_u32 vcc, 32, v0\nv_mov_b32 v7, 0x%x\ns_add_u32 s59, s59, 0x%x\nv_cndmask_b32 v6, v7, v6, vcc\nv_mov_b32 v7, s59' % (OOB, SFLAG))
        vm = VM(a)
        self.p2_coords(); self.ov_setup()
        a('v_lshlrev_b32 v2, 4, v0')
        def dma_step(first, k, lim, tag):
            a('s_add_u32 s64, s%d, %d\ns_cmp_lt_u32 s64, %d\ns_cbranch_scc0 L_ds_%s%d' % (WAVE, first + 4*k, lim, tag, k))
            a('s_cmp_ge_u32 s64, 14\ns_cselect_b32 s65, 51200, 0\ns_cselect_b32 s66, 14, 0\ns_sub_u32 s66, s64, s66\ns_mul_i32 s64, s64, 5120\ns_add_u32 s65, s65, s64')
            a('s_cmp_le_u32 s76, s66\ns_cselect_b32 s66, s75, s77\ns_add_u32 s65, s65, s66')
            for n in range(5):
                if n in (0, 4): a('s_add_u32 m0, s64, %d\ns_add_u32 s78, s65, %d' % (n*1024, n*1024))
                a('buffer_load_dwordx4 v2, %s, s78 offen offset:%d %s lds' % (s(S_WS,4), (n&3)*1024, self.bf))
            a.label('L_ds_%s%d' % (tag, k))
        a('s_waitcnt lgkmcnt(0)\ns_barrier')
        self.stamp(9)
        DE = self.val.get('de', '3')
        plan = {'0': [[], [], []], '1': [['o0','o1','o2'], ['e0','e1'], ['e2','e3','e4','o3','o4']], '2': [['o0','o1'], ['e0'], ['e1','e2']], '3': [['o0','o1'], [], []], '4': [['o0'], ['o1'], []]}[DE]
        done = set()
        def run(items):
            for it in items:
                done.add(it)
                if it[0] == 'o': self.ov_load(vm, int(it[1]), 2)
                else: dma_step(10, int(it[1]), 28, 'e')
        run(plan[0])
        for et in range(3):
            a('s_barrier')
            if et == 0: a('s_cmp_eq_u32 s%d, 0\ns_cbranch_scc0 L_dl_sk' % HH)
            for k in range(4): a('ds_read_b128 %s, v5 offset:%d' % (v(16+16*et+4*k,4), 2*k*LROW + et*512))
            for k in range(4):
                a('s_waitcnt lgkmcnt(%d)' % (3-k))
                a('buffer_store_dwordx4 %s, v8, %s, s%d offen offset:%d sc1' % (v(16+16*et+4*k,4), s(S_WS,4), 60+k, et*512))
            if et == 0: a.label('L_dl_sk')
            if et < 2: run(plan[et+1])
        a('s_waitcnt vmcnt(0)\ns_setprio 0\ns_barrier')
        self.stamp(4)
        a('s_cmp_eq_u32 s%d, 0\ns_cbranch_scc0 L_dl_nf2' % WAVE)
        self.setflag(6, 12, '-1')
        a.label('L_dl_nf2')
        self.stamp(3)
        for k in range(3): dma_step(0, k, 10, 'l')
        run([it for it in ['e0','e1','e2','e3','e4','o0','o1','o2','o3','o4'] if it not in done])
        self.stamp(2)
        a('s_branch L_p2_help')

    def dft_consumer(self):
        a = self.a
        ACC = 8
        MP, XP = 104, 152
        NP = 12
        a.label('L_dft_cons')
        self.ptrs(); self.late()
        a('s_sub_u32 s56, s%d, 4' % WAVE)
        a('s_setprio 1')
        a('v_and_b32 v208, 31, v0\nv_lshrrev_b32 v209, 5, v0\nv_bfe_u32 v210, v0, 1, 3\nv_xor_b32 v210, v210, v209')
        a('v_lshlrev_b32 v210, 4, v210\nv_lshl_add_u32 v210, v208, 7, v210')
        AM = [[211+4*k+u for u in range(4)] for k in range(3)]; AX = [2, 3, 4, 5]
        a('s_lshl_b32 s57, s56, 12\ns_add_u32 s57, s57, %d' % self.XFB)
        for u in range(4):
            a('v_xor_b32 v6, %d, v210' % (32*u))
            a('v_add_u32 v%d, s57, v6' % AX[u])
            for k in range(3): a('v_add_u32 v%d, %d, v6' % (AM[k][u], self.MB + 2*k*self.MSLOT))
        a('v_lshlrev_b32 v7, 2, v209\ns_mov_b32 s62, 0x3d000000')
        for k in range(16):
            r = 224 + k
            a('v_add_u32 v%d, %d, v7\nv_mul_u32_u24 v%d, v%d, v208\nv_and_b32 v%d, 31, v%d\nv_cvt_f32_u32 v%d, v%d\nv_mul_f32 v%d, s62, v%d' % (r, 8*(k>>2)+(k&3), r, r, r, r, r, r, r, r))
        if 'pf' in self.opt: a('s_waitcnt vmcnt(0)')
        for k in range(16):
            a('v_sin_f32 v%d, v%d\nv_cos_f32 v%d, v%d' % (240+k, 224+k, 224+k, 224+k))
        if 'dxt' in self.opt:
            a('s_lshl_b32 s57, s55, 1\ns_add_u32 s57, s57, s%d\ns_lshl_b32 s57, s57, 9\ns_lshl_b32 s58, s54, 2\ns_add_u32 s57, s57, s58\ns_add_u32 s57, s57, s56\ns_mul_i32 s57, s57, 1280' % HH)
            a('v_and_b32 v6, 7, v0\nv_mul_u32_u24 v6, 81920, v6\nv_lshrrev_b32 v162, 3, v0\nv_lshrrev_b32 v163, 2, v162\nv_add_u32 v162, v162, v163\nv_lshl_add_u32 v6, v162, 7, v6')
            a('buffer_load_dword v223, v6, %s, s57 offen offset:128' % s(S_X,4))
        a('s_lshl_b32 s57, s56, 7\ns_add_u32 s57, s57, %d' % self.DMISC)
        a('v_lshl_add_u32 v160, v209, 4, s57')
        a('v_mul_u32_u24 v161, %d, v208\nv_lshl_add_u32 v161, v209, 6, v161' % LROW)
        a('v_lshrrev_b32 v6, 3, v208\nv_add_u32 v6, s56, v6\nv_and_b32 v6, 3, v6\nv_lshl_add_u32 v161, v6, 2, v161')
        self.nonce()
        def accr(m): return ACC + 32*(m%3) + 16*(m//3)
        rd = []; need = []
        for c in range(5):
            for u in range(4):
                rd.append('ds_read_b128 %s, v%d offset:%d' % (v(XP+4*(u&1),4), AX[u], (c&1)*self.XFS))
                for m in range(6):
                    rd.append('ds_read_b128 %s, v%d offset:%d' % (v(MP+4*((6*u+m)%NP),4), AM[c>>1][u], (c&1)*self.MSLOT + m*4096))
                    need.append(len(rd)-1)
        RR = 168
        rr_reads = ['ds_read_b128 %s, v160 offset:%d' % (v(RR+4*k,4), 32*k) for k in range(4)]
        LA = 5
        a('s_barrier')
        self.stamp(1)
        for r in rd[:7]: a(r)
        issued = 7; done = 0
        a.align(3)
        for g in range(120):
            c, mu = divmod(g, 24); u, m = divmod(mu, 6)
            if mu == 21:
                a('s_waitcnt lgkmcnt(0)\ns_barrier'); done = issued
                self.stamp(5+c)
                if c < 4:
                    for _ in range(7): a(rd[issued]); issued += 1
                else:
                    for r in rr_reads: a(r)
            elif need[g] >= done:
                a('s_waitcnt lgkmcnt(%d)' % (issued - need[g] - 1)); done = need[g] + 1
            a('v_mfma_f32_32x32x16_bf16 %s, %s, %s, %s' % (v(accr(m),16), v(XP+4*(u&1),4), v(MP+4*(mu%NP),4), v(accr(m),16) if g >= 6 else '0'))
            if mu < 21:
                tgt = min(28*(c+1), need[g+1] + LA + 1)
                while issued < tgt: a(rd[issued]); issued += 1
        self.stamp(2)
        a.label('L_dc_epi')
        CC, SS, NS = 184, 192, 200
        a('s_waitcnt lgkmcnt(0)')
        for k in range(8):
            a('v_pk_mul_f32 %s, %s, %s' % (v(224+2*k,2), v(224+2*k,2), v(RR+2*k,2)))
            a('v_pk_mul_f32 %s, %s, %s' % (v(240+2*k,2), v(240+2*k,2), v(RR+2*k,2)))
        for k in range(8):
            a('v_cvt_pk_bf16_f32 v%d, v%d, v%d' % (CC+k, 224+2*k, 225+2*k))
            a('v_cvt_pk_bf16_f32 v%d, v%d, v%d' % (SS+k, 240+2*k, 241+2*k))
            a('v_xor_b32 v%d, 0x80008000, v%d' % (NS+k, SS+k))
        def zc(et):
            A0 = ACC + 32*et; Z = 104 + 16*et; o = []
            for k in range(8):
                o.append('v_cvt_pk_bf16_f32 v%d, v%d, v%d' % (Z+k, A0+2*k, A0+2*k+1))
                o.append('v_cvt_pk_bf16_f32 v%d, v%d, v%d' % (Z+8+k, A0+16+2*k, A0+16+2*k+1))
            return o
        for l in zc(0): a(l)
        a('s_nop 1')
        for et in range(3):
            A0 = ACC + 32*et; Z = 104 + 16*et
            RE, IM = A0, A0+16
            ms = [(RE,Z,CC,0),(IM,Z+8,CC,0),(RE,Z+4,CC+4,1),(IM,Z+12,CC+4,1),(RE,Z+8,SS,1),(IM,Z,NS,1),(RE,Z+12,SS+4,1),(IM,Z+4,NS+4,1)]
            fill = (zc(et+1) if et < 2 else ['s_nop 3']) + (self._dft_out(ACC + 32*(et-1), et-1) if et > 0 else [])
            per = -(-len(fill)//8)
            for i, (D, A_, B_, ac) in enumerate(ms):
                a('v_mfma_f32_32x32x16_bf16 %s, %s, %s, %s' % (v(D,16), v(A_,4), v(B_,4), v(D,16) if ac else '0'))
                for f in fill[per*i:per*i+per]: a(f)
            if et > 0: a('s_waitcnt lgkmcnt(0)\ns_barrier')
        a.nop(12)
        for f in self._dft_out(ACC + 64, 2): a(f)
        a('s_waitcnt lgkmcnt(0)\ns_barrier')
        a('s_setprio 0')
        self.stamp(3)
        a('s_waitcnt vmcnt(0)\ns_barrier')
        a('s_branch L_p2_mfma')
        a.label('L_dc_end')

    def _dft_out(self, A0, et):
        o = []
        for r in range(16):
            o.append('v_cvt_pk_bf16_f32 v%d, v%d, v%d' % (A0+r, A0+r, A0+16+r))
            o.append('ds_write_b32 v161, v%d offset:%d' % (A0+r, (32*et + 8*(r>>2) + (r&3))*16))
        return o

    TW, GV, XV = 232, 248, 228
    def p2_prep(self):
        a = self.a; TW, GV, XV = self.TW, self.GV, self.XV
        J, G_, A, B, C, D = 217, 218, 219, 220, 221, 222
        TM = 223
        a('s_and_b32 s41, s%d, 1\ns_lshr_b32 s42, s%d, 1' % (WAVE, WAVE))
        a('s_lshl_b32 s38, s%d, 9\ns_add_u32 s38, s38, 0x%x' % (T1, DFLAG))
        a('s_lshl_b32 s43, s41, 1\ns_add_u32 s44, s43, s42\ns_sub_u32 s43, s43, s42\ns_add_u32 s43, s43, 1')
        a('v_and_b32 v%d, 15, v0\nv_lshrrev_b32 v%d, 4, v0' % (J, G_))
        a('s_lshl_b32 s39, s44, 9\ns_add_u32 s39, s39, s%d\ns_mul_i32 s39, s39, 1280\ns_mul_i32 s53, s%d, 160\ns_add_u32 s39, s39, s53' % (T1, CS))
        a('s_mul_i32 s40, s%d, 3072\ns_add_u32 s40, s40, %d' % (WAVE, self.MISC + 4096))
        for m in range(3):
            a('v_add_u32 v%d, %d, v0\nv_min_u32 v%d, 159, v%d\nv_mul_u32_u24 v%d, 205, v%d\nv_lshrrev_b32 v%d, 11, v%d' % (A, 64*m, A, A, B, A, B, B))
            a('v_mul_u32_u24 v%d, %d, v%d\nv_lshl_add_u32 v%d, v%d, 4, v%d' % (B, 40960-160, B, XV+m, A, B))
        a('v_mul_u32_u24 v%d, 160, v%d\nv_and_b32 v%d, 1, v%d\nv_lshl_add_u32 v%d, v%d, 4, v%d\nv_add_u32 v%d, s40, v%d' % (A, J, B, G_, A, B, A, XV+3, A))
        a('s_lshr_b32 s45, s%d, 2\ns_lshl_b32 s47, s45, 31\ns_or_b32 s47, s47, 0x3a000000' % CS)
        a('s_mul_i32 s46, s45, 640\ns_lshl_b32 s45, s45, 1\ns_sub_u32 s45, 1, s45')
        a('s_mul_i32 s53, s%d, 80' % CS)
        a('v_mul_u32_u24 v%d, %d, v%d' % (D, 2*GBLK, G_))
        a('v_and_b32 v227, 7, v0\nv_bfe_u32 v%d, v0, 3, 1\nv_lshl_add_u32 v227, v227, 1, v%d' % (A, A))
        for n in range(5):
            a('v_add_u32 v%d, s53, v227\nv_add_u32 v%d, %d, v%d' % (A, A, 16*n, A))
            a('v_mul_lo_u32 v%d, v%d, s45\nv_add_u32 v%d, s46, v%d' % (A, A, A, A))
            a('v_and_b32 v%d, 1, v%d\nv_mul_u32_u24 v%d, %d, v%d\nv_add_u32 v%d, v%d, v%d' % (B, A, B, GBLK, B, B, B, D))
            a('v_lshrrev_b32 v%d, 1, v%d\nv_cmp_eq_u32 vcc, 160, v%d\ns_nop 1\nv_cndmask_b32 v%d, v%d, 0, vcc' % (C, A, C, C, C))
            a('v_lshl_add_u32 v%d, v%d, 4, v%d' % (GV+n, C, B))
            if n == 0:
                a('v_cmp_eq_u32 vcc, 0, v%d\nv_mov_b32 v%d, 0x%x\ns_nop 0\nv_cndmask_b32 v%d, v%d, v%d, vcc' % (A, C, OOB, GV, GV, C))
        a('s_mul_i32 s45, s45, s%d\ns_and_b32 s45, s45, 31' % T1)
        a('s_mul_i32 s36, s45, %d\ns_mul_i32 s37, s42, %d\ns_add_u32 s36, s36, s37\ns_add_u32 s36, s36, 0x%x\ns_add_u32 s37, s36, %d' % (GROW, 16*GBLK, G16, 8*GBLK))
        a('s_lshr_b32 s45, s45, 3')
        for t in range(2):
            a('s_lshl_b32 s53, s%d, 9\ns_add_u32 s53, s53, s%d\nv_lshl_add_u32 v%d, v%d, 5, s53' % (44 - t, T1, A+t, J))
        for i in range(4):
            a('s_sub_u32 s53, %d, s45\ns_and_b32 s53, s53, 3\ns_lshl_b32 s46, s42, 5\ns_add_u32 s53, s53, s46' % (i+4))
            a('v_lshl_add_u32 v%d, v%d, 2, s53\nv_add_u32 v%d, 16, v%d' % (C, G_, D, C))
            for t in range(2):
                for d in range(2):
                    r = TM + 2*d
                    a('v_mul_u32_u24 v%d, v%d, v%d' % (r, A+t, C+d))
                    a('v_and_b32 v%d, 2047, v%d\nv_cvt_f32_u32 v%d, v%d\nv_mul_f32 v%d, s47, v%d' % (r, r, r, r, r, r))
                    a('v_sin_f32 v%d, v%d\nv_cos_f32 v%d, v%d' % (r+1, r, r, r))
                a('s_nop 0')
                for d in range(2):
                    a('v_cvt_pk_bf16_f32 v%d, v%d, v%d' % (TW+(t*2+d)*4+i, TM+2*d, TM+2*d+1))

    def p2_help(self):
        a = self.a
        a.label('L_p2_help')
        if self.stage == 'p1':
            a('s_waitcnt vmcnt(0)'); self.dump_stamps(); a('s_endpgm'); return
        ACC, G, TW, OV, GV, XV = 16, 56, self.TW, self.OV, self.GV, self.XV
        def acc(t, n): return ACC + (t*5+n)*4
        a('s_and_b32 s56, s%d, 1\ns_lshr_b32 s57, s%d, 1\nv_lshlrev_b32 v1, 3, v0' % (WAVE, WAVE))
        for m in range(3):
            a('s_add_u32 m0, s40, %d\ns_nop 0\nbuffer_load_dwordx4 v%d, %s, s39 offen lds' % (1024*m, XV+m, s(S_X,4)))
        a('s_mul_i32 s61, s57, 71680\ns_mul_i32 s62, s56, 5120\ns_add_u32 s61, s61, s62\nv_add_u32 v6, s61, v2')
        a('s_mul_i32 s61, s56, 71680\ns_mul_i32 s62, s57, 15360\ns_add_u32 s62, s62, s61\ns_add_u32 s62, s62, 51200\nv_add_u32 v7, s62, v2')
        a('s_mul_i32 s62, s57, 5120\ns_sub_u32 s62, s61, s62\ns_add_u32 s62, s62, 61440\nv_add_u32 v8, s62, v2')
        a('s_waitcnt vmcnt(0)')
        self.stamp(5)
        for n in range(5): a('ds_read_b128 %s, v%d offset:%d' % (v(96+4*n,4), XV+3, 32*n))
        if 'nos' not in self.opt:
            a('s_cmp_ge_u32 s%d, 24\ns_cbranch_scc1 L_p2_sx\nv_mov_b32 v12, %d\ns_mov_b32 s53, 0' % (IDX, self.MISC + 3072))
            a.label('L_p2_sq')
            a('ds_read_b32 v13, v12\ns_add_u32 s53, s53, 1\ns_cmp_gt_u32 s53, 0x%x\ns_cbranch_scc1 L_p2_sx\ns_waitcnt lgkmcnt(0)' % SPIN_MAX)
            a('v_cmp_ne_u32 vcc, 4, v13\ns_cbranch_vccz L_p2_sx\ns_sleep 1\ns_branch L_p2_sq')
            a.label('L_p2_sx')
        self.spin('L_p2_pd', 1, 254, 's38', 8)
        self.stamp(6)
        for d in range(2):
            for n in range(5):
                a('buffer_load_dwordx4 %s, v%d, %s, s%d offen %s' % (v(G+(d*5+n)*4,4), GV+n, s(S_WS,4), 36+d, self.bf))
        a('s_waitcnt lgkmcnt(0)')
        a('v_lshrrev_b32 v9, 5, v0\nv_lshlrev_b32 v9, 4, v9\nv_sub_u32 v9, 16, v9')
        for k in range(20):
            a('v_lshlrev_b32 v%d, v9, v%d\nv_and_b32 v%d, 0xffff0000, v%d' % (96+k, 96+k, acc(0,0)+k, 96+k))
        self.stamp(7)
        a('s_barrier')
        self.stamp(8)
        a('s_waitcnt vmcnt(0)')
        for d in range(2):
            for n in range(5):
                for t in range(2):
                    a('v_mfma_f32_16x16x32_bf16 %s, %s, %s, %s' % (v(acc(t,n),4), v(G+(d*5+n)*4,4), v(TW+(t*2+d)*4,4), v(acc(t,n),4) if (t == 0 or d) else '0'))
        w = ['ds_write_b128 v6, %s offset:%d' % (v(OV+4*g,4), (g//5)*10240 + (g%5)*1024) for g in range(25)]
        w += ['ds_write_b128 v%d, %s offset:%d' % (7+t, v(acc(t,n),4), n*1024) for t in range(2) for n in range(5)]
        for lo, hi in ((0,8),(8,16),(16,24),(24,30),(30,35)):
            a('s_barrier')
            for l in w[lo:hi]: a(l)
            a('s_waitcnt lgkmcnt(0)')
        a('s_barrier')
        a('s_or_b32 s53, s2, s%d\ns_cmp_eq_u32 s53, 0\ns_cbranch_scc0 L_ph_x' % WAVE)
        a('v_mov_b32 v2, 0x%x' % EPOCH)
        self.setflag(2, 4)
        a.label('L_ph_x')
        self.dump_stamps()
        a('s_endpgm')

    def p2_mfma(self):
        a = self.a
        a.label('L_p2_mfma')
        if self.stage == 'p1':
            self.dump_stamps(); a('s_endpgm'); return
        ACC, WB, H = 16, 56, 136
        NH, NWB = 14, 4
        def acc(t, n): return ACC + (t*5+n)*4
        a('s_setprio %s' % self.val.get('mp', '1'))
        a('s_and_b32 s56, s%d, 1\ns_bfe_u32 s57, s%d, 0x10001\nv_lshlrev_b32 v2, 4, v0' % (WAVE, WAVE))
        self.p2_coords()
        a('s_lshl_b32 s58, s56, 1\ns_add_u32 s59, s58, s57\ns_sub_u32 s58, s58, s57\ns_add_u32 s58, s58, 1')
        a('s_lshl_b32 s61, s%d, 2\ns_add_u32 s62, s61, s59\ns_mul_i32 s62, s62, 49152\nv_add_u32 v6, s62, v2' % T1)
        a('s_add_u32 s62, s61, s58\ns_mul_i32 s62, s62, 49152\nv_add_u32 v7, s62, v2')
        a('s_mul_i32 s62, s57, 24\ns_sub_u32 s62, s62, s76\ns_lshl_b32 s62, s62, 10\ns_add_u32 s63, s62, 0x%x\ns_add_u32 s62, s62, 0x%x' % (HF, HF + 24576))
        a('s_mul_i32 s61, s57, 71680\nv_add_u32 v3, s61, v2\nv_add_u32 v4, 0xc800, v3')
        a('s_lshl_b32 s60, s59, 9\ns_add_u32 s60, s60, s%d\ns_mul_i32 s60, s60, 1280\ns_mul_i32 s61, s%d, 160\ns_add_u32 s60, s60, s61' % (T1, CS))
        a('s_and_b32 s74, s%d, 3\ns_xor_b32 s73, s74, 2\ns_mul_i32 s73, s73, 5120\ns_add_u32 s73, s73, 143360' % WAVE)
        a('s_mul_i32 s74, s74, 5120\ns_add_u32 s74, s74, 143360')
        for m in range(3):
            a('v_add_u32 v8, %d, v0\nv_mul_u32_u24 v9, 205, v8\nv_lshrrev_b32 v9, 11, v9' % (64*m))
            a('v_mul_u32_u24 v%d, 10, v9\nv_sub_u32 v8, v8, v%d\nv_lshlrev_b32 v8, 4, v8' % (10+m, 10+m))
            a('v_mul_u32_u24 v%d, 40960, v9\nv_add_u32 v%d, v%d, v8' % (10+m, 10+m, 10+m))
            a('v_mul_u32_u24 v9, 176, v9\nv_add3_u32 v%d, v9, v8, s74' % (13+m))
        a('v_cmp_gt_u32 vcc, 32, v0\nv_mov_b32 v8, 0x%x\ns_nop 0\nv_cndmask_b32 v12, v8, v12, vcc' % OOB)
        a('v_and_b32 v8, 15, v0\nv_mul_u32_u24 v8, 176, v8\nv_bfe_u32 v9, v0, 4, 1\nv_lshl_add_u32 v8, v9, 4, v8\nv_lshrrev_b32 v9, 5, v0\nv_lshl_add_u32 v8, v9, 3, v8\nv_add_u32 v8, s74, v8')
        a('v_add_u32 v9, s73, v2\nv_add_u32 v5, s74, v2')
        a('s_mul_i32 s61, s56, 71680\ns_mul_i32 s53, s57, 10240\ns_add_u32 s61, s61, s53\ns_add_u32 s61, s61, 51200\nv_add_u32 v1, s61, v2')
        hf = self.val.get('hf', 'p')
        k_ = {'p': 1, 'w': 4, 'l': 16}[hf]
        a('s_lshr_b32 s64, s%d, 1\ns_mul_i32 s64, s64, %d\ns_mul_i32 s65, s57, %d\ns_add_u32 s64, s64, s65\ns_add_u32 s64, s64, 0x%x' % (T1, 512*k_, 192*k_, 0 if hf == 'p' else 0xa0000))
        a('v_min_u32 v250, 23, v0\ns_mov_b32 s66, -1')
        if hf == 'w': a('v_and_b32 v251, 3, v250\nv_lshrrev_b32 v250, 2, v250\nv_lshlrev_b32 v250, 7, v250\nv_lshl_add_u32 v250, v251, 3, v250')
        else: a('v_lshlrev_b32 v250, %d, v250' % (3 if hf == 'p' else 7))
        if 'p0late' not in self.opt: a('s_barrier')
        self.stamp(7)
        vm = VM(a)
        late = []
        NG = int(self.val.get('ng', 1))
        def ensure(g, first=False):
            mask = (0xF << 4*g) if not first else (1 << 4*NG) - 1
            L = 'L_en%d' % g
            a('s_and_b32 s67, s66, 0x%x\ns_cbranch_scc1 %s' % (mask, L))
            a.label(L + '_r')
            late.append((L, mask))
        def hload(j):
            if j % 4 == 0 and (j == 0 or j//4 >= NG): ensure(j//4, j == 0)
            if j == 0: self.stamp(8)
            a('s_cmp_le_u32 s76, %d\ns_cselect_b32 s61, s63, s62\ns_add_u32 s61, s61, %d' % (j, j*1024))
            for t in range(2):
                vm.op('buffer_load_dwordx4 %s, v%d, %s, s61 offen %s' % (v(H+(j%NH)*8+4*t,4), 6+t, s(S_WS,4), self.bf), j)
        def wread(j):
            sl = j if j < 14 else j - 14
            return ['ds_read_b128 %s, v%d offset:%d' % (v(WB+(j%NWB)*20+4*n,4), 3 if sl < 10 else 4, (sl if sl < 10 else sl-10)*5120 + n*1024) for n in range(5)]
        PRE = int(self.val.get('hpre', self.h_pre))
        for j in range(PRE): hload(j)
        if 'p0late' in self.opt: a('s_barrier')
        for j in range(2):
            for r in wread(j): a(r)
        nxt = PRE
        for j in range(24):
            vm.wait(j, 'lgkmcnt(%d)' % (5 if j < 23 else 0))
            if j in (0, 4, 9, 17): self.stamp({0: 9, 4: 10, 9: 11, 17: 12}[j])
            if j in (3, 7, 11, 15, 19): a('s_barrier')
            rd = wread(j+2) if j < 22 else []
            k = 0
            for n in range(5):
                for t in range(2):
                    a('v_mfma_f32_16x16x32_bf16 %s, %s, %s, %s' % (v(acc(t,n),4), v(WB+(j%NWB)*20+4*n,4), v(H+(j%NH)*8+4*t,4), v(acc(t,n),4) if j else '0'))
                    if k < len(rd): a(rd[k]); k += 1
                    elif k in (5, 7) and nxt < 24 and nxt < j + NH and (k == 5 or nxt <= j + NH - 2):
                        hload(nxt); nxt += 1; k += 1
                    else: k += 1
        assert nxt == 24
        self.stamp(13)
        a.nop(7)
        for n in range(5): a('ds_write_b128 v9, %s offset:%d' % (v(acc(1,n),4), n*1024))
        a('s_waitcnt lgkmcnt(0)\ns_barrier')
        for n in range(5):
            a('ds_read_b128 %s, v1 offset:%d' % (v(WB+12*n,4), n*1024))
            a('ds_read_b128 %s, v1 offset:%d' % (v(WB+12*n+4,4), 5120 + n*1024))
            a('ds_read_b128 %s, v5 offset:%d' % (v(WB+12*n+8,4), n*1024))
        for n in range(5):
            a('s_waitcnt lgkmcnt(%d)' % (12-2*n))
            for k in range(2):
                a('v_pk_add_f32 %s, %s, %s' % (v(WB+12*n+2*k,2), v(WB+12*n+2*k,2), v(WB+12*n+4+2*k,2)))
                a('v_pk_add_f32 %s, %s, %s' % (v(acc(0,n)+2*k,2), v(acc(0,n)+2*k,2), v(WB+12*n+8+2*k,2)))
            for k in range(2): a('v_pk_add_f32 %s, %s, %s' % (v(acc(0,n)+2*k,2), v(acc(0,n)+2*k,2), v(WB+12*n+2*k,2)))
            a('s_nop 1')
            for k in range(2): a('v_permlane32_swap_b32 v%d, v%d' % (acc(0,n)+k, acc(0,n)+2+k))
            for k in range(2): a('v_cvt_pk_bf16_f32 v%d, v%d, v%d' % (acc(1,n)+k, acc(0,n)+k, acc(0,n)+2+k))
            a('ds_write_b64 v8, %s offset:%d' % (v(acc(1,n),2), 32*n))
        a('s_waitcnt lgkmcnt(0)')
        for m in range(3): a('ds_read_b128 %s, v%d' % (v(WB+4*m,4), 13+m))
        for m in range(3):
            a('s_waitcnt lgkmcnt(%d)' % (2-m))
            a('buffer_store_dwordx4 %s, v%d, %s, s60 offen %s' % (v(WB+4*m,4), 10+m, s(S_OUT,4), self.val.get('of', '').replace('+', ' ')))
        if self.stamps: a('s_waitcnt vmcnt(0)')
        self.dump_stamps()
        a('s_endpgm')
        for L, mask in late:
            a.label(L)
            a('s_mov_b32 s53, 0')
            a.label(L + '_l')
            a('buffer_load_dwordx2 v[254:255], v250, %s, s64 offen sc1' % s(S_WS,4))
            a('s_add_u32 s53, s53, 1\ns_cmp_gt_u32 s53, 0x%x\ns_cbranch_scc1 %s_r\ns_waitcnt vmcnt(0)' % (SPIN_MAX, L))
            a('v_cmp_ne_u64 vcc, s[12:13], v[254:255]\ns_nop 1\ns_mov_b32 s66, vcc_lo\ns_and_b32 s67, s66, 0x%x\ns_cbranch_scc0 %s_r' % (mask, L))
            a('s_sleep %s\ns_branch %s_l' % (self.val.get('hs', '1'), L))

    h_pre = 10

    def build(self, header):
        a = self.a
        self.prologue()
        self.ffn_wloader(); self.ffn_xloader(); self.dft_loader()
        self.dft_consumer(); self.ffn_consumer()
        self.p2_help(); self.p2_mfma()
        a.label('L_end')
        a('s_endpgm')
        errs = check(a.lines)
        for e in errs: print(e, file=sys.stderr)
        txt = header + '; @launch grid=(256,1,1) block=(512,1,1) lds=163840\n' + DOC
        txt += '.amdgcn_target "amdgcn-amd-amdhsa--gfx950"\n.text\n.globl %s\n.p2align 8\n.type %s,@function\n%s:\n' % (KN, KN, KN)
        txt += a.text()
        txt += '''.section .rodata,"a"
.p2align 6
.amdhsa_kernel %s
  .amdhsa_next_free_vgpr 256
  .amdhsa_next_free_sgpr 102
  .amdhsa_accum_offset 256
  .amdhsa_group_segment_fixed_size 0
  .amdhsa_kernarg_size 96
  .amdhsa_user_sgpr_count 2
  .amdhsa_user_sgpr_kernarg_segment_ptr 1
  .amdhsa_system_sgpr_workgroup_id_x 1
.end_amdhsa_kernel
''' % KN
        return txt, errs

if __name__ == '__main__':
    import argparse
    ap = argparse.ArgumentParser()
    ap.add_argument('-o', default='k.s'); ap.add_argument('--stage', default='full'); ap.add_argument('--stamps', action='store_true'); ap.add_argument('--opt', default='')
    args = ap.parse_args()
    ref = open('parallel_sum__spectral_fnet__swiglu_ffn__prompt.s.ref').read()
    header = ''.join(l + '\n' for l in ref.split('\n') if l.startswith(';') and '@launch' not in l and 'Override launch' not in l and 'grid=ceil' not in l)
    txt, errs = Gen(args.stage, args.stamps, [o for o in args.opt.split(',') if o]).build(header)
    open(args.o, 'w').write(txt)
    print('written', args.o, 'hazard errors:', len(errs))
```

```python
import sys
from dsl import *

KN = 'parallel_sum__spectral_fnet__swiglu_ffn__prompt_kernel'
HFLAG   = 0x0
EPOCH   = 0x18000
SFLAG   = 0x8000
STATS   = 0x20000
COLSUM  = 0x28000
STAMPS  = 0x60000
DFLAG   = 0x80000
WDF     = 0x100000
G16     = 0x300000
HF      = 0x600000
WS_SIZE = 0xC00000
LROW = 97*16
GROW = 160*16
GBLK = 32*GROW
SPIN_MAX = 0x100000
OOB = 0x7ffffff0

S_X, S_WS, S_OUT, S_A = 4, 8, 16, 20
NONCE = 12
P_X, P_HRE, P_HIM, P_WG, P_WU, P_WD, P_OUT, P_DBG, P_WS = 28, 32, 34, 36, 38, 40, 42, 44, 46
WAVE, XCD, IDX = 48, 49, 50
T1, CS = 51, 52
HH, DID = 14, 15

DOC = """; out = x + Re(DFT_seq(DFT_hid(LN(x)))) + SwiGLU(LN(x)), one persistent launch, one 8-wave group per CU.
;           the other 64 groups: radix-2 folded hidden DFT + 32-point DFT over rows 64 apart, row statistics.
;  phase 2, every group: 64 rows (t = t1 mod 32) x 80 columns of h*W_down + the closing 64-point stage (twiddles from v_sin/v_cos) + x.
;  Hand-offs inside the launch use write-through stores and flags/records tagged with (word found in d_ws at entry) + 1.
"""

class VM:
    def __init__(self, a): self.a = a; self.q = []
    def op(self, txt, tag): self.a(txt); self.q.append(tag)
    def wait(self, tag, extra=''):
        idx = max([i for i, t in enumerate(self.q) if t == tag], default=-1)
        if idx < 0:
            if extra: self.a('s_waitcnt ' + extra)
            return
        n = len(self.q) - idx - 1
        assert n <= 63
        self.a('s_waitcnt vmcnt(%d) %s' % (n, extra))
        self.q = self.q[idx+1:]
    def drained(self): self.q = []

class Gen:
    def __init__(self, stage='full', stamps=False, opt=()):
        self.a = Asm(); self.stage = stage; self.stamps = stamps; self.opt = set(o.split('=')[0] for o in opt); self.val = dict(o.split('=') for o in opt if '=' in o)
        self.bf = '' if 'plain' in self.opt else 'sc1'
        if 'ph8' not in self.opt:
            self.opt |= ({'ph2', 'pfw', 'nowd', 'pf', 'ft'} if 'hy' in self.opt else {'ph2', 'pfw', 'nowd'} if 'pf' in self.opt else {'ph2', 'ft', 'nowd'})
            for k, d in (('fb','6'),('wds','1'),('pw','11'),('ove','5'),('pf0','2')): self.val.setdefault(k, d)

    def srd(self, dst, ptr, size):
        a = self.a
        a('s_mov_b32 %s, %s' % (s(dst), s(ptr)))
        a('s_mov_b32 %s, %s' % (s(dst+1), s(ptr+1)))
        a('s_mov_b32 %s, 0x%x' % (s(dst+2), size))
        a('s_mov_b32 %s, 0x20000' % s(dst+3))

    def stamp(self, k):
        if self.stamps:
            self.a('%s s[98:99]\ns_waitcnt lgkmcnt(0)\ns_mov_b32 s%d, s98' % ('s_memtime' if 'cyc' in self.opt else 's_memrealtime', 80+k))

    def dump_stamps(self):
        if not self.stamps: return
        a = self.a
        a('s_memtime s[96:97]\ns_waitcnt lgkmcnt(0)\ns_sub_u32 s95, s96, s95')
        a('s_lshl_b32 s96, s2, 3\ns_add_u32 s96, s96, s%d\ns_lshl_b32 s96, s96, 6\ns_add_u32 s96, s96, 0x%x' % (WAVE, STAMPS))
        self.stamp(14)
        if 'probe' in self.opt:
            self.nprobe = getattr(self, 'nprobe', 0) + 1
            k = int(self.val['probe']); L = 'L_pr%d' % self.nprobe
            a('s_cmp_eq_u32 s2, %s\ns_cbranch_scc0 %s_x\ns_cmp_eq_u32 s%d, %s\ns_cbranch_scc0 %s_x' % (self.val.get('pwg', '0'), L, WAVE, self.val.get('pwave', '4'), L))
            a('s_sub_u32 s60, s%d, s80\ns_mul_i32 s60, s60, 10\ns_add_u32 s60, s60, 6000' % (80+k))
            a.label(L)
            a('s_memrealtime s[98:99]\ns_waitcnt lgkmcnt(0)\ns_sub_u32 s61, s98, s80\ns_cmp_lt_u32 s61, s60\ns_cbranch_scc1 %s' % L)
            a.label(L + '_x')
        for k in range(16): a('v_mov_b32 v%d, s%d' % (100+k, 80+k))
        a('v_mov_b32 v99, s96')
        a('s_mov_b64 exec, 1')
        for k in range(4): a('buffer_store_dwordx4 v[%d:%d], v99, %s, 0 offen offset:%d' % (100+4*k, 103+4*k, s(S_WS,4), 16*k))
        a('s_waitcnt vmcnt(0)')

    def nonce(self):
        self.a('s_waitcnt lgkmcnt(0)\ns_add_u32 s12, s12, 1\ns_add_u32 s13, s13, 1')

    def spin(self, lbl, va, vd, soff, sleep, first_done=False):
        a = self.a
        a('s_mov_b32 s53, 0')
        if first_done: a('s_branch %s_c' % lbl)
        a.label(lbl)
        a('buffer_load_dwordx2 %s, v%d, %s, %s offen sc1' % (v(vd,2), va, s(S_WS,4), soff))
        a('s_add_u32 s53, s53, 1\ns_cmp_gt_u32 s53, 0x%x\ns_cbranch_scc1 %s_x' % (SPIN_MAX, lbl))
        a('s_waitcnt vmcnt(0)')
        a.label(lbl + '_c')
        a('v_cmp_ne_u64 vcc, s[12:13], %s' % v(vd,2))
        a('s_cbranch_vccz %s_x\ns_sleep %d\ns_branch %s' % (lbl, sleep, lbl))
        a.label(lbl + '_x')

    def spin3(self, lbl, va, vd, first_done=False):
        a = self.a
        a('s_mov_b32 s53, 0')
        if first_done: a('s_branch %s_c' % lbl)
        a.label(lbl)
        for k in range(3): a('buffer_load_dwordx2 %s, v%d, %s, 0 offen sc1' % (v(vd+2*k,2), va[k], s(S_WS,4)))
        a('s_add_u32 s53, s53, 1\ns_cmp_gt_u32 s53, 0x%x\ns_cbranch_scc1 %s_x' % (SPIN_MAX, lbl))
        a('s_waitcnt vmcnt(0)')
        a.label(lbl + '_c')
        a('v_cmp_ne_u64 vcc, s[12:13], %s\nv_cmp_ne_u64 s[68:69], s[12:13], %s\ns_nop 0\ns_or_b64 vcc, vcc, s[68:69]' % (v(vd,2), v(vd+2,2)))
        a('v_cmp_ne_u64 s[68:69], s[12:13], %s\ns_nop 0\ns_or_b64 vcc, vcc, s[68:69]' % v(vd+4,2))
        a('s_cbranch_vccz %s_x\ns_sleep 8\ns_branch %s' % (lbl, lbl))
        a.label(lbl + '_x')

    def setflag(self, va, vd, mask='1'):
        a = self.a
        a('v_mov_b32 v%d, s12\nv_mov_b32 v%d, s13' % (vd, vd+1))
        a('s_mov_b64 exec, %s' % mask)
        a('buffer_store_dwordx2 %s, v%d, %s, 0 offen sc1' % (v(vd,2), va, s(S_WS,4)))
        a('s_mov_b64 exec, -1')

    def ptrs(self):
        a = self.a
        a('s_mov_b32 s%d, 0x%x\ns_mov_b32 s%d, 0x20000\ns_mov_b32 s%d, 0x20000' % (S_X+2, 2048*640*2, S_X+3, S_A+3))
        a('s_waitcnt lgkmcnt(0)')
        if self.stamps: a('s_mov_b32 s80, s100')
        a('s_mov_b32 s%d, s%d\ns_mov_b32 s%d, s%d' % (S_X, P_X, S_X+1, P_X+1))

    def late(self):
        a = self.a
        a('s_load_dwordx2 s[12:13], s[46:47], 0x%x' % EPOCH)
        if 'map48' in self.opt:
            a('s_lshr_b32 s%d, s%d, 3\ns_lshl_b32 s53, s%d, 2\ns_add_u32 s%d, s%d, s53\ns_and_b32 s%d, s%d, 7' % (T1, IDX, XCD, T1, T1, CS, IDX))
        else:
            a('s_lshr_b32 s%d, s%d, 2\ns_lshr_b32 s53, s%d, 1\ns_lshl_b32 s53, s53, 3\ns_add_u32 s%d, s%d, s53' % (T1, IDX, XCD, T1, T1))
            a('s_and_b32 s%d, s%d, 3\ns_and_b32 s53, s%d, 1\ns_lshl_b32 s53, s53, 2\ns_add_u32 s%d, s%d, s53' % (CS, IDX, XCD, CS, CS))
        a('s_mov_b32 s%d, 0x%x\ns_mov_b32 s%d, 0x20000' % (S_WS+2, WS_SIZE, S_WS+3))
        a('s_mov_b32 s%d, 0x%x\ns_mov_b32 s%d, 0x20000' % (S_OUT+2, 2048*640*2, S_OUT+3))
        for d, p in ((S_WS, P_WS), (S_OUT, P_OUT)):
            a('s_mov_b32 s%d, s%d\ns_mov_b32 s%d, s%d' % (d, p, d+1, p+1))

    def prologue(self):
        a = self.a
        if 'early0' in self.opt: a('s_memrealtime s[100:101]')
        a('s_load_dwordx2 s[28:29], s[0:1], 0')
        a('s_load_dwordx4 s[36:39], s[0:1], 48')
        a('s_load_dwordx8 s[40:47], s[0:1], 64')
        a('s_load_dwordx4 s[32:35], s[0:1], 24')
        a('s_cmp_ge_u32 s2, 256\ns_cbranch_scc1 L_end')
        a('v_lshrrev_b32 v1, 6, v0\nv_and_b32 v0, 63, v0')
        a('v_readfirstlane_b32 s%d, v1' % WAVE)
        a('s_and_b32 s%d, s2, 7\ns_lshr_b32 s%d, s2, 3' % (XCD, IDX))
        if self.stamps:
            for k in range(16): a('s_mov_b32 s%d, 0' % (80+k))
            a('s_mov_b32 s95, 0\ns_memrealtime s[100:101]')
        a('s_cmp_eq_u32 s%d, 7\ns_cbranch_scc0 L_nopf' % WAVE)
        a('s_getpc_b64 s[54:55]')
        a.label('L_pc')
        a('s_mul_i32 s53, s%d, %d' % (IDX, 14*128))
        a('v_min_u32 v2, 13, v0\nv_lshl_add_u32 v2, v2, 7, s53\nv_min_u32 v2, L_end-L_pc, v2')
        a('global_load_dword v1, v2, s[54:55]')
        a.label('L_nopf')
        a('s_mul_i32 s54, s%d, 43\ns_lshr_b32 s54, s54, 7' % IDX)
        a('s_mul_i32 s55, s54, 3\ns_sub_u32 s55, s%d, s55' % IDX)
        a('s_and_b32 s56, s%d, 1\ns_lshl_b32 s56, s56, 3\ns_add_u32 s54, s54, s56' % XCD)
        a('s_lshr_b32 s56, s%d, 1\ns_mul_i32 s56, s56, 3\ns_add_u32 s55, s55, s56' % XCD)
        a('s_cmp_ge_u32 s%d, 24\ns_cbranch_scc1 L_notffn' % IDX)
        a('s_cmp_lt_u32 s%d, 2\ns_cbranch_scc1 L_ffn_wl' % WAVE)
        a('s_cmp_lt_u32 s%d, 4\ns_cbranch_scc1 L_ffn_xl' % WAVE)
        a('s_branch L_ffn_cons')
        a.label('L_notffn')
        if 'ffnonly' in self.opt: a('s_endpgm')
        a('s_and_b32 s54, s%d, 3\ns_lshr_b32 s55, s%d, 2\ns_lshl_b32 s55, s55, 3\ns_add_u32 s54, s54, s55' % (IDX, XCD))
        a('s_and_b32 s55, s%d, 1\ns_lshl_b32 s55, s55, 2\ns_add_u32 s54, s54, s55\ns_bfe_u32 s55, s%d, 0x10001' % (XCD, XCD))
        a('s_bfe_u32 s%d, s%d, 0x10002\ns_lshl_b32 s%d, s54, 1\ns_add_u32 s%d, s%d, s55\ns_lshl_b32 s%d, s%d, 1\ns_add_u32 s%d, s%d, s%d' % (HH, IDX, DID, DID, DID, DID, DID, DID, DID, HH))
        if 'pf' in self.opt:
            a('s_waitcnt lgkmcnt(0)'); self.prefetch()
        a('s_cmp_lt_u32 s%d, 4\ns_cbranch_scc1 L_dft_ld' % WAVE)
        a('s_branch L_dft_cons')

    WSLOT, NWS = 16384, 6
    XB, XSLOT, NXS = 98304, 16384, 3
    MISC = 147456

    def wvoff(self, dst0, rowbytes, tmp):
        a = self.a
        t = tmp
        a('v_lshrrev_b32 v%d, 3, v0' % t)
        a('v_bfe_u32 v%d, v0, 4, 1' % (t+1))
        a('v_bfe_u32 v%d, v0, 1, 2' % (t+2))
        a('v_xor_b32 v%d, v%d, v%d' % (t+2, t+2, t+1))
        a('v_and_b32 v%d, 1, v0' % (t+1))
        a('v_lshlrev_b32 v%d, 4, v%d' % (t+1, t+1))
        a('v_lshl_add_u32 v%d, v%d, 5, v%d' % (t+2, t+2, t+1))
        a('v_mul_u32_u24 v%d, %d, v%d' % (t, rowbytes, t))
        a('v_add_u32 v%d, v%d, v%d' % (dst0, t, t+2))
        a('v_xor_b32 v%d, 64, v%d' % (t+2, t+2))
        a('v_add_u32 v%d, v%d, v%d' % (dst0+1, t, t+2))
        a('v_add_u32 v%d, %d, v%d' % (dst0+1, 8*rowbytes, dst0+1))
        a('v_add_u32 v%d, %d, v%d' % (dst0+2, 16*rowbytes, dst0))
        a('v_add_u32 v%d, %d, v%d' % (dst0+3, 16*rowbytes, dst0+1))

    def phase(self, dst):
        a = self.a
        a('s_mul_i32 s64, s%d, 43\ns_lshr_b32 s64, s64, 7\ns_mul_i32 s65, s64, 3\ns_sub_u32 s65, s%d, s65' % (IDX, IDX))
        if 'ph0' in self.opt: a('s_mov_b32 s%d, 0' % dst)
        elif 'ph2' not in self.opt and 'ph4' not in self.opt:
            a('s_lshr_b32 s%d, s64, 2\ns_add_u32 s%d, s%d, s64' % (dst, dst, dst))
            a('s_mul_i32 s53, s65, 7\ns_lshr_b32 s53, s53, 1\ns_add_u32 s%d, s%d, s53' % (dst, dst))
            a('s_cmp_ge_u32 s%d, 10\ns_cselect_b32 s53, 10, 0\ns_sub_u32 s%d, s%d, s53' % (dst, dst, dst))
        elif 'ph4' in self.opt:
            a('s_and_b32 s%d, s64, 3\ns_mul_i32 s%d, s%d, 5\ns_lshr_b32 s%d, s%d, 1' % (dst, dst, dst, dst, dst))
        else: a('s_and_b32 s%d, s64, 1\ns_mul_i32 s%d, s%d, 5' % (dst, dst, dst))

    def prefetch(self):
        a = self.a
        a('s_sub_u32 s56, s%d, 24' % IDX)
        a('s_bitcmp0_b32 s%d, 0' % XCD)
        a('s_cselect_b32 s24, s%d, s%d\ns_cselect_b32 s25, s%d, s%d\ns_mov_b32 s26, 0x%x\ns_mov_b32 s27, 0x20000' % (P_WG, P_WU, P_WG+1, P_WU+1, 640*1536*2))
        a('v_min_u32 v1, 47, v0\nv_mul_u32_u24 v2, 43, v1\nv_lshrrev_b32 v2, 8, v2')
        a('v_mul_u32_u24 v3, 6, v2\nv_sub_u32 v1, v1, v3\nv_lshlrev_b32 v1, 7, v1')
        a('v_lshrrev_b32 v3, 2, v2\nv_mul_u32_u24 v3, 320, v3\nv_and_b32 v2, 3, v2\nv_add_u32 v2, v2, v3\nv_mul_u32_u24 v2, 3072, v2\nv_add_u32 v2, v2, v1')
        a('s_lshr_b32 s57, s%d, 1\ns_mul_i32 s58, s57, 768\ns_mul_i32 s59, s56, 12288\ns_add_u32 s58, s58, s59' % XCD)
        a('s_and_b32 s59, s%d, 1\ns_lshl_b32 s59, s59, 4\ns_lshl_b32 s57, s57, 9\ns_add_u32 s57, s57, s59\ns_lshl_b32 s59, s56, 5\ns_add_u32 s57, s57, s59\ns_mul_i32 s57, s57, 1280' % XCD)
        a('v_and_b32 v3, 15, v0\nv_mul_u32_u24 v3, 1280, v3\nv_bfe_u32 v4, v0, 1, 1\nv_mul_u32_u24 v4, 5, v4')
        S0 = int(self.val.get('pf0', 1))
        def slot(sreg):
            a('s_mul_i32 s60, s%d, %d\ns_add_u32 s60, s60, s58' % (sreg, 32*3072))
            a('buffer_load_dword v255, v2, s[24:27], s60 offen')
            if 'pfw' in self.opt: return
            a('s_lshr_b32 s60, s%d, 1\nv_add_u32 v5, s60, v4\nv_lshl_add_u32 v5, v5, 7, v3\ns_and_b32 s60, s%d, 1\ns_mul_i32 s60, s60, %d\ns_add_u32 s60, s60, s57' % (sreg, sreg, 256*1280))
            a('s_mov_b64 exec, 0xffff\nbuffer_load_dword v255, v5, %s, s60 offen\ns_mov_b64 exec, -1' % s(S_X,4))
        a('s_add_u32 s61, s%d, %d\ns_cmp_lt_u32 s61, 10\ns_cbranch_scc0 L_pf_e' % (WAVE, S0))
        slot(61)
        a('s_add_u32 s61, s61, 8\ns_cmp_lt_u32 s61, 10\ns_cbranch_scc0 L_pf_x')
        slot(61)
        a('s_branch L_pf_e')
        a.label('L_pf_x')
        a('s_cmp_lt_u32 s61, %d\ns_cbranch_scc0 L_pf_e' % (0 if 'pfw' in self.opt else 13))
        a('s_sub_u32 s61, s61, 10\ns_lshl_b32 s61, s61, 2\nv_lshrrev_b32 v5, 4, v0\nv_add_u32 v5, s61, v5\nv_min_u32 v5, 9, v5')
        a('v_and_b32 v6, 1, v5\nv_mul_u32_u24 v6, %d, v6\nv_add_u32 v3, v3, v6\nv_lshrrev_b32 v5, 1, v5\nv_sub_u32 v5, v5, v4\nv_add_u32 v5, 5, v5\nv_lshl_add_u32 v5, v5, 7, v3' % (256*1280))
        a('buffer_load_dword v255, v5, %s, s57 offen' % s(S_X,4))
        a.label('L_pf_e')

    def p2_coords(self):
        a = self.a
        if 'rho' not in self.opt: a('s_mov_b32 s76, 0')
        elif 'rho2' in self.opt:
            a('s_and_b32 s76, s%d, 7\ns_and_b32 s53, s%d, 3\ns_lshl_b32 s53, s53, 1\ns_add_u32 s76, s76, s53\ns_and_b32 s76, s76, 7\ns_mul_i32 s76, s76, 3' % ((CS, T1) if 'map48' in self.opt else (T1, CS)))
        elif 'map48' in self.opt: a('s_and_b32 s76, s%d, 3\ns_mul_i32 s76, s76, 6' % T1)
        else: a('s_and_b32 s76, s%d, 7\ns_mul_i32 s76, s76, 3' % T1)
        a('s_mul_i32 s77, s%d, 245760\ns_mul_i32 s53, s76, 5120\ns_add_u32 s77, s77, s53\ns_add_u32 s77, s77, 0x%x\ns_sub_u32 s75, s77, 122880\ns_sub_u32 s76, 24, s76' % (CS, WDF))

    def wd_dma(self, vm, frags, voff):
        a = self.a; last = None
        for f in frags:
            half, r = divmod(f, 70); j, n = divmod(r, 5)
            if j != last: a('s_cmp_le_u32 s76, %d\ns_cselect_b32 s74, s75, s77' % j); last = j
            a('s_add_u32 m0, %d, 0\ns_add_u32 s78, s74, %d' % (f*1024, half*122880 + j*5120 + n*1024))
            vm.op('buffer_load_dwordx4 v%d, %s, s78 offen %s lds' % (voff, s(S_WS,4), self.bf), 'wd')

    OV = 128
    def ov_setup(self):
        a = self.a
        a('s_lshr_b32 s53, s%d, 1\ns_mul_i32 s72, s53, 122880\ns_and_b32 s53, s%d, 1\ns_sub_i32 s71, s76, s53\ns_mul_i32 s53, s53, 5120\ns_add_u32 s72, s72, s53' % (WAVE, WAVE))
        a('s_add_u32 s73, s72, s75\ns_add_u32 s72, s72, s77')
    def ov_load(self, vm, i, voff):
        a = self.a
        a('s_cmp_le_i32 s71, %d\ns_cselect_b32 s74, s73, s72\ns_add_u32 s74, s74, %d\ns_add_u32 s78, s74, 4096' % (14+2*i, (14+2*i)*5120))
        for n in range(5):
            vm.op('buffer_load_dwordx4 %s, v%d, %s, %s offen offset:%d %s' % (v(self.OV+20*i+4*n,4), voff, s(S_WS,4), 's74' if n < 4 else 's78', (n&3)*1024, self.bf), 'ov')

    def ffn_wloader(self):
        a = self.a; vm = VM(a)
        a.label('L_ffn_wl')
        self.wvoff(4, 3072, 8)
        self.phase(58)
        a('s_lshl_b32 s59, s55, 8\ns_mul_i32 s56, s58, %d\ns_add_u32 s56, s56, s59\ns_add_u32 s59, s59, %d' % (64*3072, 640*3072))
        a('s_lshl_b32 s57, s%d, 13' % WAVE)
        self.ptrs()
        a('s_cmp_eq_u32 s%d, 0' % WAVE)
        a('s_cselect_b32 s%d, s%d, s%d\ns_cselect_b32 s%d, s%d, s%d' % (S_A, P_WG, P_WU, S_A+1, P_WG+1, P_WU+1))
        a('s_mov_b32 s%d, 0x%x' % (S_A+2, 640*1536*2))
        def issue(n):
            for b in range(2):
                for j in range(4):
                    a('s_add_u32 m0, s57, %d' % ((n % self.NWS)*self.WSLOT + b*4096 + j*1024 - b*128))
                    a('s_nop 0')
                    if 'now' not in self.opt: vm.op('buffer_load_dwordx4 v%d, %s, s56 offen offset:%d %s lds' % (4+j, s(S_A,4), b*128, 'nt' if 'ntw' in self.opt else ''), n)
            a('s_add_u32 s56, s56, %d' % (32*3072))
            if n & 1: a('s_cmp_eq_u32 s56, s59\ns_cselect_b32 s60, %d, 0\ns_sub_u32 s56, s56, s60' % (640*3072))
        L0 = int(self.val.get('wl', 2)); L1 = int(self.val.get('wl1', 4)); R0 = int(self.val.get('wr', 6))
        LP = int(self.val.get('wpre', L0))
        sched = {-1: list(range(LP))}; front = LP
        for m in range(20):
            lead = L0 if m < R0 else min(L1, L0 + (m - R0)//2 + 1)
            sched[m] = []
            while front < 20 and front <= m + lead and front <= m + 5: sched[m].append(front); front += 1
        self.stamp(12)
        IB = int(self.val.get('ib', 1))
        for k_, n in enumerate(sched[-1]):
            issue(n)
            if k_ + 1 == IB: a('s_barrier')
        self.stamp(13)
        self.late()
        self.nonce()
        self.p2_coords(); self.ov_setup()
        a('v_lshlrev_b32 v2, 4, v0')
        self.p2_prep()
        WI = int(self.val.get('wi', 0)); WP = int(self.val.get('wp', 3)); FB = int(self.val.get('fb', 7))
        for m in range(15):
            vm.wait(m)
            if m == 0: self.stamp(1)
            a('s_barrier')
            for n in sched.get(m, []): issue(n)
            if m == WI and 'nowd' not in self.opt:
                for i in range(2):
                    for j in range(4):
                        a('s_add_u32 m0, s67, %d\ns_nop 0' % (i*8192 + j*1024))
                        vm.op('buffer_load_dwordx4 v%d, s[24:27], s%d offen nt lds' % (12+j, 68+i), 'wu')
            if m == WP and 'nowd' not in self.opt:
                vm.wait('wu')
                for i in range(2):
                    for ct in range(4):
                        for q in range(2): a('ds_read_b64_tr_b16 %s, v%d offset:%d' % (v(24+16*i+4*ct+2*q,2), 16+ct, i*8192 + q*2048))
                a('s_waitcnt lgkmcnt(0)')
                for k in range(8): vm.op('buffer_store_dwordx4 %s, v2, %s, s%d offen sc1' % (v(24+4*k,4), s(S_WS,4), 28+k), 'wo')
            for i in self.ov_sched(m): self.ov_load(vm, i, 2)
        a('s_cmp_eq_u32 s%d, 0\ns_cbranch_scc0 L_wl_t1' % WAVE)
        q0 = list(vm.q)
        for w in range(2):
            vm.q = list(q0)
            if w: a.label('L_wl_t1')
            for m in range(15, 21):
                if m < 20: vm.wait(m)
                a('s_barrier')
                for n in sched.get(m, []): issue(n)
                sl = (m-1) % 6
                self.wd_dma(vm, range(16*sl + 8*w, 16*sl + 8*w + 8), 2)
                for i in self.ov_sched(m): self.ov_load(vm, i, 2)
            self.stamp(2)
            a('s_branch L_p2_help')

    def ov_sched(self, m):
        assert int(self.val.get('pw', 12)) + 3 <= {'0':15,'1':15,'2':15,'5':14,'3':13,'4':13,'6':10,'7':10,'8':9}[self.val.get('ove', '1')]
        return {'0': {20: [0,1,2,3,4]}, '1': {19: [0], 20: [1,2,3,4]}, '2': {17: [0], 19: [1], 20: [2,3,4]}, '3': {13: [0], 14: [1], 17: [2], 19: [3], 20: [4]}, '4': {13: [0], 14: [1], 17: [2], 18: [3], 19: [4]}, '5': {14: [0], 17: [1], 19: [2], 20: [3,4]}, '6': {10: [0], 11: [1], 12: [2], 13: [3], 14: [4]}, '7': {10: [0], 12: [1], 14: [2], 17: [3], 19: [4]}, '8': {9: [0], 11: [1], 13: [2], 17: [3], 19: [4]}}[self.val.get('ove', '1')].get(m, [])

    def tw_addr(self, dst):
        a = self.a
        a('v_lshrrev_b32 v%d, 4, v0\nv_lshlrev_b32 v%d, 5, v%d\nv_bfe_u32 v1, v0, 1, 3\nv_add_u32 v%d, v%d, v1' % (dst, dst, dst, dst, dst))
        a('s_lshr_b32 s53, s64, 1\ns_lshl_b32 s53, s53, 3\nv_add_u32 v%d, s53, v%d\nv_mul_u32_u24 v%d, 3072, v%d' % (dst, dst, dst, dst))
        a('v_and_b32 v1, 1, v0\nv_lshl_add_u32 v%d, v1, 7, v%d' % (dst, dst))
    def tx_addr(self, dst, half):
        a = self.a
        a('v_and_b32 v%d, 15, v0\nv_lshlrev_b32 v%d, 5, v%d\nv_lshrrev_b32 v1, 4, v0\nv_lshl_add_u32 v%d, v1, 9, v%d' % (dst, dst, dst, dst, dst))
        a('s_lshl_b32 s53, s54, 1\ns_add_u32 s53, s53, s%d\nv_add_u32 v%d, s53, v%d\nv_mul_u32_u24 v%d, 1280, v%d' % (half, dst, dst, dst, dst))
    def tx_off(self, dst, ph, r):
        a = self.a
        a('s_add_u32 s%d, s%d, s65\ns_add_u32 s%d, s%d, %d\ns_cmp_ge_u32 s%d, 10\ns_cselect_b32 s53, 10, 0\ns_sub_u32 s%d, s%d, s53\ns_lshl_b32 s%d, s%d, 7' % (dst, ph, dst, dst, 3*r, dst, dst, dst, dst, dst))
        if r == 3: a('s_cmp_eq_u32 s65, 0\ns_cselect_b32 s%d, s%d, 0x%x' % (dst, dst, OOB))

    def wtouch(self, unit_sgpr, nlanes, step0, dst):
        a = self.a
        a('s_bitcmp0_b32 s%d, 0' % XCD)
        a('s_cselect_b32 s24, s%d, s%d\ns_cselect_b32 s25, s%d, s%d\ns_mov_b32 s26, 0x%x\ns_mov_b32 s27, 0x20000' % (P_WG, P_WU, P_WG+1, P_WU+1, 640*1536*2))
        a('s_mul_i32 s53, s%d, %d' % (unit_sgpr, nlanes))
        a('v_min_u32 v1, %d, v0\nv_add_u32 v1, s53, v1\nv_mul_u32_u24 v%d, 10923, v1\nv_lshrrev_b32 v%d, 16, v%d' % (nlanes-1, dst-1, dst-1, dst-1))
        a('v_mul_u32_u24 v%d, 2304, v%d\nv_lshl_add_u32 v1, v1, 7, v%d' % (dst-1, dst-1, dst-1))
        a('s_lshr_b32 s53, s%d, 1\ns_mul_i32 s53, s53, 768\ns_add_u32 s53, s53, %d' % (XCD, step0*32*3072))
        r = 'buffer_load_dword v%d, v1, s[24:27], s53 offen %s' % (dst, 'nt' if 'tnt' in self.opt else '')
        if 'tboth' in self.opt:
            a(r)
            a('s_bitcmp0_b32 s%d, 0' % XCD)
            a('s_cselect_b32 s68, s%d, s%d\ns_cselect_b32 s69, s%d, s%d\ns_mov_b32 s70, 0x%x\ns_mov_b32 s71, 0x20000' % (P_WU, P_WG, P_WU+1, P_WG+1, 640*1536*2))
            r = r.replace('s[24:27]', 's[68:71]')
        return r

    def xtouch(self, unit_sgpr, rows, c0, c1, dst):
        a = self.a
        n = rows*(c1-c0); assert n <= 64
        mag = (2048 + rows - 1)//rows
        assert all((l*mag) >> 11 == l//rows for l in range(64))
        a('v_min_u32 v1, %d, v0\nv_mul_u32_u24 v%d, %d, v1\nv_lshrrev_b32 v%d, 11, v%d' % (n-1, dst, mag, dst, dst))
        a('v_mul_u32_u24 v%d, %d, v%d\nv_sub_u32 v1, v1, v%d\nv_mul_u32_u24 v1, 1280, v1\nv_lshl_add_u32 v1, v%d, 7, v1' % (dst-1, rows, dst, dst-1, dst))
        a('s_mul_i32 s53, s%d, %d' % (unit_sgpr, rows*1280))
        return 'buffer_load_dword v%d, v1, %s, s53 offen offset:%d' % (dst, s(S_X,4), 128*c0)

    def touch_spec(self, spec, unit_sgpr, nunits, dst):
        kind, rng = spec[0], spec[1:].split('-'); lo, hi = int(rng[0]), int(rng[1])
        if kind == 'W':
            nl = (hi-lo)*8; assert nl <= 64, spec
            return self.wtouch(IDX, nl, lo, dst)
        return self.xtouch(unit_sgpr, -(-2048//nunits), lo, hi, dst)

    def ffn_xloader(self):
        a = self.a; vm = VM(a)
        a.label('L_ffn_xl')
        a('s_sub_u32 s56, s%d, 2' % WAVE)
        a('v_lshrrev_b32 v2, 3, v0\nv_lshrrev_b32 v3, 4, v0')
        a('s_lshl_b32 s57, s56, 2')
        a('v_add_u32 v3, s57, v3\nv_and_b32 v12, 7, v0\nv_xor_b32 v3, v3, v12\nv_lshlrev_b32 v3, 4, v3')
        a('v_mul_u32_u24 v2, 40960, v2\nv_add_u32 v2, v2, v3')
        a('s_lshl_b32 s57, s56, 8\ns_lshl_b32 s58, s54, 1\ns_add_u32 s57, s57, s58\ns_mul_i32 s57, s57, 1280')
        a('v_add_u32 v4, s57, v2')
        for tt in range(1, 8):
            a('v_add_u32 v%d, %d, v4' % (4+tt, ((tt>>2) + 512*(tt&3))*1280))
        a('s_lshl_b32 s57, s56, 10')
        self.phase(58)
        a('s_lshl_b32 s58, s58, 7')
        def issue(c):
            for tt in range(8):
                a('s_add_u32 m0, s57, %d' % (self.XB + (c % self.NXS)*self.XSLOT + tt*2048))
                a('s_nop 0')
                if 'nox' not in self.opt: vm.op('buffer_load_dwordx4 v%d, %s, s58 offen %s lds' % (4+tt, s(S_X,4), 'nt' if 'ntx' in self.opt else ''), c)
            a('s_add_u32 s58, s58, 128\ns_cmp_eq_u32 s58, 1280\ns_cselect_b32 s58, 0, s58')
        a('s_lshr_b32 s59, s58, 7')
        self.ptrs()
        self.stamp(12)
        issue(0)
        if int(self.val.get('ib', 1)): a('s_barrier')
        self.stamp(13)
        self.late()
        XP = int(self.val.get('xp', 1))
        if XP == 2: issue(1)
        self.p2_coords(); self.ov_setup()
        a('v_lshlrev_b32 v2, 4, v0')
        self.tw_addr(80); self.tx_addr(81, 56)
        a('s_cmp_eq_u32 s56, 0')
        a('s_cselect_b32 s%d, s%d, s%d\ns_cselect_b32 s%d, s%d, s%d\ns_mov_b32 s%d, 0x%x' % (S_A, P_WG, P_WU, S_A+1, P_WG+1, P_WU+1, S_A+2, 640*1536*2))
        a('s_mul_i32 s66, s59, %d\ns_lshl_b32 s67, s55, 8\ns_add_u32 s66, s66, s67' % (64*3072))
        TB = {}
        for spec in self.val.get('tp', '0').split('+'):
            if spec == '0': continue
            k, m = spec.split('@'); TB.setdefault(int(m), []).append(k)
        def touch(k):
            if k[0] == 'w':
                n0 = int(k[1:])
                a('s_add_u32 s67, s66, %d' % (n0*32*3072))
                if n0 == 8: a('v_and_b32 v1, 31, v0\nv_lshlrev_b32 v1, 2, v1\nds_bpermute_b32 v80, v1, v80\ns_waitcnt lgkmcnt(0)')
                vm.op('buffer_load_dword v255, v80, %s, s67 offen' % s(S_A,4), 't')
            else:
                self.tx_off(67, 59, int(k[1:]))
                vm.op('buffer_load_dword v255, v81, %s, s67 offen' % s(S_X,4), 't')
        self.p2_prep()
        self.nonce()
        a('s_cmp_eq_u32 s56, 0\ns_cbranch_scc0 L_ffn_xl3')
        q0 = list(vm.q)
        PW = int(self.val.get('pw', 12)); PS = int(self.val.get('ps', 15)); PH2 = 'ph2' in self.opt; NP = 2 if PH2 else 8; PC = int(self.val.get('pc', 15 if PH2 else 10)); FB = int(self.val.get('fb', 7))
        for role in (2, 3):
            vm.q = list(q0)
            if role == 2:
                if PH2:
                    a('v_lshrrev_b32 v12, 4, v0\nv_bfe_u32 v13, v0, 2, 2')
                    a('v_lshl_add_u32 v14, v12, 3, v13\nv_lshlrev_b32 v14, 7, v14')
                    a('v_and_b32 v13, 3, v0\nv_lshl_add_u32 v14, v13, 3, v14')
                    a('v_bfe_u32 v13, v0, 3, 1\nv_bfe_u32 v15, v0, 4, 1\nv_lshl_add_u32 v13, v15, 1, v13')
                    a('s_and_b32 s60, s54, 2\nv_xor_b32 v13, s60, v13\nv_lshl_add_u32 v14, v13, 5, v14')
                    a('s_lshr_b32 s60, s54, 2\ns_lshl_b32 s60, s60, 12\nv_add_u32 v16, s60, v14\nv_xor_b32 v17, 32, v16')
                    a('v_add_u32 v18, %d, v16\nv_add_u32 v19, %d, v17' % (3*self.WSLOT, 3*self.WSLOT))
                    for k in range(4): a('v_mov_b32 v%d, 0x3f803f80' % (20+k))
                    for k in range(8): a('v_mov_b32 v%d, 0' % (24+k))
                    a('s_and_b32 s61, s54, 1\ns_mul_i32 s61, s61, 24576\ns_lshr_b32 s62, s54, 3\ns_mul_i32 s62, s62, 12288\ns_add_u32 s61, s61, s62')
                    a('s_lshl_b32 s62, s55, 10\ns_add_u32 s61, s61, s62\ns_bfe_u32 s62, s54, 0x20001\ns_lshl_b32 s62, s62, 8\ns_add_u32 s61, s61, s62\ns_add_u32 s61, s61, 0x%x' % COLSUM)
                else:
                    a('v_lshrrev_b32 v12, 4, v0\nv_bfe_u32 v13, v0, 2, 2')
                    a('v_lshl_add_u32 v14, v12, 3, v13\nv_lshlrev_b32 v14, 7, v14')
                    a('v_and_b32 v13, 3, v0\nv_lshl_add_u32 v14, v13, 3, v14')
                    a('v_bfe_u32 v13, v0, 3, 1\nv_bfe_u32 v15, v0, 4, 1\nv_lshl_add_u32 v13, v15, 1, v13')
                    a('v_lshl_add_u32 v14, v13, 5, v14')
                    a('s_lshr_b32 s60, s54, 3\ns_lshl_b32 s60, s60, 13\nv_add_u32 v16, s60, v14')
                    for ct in range(1, 4): a('v_xor_b32 v%d, %d, v16' % (16+ct, 32*ct))
                    for k in range(4): a('v_mov_b32 v%d, 0x3f803f80' % (20+k))
                    for k in range(32): a('v_mov_b32 v%d, 0' % (88+k))
                    a('s_mul_i32 s61, s64, 24576\ns_lshr_b32 s62, s54, 3\ns_mul_i32 s62, s62, 12288\ns_add_u32 s61, s61, s62')
                    a('s_lshl_b32 s62, s55, 10\ns_add_u32 s61, s61, s62\ns_add_u32 s61, s61, 0x%x' % COLSUM)
                a('v_lshlrev_b32 v56, 5, v12\nv_and_b32 v13, 1, v0\nv_lshl_add_u32 v56, v13, 4, v56')
                a('s_lshl_b32 s62, s55, 4\ns_add_u32 s62, s62, s54\ns_lshl_b32 s62, s62, 7\ns_add_u32 s62, s62, 0x%x\nv_mov_b32 v57, s62' % (SFLAG))
                a('v_and_b32 v12, 15, v0\nv_lshlrev_b32 v12, 5, v12')
                a('v_lshrrev_b32 v13, 4, v0\nv_lshl_add_u32 v12, v13, 9, v12')
                a('s_lshl_b32 s60, s54, 1\nv_add_u32 v12, s60, v12')
                a('v_lshlrev_b32 v12, 4, v12\nv_add_u32 v12, 0x%x, v12' % STATS)
                a('v_lshlrev_b32 v13, 4, v0\nv_add_u32 v13, %d, v13' % self.MISC)
                a('v_lshlrev_b32 v14, 7, v0\nv_add_u32 v14, 0x%x, v14\nv_add_u32 v15, 8192, v14\nv_add_u32 v58, 16384, v14' % SFLAG)
                rl = ['buffer_load_dwordx4 v[64:67], v12, %s, 0 offen sc1' % s(S_WS,4), 'buffer_load_dwordx4 v[68:71], v12, %s, 0 offen offset:16 sc1' % s(S_WS,4)]
                tags = [66, 70]
            else:
                a.label('L_ffn_xl3')
                a('v_mov_b32 v12, %d\nv_mov_b32 v13, 0\nds_write_b32 v12, v13' % (self.MISC + 3072))
                a('v_lshrrev_b32 v13, 5, v0\nv_mul_u32_u24 v13, 12288, v13')
                a('v_and_b32 v12, 31, v0\nv_lshl_add_u32 v12, v12, 5, v13')
                a('s_lshl_b32 s60, s55, 10\ns_add_u32 s60, s60, 0x%x\nv_add_u32 v12, s60, v12' % COLSUM)
                a('v_lshlrev_b32 v13, 4, v0\nv_add_u32 v13, %d, v13' % (self.MISC+2048))
                for k in range(1, 8): a('s_mov_b32 s%d, %d' % (27+k, 24576*k))
                rl = ['buffer_load_dwordx4 %s, v12, %s, %s offen offset:%d sc1' % (v(16+8*p+4*h,4), s(S_WS,4), 's%d' % (27+p) if p else '0', 16*h) for p in range(NP) for h in range(2)]
                tags = [18+4*k for k in range(2*NP)]
            for m in range(21):
                if m % 2 == 0 and m < 20: vm.wait(m//2)
                if m == 20: a('s_waitcnt lgkmcnt(0)')
                a('s_barrier')
                if role == 2:
                    if m == PW + 2:
                        vm.wait('pw')
                        if 'nospin' not in self.opt: self.spin3('L_xl_sw', (14,15,58), 72, True)
                    if m == PW:
                        for k in range(3): vm.op('buffer_load_dwordx2 %s, v%d, %s, 0 offen sc1' % (v(72+2*k,2), (14,15,58)[k], s(S_WS,4)), 'pw')
                    if m == FB:
                        self.setflag(57, 60); vm.q.append('fl')
                    if m == 4 and not PH2:
                        a('v_and_b32 v1, 1, v0\nv_cmp_eq_u32 vcc, 1, v1\ns_nop 1')
                        for ct in range(8):
                            b = 88+4*ct
                            a('v_cndmask_b32 v%d, v%d, v%d, vcc\nv_cndmask_b32 v%d, v%d, v%d, vcc\nv_mov_b32 v%d, s12\nv_mov_b32 v%d, s13' % (b, b, b+2, b+1, b+1, b+3, b+2, b+3))
                        a('s_mov_b32 exec_lo, 0x00030003\ns_mov_b32 exec_hi, 0x00030003')
                        for ct in range(8): vm.op('buffer_store_dwordx4 %s, v56, %s, s61 offen offset:%d sc1' % (v(88+4*ct,4), s(S_WS,4), 128*ct), 'cs')
                        a('s_mov_b64 exec, -1')
                    if m == 10 and PH2:
                        a('v_and_b32 v1, 1, v0\nv_cmp_eq_u32 vcc, 1, v1\nv_mov_b32 v34, s12\nv_mov_b32 v35, s13\nv_mov_b32 v38, s12\nv_mov_b32 v39, s13')
                        for ct in range(2): a('v_cndmask_b32 v%d, v%d, v%d, vcc\nv_cndmask_b32 v%d, v%d, v%d, vcc' % (32+4*ct, 24+4*ct, 26+4*ct, 33+4*ct, 25+4*ct, 27+4*ct))
                        a('s_mov_b32 exec_lo, 0x00030003\ns_mov_b32 exec_hi, 0x00030003')
                        for ct in range(2): vm.op('buffer_store_dwordx4 %s, v56, %s, s61 offen offset:%d sc1' % (v(32+4*ct,4), s(S_WS,4), 128*ct), 'cs')
                        a('s_mov_b64 exec, -1')
                if m == (PS if role == 2 else PC):
                    for l in rl: vm.op(l, 'st')
                if m == (PS if role == 2 else PC) + 2:
                    vm.wait('st')
                    a('s_mov_b32 s53, 0')
                    a.label('L_xl_rs%d' % role)
                    a('v_cmp_ne_u64 vcc, s[12:13], %s' % v(tags[0],2))
                    for t in tags[1:]: a('v_cmp_ne_u64 s[68:69], s[12:13], %s\ns_nop 0\ns_or_b64 vcc, vcc, s[68:69]' % v(t,2))
                    a('s_cbranch_vccz L_xl_rx%d\ns_add_u32 s53, s53, 1\ns_cmp_gt_u32 s53, 0x%x\ns_cbranch_scc1 L_xl_rx%d\ns_sleep 2' % (role, 0 if 'nospin' in self.opt else SPIN_MAX, role))
                    for l in rl: a(l)
                    a('s_waitcnt vmcnt(0)\ns_branch L_xl_rs%d' % role)
                    a.label('L_xl_rx%d' % role)
                    if role == 2:
                        for b in (64, 68):
                            a('v_rsq_f32 v%d, v%d\nv_mov_b32 v%d, v%d\nv_mul_f32 v%d, 0xbfb8aa3b, v%d' % (b+3, b+1, b+2, b+1, b+1, b+3))
                        a('ds_write_b128 v13, v[64:67]\nds_write_b128 v13, v[68:71] offset:1024')
                    else:
                        for w_ in ((8,) if PH2 else (32, 16, 8)):
                            for k in range(0, w_, 4): a('v_add_f32 v%d, v%d, v%d\nv_add_f32 v%d, v%d, v%d' % (16+k, 16+k, 16+w_+k, 17+k, 17+k, 17+w_+k))
                        a('v_mov_b32 v18, v20\nv_mov_b32 v19, v21')
                        a('ds_write_b128 v13, v[16:19]')
                for c in range(XP, 10):
                    when = max(0, 2*c - 2 - int(self.val.get('xl%d' % role, 1 if role == 2 else 0)))
                    if c >= int(self.val.get('xr', 4)): when = max(0, 2*c - (4 if role == 2 else 3))
                    if when == m: issue(c)
                for k in TB.get(m, []): touch(k)
                if role == 2 and m < 4 and not PH2:
                    if m >= 2: a('s_and_b32 s60, s64, 3\ns_cmp_eq_u32 s60, 3\ns_cbranch_scc0 L_cs_sk%d' % m)
                    for b in range(2):
                        for ct in range(4):
                            for q in range(2):
                                a('ds_read_b64_tr_b16 %s, v%d offset:%d' % (v(24+16*b+4*ct+2*q,2), 16+ct, m*self.WSLOT + b*4096 + q*512))
                        a('s_waitcnt lgkmcnt(0)')
                        for ct in range(4): a('v_mfma_f32_16x16x32_bf16 %s, %s, v[20:23], %s' % (v(88+16*b+4*ct,4), v(24+16*b+4*ct,4), v(88+16*b+4*ct,4)))
                    if m >= 2: a.label('L_cs_sk%d' % m)
                    if m == 3: a.nop(6)
                if role == 2 and m < 10 and PH2:
                    sl = m % self.NWS
                    for ct in range(2):
                        for q in range(2):
                            a('ds_read_b64_tr_b16 %s, v%d offset:%d' % (v(40+4*ct+2*q,2), 16+ct+2*(sl//3), (sl%3)*self.WSLOT + q*512))
                    a('s_waitcnt lgkmcnt(0)')
                    for ct in range(2): a('v_mfma_f32_16x16x32_bf16 %s, %s, v[20:23], %s' % (v(24+4*ct,4), v(40+4*ct,4), v(24+4*ct,4)))
                    if m == 9: a.nop(6)
                if m in (16, 18, 20):
                    f0 = {16: 112, 18: 128, 20: 96}[m]; n = {16: 8, 18: 6, 20: 8}[m]
                    self.wd_dma(vm, range(f0 + (role-2)*n, f0 + (role-1)*n), 2)
                for i in self.ov_sched(m): self.ov_load(vm, i, 2)
            self.stamp(2)
            a('s_branch L_p2_help')

    def ffn_consumer(self):
        a = self.a
        ACC, FR = 8, 136
        AW = [2, 3, 232, 233]
        AX = [4, 5]
        def acc(tt, mat, c2): return ACC + ((tt*2 + mat)*2 + c2)*4
        def xf(st, tt): return FR + st*48 + tt*4
        def wf(st, mat, c2): return FR + st*48 + 32 + (mat*2 + c2)*4
        a.label('L_ffn_cons')
        self.ptrs(); self.late()
        a('s_sub_u32 s56, s%d, 4' % WAVE)
        a('s_mul_i32 s57, s%d, 24\ns_add_u32 s57, s57, s%d\ns_and_b32 s58, s57, 1\ns_add_u32 s58, s58, 2\n%ss_cmp_lt_u32 s56, s58\ns_cselect_b32 s79, 1, 0\ns_cbranch_scc0 L_fc_nu' % (XCD, IDX, 's_mov_b32 s58, 0\n' if 'skipwd' in self.opt else ''))
        a('s_mul_i32 s57, s57, 5\ns_lshr_b32 s57, s57, 1\ns_add_u32 s57, s57, s56')
        a('s_mul_i32 s70, s57, 52429\ns_lshr_b32 s70, s70, 19\ns_mul_i32 s53, s70, 10\ns_sub_u32 s71, s57, s53')
        a('s_mul_i32 s68, s70, %d\ns_lshl_b32 s53, s71, 7\ns_add_u32 s68, s68, s53' % (32*1280))
        a('s_mov_b32 s72, s%d\ns_mov_b32 s73, s%d\ns_mov_b32 s74, 0x%x\ns_mov_b32 s75, 0x20000' % (P_WD, P_WD+1, 1536*640*2))
        self.wvoff(8, 1280, 12)
        a('s_lshl_b32 s67, s56, 12\ns_add_u32 s67, s67, %d' % (self.MISC + 4096))
        a.label('L_fc_nu')
        if int(self.val.get('ib', 1)): a('s_barrier')
        a('s_cmp_eq_u32 s79, 0\ns_cbranch_scc1 L_fc_nu2')
        for j in range(4):
            a('s_add_u32 m0, s67, %d\ns_nop 0' % (j*1024))
            a('buffer_load_dwordx4 v%d, s[72:75], s68 offen nt lds' % (8+j))
        a.label('L_fc_nu2')
        def ctouch():
            a('s_cmp_lt_u32 s58, 320\ns_cbranch_scc0 L_ct_w%d\ns_lshl_b32 s58, s58, 13\nv_lshlrev_b32 v1, 7, v0' % self.nct)
            a('buffer_load_dword v255, v1, %s, s58 offen\ns_branch L_ct_e%d' % (s(S_X,4), self.nct))
            a.label('L_ct_w%d' % self.nct)
            a('s_sub_u32 s58, s58, 320\ns_cmp_lt_u32 s58, 240')
            a('s_cselect_b32 s24, s%d, s%d\ns_cselect_b32 s25, s%d, s%d\ns_cselect_b32 s53, 0, 240\ns_mov_b32 s26, 0x%x\ns_mov_b32 s27, 0x20000' % (P_WG, P_WU, P_WG+1, P_WU+1, 640*1536*2))
            a('s_sub_u32 s58, s58, s53\ns_lshl_b32 s58, s58, 13\nv_lshlrev_b32 v1, 7, v0\nbuffer_load_dword v255, v1, s[24:27], s58 offen')
            a.label('L_ct_e%d' % self.nct); self.nct += 1
        self.nct = 0
        def touches():
            if 'ct' in self.opt:
                a('s_mul_i32 s58, s%d, 24\ns_add_u32 s58, s58, s%d\ns_lshl_b32 s58, s58, 2\ns_add_u32 s58, s58, s56' % (XCD, IDX))
                if 'ctm' in self.opt: a('s_mul_i32 s58, s58, 25\ns_lshr_b32 s58, s58, 0\ns_mul_hi_u32 s53, s58, 0x55555556\ns_nop 0')
                ctouch(); return
            if 'ft' in self.opt:
                for k, spec in enumerate(self.val.get('ft', 'W2-6+W12-16+W6-10+W16-20').split('+')):
                    lo, hi = [int(z) for z in spec[1:].split('-')]
                    a('s_cmp_eq_u32 s56, %d\ns_cbranch_scc0 L_fc_n%d' % (k, k))
                    a(self.wtouch(IDX, (hi-lo)*8, lo, 255))
                    a.label('L_fc_n%d' % k)
        if 'tlate' not in self.opt: touches()
        if 'ta' in self.opt:
            self.phase(59)
            a('s_cmp_lt_u32 s56, 2\ns_cbranch_scc0 L_fc_tx')
            self.tw_addr(2)
            a('s_cmp_eq_u32 s56, 0')
            a('s_cselect_b32 s%d, s%d, s%d\ns_cselect_b32 s%d, s%d, s%d\ns_mov_b32 s%d, 0x%x' % (S_A, P_WG, P_WU, S_A+1, P_WG+1, P_WU+1, S_A+2, 640*1536*2))
            a('s_mul_i32 s66, s59, %d\ns_lshl_b32 s67, s55, 8\ns_add_u32 s66, s66, s67' % (64*3072))
            a('buffer_load_dword v255, v2, %s, s66 offen' % s(S_A,4))
            a('s_branch L_fc_t3')
            a.label('L_fc_tx')
            a('s_sub_u32 s60, s56, 2')
            self.tx_addr(2, 60); self.tx_off(67, 59, 0)
            a('buffer_load_dword v255, v2, %s, s67 offen' % s(S_X,4))
            a.label('L_fc_t3')
        a('s_setprio 1')
        a('v_lshrrev_b32 v6, 4, v0\nv_bfe_u32 v7, v0, 2, 2')
        a('v_lshl_add_u32 v8, v6, 3, v7\nv_lshlrev_b32 v8, 7, v8')
        a('v_and_b32 v9, 3, v0\nv_lshl_add_u32 v8, v9, 3, v8')
        a('v_bfe_u32 v9, v0, 3, 1\nv_bfe_u32 v10, v0, 4, 1\nv_lshl_add_u32 v9, v10, 1, v9')
        a('s_and_b32 s57, s56, 1\ns_lshl_b32 s57, s57, 1')
        a('v_xor_b32 v9, s57, v9\nv_lshl_add_u32 v8, v9, 5, v8')
        a('s_lshr_b32 s57, s56, 1\ns_lshl_b32 s57, s57, 12')
        a('v_add_u32 v%d, s57, v8' % AW[0])
        a('v_xor_b32 v%d, 32, v%d' % (AW[1], AW[0]))
        a('v_add_u32 v%d, %d, v%d\nv_add_u32 v%d, %d, v%d' % (AW[2], 3*self.WSLOT, AW[0], AW[3], 3*self.WSLOT, AW[1]))
        a('v_and_b32 v8, 15, v0\nv_lshrrev_b32 v9, 1, v8\nv_xor_b32 v9, v9, v6')
        a('v_lshlrev_b32 v9, 4, v9\nv_lshl_add_u32 v9, v8, 7, v9')
        a('v_add_u32 v%d, %d, v9' % (AX[0], self.XB))
        a('v_xor_b32 v%d, 64, v%d' % (AX[1], AX[0]))
        a('v_lshlrev_b32 v234, 4, v8\nv_add_u32 v234, %d, v234' % self.MISC)
        a('v_lshlrev_b32 v235, 4, v6\ns_lshl_b32 s57, s56, 7\nv_add_u32 v235, s57, v235\nv_add_u32 v235, %d, v235' % (self.MISC+2048))
        a('v_lshlrev_b32 v236, 4, v0')
        hf = self.val.get('hf', 'p')
        if hf == 'p': a('s_lshl_b32 s58, s54, 4\ns_add_u32 s58, s58, s55\ns_lshl_b32 s58, s58, 2\ns_add_u32 s58, s58, s56\ns_lshl_b32 s58, s58, 3\nv_mov_b32 v237, s58')
        elif hf == 'w': a('s_lshl_b32 s58, s54, 4\ns_add_u32 s58, s58, s55\ns_lshl_b32 s58, s58, 4\ns_add_u32 s58, s58, s56\ns_lshl_b32 s58, s58, 3\ns_add_u32 s58, s58, 0xa0000\nv_mov_b32 v237, s58')
        else: a('s_lshl_b32 s58, s54, 4\ns_add_u32 s58, s58, s55\ns_lshl_b32 s58, s58, 2\ns_add_u32 s58, s58, s56\ns_lshl_b32 s58, s58, 7\ns_add_u32 s58, s58, 0xa0000\nv_mov_b32 v237, s58')
        a('s_mul_i32 s57, s54, %d\ns_lshl_b32 s58, s55, 2\ns_add_u32 s58, s58, s56\ns_lshl_b32 s58, s58, 10\ns_add_u32 s57, s57, s58\ns_add_u32 s57, s57, 0x%x' % (8*49152, HF - 49152))
        self.nonce()
        a('s_cmp_eq_u32 s79, 0\ns_cbranch_scc1 L_fc_nv')
        a('v_lshrrev_b32 v16, 2, v0\nv_lshlrev_b32 v16, 7, v16\nv_and_b32 v1, 3, v0\nv_lshl_add_u32 v16, v1, 3, v16')
        a('v_bfe_u32 v1, v0, 3, 1\nv_bfe_u32 v17, v0, 5, 1\nv_lshl_add_u32 v1, v17, 1, v1\nv_lshl_add_u32 v16, v1, 5, v16')
        a('v_add_u32 v1, s67, v16\nv_xor_b32 v6, 32, v1\nv_xor_b32 v7, 64, v1\nv_xor_b32 v254, 96, v1')
        for ct in range(4):
            a('s_lshl_b32 s63, s71, 2\ns_add_u32 s63, s63, %d\ns_mul_i32 s64, s63, 52\ns_lshr_b32 s64, s64, 8' % ct)
            a('s_mul_i32 s65, s64, 5\ns_sub_u32 s65, s63, s65\ns_lshl_b32 s65, s65, 10')
            a('s_mul_i32 s64, s64, 245760\ns_add_u32 s65, s65, s64\ns_mul_i32 s64, s70, 5120\ns_add_u32 s65, s65, s64\ns_add_u32 s%d, s65, 0x%x' % (72+ct, WDF))
        a.label('L_fc_nv')
        def reads(n):
            st = n & 1; sl = n % self.NWS
            r = []
            for mat in range(2):
                for c2 in range(2):
                    for q in range(2):
                        r.append('ds_read_b64_tr_b16 v[%d:%d], v%d offset:%d' % (wf(st,mat,c2)+2*q, wf(st,mat,c2)+2*q+1, AW[c2 + 2*(sl//3)], (sl%3)*self.WSLOT + mat*8192 + q*512))
            for tt in range(8):
                r.append('ds_read_b128 %s, v%d offset:%d' % (v(xf(st,tt),4), AX[n&1], ((n//2) % self.NXS)*self.XSLOT + tt*2048))
            return r
        ST, CSR, TM = FR, FR+32, 238
        ep_reads = ['ds_read_b128 %s, v234 offset:%d' % (v(ST+4*tt,4), tt*256) for tt in range(8)]
        ep_reads += ['ds_read_b128 %s, v235 offset:%d' % (v(CSR+(mat*2+c2)*4,4), mat*512 + c2*64) for mat in range(2) for c2 in range(2)]
        FB = int(self.val.get('fb', 5))
        a('s_barrier')
        self.stamp(1)
        for r in reads(0): a(r)
        if 'tlate' in self.opt: touches()
        a.align(3)
        for n in range(20):
            st = n & 1
            a('s_waitcnt %slgkmcnt(0)\ns_barrier' % ('vmcnt(0) ' if n == int(self.val['fb']) - 1 else ''))
            if n == 10: self.stamp(5)
            if n == 5: self.stamp(6)
            if n == 15: self.stamp(7)
            rd = reads(n+1) if n < 19 else ep_reads
            WS = int(self.val.get('wds', 2))
            if n == WS:
                a('s_cmp_eq_u32 s79, 0\ns_cbranch_scc1 L_fc_w1\ns_waitcnt vmcnt(0)')
                for ct, ar in enumerate((1, 6, 7, 254)):
                    for q in range(2): a('ds_read_b64_tr_b16 %s, v%d offset:%d' % (v(238+4*ct+2*q,2), ar, q*2048))
                a('v_bfe_u32 v255, v0, 1, 3\nv_and_b32 v6, 1, v0\nv_lshl_add_u32 v255, v6, 3, v255\nv_and_b32 v6, 48, v0\nv_add_lshl_u32 v255, v255, v6, 4')
                a.label('L_fc_w1')
            if n == int(self.val.get('wst', WS + 1)):
                a('s_cmp_eq_u32 s79, 0\ns_cbranch_scc1 L_fc_w2')
                for ct in range(4): a('buffer_store_dwordx4 %s, v255, %s, s%d offen sc1' % (v(238+4*ct,4), s(S_WS,4), 72+ct))
                a.label('L_fc_w2')
            k = 0
            order = [(tt, mat, c2) for tt in range(8) for mat in range(2) for c2 in range(2)]
            if 'aord' in self.opt: order = [(tt, mat, c2) for mat in range(2) for c2 in range(2) for tt in range(8)]
            if 'snake' in self.opt: order = [(tt, w >> 1, w & 1) for tt in range(8) for w in (range(4) if tt % 2 == 0 else range(3, -1, -1))]
            for tt, mat, c2 in order:
                    if True:
                        A = acc(tt, mat, c2)
                        if 'nomfma' not in self.opt: a('v_mfma_f32_16x16x32_bf16 %s, %s, %s, %s' % (v(A,4), v(wf(st,mat,c2),4), v(xf(st,tt),4), v(A,4) if n else '0'))
                        if k < len(rd) and 'nords' not in self.opt: a(rd[k]); k += 1
        self.stamp(2)
        a('s_waitcnt lgkmcnt(0)')
        a.align(3)
        a.label('L_fc_epi')
        OUT = FR + 48
        for tt in range(8):
            m, q = ST+4*tt, ST+4*tt+2
            O = OUT + tt*4
            t = TM + (tt&1)*8
            pairs = [(c2, hh) for c2 in range(2) for hh in range(2)]
            for k, (c2, hh) in enumerate(pairs):
                ga = acc(tt,0,c2)+2*hh; ua = acc(tt,1,c2)+2*hh
                a('v_pk_fma_f32 %s, %s, %s, %s op_sel_hi:[0,1,1] neg_lo:[1,0,0] neg_hi:[1,0,0]' % (v(ga,2), v(m,2), v(CSR+c2*4+2*hh,2), v(ga,2)))
                a('v_pk_fma_f32 %s, %s, %s, %s op_sel_hi:[0,1,1] neg_lo:[1,0,0] neg_hi:[1,0,0]' % (v(ua,2), v(m,2), v(CSR+8+c2*4+2*hh,2), v(ua,2)))
            for k, (c2, hh) in enumerate(pairs):
                ga = acc(tt,0,c2)+2*hh
                a('v_pk_mul_f32 %s, %s, %s op_sel:[0,1] op_sel_hi:[1,1]' % (v(t+2*k,2), v(ga,2), v(m,2)))
            for k in range(8): a('v_exp_f32 v%d, v%d' % (t+k, t+k))
            for k, (c2, hh) in enumerate(pairs):
                ga = acc(tt,0,c2)+2*hh; ua = acc(tt,1,c2)+2*hh
                a('v_pk_mul_f32 %s, %s, %s' % (v(ga,2), v(ga,2), v(ua,2)))
                a('v_pk_fma_f32 %s, %s, %s, %s op_sel_hi:[1,0,0]' % (v(t+2*k,2), v(t+2*k,2), v(q,2), v(q,2)))
            for k in range(8): a('v_rcp_f32 v%d, v%d' % (t+k, t+k))
            a('s_add_u32 s%d, s57, %d' % (60+tt, 49152*(tt+1)))
            for k, (c2, hh) in enumerate(pairs):
                ga = acc(tt,0,c2)+2*hh
                a('v_pk_mul_f32 %s, %s, %s' % (v(ga,2), v(ga,2), v(t+2*k,2)))
            for k, (c2, hh) in enumerate(pairs):
                ga = acc(tt,0,c2)+2*hh
                a('v_cvt_pk_bf16_f32 v%d, v%d, v%d' % (O+k, ga, ga+1))
            DS = int(self.val.get('ds', 0))
            if tt == 0: nst = 0
            lim = tt + 1 if tt == 7 else (0 if tt < DS else min(tt + 1, nst + int(self.val.get('dr', 2))))
            while nst < lim:
                a('buffer_store_dwordx4 %s, v236, %s, s%d offen sc1' % (v(OUT + nst*4,4), s(S_WS,4), 60+nst)); nst += 1
        self.stamp(3)
        a('v_mov_b32 v2, %d\nv_mov_b32 v3, 1\ns_mov_b64 exec, 1\nds_add_u32 v2, v3\ns_mov_b64 exec, -1' % (self.MISC + 3072))
        a('s_waitcnt vmcnt(0)')
        self.stamp(4)
        self.setflag(237, 2)
        a('s_branch L_p2_mfma')

    MSLOT = 24576; MB = 32768; XFB = 0; XFS = 16384; DMISC = 155648

    def code_touch(self, lo, hi, n, dst, uniq):
        a = self.a
        a('s_getpc_b64 s[72:73]')
        a.label('L_ct%s' % uniq)
        a('s_add_u32 s72, s72, %s-L_ct%s\ns_addc_u32 s73, s73, 0' % (lo, uniq))
        out = []
        for k in range(n):
            a('v_lshlrev_b32 v%d, 7, v0\nv_add_u32 v%d, %d, v%d\nv_min_u32 v%d, %s-%s-4, v%d' % (dst-1-k, dst-1-k, 8192*k, dst-1-k, dst-1-k, hi, lo, dst-1-k))
            out.append('global_load_dword v%d, v%d, s[72:73]' % (dst, dst-1-k))
        return out

    def dft_loader(self):
        a = self.a; vm = VM(a)
        RAW, SA = 32, 192
        a.label('L_dft_ld')
        a('s_setprio %s' % self.val.get('dlp', '2'))
        a('v_lshrrev_b32 v2, 3, v0\nv_lshrrev_b32 v3, 4, v0\nv_and_b32 v4, 7, v0')
        a('v_mul_u32_u24 v5, 81920, v2\nv_lshl_add_u32 v5, v4, 4, v5')
        a('s_lshl_b32 s66, s54, 2\ns_add_u32 s66, s66, s%d\ns_and_b32 s63, s%d, 3' % (WAVE, DID))
        for u in range(4): a('s_add_u32 s53, s63, %d\ns_and_b32 s%d, s53, 3\ns_lshl_b32 s53, s%d, 9\ns_add_u32 s53, s53, s66\ns_mul_i32 s%d, s53, 1280' % (u, 68+u, 68+u, 56+u))
        if 'dph0' in self.opt: a('s_mov_b32 s74, 0')
        else: a('s_and_b32 s74, s54, 3\ns_lshl_b32 s75, s%d, 1\ns_add_u32 s74, s74, s75\ns_cmp_ge_u32 s74, 5\ns_cselect_b32 s75, 5, 0\ns_sub_u32 s74, s74, s75\ns_lshl_b32 s74, s74, 7' % HH)
        a('s_mov_b32 s75, s74\nv_add_u32 v208, s74, v5')
        for c in range(1, 5): a('s_add_u32 s74, s74, 128\ns_cmp_eq_u32 s74, 640\ns_cselect_b32 s74, 0, s74\nv_add_u32 v%d, s74, v5' % (208+c))
        def xl(c, us):
            o = []
            for u in us:
                tag = 'x%d' % c if u else 'y%d' % c
                o.append(([], 'buffer_load_dwordx4 %s, v%d, %s, s%d offen' % (v(RAW+32*c+8*u,4), 208+c, s(S_X,4), 56+u), tag))
                o.append(([], 'buffer_load_dwordx4 %s, v%d, %s, s%d offen offset:640' % (v(RAW+32*c+8*u+4,4), 208+c, s(S_X,4), 56+u), tag))
            return o
        def ml(c):
            adv = ['s_add_u32 s75, s75, 128', 's_cmp_eq_u32 s75, 640', 's_cselect_b32 s75, 0, s75', 's_add_u32 s76, s60, s75']
            return [((adv if u == 0 and c > 0 else []) + ['s_add_u32 m0, s61, %d' % (self.MB + c*self.MSLOT + u*1024), 's_add_u32 s62, s76, %d' % (u*16*1280)],
                     'buffer_load_dwordx4 v%d, %s, s62 offen lds' % (8 if u == 0 else 6+(u&1), s(S_A,4)), 'm%d' % c) for u in range(6)]
        t = 16
        def unpack(lo):
            o = []
            for k in range(4):
                o += ['v_lshlrev_b32 v%d, 16, v%d' % (t+2*k, lo+k), 'v_and_b32 v%d, s77, v%d' % (t+2*k+1, lo+k),
                      'v_lshlrev_b32 v%d, 16, v%d' % (t+8+2*k, lo+4+k), 'v_and_b32 v%d, s77, v%d' % (t+8+2*k+1, lo+4+k)]
            return o
        def acc():
            o = []
            for k in range(16): o += ['v_add_f32 v%d, v%d, v%d' % (SA+(k&3), SA+(k&3), t+k), 'v_fmac_f32 v%d, v%d, v%d' % (SA+4+(k&3), t+k, t+k)]
            return o
        def st(c): return unpack(RAW+32*c) + acc()
        def fl(c, with_stats):
            o = []
            for u in range(4):
                lo = RAW+32*c+8*u
                o += unpack(lo)
                if u == 0 and with_stats: o += acc()
                if c == 0:
                    P = 204+u
                    o += ['v_add_f32 v%d, v%d, v%d' % (P, t, t+1), 'v_add_f32 v13, v%d, v%d' % (t+8, t+9), 'v_add_f32 v%d, v%d, v13' % (P, P)]
                    for mod in ('quad_perm:[1,0,3,2]', 'quad_perm:[2,3,0,1]', 'row_half_mirror'):
                        o += ['s_nop 1', 'v_add_f32 v%d, v%d, v%d %s row_mask:0xf bank_mask:0xf' % (P, P, P, mod)]
                    o += ['v_mul_f32 v%d, s78, v%d' % (P, P)]
                for k in range(8): o.append('v_sub_f32 v%d, v%d, v%d' % (t+k, t+k, 204+u))
                for k in range(8): o.append('v_fmac_f32 v%d, v12, v%d' % (t+k, t+8+k))
                for k in range(4): o.append('v_cvt_pk_bf16_f32 v%d, v%d, v%d' % (lo+k, t+2*k, t+2*k+1))
                o.append('ds_write_b128 v%d, %s offset:%d' % (213+u, v(lo,4), (c&1)*self.XFS))
            return o
        def emit(loads, valu):
            per = -(-len(valu) // max(1, len(loads))); k = 0
            for pre, ld, tag in loads:
                for p in pre: a(p)
                vm.op(ld, tag)
                for l in valu[k:k+per]: a(l)
                k += per
            for l in valu[k:]: a(l)
        self.ptrs()
        emit(xl(0, range(4)), [])
        self.late()
        a('s_cmp_lt_u32 s%d, 2' % WAVE)
        a('s_cselect_b32 s%d, s%d, s%d\ns_cselect_b32 s%d, s%d, s%d' % (S_A, P_HRE, P_HIM, S_A+1, P_HRE+1, P_HIM+1))
        a('s_mov_b32 s%d, 0x%x' % (S_A+2, 640*640*2))
        a('v_xor_b32 v3, v3, v4\nv_lshlrev_b32 v3, 4, v3')
        a('v_mul_u32_u24 v6, 2560, v2\nv_add_u32 v6, v6, v3\nv_xor_b32 v7, 64, v6')
        a('s_or_b32 s60, s55, s%d\ns_or_b32 s60, s60, s%d\ns_cmp_eq_u32 s60, 0\ns_cselect_b32 s60, %d, 0' % (WAVE, HH, 320*1280))
        a('v_cmp_gt_u32 vcc, 8, v0\nv_mov_b32 v8, s60\ns_nop 0\nv_cndmask_b32 v8, 0, v8, vcc\nv_add_u32 v8, v8, v6')
        a('s_and_b32 s60, s%d, 1\ns_mul_i32 s60, s60, 96\ns_lshl_b32 s61, s%d, 7\ns_add_u32 s60, s60, s61\ns_add_u32 s60, s60, s55\ns_mul_i32 s60, s60, 1280' % (WAVE, HH))
        a('s_mul_i32 s61, s%d, 6144\ns_add_u32 s76, s60, s75' % WAVE)
        YL = 'ylate' in self.opt
        emit(ml(0) + ([] if YL else xl(2, [0]) + xl(3, [0]) + xl(4, [0])), [])
        a('s_lshl_b32 s53, s%d, 12\ns_add_u32 s53, s53, %d' % (WAVE, self.XFB))
        a('v_lshl_add_u32 v9, v2, 7, v3\nv_add_u32 v9, s53, v9')
        for u in range(4): a('s_and_b32 s53, s%d, 1\ns_lshl_b32 s53, s53, 6\nv_xor_b32 v%d, s53, v9\ns_lshl_b32 s53, s%d, 10\nv_add_u32 v%d, s53, v%d' % (68+u, 213+u, 68+u, 213+u, 213+u))
        a('s_cmp_eq_u32 s55, 0\ns_cselect_b32 s53, 1.0, -1.0\nv_mov_b32 v12, s53\ns_cselect_b32 s78, 0x3d800000, 0\ns_mov_b32 s77, 0xffff0000')
        for k in range(8): a('v_mov_b32 v%d, 0' % (SA+k))
        a('v_lshlrev_b32 v4, 10, v2\ns_lshl_b32 s65, s66, 4\ns_add_u32 s65, s65, 0x%x\ns_lshl_b32 s64, s63, 13\ns_add_u32 s64, s64, s65' % STATS)
        a('v_and_b32 v3, 31, v0\nv_lshlrev_b32 v10, 10, v3\ns_lshl_b32 s53, s%d, 7\ns_add_u32 s53, s53, %d\nv_lshl_add_u32 v3, v3, 2, s53' % (WAVE, self.DMISC))
        self.p2_prep()
        self.nonce()
        vm.wait('x0')
        emit([], fl(0, True))
        vm.wait('m0', 'lgkmcnt(0)'); a('s_barrier')
        self.stamp(1)
        if YL:
            emit(xl(1, range(4)) + ml(1) + xl(2, [0]) + xl(3, [0]) + xl(4, [0]), [])
            vm.wait('x1'); emit([], fl(1, True)); vm.wait('y4'); emit(xl(2, [1,2,3]) + ml(2), st(2) + st(3) + st(4))
        else:
            vm.wait('y4')
            emit(xl(1, range(4)) + ml(1), st(2) + st(3) + st(4))
            vm.wait('x1'); emit(xl(2, [1,2,3]) + ml(2), fl(1, True))
        fin = []
        fin += ['v_add_f32 v%d, v%d, v%d' % (SA+k, SA+k, SA+k+1) for k in (0, 4, 2, 6)] + ['v_add_f32 v%d, v%d, v%d' % (SA+k, SA+k, SA+k+2) for k in (0, 4)]
        for mod in ('quad_perm:[1,0,3,2]', 'quad_perm:[2,3,0,1]', 'row_half_mirror'):
            fin += ['s_nop 0'] + ['v_add_f32 v%d, v%d, v%d %s row_mask:0xf bank_mask:0xf' % (SA+k, SA+k, SA+k, mod) for k in (0, 4)]
        fin += ['v_mul_f32 v%d, 0x3acccccd, v%d' % (SA+8, SA), 'v_mul_f32 v%d, 0x3acccccd, v%d' % (SA+9, SA+4),
                'v_fma_f32 v%d, -v%d, v%d, v%d' % (SA+9, SA+8, SA+8, SA+9), 'v_max_f32 v%d, 0, v%d' % (SA+9, SA+9), 'v_add_f32 v%d, 0x3727c5ac, v%d' % (SA+9, SA+9),
                'v_mov_b32 v%d, s12' % (SA+10), 'v_mov_b32 v%d, s13' % (SA+11)]
        emit([], fin)
        a('s_mov_b32 exec_lo, 0x01010101\ns_mov_b32 exec_hi, 0x01010101')
        vm.op('buffer_store_dwordx4 %s, v4, %s, s64 offen sc1' % (v(SA+8,4), s(S_WS,4)), 'o')
        a('s_mov_b64 exec, -1')
        vm.wait('m1', 'lgkmcnt(0)'); a('s_barrier')
        vm.wait('x2'); emit(xl(3, [1,2,3]) + ml(3), fl(2, False)); vm.wait('m2', 'lgkmcnt(0)'); a('s_barrier')
        vm.wait('x3'); emit(ml(4) + xl(4, [1,2,3]), fl(3, False)); vm.wait('m3', 'lgkmcnt(0)'); a('s_barrier')
        vm.op('buffer_load_dwordx4 %s, v10, %s, s65 offen sc1' % (v(SA,4), s(S_WS,4)), 'r')
        vm.wait('x4')
        a('v_lshlrev_b32 v11, 7, v0\nv_add_u32 v11, 0x%x, v11\nv_add_u32 v13, 8192, v11\nv_add_u32 v14, 16384, v11' % SFLAG)
        a('s_cmp_eq_u32 s%d, 1\ns_cbranch_scc0 L_dl_np' % WAVE)
        for k in range(3): a('buffer_load_dwordx2 %s, v%d, %s, 0 offen sc1' % (v(SA+4+2*k,2), (11,13,14)[k], s(S_WS,4)))
        a.label('L_dl_np')
        emit([], fl(4, False))
        a('s_waitcnt lgkmcnt(0)\ns_barrier')
        a('s_waitcnt vmcnt(0)')
        a('s_cmp_eq_u32 s%d, 1\ns_cbranch_scc0 L_dl_nq' % WAVE)
        self.spin3('L_dl_sp', (11,13,14), SA+4, True)
        a.label('L_dl_nq')
        a('s_mov_b32 s53, 0')
        a.label('L_dl_rs')
        a('v_cmp_ne_u64 vcc, s[12:13], %s' % v(SA+2,2))
        a('s_cbranch_vccz L_dl_rx\ns_add_u32 s53, s53, 1\ns_cmp_gt_u32 s53, 0x%x\ns_cbranch_scc1 L_dl_rx\ns_sleep 2' % SPIN_MAX)
        a('buffer_load_dwordx4 %s, v10, %s, s65 offen sc1\ns_waitcnt vmcnt(0)\ns_branch L_dl_rs' % (v(SA,4), s(S_WS,4)))
        a.label('L_dl_rx')
        a('v_rsq_f32 v%d, v%d\ns_nop 0\nds_write_b32 v3, v%d' % (SA, SA+1, SA))
        a('s_lshl_b32 s58, s%d, 3\nv_lshrrev_b32 v7, 5, v0\nv_add_u32 v7, s58, v7\nv_and_b32 v6, 31, v0\nv_lshlrev_b32 v6, 4, v6' % WAVE)
        a('v_mul_u32_u24 v5, %d, v7\nv_add_u32 v5, v5, v6\nv_mul_u32_u24 v8, %d, v7\nv_add_u32 v8, v8, v6' % (LROW, GROW))
        a('s_lshr_b32 s59, s%d, 1\ns_mul_i32 s57, s59, %d\ns_lshl_b32 s59, s%d, 10\ns_add_u32 s57, s57, s59' % (DID, GBLK, HH))
        for k in range(4): a('s_add_u32 s%d, s57, 0x%x' % (60+k, G16 + 2*k*GROW))
        a('s_lshl_b32 s59, s%d, 3\ns_add_u32 s58, s59, 0x%x\nv_lshl_add_u32 v6, v0, 9, s58' % (DID, DFLAG))
        a('v_cmp_gt_u32 vcc, 32, v0\nv_mov_b32 v7, 0x%x\ns_add_u32 s59, s59, 0x%x\nv_cndmask_b32 v6, v7, v6, vcc\nv_mov_b32 v7, s59' % (OOB, SFLAG))
        vm = VM(a)
        self.p2_coords(); self.ov_setup()
        a('v_lshlrev_b32 v2, 4, v0')
        def dma_step(first, k, lim, tag):
            a('s_add_u32 s64, s%d, %d\ns_cmp_lt_u32 s64, %d\ns_cbranch_scc0 L_ds_%s%d' % (WAVE, first + 4*k, lim, tag, k))
            a('s_cmp_ge_u32 s64, 14\ns_cselect_b32 s65, 51200, 0\ns_cselect_b32 s66, 14, 0\ns_sub_u32 s66, s64, s66\ns_mul_i32 s64, s64, 5120\ns_add_u32 s65, s65, s64')
            a('s_cmp_le_u32 s76, s66\ns_cselect_b32 s66, s75, s77\ns_add_u32 s65, s65, s66')
            for n in range(5):
                if n in (0, 4): a('s_add_u32 m0, s64, %d\ns_add_u32 s78, s65, %d' % (n*1024, n*1024))
                a('buffer_load_dwordx4 v2, %s, s78 offen offset:%d %s lds' % (s(S_WS,4), (n&3)*1024, self.bf))
            a.label('L_ds_%s%d' % (tag, k))
        a('s_waitcnt lgkmcnt(0)\ns_barrier')
        self.stamp(9)
        DE = self.val.get('de', '3')
        plan = {'0': [[], [], []], '1': [['o0','o1','o2'], ['e0','e1'], ['e2','e3','e4','o3','o4']], '2': [['o0','o1'], ['e0'], ['e1','e2']], '3': [['o0','o1'], [], []], '4': [['o0'], ['o1'], []]}[DE]
        done = set()
        def run(items):
            for it in items:
                done.add(it)
                if it[0] == 'o': self.ov_load(vm, int(it[1]), 2)
                else: dma_step(10, int(it[1]), 28, 'e')
        run(plan[0])
        for et in range(3):
            a('s_barrier')
            if et == 0: a('s_cmp_eq_u32 s%d, 0\ns_cbranch_scc0 L_dl_sk' % HH)
            for k in range(4): a('ds_read_b128 %s, v5 offset:%d' % (v(16+16*et+4*k,4), 2*k*LROW + et*512))
            for k in range(4):
                a('s_waitcnt lgkmcnt(%d)' % (3-k))
                a('buffer_store_dwordx4 %s, v8, %s, s%d offen offset:%d sc1' % (v(16+16*et+4*k,4), s(S_WS,4), 60+k, et*512))
            if et == 0: a.label('L_dl_sk')
            if et < 2: run(plan[et+1])
        a('s_waitcnt vmcnt(0)\ns_setprio 0\ns_barrier')
        self.stamp(4)
        a('s_cmp_eq_u32 s%d, 0\ns_cbranch_scc0 L_dl_nf2' % WAVE)
        self.setflag(6, 12, '-1')
        a.label('L_dl_nf2')
        self.stamp(3)
        for k in range(3): dma_step(0, k, 10, 'l')
        run([it for it in ['e0','e1','e2','e3','e4','o0','o1','o2','o3','o4'] if it not in done])
        self.stamp(2)
        a('s_branch L_p2_help')

    def dft_consumer(self):
        a = self.a
        ACC = 8
        MP, XP = 104, 152
        NP = 12
        a.label('L_dft_cons')
        self.ptrs(); self.late()
        a('s_sub_u32 s56, s%d, 4' % WAVE)
        a('s_setprio 1')
        a('v_and_b32 v208, 31, v0\nv_lshrrev_b32 v209, 5, v0\nv_bfe_u32 v210, v0, 1, 3\nv_xor_b32 v210, v210, v209')
        a('v_lshlrev_b32 v210, 4, v210\nv_lshl_add_u32 v210, v208, 7, v210')
        AM = [[211+4*k+u for u in range(4)] for k in range(3)]; AX = [2, 3, 4, 5]
        a('s_lshl_b32 s57, s56, 12\ns_add_u32 s57, s57, %d' % self.XFB)
        for u in range(4):
            a('v_xor_b32 v6, %d, v210' % (32*u))
            a('v_add_u32 v%d, s57, v6' % AX[u])
            for k in range(3): a('v_add_u32 v%d, %d, v6' % (AM[k][u], self.MB + 2*k*self.MSLOT))
        a('v_lshlrev_b32 v7, 2, v209\ns_mov_b32 s62, 0x3d000000')
        for k in range(16):
            r = 224 + k
            a('v_add_u32 v%d, %d, v7\nv_mul_u32_u24 v%d, v%d, v208\nv_and_b32 v%d, 31, v%d\nv_cvt_f32_u32 v%d, v%d\nv_mul_f32 v%d, s62, v%d' % (r, 8*(k>>2)+(k&3), r, r, r, r, r, r, r, r))
        if 'pf' in self.opt: a('s_waitcnt vmcnt(0)')
        for k in range(16):
            a('v_sin_f32 v%d, v%d\nv_cos_f32 v%d, v%d' % (240+k, 224+k, 224+k, 224+k))
        if 'dxt' in self.opt:
            a('s_lshl_b32 s57, s55, 1\ns_add_u32 s57, s57, s%d\ns_lshl_b32 s57, s57, 9\ns_lshl_b32 s58, s54, 2\ns_add_u32 s57, s57, s58\ns_add_u32 s57, s57, s56\ns_mul_i32 s57, s57, 1280' % HH)
            a('v_and_b32 v6, 7, v0\nv_mul_u32_u24 v6, 81920, v6\nv_lshrrev_b32 v162, 3, v0\nv_lshrrev_b32 v163, 2, v162\nv_add_u32 v162, v162, v163\nv_lshl_add_u32 v6, v162, 7, v6')
            a('buffer_load_dword v223, v6, %s, s57 offen offset:128' % s(S_X,4))
        a('s_lshl_b32 s57, s56, 7\ns_add_u32 s57, s57, %d' % self.DMISC)
        a('v_lshl_add_u32 v160, v209, 4, s57')
        a('v_mul_u32_u24 v161, %d, v208\nv_lshl_add_u32 v161, v209, 6, v161' % LROW)
        a('v_lshrrev_b32 v6, 3, v208\nv_add_u32 v6, s56, v6\nv_and_b32 v6, 3, v6\nv_lshl_add_u32 v161, v6, 2, v161')
        self.nonce()
        def accr(m): return ACC + 32*(m%3) + 16*(m//3)
        rd = []; need = []
        for c in range(5):
            for u in range(4):
                rd.append('ds_read_b128 %s, v%d offset:%d' % (v(XP+4*(u&1),4), AX[u], (c&1)*self.XFS))
                for m in range(6):
                    rd.append('ds_read_b128 %s, v%d offset:%d' % (v(MP+4*((6*u+m)%NP),4), AM[c>>1][u], (c&1)*self.MSLOT + m*4096))
                    need.append(len(rd)-1)
        RR = 168
        rr_reads = ['ds_read_b128 %s, v160 offset:%d' % (v(RR+4*k,4), 32*k) for k in range(4)]
        LA = 5
        a('s_barrier')
        self.stamp(1)
        for r in rd[:7]: a(r)
        issued = 7; done = 0
        a.align(3)
        for g in range(120):
            c, mu = divmod(g, 24); u, m = divmod(mu, 6)
            if mu == 21:
                a('s_waitcnt lgkmcnt(0)\ns_barrier'); done = issued
                self.stamp(5+c)
                if c < 4:
                    for _ in range(7): a(rd[issued]); issued += 1
                else:
                    for r in rr_reads: a(r)
            elif need[g] >= done:
                a('s_waitcnt lgkmcnt(%d)' % (issued - need[g] - 1)); done = need[g] + 1
            a('v_mfma_f32_32x32x16_bf16 %s, %s, %s, %s' % (v(accr(m),16), v(XP+4*(u&1),4), v(MP+4*(mu%NP),4), v(accr(m),16) if g >= 6 else '0'))
            if mu < 21:
                tgt = min(28*(c+1), need[g+1] + LA + 1)
                while issued < tgt: a(rd[issued]); issued += 1
        self.stamp(2)
        a.label('L_dc_epi')
        CC, SS, NS = 184, 192, 200
        a('s_waitcnt lgkmcnt(0)')
        for k in range(8):
            a('v_pk_mul_f32 %s, %s, %s' % (v(224+2*k,2), v(224+2*k,2), v(RR+2*k,2)))
            a('v_pk_mul_f32 %s, %s, %s' % (v(240+2*k,2), v(240+2*k,2), v(RR+2*k,2)))
        for k in range(8):
            a('v_cvt_pk_bf16_f32 v%d, v%d, v%d' % (CC+k, 224+2*k, 225+2*k))
            a('v_cvt_pk_bf16_f32 v%d, v%d, v%d' % (SS+k, 240+2*k, 241+2*k))
            a('v_xor_b32 v%d, 0x80008000, v%d' % (NS+k, SS+k))
        def zc(et):
            A0 = ACC + 32*et; Z = 104 + 16*et; o = []
            for k in range(8):
                o.append('v_cvt_pk_bf16_f32 v%d, v%d, v%d' % (Z+k, A0+2*k, A0+2*k+1))
                o.append('v_cvt_pk_bf16_f32 v%d, v%d, v%d' % (Z+8+k, A0+16+2*k, A0+16+2*k+1))
            return o
        for l in zc(0): a(l)
        a('s_nop 1')
        for et in range(3):
            A0 = ACC + 32*et; Z = 104 + 16*et
            RE, IM = A0, A0+16
            ms = [(RE,Z,CC,0),(IM,Z+8,CC,0),(RE,Z+4,CC+4,1),(IM,Z+12,CC+4,1),(RE,Z+8,SS,1),(IM,Z,NS,1),(RE,Z+12,SS+4,1),(IM,Z+4,NS+4,1)]
            fill = (zc(et+1) if et < 2 else ['s_nop 3']) + (self._dft_out(ACC + 32*(et-1), et-1) if et > 0 else [])
            per = -(-len(fill)//8)
            for i, (D, A_, B_, ac) in enumerate(ms):
                a('v_mfma_f32_32x32x16_bf16 %s, %s, %s, %s' % (v(D,16), v(A_,4), v(B_,4), v(D,16) if ac else '0'))
                for f in fill[per*i:per*i+per]: a(f)
            if et > 0: a('s_waitcnt lgkmcnt(0)\ns_barrier')
        a.nop(12)
        for f in self._dft_out(ACC + 64, 2): a(f)
        a('s_waitcnt lgkmcnt(0)\ns_barrier')
        a('s_setprio 0')
        self.stamp(3)
        a('s_waitcnt vmcnt(0)\ns_barrier')
        a('s_branch L_p2_mfma')
        a.label('L_dc_end')

    def _dft_out(self, A0, et):
        o = []
        for r in range(16):
            o.append('v_cvt_pk_bf16_f32 v%d, v%d, v%d' % (A0+r, A0+r, A0+16+r))
            o.append('ds_write_b32 v161, v%d offset:%d' % (A0+r, (32*et + 8*(r>>2) + (r&3))*16))
        return o

    TW, GV, XV = 232, 248, 228
    def p2_prep(self):
        a = self.a; TW, GV, XV = self.TW, self.GV, self.XV
        J, G_, A, B, C, D = 217, 218, 219, 220, 221, 222
        TM = 223
        a('s_and_b32 s41, s%d, 1\ns_lshr_b32 s42, s%d, 1' % (WAVE, WAVE))
        a('s_lshl_b32 s38, s%d, 9\ns_add_u32 s38, s38, 0x%x' % (T1, DFLAG))
        a('s_lshl_b32 s43, s41, 1\ns_add_u32 s44, s43, s42\ns_sub_u32 s43, s43, s42\ns_add_u32 s43, s43, 1')
        a('v_and_b32 v%d, 15, v0\nv_lshrrev_b32 v%d, 4, v0' % (J, G_))
        a('s_lshl_b32 s39, s44, 9\ns_add_u32 s39, s39, s%d\ns_mul_i32 s39, s39, 1280\ns_mul_i32 s53, s%d, 160\ns_add_u32 s39, s39, s53' % (T1, CS))
        a('s_mul_i32 s40, s%d, 3072\ns_add_u32 s40, s40, %d' % (WAVE, self.MISC + 4096))
        for m in range(3):
            a('v_add_u32 v%d, %d, v0\nv_min_u32 v%d, 159, v%d\nv_mul_u32_u24 v%d, 205, v%d\nv_lshrrev_b32 v%d, 11, v%d' % (A, 64*m, A, A, B, A, B, B))
            a('v_mul_u32_u24 v%d, %d, v%d\nv_lshl_add_u32 v%d, v%d, 4, v%d' % (B, 40960-160, B, XV+m, A, B))
        a('v_mul_u32_u24 v%d, 160, v%d\nv_and_b32 v%d, 1, v%d\nv_lshl_add_u32 v%d, v%d, 4, v%d\nv_add_u32 v%d, s40, v%d' % (A, J, B, G_, A, B, A, XV+3, A))
        a('s_lshr_b32 s45, s%d, 2\ns_lshl_b32 s47, s45, 31\ns_or_b32 s47, s47, 0x3a000000' % CS)
        a('s_mul_i32 s46, s45, 640\ns_lshl_b32 s45, s45, 1\ns_sub_u32 s45, 1, s45')
        a('s_mul_i32 s53, s%d, 80' % CS)
        a('v_mul_u32_u24 v%d, %d, v%d' % (D, 2*GBLK, G_))
        a('v_and_b32 v227, 7, v0\nv_bfe_u32 v%d, v0, 3, 1\nv_lshl_add_u32 v227, v227, 1, v%d' % (A, A))
        for n in range(5):
            a('v_add_u32 v%d, s53, v227\nv_add_u32 v%d, %d, v%d' % (A, A, 16*n, A))
            a('v_mul_lo_u32 v%d, v%d, s45\nv_add_u32 v%d, s46, v%d' % (A, A, A, A))
            a('v_and_b32 v%d, 1, v%d\nv_mul_u32_u24 v%d, %d, v%d\nv_add_u32 v%d, v%d, v%d' % (B, A, B, GBLK, B, B, B, D))
            a('v_lshrrev_b32 v%d, 1, v%d\nv_cmp_eq_u32 vcc, 160, v%d\ns_nop 1\nv_cndmask_b32 v%d, v%d, 0, vcc' % (C, A, C, C, C))
            a('v_lshl_add_u32 v%d, v%d, 4, v%d' % (GV+n, C, B))
            if n == 0:
                a('v_cmp_eq_u32 vcc, 0, v%d\nv_mov_b32 v%d, 0x%x\ns_nop 0\nv_cndmask_b32 v%d, v%d, v%d, vcc' % (A, C, OOB, GV, GV, C))
        a('s_mul_i32 s45, s45, s%d\ns_and_b32 s45, s45, 31' % T1)
        a('s_mul_i32 s36, s45, %d\ns_mul_i32 s37, s42, %d\ns_add_u32 s36, s36, s37\ns_add_u32 s36, s36, 0x%x\ns_add_u32 s37, s36, %d' % (GROW, 16*GBLK, G16, 8*GBLK))
        a('s_lshr_b32 s45, s45, 3')
        for t in range(2):
            a('s_lshl_b32 s53, s%d, 9\ns_add_u32 s53, s53, s%d\nv_lshl_add_u32 v%d, v%d, 5, s53' % (44 - t, T1, A+t, J))
        for i in range(4):
            a('s_sub_u32 s53, %d, s45\ns_and_b32 s53, s53, 3\ns_lshl_b32 s46, s42, 5\ns_add_u32 s53, s53, s46' % (i+4))
            a('v_lshl_add_u32 v%d, v%d, 2, s53\nv_add_u32 v%d, 16, v%d' % (C, G_, D, C))
            for t in range(2):
                for d in range(2):
                    r = TM + 2*d
                    a('v_mul_u32_u24 v%d, v%d, v%d' % (r, A+t, C+d))
                    a('v_and_b32 v%d, 2047, v%d\nv_cvt_f32_u32 v%d, v%d\nv_mul_f32 v%d, s47, v%d' % (r, r, r, r, r, r))
                    a('v_sin_f32 v%d, v%d\nv_cos_f32 v%d, v%d' % (r+1, r, r, r))
                a('s_nop 0')
                for d in range(2):
                    a('v_cvt_pk_bf16_f32 v%d, v%d, v%d' % (TW+(t*2+d)*4+i, TM+2*d, TM+2*d+1))

    def p2_help(self):
        a = self.a
        a.label('L_p2_help')
        if self.stage == 'p1':
            a('s_waitcnt vmcnt(0)'); self.dump_stamps(); a('s_endpgm'); return
        ACC, G, TW, OV, GV, XV = 16, 56, self.TW, self.OV, self.GV, self.XV
        def acc(t, n): return ACC + (t*5+n)*4
        a('s_and_b32 s56, s%d, 1\ns_lshr_b32 s57, s%d, 1\nv_lshlrev_b32 v1, 3, v0' % (WAVE, WAVE))
        for m in range(3):
            a('s_add_u32 m0, s40, %d\ns_nop 0\nbuffer_load_dwordx4 v%d, %s, s39 offen lds' % (1024*m, XV+m, s(S_X,4)))
        a('s_mul_i32 s61, s57, 71680\ns_mul_i32 s62, s56, 5120\ns_add_u32 s61, s61, s62\nv_add_u32 v6, s61, v2')
        a('s_mul_i32 s61, s56, 71680\ns_mul_i32 s62, s57, 15360\ns_add_u32 s62, s62, s61\ns_add_u32 s62, s62, 51200\nv_add_u32 v7, s62, v2')
        a('s_mul_i32 s62, s57, 5120\ns_sub_u32 s62, s61, s62\ns_add_u32 s62, s62, 61440\nv_add_u32 v8, s62, v2')
        a('s_waitcnt vmcnt(0)')
        self.stamp(5)
        for n in range(5): a('ds_read_b128 %s, v%d offset:%d' % (v(96+4*n,4), XV+3, 32*n))
        if 'nos' not in self.opt:
            a('s_cmp_ge_u32 s%d, 24\ns_cbranch_scc1 L_p2_sx\nv_mov_b32 v12, %d\ns_mov_b32 s53, 0' % (IDX, self.MISC + 3072))
            a.label('L_p2_sq')
            a('ds_read_b32 v13, v12\ns_add_u32 s53, s53, 1\ns_cmp_gt_u32 s53, 0x%x\ns_cbranch_scc1 L_p2_sx\ns_waitcnt lgkmcnt(0)' % SPIN_MAX)
            a('v_cmp_ne_u32 vcc, 4, v13\ns_cbranch_vccz L_p2_sx\ns_sleep 1\ns_branch L_p2_sq')
            a.label('L_p2_sx')
        self.spin('L_p2_pd', 1, 254, 's38', 8)
        self.stamp(6)
        for d in range(2):
            for n in range(5):
                a('buffer_load_dwordx4 %s, v%d, %s, s%d offen %s' % (v(G+(d*5+n)*4,4), GV+n, s(S_WS,4), 36+d, self.bf))
        a('s_waitcnt lgkmcnt(0)')
        a('v_lshrrev_b32 v9, 5, v0\nv_lshlrev_b32 v9, 4, v9\nv_sub_u32 v9, 16, v9')
        for k in range(20):
            a('v_lshlrev_b32 v%d, v9, v%d\nv_and_b32 v%d, 0xffff0000, v%d' % (96+k, 96+k, acc(0,0)+k, 96+k))
        self.stamp(7)
        a('s_barrier')
        self.stamp(8)
        a('s_waitcnt vmcnt(0)')
        for d in range(2):
            for n in range(5):
                for t in range(2):
                    a('v_mfma_f32_16x16x32_bf16 %s, %s, %s, %s' % (v(acc(t,n),4), v(G+(d*5+n)*4,4), v(TW+(t*2+d)*4,4), v(acc(t,n),4) if (t == 0 or d) else '0'))
        w = ['ds_write_b128 v6, %s offset:%d' % (v(OV+4*g,4), (g//5)*10240 + (g%5)*1024) for g in range(25)]
        w += ['ds_write_b128 v%d, %s offset:%d' % (7+t, v(acc(t,n),4), n*1024) for t in range(2) for n in range(5)]
        for lo, hi in ((0,8),(8,16),(16,24),(24,30),(30,35)):
            a('s_barrier')
            for l in w[lo:hi]: a(l)
            a('s_waitcnt lgkmcnt(0)')
        a('s_barrier')
        a('s_or_b32 s53, s2, s%d\ns_cmp_eq_u32 s53, 0\ns_cbranch_scc0 L_ph_x' % WAVE)
        a('v_mov_b32 v2, 0x%x' % EPOCH)
        self.setflag(2, 4)
        a.label('L_ph_x')
        self.dump_stamps()
        a('s_endpgm')

    def p2_mfma(self):
        a = self.a
        a.label('L_p2_mfma')
        if self.stage == 'p1':
            self.dump_stamps(); a('s_endpgm'); return
        ACC, WB, H = 16, 56, 136
        NH, NWB = 14, 4
        def acc(t, n): return ACC + (t*5+n)*4
        a('s_setprio %s' % self.val.get('mp', '1'))
        a('s_and_b32 s56, s%d, 1\ns_bfe_u32 s57, s%d, 0x10001\nv_lshlrev_b32 v2, 4, v0' % (WAVE, WAVE))
        self.p2_coords()
        a('s_lshl_b32 s58, s56, 1\ns_add_u32 s59, s58, s57\ns_sub_u32 s58, s58, s57\ns_add_u32 s58, s58, 1')
        a('s_lshl_b32 s61, s%d, 2\ns_add_u32 s62, s61, s59\ns_mul_i32 s62, s62, 49152\nv_add_u32 v6, s62, v2' % T1)
        a('s_add_u32 s62, s61, s58\ns_mul_i32 s62, s62, 49152\nv_add_u32 v7, s62, v2')
        a('s_mul_i32 s62, s57, 24\ns_sub_u32 s62, s62, s76\ns_lshl_b32 s62, s62, 10\ns_add_u32 s63, s62, 0x%x\ns_add_u32 s62, s62, 0x%x' % (HF, HF + 24576))
        a('s_mul_i32 s61, s57, 71680\nv_add_u32 v3, s61, v2\nv_add_u32 v4, 0xc800, v3')
        a('s_lshl_b32 s60, s59, 9\ns_add_u32 s60, s60, s%d\ns_mul_i32 s60, s60, 1280\ns_mul_i32 s61, s%d, 160\ns_add_u32 s60, s60, s61' % (T1, CS))
        a('s_and_b32 s74, s%d, 3\ns_xor_b32 s73, s74, 2\ns_mul_i32 s73, s73, 5120\ns_add_u32 s73, s73, 143360' % WAVE)
        a('s_mul_i32 s74, s74, 5120\ns_add_u32 s74, s74, 143360')
        for m in range(3):
            a('v_add_u32 v8, %d, v0\nv_mul_u32_u24 v9, 205, v8\nv_lshrrev_b32 v9, 11, v9' % (64*m))
            a('v_mul_u32_u24 v%d, 10, v9\nv_sub_u32 v8, v8, v%d\nv_lshlrev_b32 v8, 4, v8' % (10+m, 10+m))
            a('v_mul_u32_u24 v%d, 40960, v9\nv_add_u32 v%d, v%d, v8' % (10+m, 10+m, 10+m))
            a('v_mul_u32_u24 v9, 176, v9\nv_add3_u32 v%d, v9, v8, s74' % (13+m))
        a('v_cmp_gt_u32 vcc, 32, v0\nv_mov_b32 v8, 0x%x\ns_nop 0\nv_cndmask_b32 v12, v8, v12, vcc' % OOB)
        a('v_and_b32 v8, 15, v0\nv_mul_u32_u24 v8, 176, v8\nv_bfe_u32 v9, v0, 4, 1\nv_lshl_add_u32 v8, v9, 4, v8\nv_lshrrev_b32 v9, 5, v0\nv_lshl_add_u32 v8, v9, 3, v8\nv_add_u32 v8, s74, v8')
        a('v_add_u32 v9, s73, v2\nv_add_u32 v5, s74, v2')
        a('s_mul_i32 s61, s56, 71680\ns_mul_i32 s53, s57, 10240\ns_add_u32 s61, s61, s53\ns_add_u32 s61, s61, 51200\nv_add_u32 v1, s61, v2')
        hf = self.val.get('hf', 'p')
        k_ = {'p': 1, 'w': 4, 'l': 16}[hf]
        a('s_lshr_b32 s64, s%d, 1\ns_mul_i32 s64, s64, %d\ns_mul_i32 s65, s57, %d\ns_add_u32 s64, s64, s65\ns_add_u32 s64, s64, 0x%x' % (T1, 512*k_, 192*k_, 0 if hf == 'p' else 0xa0000))
        a('v_min_u32 v250, 23, v0\ns_mov_b32 s66, -1')
        if hf == 'w': a('v_and_b32 v251, 3, v250\nv_lshrrev_b32 v250, 2, v250\nv_lshlrev_b32 v250, 7, v250\nv_lshl_add_u32 v250, v251, 3, v250')
        else: a('v_lshlrev_b32 v250, %d, v250' % (3 if hf == 'p' else 7))
        if 'p0late' not in self.opt: a('s_barrier')
        self.stamp(7)
        vm = VM(a)
        late = []
        NG = int(self.val.get('ng', 1))
        def ensure(g, first=False):
            mask = (0xF << 4*g) if not first else (1 << 4*NG) - 1
            L = 'L_en%d' % g
            a('s_and_b32 s67, s66, 0x%x\ns_cbranch_scc1 %s' % (mask, L))
            a.label(L + '_r')
            late.append((L, mask))
        def hload(j):
            if j % 4 == 0 and (j == 0 or j//4 >= NG): ensure(j//4, j == 0)
            if j == 0: self.stamp(8)
            a('s_cmp_le_u32 s76, %d\ns_cselect_b32 s61, s63, s62\ns_add_u32 s61, s61, %d' % (j, j*1024))
            for t in range(2):
                vm.op('buffer_load_dwordx4 %s, v%d, %s, s61 offen %s' % (v(H+(j%NH)*8+4*t,4), 6+t, s(S_WS,4), self.bf), j)
        def wread(j):
            sl = j if j < 14 else j - 14
            return ['ds_read_b128 %s, v%d offset:%d' % (v(WB+(j%NWB)*20+4*n,4), 3 if sl < 10 else 4, (sl if sl < 10 else sl-10)*5120 + n*1024) for n in range(5)]
        PRE = int(self.val.get('hpre', self.h_pre))
        for j in range(PRE): hload(j)
        if 'p0late' in self.opt: a('s_barrier')
        for j in range(2):
            for r in wread(j): a(r)
        nxt = PRE
        for j in range(24):
            vm.wait(j, 'lgkmcnt(%d)' % (5 if j < 23 else 0))
            if j in (0, 4, 9, 17): self.stamp({0: 9, 4: 10, 9: 11, 17: 12}[j])
            if j in (3, 7, 11, 15, 19): a('s_barrier')
            rd = wread(j+2) if j < 22 else []
            k = 0
            for n in range(5):
                for t in range(2):
                    a('v_mfma_f32_16x16x32_bf16 %s, %s, %s, %s' % (v(acc(t,n),4), v(WB+(j%NWB)*20+4*n,4), v(H+(j%NH)*8+4*t,4), v(acc(t,n),4) if j else '0'))
                    if k < len(rd): a(rd[k]); k += 1
                    elif k in (5, 7) and nxt < 24 and nxt < j + NH and (k == 5 or nxt <= j + NH - 2):
                        hload(nxt); nxt += 1; k += 1
                    else: k += 1
        assert nxt == 24
        self.stamp(13)
        a.nop(7)
        for n in range(5): a('ds_write_b128 v9, %s offset:%d' % (v(acc(1,n),4), n*1024))
        a('s_waitcnt lgkmcnt(0)\ns_barrier')
        for n in range(5):
            a('ds_read_b128 %s, v1 offset:%d' % (v(WB+12*n,4), n*1024))
            a('ds_read_b128 %s, v1 offset:%d' % (v(WB+12*n+4,4), 5120 + n*1024))
            a('ds_read_b128 %s, v5 offset:%d' % (v(WB+12*n+8,4), n*1024))
        for n in range(5):
            a('s_waitcnt lgkmcnt(%d)' % (12-2*n))
            for k in range(2):
                a('v_pk_add_f32 %s, %s, %s' % (v(WB+12*n+2*k,2), v(WB+12*n+2*k,2), v(WB+12*n+4+2*k,2)))
                a('v_pk_add_f32 %s, %s, %s' % (v(acc(0,n)+2*k,2), v(acc(0,n)+2*k,2), v(WB+12*n+8+2*k,2)))
            for k in range(2): a('v_pk_add_f32 %s, %s, %s' % (v(acc(0,n)+2*k,2), v(acc(0,n)+2*k,2), v(WB+12*n+2*k,2)))
            a('s_nop 1')
            for k in range(2): a('v_permlane32_swap_b32 v%d, v%d' % (acc(0,n)+k, acc(0,n)+2+k))
            for k in range(2): a('v_cvt_pk_bf16_f32 v%d, v%d, v%d' % (acc(1,n)+k, acc(0,n)+k, acc(0,n)+2+k))
            a('ds_write_b64 v8, %s offset:%d' % (v(acc(1,n),2), 32*n))
        a('s_waitcnt lgkmcnt(0)')
        for m in range(3): a('ds_read_b128 %s, v%d' % (v(WB+4*m,4), 13+m))
        for m in range(3):
            a('s_waitcnt lgkmcnt(%d)' % (2-m))
            a('buffer_store_dwordx4 %s, v%d, %s, s60 offen %s' % (v(WB+4*m,4), 10+m, s(S_OUT,4), self.val.get('of', '').replace('+', ' ')))
        if self.stamps: a('s_waitcnt vmcnt(0)')
        self.dump_stamps()
        a('s_endpgm')
        for L, mask in late:
            a.label(L)
            a('s_mov_b32 s53, 0')
            a.label(L + '_l')
            a('buffer_load_dwordx2 v[254:255], v250, %s, s64 offen sc1' % s(S_WS,4))
            a('s_add_u32 s53, s53, 1\ns_cmp_gt_u32 s53, 0x%x\ns_cbranch_scc1 %s_r\ns_waitcnt vmcnt(0)' % (SPIN_MAX, L))
            a('v_cmp_ne_u64 vcc, s[12:13], v[254:255]\ns_nop 1\ns_mov_b32 s66, vcc_lo\ns_and_b32 s67, s66, 0x%x\ns_cbranch_scc0 %s_r' % (mask, L))
            a('s_sleep %s\ns_branch %s_l' % (self.val.get('hs', '1'), L))

    h_pre = 10

    def build(self, header):
        a = self.a
        self.prologue()
        self.ffn_wloader(); self.ffn_xloader(); self.dft_loader()
        self.dft_consumer(); self.ffn_consumer()
        self.p2_help(); self.p2_mfma()
        a.label('L_end')
        a('s_endpgm')
        errs = check(a.lines)
        for e in errs: print(e, file=sys.stderr)
        txt = header + '; @launch grid=(256,1,1) block=(512,1,1) lds=163840\n' + DOC
        txt += '.amdgcn_target "amdgcn-amd-amdhsa--gfx950"\n.text\n.globl %s\n.p2align 8\n.type %s,@function\n%s:\n' % (KN, KN, KN)
        txt += a.text()
        txt += '''.section .rodata,"a"
.p2align 6
.amdhsa_kernel %s
  .amdhsa_next_free_vgpr 256
  .amdhsa_next_free_sgpr 102
  .amdhsa_accum_offset 256
  .amdhsa_group_segment_fixed_size 0
  .amdhsa_kernarg_size 96
  .amdhsa_user_sgpr_count 2
  .amdhsa_user_sgpr_kernarg_segment_ptr 1
  .amdhsa_system_sgpr_workgroup_id_x 1
.end_amdhsa_kernel
''' % KN
        return txt, errs

if __name__ == '__main__':
    import argparse
    ap = argparse.ArgumentParser()
    ap.add_argument('-o', default='k.s'); ap.add_argument('--stage', default='full'); ap.add_argument('--stamps', action='store_true'); ap.add_argument('--opt', default='')
    args = ap.parse_args()
    ref = open('parallel_sum__spectral_fnet__swiglu_ffn__prompt.s.ref').read()
    header = ''.join(l + '\n' for l in ref.split('\n') if l.startswith(';') and '@launch' not in l and 'Override launch' not in l and 'grid=ceil' not in l)
    txt, errs = Gen(args.stage, args.stamps, [o for o in args.opt.split(',') if o]).build(header)
    open(args.o, 'w').write(txt)
    print('written', args.o, 'hazard errors:', len(errs))
```
